```python
import torch

def _softmax(x, axis=-1):
    return torch.softmax(x, dim=axis)
def _gelu(x):
    return torch.nn.functional.gelu(x, approximate="tanh")
def _silu(x):
    return torch.nn.functional.silu(x)
def _sigmoid(x):
    return torch.sigmoid(x)
def _layernorm(x, axis=-1, eps=1e-5):
    m = x.mean(dim=axis, keepdim=True)
    v = x.var(dim=axis, keepdim=True, unbiased=False)
    return (x - m) / torch.sqrt(v + eps)
def _scatter_add(tgt, idx, src, axis=0):
    return tgt.clone().index_add_(axis, idx, src)
def _segment_sum(src, seg, n):
    out = torch.zeros((n,) + src.shape[1:], dtype=src.dtype)
    return out.index_add_(0, seg, src)
def _pad(x, pw):
    flat = tuple(v for pair in reversed(pw) for v in pair)
    return torch.nn.functional.pad(x, flat)

kernel_name = 'parallel_sum__ssm_conv_s5__mixer_channel_mlp__prompt'

def setup_inputs():

    _w = (lambda a: (lambda t: t.to(torch.bfloat16) if t.is_floating_point() else t)(torch.as_tensor(a)))
    def _A_setup():
        B, S, D = 1, 2048, 448
        P = D
        Lambda_re = -0.5 * (lambda _x: torch.exp(torch.as_tensor(_x)))((lambda *s: torch.randn(*s, dtype=torch.bfloat16) * 0.2)(P))
        Lambda_im = (lambda *s: torch.randn(*s, dtype=torch.bfloat16) * 0.8)(P) * 1.0
        B_re = (lambda *s: torch.randn(*s, dtype=torch.bfloat16) * 0.2)(P, D) * (D ** -0.5)
        B_im = (lambda *s: torch.randn(*s, dtype=torch.bfloat16) * 0.2)(P, D) * (D ** -0.5)
        C_re = (lambda *s: torch.randn(*s, dtype=torch.bfloat16) * 0.2)(D, P) * (P ** -0.5)
        C_im = (lambda *s: torch.randn(*s, dtype=torch.bfloat16) * 0.2)(D, P) * (P ** -0.5)
        log_dt = (lambda *s: torch.randn(*s, dtype=torch.bfloat16) * 0.2)(P) * 0.3 - 2.0
        Dskip = (lambda *s: torch.randn(*s, dtype=torch.bfloat16) * 0.05)(D)
        return {
            "x": _w((lambda *s: torch.randn(*s, dtype=torch.bfloat16) * 0.05)(B, S, D)),
            "Lambda_re": _w(Lambda_re),
            "Lambda_im": _w(Lambda_im),
            "B_re": _w(B_re),
            "B_im": _w(B_im),
            "C_re": _w(C_re),
            "C_im": _w(C_im),
            "log_dt": _w(log_dt),
            "Dskip": _w(Dskip),
        }
    _A_in = _A_setup()

    def _B_setup():
        B, S, D, F = 1, 2048, 448, 1792
        return {
            "x": _w((lambda *s: torch.randn(*s, dtype=torch.bfloat16) * 0.05)(B, S, D)),
            "w1": _w((lambda *s: torch.randn(*s, dtype=torch.bfloat16) * 1.6)(D, F) * (D ** -0.5)),
            "b1": _w((lambda *s: torch.randn(*s, dtype=torch.bfloat16) * 0.8)(F)),
            "w2": _w((lambda *s: torch.randn(*s, dtype=torch.bfloat16) * 0.05)(F, D) * (F ** -0.5)),
            "b2": _w((lambda *s: torch.randn(*s, dtype=torch.bfloat16) * 0.05)(D)),
        }
    _B_in = _B_setup()

    return {
        "A_x": _A_in["x"],
        "A_Lambda_re": _A_in["Lambda_re"],
        "A_Lambda_im": _A_in["Lambda_im"],
        "A_B_re": _A_in["B_re"],
        "A_B_im": _A_in["B_im"],
        "A_C_re": _A_in["C_re"],
        "A_C_im": _A_in["C_im"],
        "A_log_dt": _A_in["log_dt"],
        "A_Dskip": _A_in["Dskip"],
        "B_x": _B_in["x"],
        "B_w1": _B_in["w1"],
        "B_b1": _B_in["b1"],
        "B_w2": _B_in["w2"],
        "B_b2": _B_in["b2"],
    }

def reference(A_x, A_Lambda_re, A_Lambda_im, A_B_re, A_B_im, A_C_re, A_C_im, A_log_dt, A_Dskip, B_x, B_w1, B_b1, B_w2, B_b2):
    def _A_ref(x, Lambda_re, Lambda_im, B_re, B_im, C_re, C_im, log_dt, Dskip):
        Bsz, L, H = x.shape
        Lam = Lambda_re + 1j * Lambda_im
        Bmat = B_re + 1j * B_im
        Cmat = C_re + 1j * C_im
        dt = torch.exp(log_dt)
        Lam_bar = torch.exp(dt * Lam)
        B_bar = ((Lam_bar - 1.0) / Lam)[:, None] * Bmat
        Bu = torch.einsum("bld,pd->blp", x + 0j, B_bar)
        h = torch.zeros_like(Bu[:, 0, :])
        hs = []
        for t in range(L):
            h = Lam_bar[None, :] * h + Bu[:, t, :]
            hs.append(h)
        hseq = torch.stack(hs, 1)
        y = 2.0 * torch.einsum("blp,dp->bld", hseq, Cmat).real + x * Dskip[None, None, :]
        return y

    def _B_ref(x, w1, b1, w2, b2):
        y = _layernorm(x, axis=-1)
        h = _gelu(torch.einsum("bsd,df->bsf", y, w1) + b1)
        return torch.einsum("bsf,fd->bsd", h, w2) + b2

    x = A_x
    xn = _layernorm(x, axis=-1)
    return x + _A_ref(xn, A_Lambda_re, A_Lambda_im, A_B_re, A_B_im, A_C_re, A_C_im, A_log_dt, A_Dskip) + _B_ref(xn, B_w1, B_b1, B_w2, B_b2)
```

```python
import re

_REG = re.compile(r'^(-|\|)?(abs\()?([vsa])(\d+|\[(\d+):(\d+)\])\)?\|?$')


def regs_of(tok):
    tok = tok.strip()
    if tok in ('vcc', 'vcc_lo', 'vcc_hi'):
        return [('s', 'vcc')]
    if tok == 'exec':
        return [('s', 'exec')]
    if tok == 'm0':
        return [('s', 'm0')]
    m = _REG.match(tok)
    if not m:
        return []
    cls = m.group(3)
    if m.group(5) is not None:
        return [(cls, i) for i in range(int(m.group(5)), int(m.group(6)) + 1)]
    return [(cls, int(m.group(4)))]


TRANS = ('v_exp_f32', 'v_log_f32', 'v_rcp_f32', 'v_rsq_f32', 'v_sqrt_f32', 'v_sin_f32', 'v_cos_f32')


class Ins:
    __slots__ = ('text', 'op', 'kind', 'dst', 'src', 'A', 'B', 'C', 'passes', 'dpp', 'lds_dma', 'states', 'wide_store', 'size', 'store_data')

    def __init__(self, text):
        self.text = text
        t = text.split(';')[0].strip()
        parts = t.split(None, 1)
        self.op = parts[0]
        rest = parts[1] if len(parts) > 1 else ''
        ops = []
        depth = 0
        cur = ''
        for ch in rest:
            if ch == '[':
                depth += 1
            if ch == ']':
                depth -= 1
            if ch == ',' and depth == 0:
                ops.append(cur.strip())
                cur = ''
            else:
                cur += ch
        if cur.strip():
            ops.append(cur.strip())
        mods = ''
        if ops:
            sp = ops[-1].split(None, 1)
            ops[-1] = sp[0]
            mods = sp[1] if len(sp) > 1 else ''
        op = self.op
        self.kind = 'other'
        self.dst = []
        self.src = []
        self.A = self.B = self.C = []
        self.passes = 0
        self.dpp = ('_dpp' in op) or ('quad_perm' in mods) or ('row_' in mods)
        self.lds_dma = False
        self.states = 1
        self.wide_store = False
        base = op.replace('_e32', '').replace('_e64', '').replace('_dpp', '').replace('_sdwa', '')
        R = regs_of
        if op == 's_nop':
            self.kind = 'nop'
            self.states = int(ops[0], 0) + 1
        elif op.startswith('v_mfma'):
            self.kind = 'mfma'
            self.dst = R(ops[0])
            self.A = R(ops[1])
            self.B = R(ops[2])
            self.C = R(ops[3])
            self.src = self.A + self.B + self.C
            self.passes = 8 if '32x32x16' in op else 4
        elif op.startswith('v_cmp'):
            self.kind = 'valu'
            self.dst = R(ops[0])
            self.src = sum((R(o) for o in ops[1:]), [])
        elif op.startswith('v_readfirstlane') or op.startswith('v_readlane'):
            self.kind = 'valu'
            self.dst = R(ops[0])
            self.src = sum((R(o) for o in ops[1:]), [])
        elif op.startswith('v_permlane'):
            self.kind = 'valu'
            self.dst = R(ops[0]) + R(ops[1])
            self.src = R(ops[0]) + R(ops[1])
        elif op.startswith('v_'):
            self.kind = 'trans' if base in TRANS else 'valu'
            self.dst = R(ops[0])
            self.src = sum((R(o) for o in ops[1:]), [])
            if base in ('v_fmac_f32', 'v_dot2c_f32_bf16', 'v_mac_f32') or 'd16' in base:
                self.src += self.dst
            if base == 'v_cndmask_b32' and len(ops) == 3:
                self.src += [('s', 'vcc')]
            if base in ('v_add_co_u32', 'v_addc_co_u32'):
                self.dst += R(ops[1])
        elif op.startswith('ds_read') or op.startswith('ds_bpermute') or op.startswith('ds_swizzle'):
            self.kind = 'ds'
            self.dst = R(ops[0])
            self.src = sum((R(o) for o in ops[1:]), [])
        elif op.startswith('ds_add_rtn'):
            self.kind = 'ds'
            self.dst = R(ops[0])
            self.src = sum((R(o) for o in ops[1:]), [])
        elif op.startswith('ds_'):
            self.kind = 'ds'
            self.src = sum((R(o) for o in ops), [])
        elif op.startswith('buffer_load') or op.startswith('global_load'):
            self.kind = 'vmem'
            if ' lds' in (' ' + mods) or mods.endswith('lds') or 'global_load_lds' in op:
                self.lds_dma = True
                self.src = sum((R(o) for o in ops), []) + [('s', 'm0')]
            else:
                self.dst = R(ops[0])
                self.src = sum((R(o) for o in ops[1:]), [])
                if 'd16' in op:
                    self.src += self.dst
        elif op.startswith('buffer_store') or op.startswith('global_store') or op.startswith('buffer_atomic') or op.startswith('global_atomic'):
            self.kind = 'vmem'
            self.src = sum((R(o) for o in ops), [])
            if 'x4' in op or 'x3' in op:
                self.wide_store = True
                self.store_data = None
            if 'atomic' in op and 'sc0' in mods:
                self.dst = R(ops[0])
        elif op.startswith('s_load') or op.startswith('s_memtime') or op.startswith('s_memrealtime'):
            self.kind = 'smem'
            self.dst = R(ops[0])
            self.src = sum((R(o) for o in ops[1:]), [])
        elif op.startswith('s_waitcnt') or op in ('s_barrier', 's_sleep', 's_setprio', 's_endpgm') or op.startswith('s_cbranch') or op == 's_branch':
            self.kind = 'sctl'
        elif op.startswith('s_cmp') or op.startswith('s_bitcmp'):
            self.kind = 'salu'
            self.src = sum((R(o) for o in ops), [])
        elif op.startswith('s_'):
            self.kind = 'salu'
            self.dst = R(ops[0])
            self.src = sum((R(o) for o in ops[1:]), [])
            if 'saveexec' in op:
                self.dst += [('s', 'exec')]


def need_states(prev, cur, prev_ops_data=None):
    n = 0
    pd = set(prev.dst)
    if not pd and prev.kind != 'mfma' and not prev.wide_store:
        return 0
    cs = set(cur.src)
    cd = set(cur.dst)
    valu_prev = prev.kind in ('valu', 'trans')
    valu_cur = cur.kind in ('valu', 'trans')
    pv = {r for r in pd if r[0] == 'v'}
    ps = {r for r in pd if r[0] == 's'}
    if valu_prev:
        if cur.kind == 'mfma' and pv & cs:
            n = max(n, 2)
        if valu_cur and cur.dpp and pv & cs:
            n = max(n, 2)
        if cur.op.startswith('v_readfirstlane') or cur.op.startswith('v_readlane'):
            if pv & cs:
                n = max(n, 1)
        if cur.op.startswith('v_permlane') and pv & cs:
            n = max(n, 2)
        if prev.kind == 'trans' and valu_cur and pv & cs:
            n = max(n, 1)
        if ps:
            if valu_cur and ps & cs:
                n = max(n, 2)
            if cur.kind == 'vmem' and ps & cs:
                n = max(n, 5)
            if cur.kind in ('salu', 'smem') and ps & cs:
                n = max(n, 3)
            if ('s', 'exec') in ps and (cur.kind == 'mfma'):
                n = max(n, 4)
            if ('s', 'exec') in ps and valu_cur and cur.dpp:
                n = max(n, 5)
    if prev.op.startswith('v_dot2') and (valu_cur or cur.kind in ('vmem', 'ds', 'mfma')):
        if pv & (cs | cd):
            if not (cur.op == prev.op and set(cur.dst) == pd):
                n = max(n, 3)
    if prev.kind == 'salu':
        if ('s', 'm0') in ps and cur.lds_dma:
            n = max(n, 1)
        if ('s', 'exec') in ps and valu_cur and cur.dpp:
            n = max(n, 5)
    if prev.kind == 'mfma':
        p = prev.passes
        D = set(prev.dst)
        if cur.kind == 'mfma':
            if D & (set(cur.A) | set(cur.B)):
                n = max(n, 8 if p == 4 else 12)
            c = set(cur.C)
            if D & c:
                if c == D and cur.passes == p:
                    pass
                else:
                    n = max(n, 6 if p == 4 else 10)
            if (D & cd) and not (cd == D and cur.passes == p):
                n = max(n, 6 if p == 4 else 10)
        else:
            if valu_cur and (D & (cs | cd)):
                n = max(n, 8 if p == 4 else 12)
            if cur.kind in ('vmem', 'ds') and (D & (cs | cd)):
                n = max(n, 8 if p == 4 else 12)
            if valu_cur and (set(prev.C) & cd):
                n = max(n, 3 if p == 4 else 7)
    if prev.wide_store and (valu_cur or cur.kind in ('ds', 'vmem')):
        sv = {r for r in prev.src if r[0] == 'v'}
        if sv & cd:
            n = max(n, 2)
    return n


class Asm:
    def __init__(self):
        self.items = []
        self.vm = []
        self.lg = []

    def __call__(self, text):
        for line in text.split('\n'):
            line = line.strip()
            if not line:
                continue
            if line.startswith(';'):
                self.items.append(('raw', line))
            elif line.endswith(':'):
                self.items.append(('label', line[:-1]))
            elif line.startswith('.'):
                self.items.append(('raw', line))
            else:
                self.items.append(('ins', Ins(line)))

    def label(self, name):
        self.items.append(('label', name))

    def comment(self, c):
        self.items.append(('raw', '; ' + c))

    def vmem(self, text, tag=None):
        self(text)
        self.vm.append(tag)

    def lds(self, text, tag=None):
        self(text)
        self.lg.append(tag)
        assert len(self.lg) <= 15, ("too many LDS ops in flight", text)

    def wait_vm(self, tag, extra_lg=None):
        idx = max((i for i, t in enumerate(self.vm) if t == tag), default=None)
        if idx is None:
            return False
        n = len(self.vm) - 1 - idx
        assert n <= 63, n
        self(f"s_waitcnt vmcnt({n})")
        self.vm = self.vm[idx + 1:]
        return True

    def wait_vm_all(self):
        self("s_waitcnt vmcnt(0)")
        self.vm = []

    def wait_lg(self, tag):
        idx = max((i for i, t in enumerate(self.lg) if t == tag), default=None)
        if idx is None:
            return False
        n = len(self.lg) - 1 - idx
        if n > 15:
            n = 15
            raise AssertionError("lgkmcnt overflow")
        self(f"s_waitcnt lgkmcnt({n})")
        self.lg = self.lg[idx + 1:]
        return True

    def wait_lg_all(self):
        self("s_waitcnt lgkmcnt(0)")
        self.lg = []

    def text(self, pad=True):
        out = []
        window = []
        npad = 0
        for kind, it in self.items:
            if kind == 'raw':
                out.append(it)
                continue
            if kind == 'label':
                out.append(it + ':')
                continue
            ins = it
            if pad:
                need = 0
                dist = 0
                for prev in reversed(window):
                    r = need_states(prev, ins)
                    if r > dist:
                        need = max(need, r - dist)
                    dist += prev.states
                    if dist >= 20:
                        break
                while need > 0:
                    k = min(need, 16)
                    nop = Ins(f"s_nop {k-1}")
                    out.append("    " + nop.text)
                    window.append(nop)
                    need -= k
                    npad += 1
            out.append("    " + ins.text)
            window.append(ins)
            if len(window) > 40:
                window = window[-30:]
        self.npad = npad
        return "\n".join(out) + "\n"
```

```python
import sys
from asmlib import Asm

KNAME = "parallel_sum__ssm_conv_s5__mixer_channel_mlp__prompt"

Y = 0
Q = 57344
P = 106496
RING = 12288
MISC = 155648
S2T = MISC
M2T = MISC + 256
SCR = MISC + 512
CNT = MISC + 2560
LDS_BYTES = 163840
EBUF = 0
STATS = 0x20000
PBUF = 0x100000
WS_SIZE = 0x1000000
OOB = 0x7ff00000

sSL, sRB, sWV = 38, 39, 40
sRING, sT, sT2, sBASE, sBASE2 = 41, 42, 43, 76, 77
SX, SA, SW2, SCR_, SCI, SBI, SWS, SDBG = 44, 48, 52, 56, 60, 64, 68, 72
sRING3 = 78
sCB = 79
sW2B = 80
sTMP = 82

LOG2E = 1.4426950408889634


def fhex(x):
    import struct
    return "0x%08x" % struct.unpack("<I", struct.pack("<f", x))[0]


def srd(a, dst, ptr, size):
    a(f"s_mov_b32 s{dst}, s{ptr}")
    a(f"s_mov_b32 s{dst+1}, s{ptr+1}")
    a(f"s_mov_b32 s{dst+2}, {size}")
    a(f"s_mov_b32 s{dst+3}, 0x20000")


def vr(b, n):
    return f"v[{b}:{b+n-1}]" if n > 1 else f"v{b}"


class Stream:
    def __init__(self, a, items, first_index=0):
        self.a = a
        self.items = items
        self.first = first_index
        self.next = 0

    def slot(self, i):
        return (self.first + i) % 6

    def issue(self, upto):
        a = self.a
        while self.next < min(upto, len(self.items)):
            it = self.items[self.next]
            sl = self.slot(self.next)
            a(f"s_add_u32 m0, s{it['ring']}, {sl*2048}")
            a(f"s_add_u32 s{sT}, s{it['sbase']}, {it['off']}")
            a.vmem(f"buffer_load_dwordx4 v{it['va']}, s[{it['srd']}:{it['srd']+3}], s{sT} offen lds", ('st', self.first + self.next))
            a.vmem(f"buffer_load_dwordx4 v{it['vb']}, s[{it['srd']}:{it['srd']+3}], s{sT} offen offset:1024 lds", ('st', self.first + self.next))
            self.next += 1

    def wait(self, i):
        self.a.wait_vm(('st', self.first + i))


def bf16_round(a, dst, src):
    a(f"v_cvt_pk_bf16_f32 v{dst}, v{src}, v{src}")
    a(f"v_lshlrev_b32 v{dst}, 16, v{dst}")


def gen_k1(opt):
    a = Asm()
    dbg = opt.get('dbg', '')
    K = f"{KNAME}_kernel" if opt.get('single') else "k1_kernel"
    a(f"s_cmp_ge_u32 s2, 256")
    a("s_cbranch_scc1 K1_END")
    a(f"s_and_b32 s{sSL}, s2, 7")
    a(f"s_cmp_eq_u32 s{sSL}, 7")
    a("s_cbranch_scc1 K1_END")
    a("s_load_dwordx16 s[4:19], s[0:1], 0")
    a("s_load_dwordx16 s[20:35], s[0:1], 64")
    a("s_load_dwordx2 s[36:37], s[0:1], 128")
    a(f"s_lshr_b32 s{sRB}, s2, 3")
    a("v_lshrrev_b32 v2, 6, v0")
    a("v_and_b32 v1, 63, v0")
    a(f"v_readfirstlane_b32 s{sWV}, v2")
    a("v_lshrrev_b32 v3, 3, v1")
    a("v_and_b32 v4, 7, v1")
    a("v_mul_u32_u24 v5, 896, v3")
    a("v_lshl_add_u32 v10, v4, 4, v5")
    a("v_lshrrev_b32 v6, 4, v1")
    a("v_and_b32 v7, 1, v6")
    a("v_lshlrev_b32 v7, 2, v7")
    a("v_xor_b32 v7, v4, v7")
    a("v_xor_b32 v8, v4, v6")
    a("v_lshl_add_u32 v31, v8, 4, v5")
    a("v_xor_b32 v11, 64, v31")
    a(f"v_add_u32 v11, {8*896-1024}, v11")
    a("v_lshl_add_u32 v29, v7, 4, v5")
    a(f"v_add_u32 v30, {8*896-1024}, v29")
    a("v_mul_u32_u24 v27, 3584, v3")
    a("v_lshl_add_u32 v27, v7, 4, v27")
    a(f"v_add_u32 v28, {8*3584-1024}, v27")
    a(f"s_lshl_b32 s{sT}, s{sRB}, 3")
    a(f"s_add_u32 s{sT}, s{sT}, s{sWV}")
    a(f"s_mul_i32 s{sBASE2}, s{sT}, {8*896}")
    a(f"s_mul_i32 s{sW2B}, s{sSL}, {256*896}")
    a(f"s_lshl_b32 s{sT}, s{sWV}, 7")
    a(f"s_add_u32 s{sW2B}, s{sW2B}, s{sT}")
    a(f"s_mul_i32 s{sCB}, s{sWV}, {64*896}")
    a(f"s_lshl_b32 s{sT}, s{sSL}, 7")
    a(f"s_add_u32 s{sCB}, s{sCB}, s{sT}")
    a("s_waitcnt lgkmcnt(0)")
    srd(a, SX, 4, 2048 * 896)
    srd(a, SW2, 28, 1792 * 896)
    srd(a, SCR_, 14, 448 * 896)
    srd(a, SCI, 16, 448 * 896)
    srd(a, SBI, 12, 448 * 896)
    srd(a, SWS, 36, WS_SIZE)
    srd(a, SDBG, 34, 256)
    a(f"s_cmp_ge_u32 s{sWV}, 4")
    a("s_cbranch_scc1 K1_G1_PRE")

    srd(a, SA, 24, 448 * 3584)
    a(f"s_mul_i32 s{sRING}, s{sWV}, {RING}")
    a(f"s_add_u32 s{sRING}, s{sRING}, {P}")
    a(f"s_mov_b32 s{sRING3}, s{sRING}")
    a(f"s_lshl_b32 s{sBASE}, s{sSL}, 9")
    a(f"s_lshl_b32 s{sT}, s{sWV}, 7")
    a(f"s_add_u32 s{sBASE}, s{sBASE}, s{sT}")
    a("v_lshrrev_b32 v2, 5, v1")
    a("v_lshlrev_b32 v2, 3, v2")
    a(f"v_add_u32 v2, s{sBASE}, v2")
    for ft in range(2):
        for aa in range(4):
            a.vmem(f"global_load_dwordx2 {vr(224 + 2*(4*ft+aa), 2)}, v2, s[26:27] offset:{(32*ft+8*aa)*2}", 'bias')
    for i in range(7):
        a.vmem(f"buffer_load_dwordx4 {vr(32+4*i,4)}, v10, s[{SX}:{SX+3}], s{sBASE2} offen offset:{128*i}", 'x')
    w1_items = [dict(srd=SA, va=27, vb=28, sbase=sBASE, off=16 * s * 3584, ring=sRING) for s in range(28)]
    w2_items = [dict(srd=SW2, va=29, vb=30, sbase=sW2B, off=16 * ks * 896, ring=sRING3) for ks in range(16)]
    c_items = []
    for part in range(2):
        for nt in range(2):
            for pr in range(2):
                c_items.append(dict(srd=(SCR_, SCI)[part], va=31, vb=11, sbase=sCB, off=(32 * nt + 16 * pr) * 896, ring=sRING3))
    stA = Stream(a, w1_items + w2_items + c_items, 0)
    stA.issue(6)
    vmA_state = None
    a.wait_vm('bias')
    for ft in range(2):
        for aa in range(4):
            s_ = 224 + 2 * (4 * ft + aa)
            d_ = 128 + 16 * ft + 4 * aa
            a(f"v_lshlrev_b32 v{d_}, 16, v{s_}")
            a(f"v_and_b32 v{d_+1}, 0xffff0000, v{s_}")
            a(f"v_lshlrev_b32 v{d_+2}, 16, v{s_+1}")
            a(f"v_and_b32 v{d_+3}, 0xffff0000, v{s_+1}")
    saved_vm_A = list(a.vm)
    a("s_branch K1_LN")

    a.label("K1_G1_PRE")
    a.vm = []
    srd(a, SA, 10, 448 * 896)
    a(f"s_sub_u32 s{sTMP}, s{sWV}, 4")
    a(f"s_mul_i32 s{sRING}, s{sTMP}, {RING}")
    a(f"s_add_u32 s{sRING3}, s{sRING}, {Y}")
    a(f"s_add_u32 s{sRING}, s{sRING}, {Q}")
    a(f"s_lshl_b32 s{sBASE}, s{sSL}, 6")
    a(f"s_lshl_b32 s{sT}, s{sTMP}, 4")
    a(f"s_add_u32 s{sBASE}, s{sBASE}, s{sT}")
    a("v_and_b32 v2, 15, v1")
    a(f"v_add_u32 v2, s{sBASE}, v2")
    a("v_lshlrev_b32 v2, 1, v2")
    a.vmem("global_load_ushort v104, v2, s[6:7]", 'par')
    a.vmem("global_load_ushort v105, v2, s[8:9]", 'par')
    a.vmem("global_load_ushort v106, v2, s[18:19]", 'par')
    for i in range(7):
        a.vmem(f"buffer_load_dwordx4 {vr(32+4*i,4)}, v10, s[{SX}:{SX+3}], s{sBASE2} offen offset:{128*i}", 'x')
    a(f"s_mul_i32 s{sBASE}, s{sBASE}, 896")

    def b_issue(ds):
        sl_ = ds % 3
        a(f"s_add_u32 m0, s{sRING}, {sl_*4096}")
        a(f"s_add_u32 s{sT}, s{sBASE}, {128*ds}")
        a.vmem(f"buffer_load_dwordx4 v31, s[{SA}:{SA+3}], s{sT} offen lds", ('b', ds))
        a.vmem(f"buffer_load_dwordx4 v11, s[{SA}:{SA+3}], s{sT} offen offset:1024 lds", ('b', ds))
        a(f"s_add_u32 m0, s{sRING}, {sl_*4096+2048}")
        a.vmem(f"buffer_load_dwordx4 v31, s[{SBI}:{SBI+3}], s{sT} offen lds", ('b', ds))
        a.vmem(f"buffer_load_dwordx4 v11, s[{SBI}:{SBI+3}], s{sT} offen offset:1024 lds", ('b', ds))
    for ds in range(3):
        b_issue(ds)
    a.wait_vm('par')
    LR, LI = 104, 105
    a("v_lshlrev_b32 v107, 16, v104")
    a("v_lshlrev_b32 v108, 16, v105")
    a("v_lshlrev_b32 v106, 16, v106")
    a(f"v_mul_f32 v106, {fhex(LOG2E)}, v106")
    a("v_exp_f32 v106, v106")
    bf16_round(a, 106, 106)
    a("v_mul_f32 v109, v106, v107")
    a("v_mul_f32 v110, v106, v108")
    a(f"v_mul_f32 v109, {fhex(LOG2E)}, v109")
    a("v_exp_f32 v109, v109")
    a(f"v_mul_f32 v110, {fhex(0.15915494309189535)}, v110")
    a("v_rndne_f32 v111, v110")
    a("v_sub_f32 v110, v110, v111")
    a("v_cos_f32 v111, v110")
    a("v_sin_f32 v112, v110")
    a("v_mul_f32 v104, v109, v111")
    a("v_mul_f32 v105, v109, v112")
    a("v_add_f32 v109, -1.0, v104")
    a("v_mul_f32 v110, v107, v107")
    a("v_fmac_f32 v110, v108, v108")
    a("v_rcp_f32 v110, v110")
    a("v_mul_f32 v111, v109, v107")
    a("v_fmac_f32 v111, v105, v108")
    a("v_mul_f32 v112, v105, v107")
    a("v_fma_f32 v112, -v109, v108, v112")
    a("v_add_f32 v110, v110, v110")
    CR, CI = 116, 117
    a(f"v_mul_f32 v{CR}, v111, v110")
    a(f"v_mul_f32 v{CI}, v112, v110")

    def csq(dr, di, sr, si):
        a(f"v_mul_f32 v{dr}, v{sr}, v{sr}")
        a(f"v_mul_f32 v{di}, v{sr}, v{si}")
        a(f"v_fma_f32 v{dr}, -v{si}, v{si}, v{dr}")
        a(f"v_add_f32 v{di}, v{di}, v{di}")

    def cmul(dr, di, xr, xi, yr, yi):
        a(f"v_mul_f32 v{dr}, v{xr}, v{yr}")
        a(f"v_mul_f32 v{di}, v{xr}, v{yi}")
        a(f"v_fma_f32 v{dr}, -v{xi}, v{yi}, v{dr}")
        a(f"v_fmac_f32 v{di}, v{xi}, v{yr}")
    L16R, L16I, PGR, PGI, MUR, MUI, M8R, M8I = 106, 107, 108, 109, 110, 111, 112, 113
    csq(118, 119, LR, LI)
    csq(120, 121, 118, 119)
    csq(118, 119, 120, 121)
    csq(L16R, L16I, 118, 119)
    csq(118, 119, L16R, L16I)
    cmul(120, 121, 118, 119, L16R, L16I)
    csq(MUR, MUI, 118, 119)
    a("v_lshrrev_b32 v2, 4, v1")
    a(f"v_mov_b32 v{PGR}, 1.0")
    a(f"v_mov_b32 v{PGI}, 0")
    a("v_cmp_eq_u32 vcc, 1, v2")
    a(f"v_cndmask_b32 v{PGR}, v{PGR}, v{L16R}, vcc")
    a(f"v_cndmask_b32 v{PGI}, v{PGI}, v{L16I}, vcc")
    a("v_cmp_eq_u32 vcc, 2, v2")
    a(f"v_cndmask_b32 v{PGR}, v{PGR}, v118, vcc")
    a(f"v_cndmask_b32 v{PGI}, v{PGI}, v119, vcc")
    a("v_cmp_eq_u32 vcc, 3, v2")
    a(f"v_cndmask_b32 v{PGR}, v{PGR}, v120, vcc")
    a(f"v_cndmask_b32 v{PGI}, v{PGI}, v121, vcc")
    csq(118, 119, MUR, MUI)
    csq(120, 121, 118, 119)
    csq(M8R, M8I, 120, 121)
    saved_vm_B = list(a.vm)

    a.label("K1_LN")
    assert len([t for t in saved_vm_A if t != 'x']) == 12 and saved_vm_A[:7] == ['x'] * 7, saved_vm_A
    assert len([t for t in saved_vm_B if t != 'x']) == 12 and saved_vm_B[:7] == ['x'] * 7, saved_vm_B
    a("s_waitcnt vmcnt(12)")
    saved_vm_A = saved_vm_A[7:]
    saved_vm_B = saved_vm_B[7:]
    a("v_mov_b32 v2, 0")
    a("v_mov_b32 v3, 0")
    a("v_mov_b32 v4, 0")
    a("v_mov_b32 v5, 0")
    a(f"v_mov_b32 v60, 0x3f803f80")
    for i in range(28):
        x = 32 + i
        a(f"v_dot2c_f32_bf16 v{2 + (i & 1)}, v60, v{x}")
        a(f"v_dot2c_f32_bf16 v{4 + (i & 1)}, v{x}, v{x}")
    a("v_add_f32 v2, v2, v3")
    a("v_add_f32 v4, v4, v5")
    for m in ("quad_perm:[1,0,3,2]", "quad_perm:[2,3,0,1]", "row_half_mirror"):
        a(f"v_add_f32_dpp v2, v2, v2 {m} row_mask:0xf bank_mask:0xf")
        a(f"v_add_f32_dpp v4, v4, v4 {m} row_mask:0xf bank_mask:0xf")
    inv = fhex(1.0 / 448.0)
    eps = fhex(1e-5)
    a(f"v_mul_f32 v2, {inv}, v2")
    a(f"v_mul_f32 v4, {inv}, v4")
    a("v_fma_f32 v4, -v2, v2, v4")
    a("v_max_f32 v4, 0, v4")
    bf16_round(a, 5, 2)
    bf16_round(a, 6, 4)
    a(f"v_add_f32 v6, {eps}, v6")
    bf16_round(a, 6, 6)
    a("v_sqrt_f32 v6, v6")
    bf16_round(a, 6, 6)
    a("v_rcp_f32 v6, v6")
    a("v_sub_f32 v7, v2, v5")
    a("v_mul_f32 v7, v7, v6")
    a("v_mul_f32 v8, v6, v6")
    a("v_mul_f32 v8, v8, v4")
    bf16_round(a, 7, 7)
    bf16_round(a, 8, 8)
    a(f"v_add_f32 v8, {eps}, v8")
    bf16_round(a, 8, 8)
    a("v_sqrt_f32 v8, v8")
    bf16_round(a, 8, 8)
    a("v_rcp_f32 v9, v8")
    a("v_mul_f32 v2, v6, v9")
    a("v_fma_f32 v3, v5, v6, v7")
    a("v_mul_f32 v3, v3, v9")
    a("v_sub_f32 v3, 0, v3")
    a("v_lshrrev_b32 v61, 3, v1")
    a(f"s_lshl_b32 s{sT}, s{sWV}, 3")
    a(f"v_add_u32 v62, s{sT}, v61")
    a("v_bfe_u32 v63, v62, 1, 3")
    a(f"s_lshr_b32 s{sT}, s{sWV}, 1")
    a(f"s_and_b32 s{sT2}, s{sT}, 1")
    a(f"s_mul_i32 s{sT2}, s{sT2}, 3")
    a(f"s_lshr_b32 s{sT}, s{sT}, 1")
    a(f"s_xor_b32 s{sT}, s{sT}, s{sT2}")
    a(f"s_lshl_b32 s{sT}, s{sT}, 1")
    a(f"v_xor_b32 v63, s{sT}, v63")
    a("v_and_b32 v4, 7, v1")
    a("v_xor_b32 v63, v63, v4")
    a("v_mul_u32_u24 v61, 896, v62")
    a("v_lshl_add_u32 v10, v63, 4, v61")
    a("v_lshlrev_b32 v62, 2, v62")
    a("v_cmp_eq_u32 vcc, 0, v4")
    a(f"s_and_saveexec_b64 s[{sTMP}:{sTMP+1}], vcc")
    a(f"v_add_u32 v26, {S2T}, v62")
    a(f"ds_write_b32 v26, v8")
    a(f"ds_write_b32 v26, v7 offset:{M2T-S2T}")
    a(f"s_cmp_lg_u32 s{sSL}, 0")
    a("s_cbranch_scc1 K1_NOSTAT")
    a("v_lshlrev_b32 v62, 1, v62")
    a(f"s_lshl_b32 s{sT}, s{sRB}, 9")
    a(f"s_add_u32 s{sT}, s{sT}, {STATS}")
    a("v_mov_b32 v24, v5")
    a("v_mov_b32 v25, v6")
    a(f"buffer_store_dwordx2 v[24:25], v62, s[{SWS}:{SWS+3}], s{sT} offen")
    a.label("K1_NOSTAT")
    a(f"s_mov_b64 exec, s[{sTMP}:{sTMP+1}]")
    a("v_mov_b32 v62, 0")
    a(f"v_mov_b32 v63, {CNT}")
    a("ds_write_b32 v63, v62")
    for i in range(7):
        for d in range(4):
            x = 32 + 4 * i + d
            a(f"v_lshlrev_b32 v60, 16, v{x}")
            a(f"v_and_b32 v61, 0xffff0000, v{x}")
            a("v_fma_f32 v60, v60, v2, v3")
            a("v_fma_f32 v61, v61, v2, v3")
            a(f"v_cvt_pk_bf16_f32 v{x}, v60, v61")
        a(f"ds_write_b128 v10, {vr(32+4*i,4)} offset:{128*i}")
    a("s_waitcnt lgkmcnt(0)")
    a("s_barrier")
    if dbg == 'y2':
        dump_lds(a, 0, 57344)
        a("s_branch K1_END")
    a(f"s_cmp_ge_u32 s{sWV}, 4")
    a("s_cbranch_scc1 K1_G1")

    a.vm = list(saved_vm_A)
    a.lg = []
    a("v_lshrrev_b32 v2, 5, v1")
    a("v_bfe_u32 v3, v1, 2, 2")
    a("v_and_b32 v4, 3, v1")
    a("v_bfe_u32 v5, v1, 4, 1")
    a("v_lshlrev_b32 v6, 1, v5")
    a("v_lshrrev_b32 v7, 1, v4")
    a("v_or_b32 v6, v6, v7")
    a("v_lshrrev_b32 v7, 1, v3")
    a("v_lshlrev_b32 v7, 2, v7")
    a("v_xor_b32 v6, v6, v7")
    a("v_lshlrev_b32 v6, 4, v6")
    a("v_and_b32 v7, 1, v4")
    a("v_lshl_add_u32 v6, v7, 3, v6")
    a("v_lshl_add_u32 v7, v2, 3, v3")
    a("v_lshl_add_u32 v8, v7, 7, v6")
    a("v_lshl_add_u32 v7, v2, 2, v3")
    a("v_lshl_add_u32 v9, v7, 7, v6")
    a(f"v_add_u32 v12, s{sRING}, v8")
    a("v_xor_b32 v13, 64, v12")
    a(f"v_add_u32 v18, s{sRING3}, v9")
    a("v_xor_b32 v19, 64, v18")
    a(f"v_add_u32 v21, {Q + 8192}, v8")
    a("v_xor_b32 v22, 64, v21")
    a("v_and_b32 v3, 31, v1")
    a("v_bfe_u32 v4, v3, 1, 3")
    a("v_lshrrev_b32 v5, 4, v3")
    a("v_mul_u32_u24 v5, 6, v5")
    a("v_xor_b32 v4, v4, v5")
    a("v_xor_b32 v4, v4, v2")
    a("v_mul_u32_u24 v5, 896, v3")
    for j in range(4):
        a(f"v_xor_b32 v6, {2*j}, v4")
        a(f"v_lshl_add_u32 v{14+j}, v6, 4, v5")
    a("v_lshlrev_b32 v20, 4, v1")
    a(f"v_add_u32 v20, {Q}, v20")
    c_addr(a)

    FA = [192, 208]

    def g2_reads(s):
        b = FA[s & 1]
        so = (s % 6) * 2048
        for ft in range(2):
            for q in range(2):
                a.lds(f"ds_read_b64_tr_b16 {vr(b+4*ft+2*q,2)}, v{12+ft} offset:{so+512*q}", ('f', s))
        j = s & 3
        a.lds(f"ds_read_b128 {vr(b+8,4)}, v{14+j} offset:{128*(s>>2)}", ('f', s))
        a.lds(f"ds_read_b128 {vr(b+12,4)}, v{14+(j^1)} offset:{128*(s>>2)+28672}", ('f', s))

    stA.wait(0)
    g2_reads(0)
    for s in range(28):
        b = FA[s & 1]
        a.wait_lg(('f', s))
        stA.issue(s + 7)
        if s + 1 < 28:
            stA.wait(s + 1)
        ms = []
        for ft in range(2):
            for tt in range(2):
                acc = 64 + 32 * ft + 16 * tt
                c = vr(128 + 16 * ft, 16) if s == 0 else vr(acc, 16)
                ms.append(f"v_mfma_f32_32x32x16_bf16 {vr(acc,16)}, {vr(b+4*ft,4)}, {vr(b+8+4*tt,4)}, {c}")
        a(ms[0])
        if s + 1 < 28:
            g2_reads(s + 1)
        a(ms[1])
        a(ms[2])
        a(ms[3])
    a("s_barrier")
    if dbg == 'pre':
        dump_regs(a, 64, 64)
        a("s_branch K1_END")
    gelu(a)
    a.wait_lg_all()
    a("s_barrier")
    if dbg == 'H':
        dump_lds(a, Q, 49152)
        a("s_branch K1_END")
    g3(a, stA, 28, True)
    a("s_branch K1_END")

    a.label("K1_G1")
    a.vm = list(saved_vm_B)
    a.lg = []
    a("v_and_b32 v2, 15, v1")
    a("v_lshrrev_b32 v3, 4, v1")
    a("v_bfe_u32 v4, v2, 1, 3")
    a("v_xor_b32 v4, v4, v3")
    a("v_lshlrev_b32 v4, 4, v4")
    a("v_lshl_add_u32 v4, v2, 7, v4")
    a(f"v_add_u32 v12, s{sRING}, v4")
    a("v_xor_b32 v13, 64, v12")
    a("v_lshrrev_b32 v4, 2, v2")
    a("v_and_b32 v5, 3, v2")
    a("v_lshl_add_u32 v6, v4, 4, v5")
    a("v_mul_u32_u24 v6, 896, v6")
    a("v_and_b32 v7, 1, v4")
    a("v_mul_u32_u24 v7, 3, v7")
    a("v_lshrrev_b32 v8, 1, v4")
    a("v_xor_b32 v7, v7, v8")
    a("v_lshlrev_b32 v7, 1, v7")
    a("v_lshrrev_b32 v8, 1, v5")
    a("v_xor_b32 v7, v7, v8")
    a("v_xor_b32 v7, v7, v3")
    for k in range(4):
        a(f"v_xor_b32 v8, {2*k}, v7")
        a(f"v_lshl_add_u32 v{14+k}, v8, 4, v6")
    for k in range(4):
        a(f"v_mov_b32 v{240+k}, 0x3f803f80")
    AF = [192, 208]
    BF = [224, 232]

    def g1_reads(s):
        ds, s1 = s >> 1, s & 1
        so = (ds % 3) * 4096
        a.lds(f"ds_read_b128 {vr(BF[s&1],4)}, v{12+s1} offset:{so}", ('f', s))
        a.lds(f"ds_read_b128 {vr(BF[s&1]+4,4)}, v{12+s1} offset:{so+2048}", ('f', s))
        for aa in range(4):
            k = (2 * s1) ^ aa
            a.lds(f"ds_read_b128 {vr(AF[s&1]+4*aa,4)}, v{14+k} offset:{aa*4*896+128*(s>>1)}", ('f', s))

    a.wait_vm(('b', 0))
    g1_reads(0)
    for s in range(14):
        a.wait_lg(('f', s))
        if s & 1 and (s >> 1) + 3 < 7:
            b_issue((s >> 1) + 3)
        if s + 1 < 14 and (s + 1) & 1 == 0:
            a.wait_vm(('b', (s + 1) >> 1))
        A_, B_ = AF[s & 1], BF[s & 1]
        ms = []
        for aa in range(4):
            for part in range(2):
                acc = 64 + 16 * part + 4 * aa
                c = "0" if s == 0 else vr(acc, 4)
                ms.append(f"v_mfma_f32_16x16x32_bf16 {vr(acc,4)}, {vr(A_+4*aa,4)}, {vr(B_+4*part,4)}, {c}")
        for part in range(2):
            acc = 96 + 4 * part
            c = "0" if s == 0 else vr(acc, 4)
            ms.append(f"v_mfma_f32_16x16x32_bf16 {vr(acc,4)}, v[240:243], {vr(B_+4*part,4)}, {c}")
        a(ms[0])
        if s + 1 < 14:
            g1_reads(s + 1)
        for m in ms[1:]:
            a(m)
    a("v_lshrrev_b32 v3, 4, v1")
    a("v_lshlrev_b32 v4, 6, v3")
    a(f"v_add_u32 v4, {S2T}, v4")
    for k in range(4):
        a.lds(f"ds_read_b128 {vr(32+4*k,4)}, v4 offset:{16*k}", 'st')
        a.lds(f"ds_read_b128 {vr(48+4*k,4)}, v4 offset:{M2T-S2T+16*k}", 'st')
    a.wait_lg('st')
    for e in range(16):
        R_, I_ = 64 + e, 80 + e
        a(f"v_mul_f32 v2, v{48+e}, v96")
        a(f"v_mul_f32 v3, v{48+e}, v100")
        a(f"v_fma_f32 v2, v{32+e}, v{R_}, v2")
        a(f"v_fma_f32 v3, v{32+e}, v{I_}, v3")
        a(f"v_mul_f32 v{R_}, v{CR}, v2")
        a(f"v_mul_f32 v{I_}, v{CR}, v3")
        a(f"v_fma_f32 v{R_}, -v{CI}, v3, v{R_}")
        a(f"v_fmac_f32 v{I_}, v{CI}, v2")
    if dbg == 'bu':
        dump_regs(a, 64, 32)
        a("s_barrier\n s_barrier")
        a("s_branch K1_END")
    HR, HI, TR, TI = 2, 3, 4, 5
    a(f"v_mov_b32 v{HR}, v64")
    a(f"v_mov_b32 v{HI}, v80")
    for e in range(1, 16):
        a(f"v_fma_f32 v{TR}, v{LR}, v{HR}, v{64+e}")
        a(f"v_fma_f32 v{TI}, v{LR}, v{HI}, v{80+e}")
        a(f"v_fma_f32 v{TR}, -v{LI}, v{HI}, v{TR}")
        a(f"v_fma_f32 v{HI}, v{LI}, v{HR}, v{TI}")
        a(f"v_mov_b32 v{HR}, v{TR}")
    a("v_and_b32 v6, 15, v1")
    a("v_lshrrev_b32 v7, 4, v1")
    a("v_lshlrev_b32 v6, 5, v6")
    a(f"s_sub_u32 s{sTMP}, s{sWV}, 4")
    a(f"s_lshl_b32 s{sT}, s{sTMP}, 9")
    a(f"s_add_u32 s{sT}, s{sT}, {SCR}")
    a(f"v_add_u32 v24, s{sT}, v6")
    a("v_lshl_add_u32 v25, v7, 3, v24")
    a.lds(f"ds_write_b64 v25, v[{HR}:{HI}]", 'w')
    a.wait_lg('w')
    a.lds("ds_read_b128 v[32:35], v24", 'r')
    a.lds("ds_read_b128 v[36:39], v24 offset:16", 'r')
    a.wait_lg('r')
    def cmac(dr, di, xr, xi, yr, yi, ar, ai):
        a(f"v_fma_f32 v{dr}, v{xr}, v{yr}, v{ar}")
        a(f"v_fma_f32 v{di}, v{xr}, v{yi}, v{ai}")
        a(f"v_fma_f32 v{dr}, -v{xi}, v{yi}, v{dr}")
        a(f"v_fmac_f32 v{di}, v{xi}, v{yr}")
    cmac(40, 41, L16R, L16I, 32, 33, 34, 35)
    cmac(42, 43, L16R, L16I, 40, 41, 36, 37)
    cmac(44, 45, L16R, L16I, 42, 43, 38, 39)
    XR, XI = 122, 123
    a(f"v_mov_b32 v{XR}, 0")
    a(f"v_mov_b32 v{XI}, 0")
    for g, (r_, i_) in ((1, (32, 33)), (2, (40, 41)), (3, (42, 43))):
        a(f"v_cmp_eq_u32 vcc, {g}, v7")
        a(f"v_cndmask_b32 v{XR}, v{XR}, v{r_}, vcc")
        a(f"v_cndmask_b32 v{XI}, v{XI}, v{i_}, vcc")
    a(f"s_lshl_b32 s{sT}, s{sSL}, 5")
    a(f"s_add_u32 s{sT}, s{sT}, s{sRB}")
    a(f"s_lshl_b32 s{sT}, s{sT}, 9")
    a(f"s_lshl_b32 s{sT2}, s{sTMP}, 7")
    a(f"s_add_u32 s{sT}, s{sT}, s{sT2}")
    a("v_and_b32 v6, 15, v1")
    a("v_lshlrev_b32 v6, 3, v6")
    a("v_cmp_eq_u32 vcc, 0, v7")
    a(f"s_and_saveexec_b64 s[{sTMP+2}:{sTMP+3}], vcc")
    a(f"buffer_store_dwordx2 v[44:45], v6, s[{SWS}:{SWS+3}], s{sT} offen sc1")
    a(f"s_mov_b64 exec, s[{sTMP+2}:{sTMP+3}]")
    a("s_waitcnt vmcnt(0)")
    a.vm = []
    a(f"v_mov_b32 v8, {CNT}")
    a("v_mov_b32 v9, 1")
    a("v_cmp_eq_u32 vcc, 0, v1")
    a(f"s_and_saveexec_b64 s[{sTMP+2}:{sTMP+3}], vcc")
    a("ds_add_rtn_u32 v9, v8, v9")
    a("s_waitcnt lgkmcnt(0)")
    a(f"v_readfirstlane_b32 s{sT}, v9")
    a(f"s_cmp_lg_u32 s{sT}, 3")
    a("s_cbranch_scc1 K1_NOFLAG")
    a(f"s_lshl_b32 s{sT}, 1, s{sRB}")
    a(f"v_mov_b32 v9, s{sT}")
    a(f"s_lshl_b32 s{sT2}, s{sSL}, 2")
    a(f"v_mov_b32 v8, s{sT2}")
    a(f"buffer_atomic_or v9, v8, s[{SDBG}:{SDBG+3}], 0 offen sc1")
    a.label("K1_NOFLAG")
    a(f"s_mov_b64 exec, s[{sTMP+2}:{sTMP+3}]")
    a(f"s_lshl_b32 s{sT}, 1, s{sRB}")
    a(f"s_sub_u32 s{sTMP+4}, s{sT}, 1")
    a(f"s_lshl_b32 s{sT2}, s{sSL}, 2")
    a(f"v_mov_b32 v8, s{sT2}")
    a.label("K1_POLL")
    a(f"buffer_load_dword v9, v8, s[{SDBG}:{SDBG+3}], 0 offen sc1")
    a("s_waitcnt vmcnt(0)")
    a(f"v_readfirstlane_b32 s{sT}, v9")
    a(f"s_and_b32 s{sT}, s{sT}, s{sTMP+4}")
    a(f"s_cmp_eq_u32 s{sT}, s{sTMP+4}")
    a("s_cbranch_scc1 K1_POLLED")
    a("s_sleep 2")
    a("s_branch K1_POLL")
    a.label("K1_POLLED")
    a(f"s_sub_u32 s{sT}, s{sRB}, 32")
    a(f"v_lshl_add_u32 v8, v7, 3, s{sT}")
    a(f"s_lshl_b32 s{sT}, s{sSL}, 14")
    a(f"s_lshl_b32 s{sT2}, s{sTMP}, 7")
    a(f"s_add_u32 s{sT}, s{sT}, s{sT2}")
    a(f"v_add_u32 v6, s{sT}, v6")
    a(f"v_mov_b32 v26, {OOB}")
    for j in range(8):
        a(f"v_add_u32 v9, {j}, v8")
        a(f"v_lshl_add_u32 v23, v9, 9, v6")
        a("v_cmp_gt_i32 vcc, 0, v9")
        a("v_cndmask_b32 v23, v23, v26, vcc")
        a.vmem(f"buffer_load_dwordx2 {vr(32+2*j,2)}, v23, s[{SWS}:{SWS+3}], 0 offen sc1", 'e')
    a.wait_vm('e')
    a("v_mov_b32 v2, v32")
    a("v_mov_b32 v3, v33")
    for j in range(1, 8):
        cmac(4, 5, MUR, MUI, 2, 3, 32 + 2 * j, 33 + 2 * j)
        a("v_mov_b32 v2, v4")
        a("v_mov_b32 v3, v5")
    a.lds("ds_write_b64 v25, v[2:3]", 'w')
    a.wait_lg('w')
    a.lds("ds_read_b128 v[32:35], v24", 'r')
    a.lds("ds_read_b128 v[36:39], v24 offset:16", 'r')
    a.wait_lg('r')
    cmac(40, 41, M8R, M8I, 32, 33, 34, 35)
    cmac(42, 43, M8R, M8I, 40, 41, 36, 37)
    cmac(44, 45, M8R, M8I, 42, 43, 38, 39)
    cmac(HR, HI, PGR, PGI, 44, 45, XR, XI)
    prev = None
    for e in range(16):
        a(f"v_fma_f32 v{TR}, v{LR}, v{HR}, v{64+e}")
        a(f"v_fma_f32 v{TI}, v{LR}, v{HI}, v{80+e}")
        a(f"v_fma_f32 v{TR}, -v{LI}, v{HI}, v{TR}")
        a(f"v_fma_f32 v{HI}, v{LI}, v{HR}, v{TI}")
        a(f"v_mov_b32 v{HR}, v{TR}")
        if e & 1 == 0:
            a(f"v_mov_b32 v6, v{HR}")
            a(f"v_mov_b32 v7, v{HI}")
        else:
            a(f"v_cvt_pk_bf16_f32 v{32 + e//2}, v6, v{HR}")
            a(f"v_cvt_pk_bf16_f32 v{40 + e//2}, -v7, -v{HI}")
    a("v_and_b32 v2, 15, v1")
    a("v_lshrrev_b32 v3, 4, v1")
    a("v_lshlrev_b32 v3, 1, v3")
    a("v_bfe_u32 v4, v2, 1, 1")
    a("v_lshlrev_b32 v4, 2, v4")
    a("v_xor_b32 v3, v3, v4")
    a("v_lshlrev_b32 v3, 4, v3")
    a("v_lshl_add_u32 v3, v2, 7, v3")
    a(f"v_add_u32 v3, s{sRING}, v3")
    a.lds("ds_write_b128 v3, v[32:35] offset:8192", 'w')
    a.lds("ds_write_b128 v3, v[36:39] offset:8208", 'w')
    a.lds("ds_write_b128 v3, v[40:43] offset:10240", 'w')
    a.lds("ds_write_b128 v3, v[44:47] offset:10256", 'w')
    a("v_lshrrev_b32 v2, 5, v1")
    a("v_bfe_u32 v3, v1, 2, 2")
    a("v_and_b32 v4, 3, v1")
    a("v_bfe_u32 v5, v1, 4, 1")
    a("v_lshlrev_b32 v6, 1, v5")
    a("v_lshrrev_b32 v7, 1, v4")
    a("v_or_b32 v6, v6, v7")
    a("v_lshrrev_b32 v7, 1, v3")
    a("v_lshlrev_b32 v7, 2, v7")
    a("v_xor_b32 v6, v6, v7")
    a("v_lshlrev_b32 v6, 4, v6")
    a("v_and_b32 v7, 1, v4")
    a("v_lshl_add_u32 v6, v7, 3, v6")
    a("v_lshl_add_u32 v7, v2, 3, v3")
    a("v_lshl_add_u32 v8, v7, 7, v6")
    a("v_lshl_add_u32 v7, v2, 2, v3")
    a("v_lshl_add_u32 v9, v7, 7, v6")
    a(f"v_add_u32 v18, s{sRING3}, v9")
    a("v_xor_b32 v19, 64, v18")
    a(f"v_add_u32 v21, {Q + 8192}, v8")
    a("v_xor_b32 v22, 64, v21")
    a("v_lshlrev_b32 v20, 4, v1")
    a(f"v_add_u32 v20, {Q}, v20")
    c_addr(a)
    a.wait_lg_all()
    a("s_barrier")
    if dbg in ('pre',):
        a("s_branch K1_END")
    if dbg == 'H':
        a("s_barrier")
        a("s_branch K1_END")
    a(f"s_cmp_eq_u32 s{sWV}, 7")
    a("s_cbranch_scc0 K1_G3B")
    a("s_barrier")
    a("s_branch K1_END")
    a.label("K1_G3B")
    stB = Stream(a, c_items + w2_items, 2)
    a.vm = []
    g3(a, stB, 0, False)
    a.label("K1_END")
    a("s_endpgm")
    return a


def c_addr(a):
    a("v_and_b32 v3, 31, v1")
    a("v_lshrrev_b32 v2, 5, v1")
    a("v_bfe_u32 v4, v3, 1, 3")
    a("v_xor_b32 v4, v4, v2")
    a("v_lshlrev_b32 v4, 4, v4")
    a("v_lshl_add_u32 v4, v3, 7, v4")
    a(f"v_add_u32 v23, s{sRING3}, v4")
    for cg in range(1, 4):
        a(f"v_xor_b32 v{23+cg}, {32*cg}, v23")


def gelu(a):
    c1 = -2.0 * 0.7978845608028654 * LOG2E
    c2 = c1 * 0.044715
    a(f"s_mov_b32 s{sT}, {fhex(c1)}")
    a(f"s_mov_b32 s{sT2}, {fhex(c2)}")
    a(f"v_mov_b32 v60, s{sT}")
    a(f"s_mul_i32 s{sTMP}, s{sWV}, {RING}")
    a(f"s_add_u32 s{sTMP}, s{sTMP}, {Q}")
    a("v_lshlrev_b32 v61, 4, v1")
    a(f"v_add_u32 v61, s{sTMP}, v61")
    for ft in range(2):
        for tt in range(2):
            acc = 64 + 32 * ft + 16 * tt
            for half in range(2):
                xs = [acc + 8 * half + e for e in range(8)]
                T = [32 + e for e in range(8)]
                U = [40 + e for e in range(8)]
                for e in range(8):
                    a(f"v_mul_f32 v{T[e]}, v{xs[e]}, v{xs[e]}")
                for e in range(8):
                    a(f"v_fma_f32 v{T[e]}, v{T[e]}, s{sT2}, v60")
                for e in range(8):
                    a(f"v_mul_f32 v{T[e]}, v{T[e]}, v{xs[e]}")
                for e in range(8):
                    a(f"v_exp_f32 v{T[e]}, v{T[e]}")
                for e in range(8):
                    a(f"v_add_f32 v{T[e]}, 1.0, v{T[e]}")
                for e in range(8):
                    a(f"v_rcp_f32 v{T[e]}, v{T[e]}")
                for e in range(8):
                    a(f"v_mul_f32 v{T[e]}, v{T[e]}, v{xs[e]}")
                for d in range(4):
                    a(f"v_cvt_pk_bf16_f32 v{U[d]}, v{T[2*d]}, v{T[2*d+1]}")
                a.lds(f"ds_write_b128 v61, {vr(U[0],4)} offset:{((2*ft+half)*2+tt)*1024}", 'hw')
                if len(a.lg) >= 8:
                    a.wait_lg_all()


def g3(a, st, base, mlp_first):
    FA = [192, 208]
    CF = 224
    mlp_base = base if mlp_first else base + 8
    ssm_base = base + 16 if mlp_first else base
    first = [True]

    def mfmas(Aregs, Bregs):
        ms = []
        for tt in range(2):
            for nt in range(2):
                acc = 128 + 32 * tt + 16 * nt
                c = "0" if first[0] else vr(acc, 16)
                ms.append(f"v_mfma_f32_32x32x16_bf16 {vr(acc,16)}, {vr(Aregs[tt],4)}, {vr(Bregs[nt],4)}, {c}")
        first[0] = False
        return ms

    def mlp_reads(ks, buf):
        b = FA[buf]
        so = st.slot(mlp_base + ks) * 2048
        for nt in range(2):
            for q in range(2):
                a.lds(f"ds_read_b64_tr_b16 {vr(b+8+4*nt+2*q,2)}, v{18+nt} offset:{so+1024*q}", ('m', ks))
        for tt in range(2):
            a.lds(f"ds_read_b128 {vr(b+4*tt,4)}, v20 offset:{12288*(ks>>2)+((ks&3)*2+tt)*1024}", ('m', ks))

    def ssm_areads(k, buf):
        part, cg = k >> 2, k & 3
        b = FA[buf]
        for tt in range(2):
            for q in range(2):
                a.lds(f"ds_read_b64_tr_b16 {vr(b+4*tt+2*q,2)}, v{21+tt} offset:{12288*cg+2048*part+512*q}", ('s', k))

    def c_reads(part):
        for nt in range(2):
            i0 = ssm_base + 4 * part + 2 * nt
            so = st.slot(i0) * 2048
            assert st.slot(i0 + 1) == st.slot(i0) + 1
            for cg in range(4):
                a.lds(f"ds_read_b128 {vr(CF+8*cg+4*nt,4)}, v{23+cg} offset:{so}", ('c', part))

    def run_mlp():
        st.wait(mlp_base)
        mlp_reads(0, 0)
        for ks in range(16):
            a.wait_lg(('m', ks))
            st.issue(mlp_base + ks + 7)
            if ks + 1 < 16:
                st.wait(mlp_base + ks + 1)
            b = FA[ks & 1]
            ms = mfmas([b, b + 4], [b + 8, b + 12])
            a(ms[0])
            if ks + 1 < 16:
                mlp_reads(ks + 1, (ks + 1) & 1)
            for m in ms[1:]:
                a(m)

    def run_ssm():
        for part in range(2):
            st.wait(ssm_base + 4 * part + 3)
            c_reads(part)
            ssm_areads(4 * part, 0)
            a.wait_lg(('c', part))
            st.issue(ssm_base + 4 * part + 4 + 6)
            for cg in range(4):
                k = 4 * part + cg
                a.wait_lg(('s', k))
                b = FA[cg & 1]
                ms = mfmas([b, b + 4], [CF + 8 * cg, CF + 8 * cg + 4])
                a(ms[0])
                if cg + 1 < 4:
                    ssm_areads(k + 1, (cg + 1) & 1)
                for m in ms[1:]:
                    a(m)

    if mlp_first:
        run_mlp()
        run_ssm()
    else:
        st.issue(6)
        run_ssm()
        a("s_barrier")
        run_mlp()
    a(f"s_mul_i32 s{sT}, s{sRB}, 7")
    a(f"s_add_u32 s{sT}, s{sT}, s{sWV}")
    a(f"s_mul_i32 s{sT}, s{sT}, 56")
    a(f"s_add_u32 s{sT}, s{sT}, s{sSL}")
    a(f"s_lshl_b32 s{sT}, s{sT}, 10")
    a(f"s_add_u32 s{sT}, s{sT}, {PBUF}")
    a("v_lshlrev_b32 v2, 4, v1")
    for tt in range(2):
        for nt in range(2):
            acc = 128 + 32 * tt + 16 * nt
            for hf in range(2):
                v_ = tt * 4 + nt * 2 + hf
                d = 32 + 4 * (v_ & 3)
                for k in range(4):
                    a(f"v_cvt_pk_bf16_f32 v{d+k}, v{acc+8*hf+2*k}, v{acc+8*hf+2*k+1}")
                a(f"s_add_u32 s{sT2}, s{sT}, {v_*7*1024}")
                a(f"buffer_store_dwordx4 {vr(d,4)}, v2, s[{SWS}:{SWS+3}], s{sT2} offen sc1")


def dump_lds(a, base, nbytes):
    a("s_lshl_b32 s90, s2, 16")
    a("s_add_u32 s90, s90, 0x800000")
    a("v_lshlrev_b32 v2, 4, v0")
    n = (nbytes + 8191) // 8192
    for i in range(n):
        a(f"v_add_u32 v3, {base + 8192*i}, v2")
        a("ds_read_b128 v[4:7], v3")
        a("s_waitcnt lgkmcnt(0)")
        a(f"v_add_u32 v3, {8192*i}, v2")
        a(f"buffer_store_dwordx4 v[4:7], v3, s[{SWS}:{SWS+3}], s90 offen")
        a("s_waitcnt vmcnt(0)")


def dump_regs(a, base, n):
    a("s_lshl_b32 s90, s2, 3")
    a(f"s_add_u32 s90, s90, s{sWV}")
    a("s_lshl_b32 s90, s90, 14")
    a("s_add_u32 s90, s90, 0x800000")
    a("v_lshlrev_b32 v2, 2, v1")
    a("s_nop 15")
    for i in range(n):
        a(f"buffer_store_dword v{base+i}, v2, s[{SWS}:{SWS+3}], s90 offen")
        a("s_add_u32 s90, s90, 256")
    a("s_waitcnt vmcnt(0)")


def gen_k2(opt):
    a = Asm()
    a("s_cmp_ge_u32 s2, 256")
    a("s_cbranch_scc1 K2_END")
    a("s_and_b32 s38, s2, 7")
    a("s_cmp_eq_u32 s38, 7")
    a("s_cbranch_scc1 K2_END")
    a("s_load_dwordx2 s[4:5], s[0:1], 0")
    a("s_load_dwordx2 s[6:7], s[0:1], 64")
    a("s_load_dwordx2 s[8:9], s[0:1], 104")
    a("s_load_dwordx2 s[10:11], s[0:1], 112")
    a("s_load_dwordx2 s[12:13], s[0:1], 128")
    a("s_lshr_b32 s39, s2, 3")
    a("v_lshrrev_b32 v2, 6, v0")
    a("v_and_b32 v1, 63, v0")
    a("v_readfirstlane_b32 s40, v2")
    a("v_and_b32 v3, 31, v1")
    a("v_lshrrev_b32 v4, 5, v1")
    a("s_lshr_b32 s41, s40, 2")
    a("s_bfe_u32 s42, s40, 0x10001")
    a("s_and_b32 s43, s40, 1")
    a("s_lshl_b32 s44, s38, 6")
    a("s_lshl_b32 s45, s42, 5")
    a("s_add_u32 s44, s44, s45")
    a("v_add_u32 v5, s44, v3")
    a("s_lshl_b32 s45, s39, 6")
    a("s_lshl_b32 s46, s41, 5")
    a("s_add_u32 s45, s45, s46")
    a("s_lshl_b32 s46, s43, 4")
    a("s_add_u32 s45, s45, s46")
    a("v_lshl_add_u32 v6, v4, 2, s45")
    a("s_mul_i32 s46, s39, 7")
    a("s_add_u32 s46, s46, s38")
    a("s_lshl_b32 s46, s46, 3")
    a("s_add_u32 s46, s46, s40")
    a("s_mul_i32 s46, s46, 7168")
    a(f"s_add_u32 s46, s46, {PBUF}")
    a("v_lshlrev_b32 v7, 4, v1")
    a("s_waitcnt lgkmcnt(0)")
    srd(a, 48, 4, 2048 * 896)
    srd(a, 52, 10, 2048 * 1792)
    srd(a, 56, 12, WS_SIZE)
    for s_ in range(7):
        a(f"buffer_load_dwordx4 {vr(32+4*s_,4)}, v7, s[56:59], s46 offen")
        a("s_add_u32 s46, s46, 1024")
    a("v_mul_u32_u24 v8, 896, v6")
    a("v_lshl_add_u32 v8, v5, 1, v8")
    for e in range(8):
        a(f"buffer_load_ushort v{16+e}, v8, s[48:51], 0 offen offset:{896*(8*(e>>2)+(e&3))}" if 896 * (8 * (e >> 2) + (e & 3)) < 4096 else "")
        if 896 * (8 * (e >> 2) + (e & 3)) >= 4096:
            a(f"v_add_u32 v9, {896*8}, v8")
            a(f"buffer_load_ushort v{16+e}, v9, s[48:51], 0 offen offset:{896*(e&3)}")
    a("v_lshlrev_b32 v10, 3, v6")
    a(f"s_mov_b32 s47, {STATS}")
    a("buffer_load_dwordx4 v[64:67], v10, s[56:59], s47 offen")
    a("buffer_load_dwordx4 v[68:71], v10, s[56:59], s47 offen offset:16")
    a("buffer_load_dwordx4 v[72:75], v10, s[56:59], s47 offen offset:64")
    a("buffer_load_dwordx4 v[76:79], v10, s[56:59], s47 offen offset:80")
    a("v_lshlrev_b32 v11, 1, v5")
    a("global_load_ushort v24, v11, s[6:7]")
    a("global_load_ushort v25, v11, s[8:9]")
    a("v_mul_u32_u24 v12, 1792, v6")
    a("v_lshl_add_u32 v12, v5, 2, v12")
    a(f"v_add_u32 v13, {1792*8}, v12")
    a("s_waitcnt vmcnt(0)")
    a("v_lshlrev_b32 v24, 16, v24")
    a("v_lshlrev_b32 v25, 16, v25")
    for e in range(8):
        d, hi = e >> 1, e & 1
        for s_ in range(7):
            r = 32 + 4 * s_ + d
            if hi:
                a(f"v_and_b32 v14, 0xffff0000, v{r}")
            else:
                a(f"v_lshlrev_b32 v14, 16, v{r}")
            if s_ == 0:
                a("v_add_f32 v15, v25, v14")
            else:
                a("v_add_f32 v15, v15, v14")
        m1 = 64 + 8 * (e >> 2) + 2 * (e & 3)
        a(f"v_lshlrev_b32 v26, 16, v{16+e}")
        a(f"v_sub_f32 v27, v26, v{m1}")
        a(f"v_mul_f32 v27, v27, v{m1+1}")
        bf16_round(a, 27, 27)
        a("v_fma_f32 v26, v27, v24, v26")
        a("v_add_f32 v15, v15, v26")
        base = 12 if e < 4 else 13
        a(f"buffer_store_dword v15, v{base}, s[52:55], 0 offen offset:{1792*(e&3)}" if 1792 * (e & 3) < 4096 else "")
        if 1792 * (e & 3) >= 4096:
            a(f"v_add_u32 v28, {1792*2}, v{base}")
            a(f"buffer_store_dword v15, v28, s[52:55], 0 offen offset:1792")
    a.label("K2_END")
    a("s_endpgm")
    return a


def desc(name, vgpr, sgpr=96):
    return f""".p2align 6
.amdhsa_kernel {name}
  .amdhsa_next_free_vgpr {vgpr}
  .amdhsa_next_free_sgpr {sgpr}
  .amdhsa_accum_offset {vgpr}
  .amdhsa_group_segment_fixed_size 0
  .amdhsa_kernarg_size 136
  .amdhsa_user_sgpr_count 2
  .amdhsa_user_sgpr_kernarg_segment_ptr 1
  .amdhsa_system_sgpr_workgroup_id_x 1
.end_amdhsa_kernel
"""


def build(opt):
    ref = open("parallel_sum__ssm_conv_s5__mixer_channel_mlp__prompt.s.ref").read() if opt.get('hdr', True) else ""
    hdr = [l for l in ref.split("\n") if l.startswith(";") and "@launch" not in l and "Override launch" not in l and "grid=ceil" not in l]
    out = "\n".join(hdr) + "\n"
    out += f"; @launch kernel=k1_kernel grid=(256,1,1) block=(512,1,1) lds={LDS_BYTES}\n"
    if not opt.get('dbg'):
        out += "; @launch kernel=k2_kernel grid=(256,1,1) block=(512,1,1) lds=0\n"
    out += '.amdgcn_target "amdgcn-amd-amdhsa--gfx950"\n.text\n'
    k1 = gen_k1(opt)
    out += ".globl k1_kernel\n.p2align 8\n.type k1_kernel,@function\nk1_kernel:\n" + k1.text()
    k2 = gen_k2(opt)
    out += ".globl k2_kernel\n.p2align 8\n.type k2_kernel,@function\nk2_kernel:\n" + k2.text()
    out += '.section .rodata,"a"\n' + desc("k1_kernel", 256) + desc("k2_kernel", 80)
    return out


if __name__ == "__main__":
    opt = {}
    outp = sys.argv[1]
    for kv in sys.argv[2:]:
        k, v = kv.split("=")
        opt[k] = v
    open(outp, "w").write(build(opt))
```

```python
import sys
from asmlib import Asm

KNAME = "parallel_sum__ssm_conv_s5__mixer_channel_mlp__prompt"

Y = 0
Q = 57344
P = 106496
RING = 12288
MISC = 155648
S2T = MISC
M2T = MISC + 256
SCR = MISC + 512
CNT = MISC + 2560
LDS_BYTES = 163840
EBUF = 0
STATS = 0x20000
PBUF = 0x100000
WS_SIZE = 0x1000000
OOB = 0x7ff00000

sSL, sRB, sWV = 38, 39, 40
sRING, sT, sT2, sBASE, sBASE2 = 41, 42, 43, 76, 77
SX, SA, SW2, SCR_, SCI, SBI, SWS, SDBG = 44, 48, 52, 56, 60, 64, 68, 72
sRING3 = 78
sCB = 79
sW2B = 80
sTMP = 82

LOG2E = 1.4426950408889634


def fhex(x):
    import struct
    return "0x%08x" % struct.unpack("<I", struct.pack("<f", x))[0]


def srd(a, dst, ptr, size):
    a(f"s_mov_b32 s{dst}, s{ptr}")
    a(f"s_mov_b32 s{dst+1}, s{ptr+1}")
    a(f"s_mov_b32 s{dst+2}, {size}")
    a(f"s_mov_b32 s{dst+3}, 0x20000")


def vr(b, n):
    return f"v[{b}:{b+n-1}]" if n > 1 else f"v{b}"


class Stream:
    def __init__(self, a, items, first_index=0):
        self.a = a
        self.items = items
        self.first = first_index
        self.next = 0

    def slot(self, i):
        return (self.first + i) % 6

    def issue(self, upto):
        a = self.a
        while self.next < min(upto, len(self.items)):
            it = self.items[self.next]
            sl = self.slot(self.next)
            a(f"s_add_u32 m0, s{it['ring']}, {sl*2048}")
            a(f"s_add_u32 s{sT}, s{it['sbase']}, {it['off']}")
            a.vmem(f"buffer_load_dwordx4 v{it['va']}, s[{it['srd']}:{it['srd']+3}], s{sT} offen lds", ('st', self.first + self.next))
            a.vmem(f"buffer_load_dwordx4 v{it['vb']}, s[{it['srd']}:{it['srd']+3}], s{sT} offen offset:1024 lds", ('st', self.first + self.next))
            self.next += 1

    def wait(self, i):
        self.a.wait_vm(('st', self.first + i))


def bf16_round(a, dst, src):
    a(f"v_cvt_pk_bf16_f32 v{dst}, v{src}, v{src}")
    a(f"v_lshlrev_b32 v{dst}, 16, v{dst}")


PROF = [False]
def stamp(a, i):
    if not PROF[0]: return
    a("s_waitcnt lgkmcnt(0)")
    a("s_memtime s[100:101]")
    a("s_waitcnt lgkmcnt(0)")
    a(f"v_writelane_b32 v0, s100, {i}")
    a.lg = []

def stamp_out(a):
    if not PROF[0]: return
    a("s_memrealtime s[100:101]")
    a("s_lshl_b32 s87, s2, 3")
    a(f"s_add_u32 s87, s87, s{sWV}")
    a("s_lshl_b32 s87, s87, 8")
    a("s_add_u32 s87, s87, 0xE00000")
    a("s_waitcnt lgkmcnt(0)")
    a("v_writelane_b32 v0, s100, 62")
    a("v_writelane_b32 v0, s99, 63")
    a("v_lshlrev_b32 v2, 2, v1")
    a(f"buffer_store_dword v0, v2, s[{SWS}:{SWS+3}], s87 offen")

def gen_k1(opt):
    a = Asm()
    PROF[0] = bool(opt.get('prof'))
    dbg = opt.get('dbg', '')
    K = f"{KNAME}_kernel" if opt.get('single') else "k1_kernel"
    a(f"s_cmp_ge_u32 s2, 256")
    a("s_cbranch_scc1 K1_END")
    a(f"s_and_b32 s{sSL}, s2, 7")
    a(f"s_cmp_eq_u32 s{sSL}, 7")
    a("s_cbranch_scc1 K1_END")
    if PROF[0]:
        a("s_memrealtime s[100:101]\n s_waitcnt lgkmcnt(0)\n s_mov_b32 s99, s100")
        a("s_memtime s[100:101]\n s_waitcnt lgkmcnt(0)\n s_mov_b32 s98, s100")
    a("s_load_dwordx16 s[4:19], s[0:1], 0")
    a("s_load_dwordx16 s[20:35], s[0:1], 64")
    a("s_load_dwordx2 s[36:37], s[0:1], 128")
    a(f"s_lshr_b32 s{sRB}, s2, 3")
    a("v_lshrrev_b32 v2, 6, v0")
    a("v_and_b32 v1, 63, v0")
    a(f"v_readfirstlane_b32 s{sWV}, v2")
    if PROF[0]:
        a("v_writelane_b32 v0, s98, 0")
    a("v_lshrrev_b32 v3, 3, v1")
    a("v_and_b32 v4, 7, v1")
    a("v_mul_u32_u24 v5, 896, v3")
    a("v_lshl_add_u32 v10, v4, 4, v5")
    a("v_lshrrev_b32 v6, 4, v1")
    a("v_and_b32 v7, 1, v6")
    a("v_lshlrev_b32 v7, 2, v7")
    a("v_xor_b32 v7, v4, v7")
    a("v_xor_b32 v8, v4, v6")
    a("v_lshl_add_u32 v31, v8, 4, v5")
    a("v_xor_b32 v11, 64, v31")
    a(f"v_add_u32 v11, {8*896-1024}, v11")
    a("v_lshl_add_u32 v29, v7, 4, v5")
    a(f"v_add_u32 v30, {8*896-1024}, v29")
    a("v_mul_u32_u24 v27, 3584, v3")
    a("v_lshl_add_u32 v27, v7, 4, v27")
    a(f"v_add_u32 v28, {8*3584-1024}, v27")
    a(f"s_lshl_b32 s{sT}, s{sRB}, 3")
    a(f"s_add_u32 s{sT}, s{sT}, s{sWV}")
    a(f"s_mul_i32 s{sBASE2}, s{sT}, {8*896}")
    a(f"s_mul_i32 s{sW2B}, s{sSL}, {256*896}")
    a(f"s_lshl_b32 s{sT}, s{sWV}, 7")
    a(f"s_add_u32 s{sW2B}, s{sW2B}, s{sT}")
    a(f"s_mul_i32 s{sCB}, s{sWV}, {64*896}")
    a(f"s_lshl_b32 s{sT}, s{sSL}, 7")
    a(f"s_add_u32 s{sCB}, s{sCB}, s{sT}")
    a("s_waitcnt lgkmcnt(0)")
    stamp(a, 11)
    srd(a, SX, 4, 2048 * 896)
    srd(a, SW2, 28, 1792 * 896)
    srd(a, SCR_, 14, 448 * 896)
    srd(a, SCI, 16, 448 * 896)
    srd(a, SBI, 12, 448 * 896)
    srd(a, SWS, 36, WS_SIZE)
    srd(a, SDBG, 34, 256)
    a(f"s_cmp_ge_u32 s{sWV}, 4")
    a("s_cbranch_scc1 K1_G1_PRE")

    srd(a, SA, 24, 448 * 3584)
    a(f"s_mul_i32 s{sRING}, s{sWV}, {RING}")
    a(f"s_add_u32 s{sRING}, s{sRING}, {P}")
    a(f"s_mov_b32 s{sRING3}, s{sRING}")
    a(f"s_lshl_b32 s{sBASE}, s{sSL}, 9")
    a(f"s_lshl_b32 s{sT}, s{sWV}, 7")
    a(f"s_add_u32 s{sBASE}, s{sBASE}, s{sT}")
    a("v_lshrrev_b32 v2, 5, v1")
    a("v_lshlrev_b32 v2, 3, v2")
    a(f"v_add_u32 v2, s{sBASE}, v2")
    for ft in range(2):
        for aa in range(4):
            a.vmem(f"global_load_dwordx2 {vr(224 + 2*(4*ft+aa), 2)}, v2, s[26:27] offset:{(32*ft+8*aa)*2}", 'bias')
    for i in range(7):
        a.vmem(f"buffer_load_dwordx4 {vr(32+4*i,4)}, v10, s[{SX}:{SX+3}], s{sBASE2} offen offset:{128*i}", 'x')
    if not opt.get('notouch'):
        a(f"s_mul_i32 s{sT}, s{sWV}, 28")
        a(f"v_add_u32 v2, s{sT}, v1")
        a("v_lshrrev_b32 v3, 3, v2")
        a("v_and_b32 v4, 7, v2")
        a(f"s_mul_i32 s{sT}, s{sRB}, 14")
        a(f"v_add_u32 v3, s{sT}, v3")
        a("v_mul_u32_u24 v3, 3584, v3")
        a("v_lshl_add_u32 v3, v4, 6, v3")
        a(f"s_lshl_b32 s{sT}, s{sSL}, 9")
        a(f"v_add_u32 v3, s{sT}, v3")
        a("v_lshlrev_b32 v4, 6, v2")
        a(f"s_lshl_b32 s{sT}, s{sSL}, 5")
        a(f"s_add_u32 s{sT}, s{sT}, s{sRB}")
        a(f"s_mul_i32 s{sT}, s{sT}, {8*896}")
        a(f"v_add_u32 v4, s{sT}, v4")
        a(f"v_mov_b32 v5, {OOB}")
        a("v_cmp_gt_u32 vcc, 28, v1")
        a("v_cndmask_b32 v3, v5, v3, vcc")
        a("v_cndmask_b32 v4, v5, v4, vcc")
        a.vmem(f"buffer_load_dword v252, v3, s[{SA}:{SA+3}], 0 offen", 'touch')
        a.vmem(f"buffer_load_dword v253, v4, s[{SW2}:{SW2+3}], 0 offen", 'touch')
    w1_items = [dict(srd=SA, va=27, vb=28, sbase=sBASE, off=16 * s * 3584, ring=sRING) for s in range(28)]
    w2_items = [dict(srd=SW2, va=29, vb=30, sbase=sW2B, off=16 * ks * 896, ring=sRING3) for ks in range(16)]
    c_items = []
    for part in range(2):
        for nt in range(2):
            for pr in range(2):
                c_items.append(dict(srd=(SCR_, SCI)[part], va=31, vb=11, sbase=sCB, off=(32 * nt + 16 * pr) * 896, ring=sRING3))
    stA = Stream(a, w1_items + w2_items + c_items, 0)
    stA.issue(6)
    vmA_state = None
    a.wait_vm('bias')
    stamp(a, 12)
    for ft in range(2):
        for aa in range(4):
            s_ = 224 + 2 * (4 * ft + aa)
            d_ = 128 + 16 * ft + 4 * aa
            a(f"v_lshlrev_b32 v{d_}, 16, v{s_}")
            a(f"v_and_b32 v{d_+1}, 0xffff0000, v{s_}")
            a(f"v_lshlrev_b32 v{d_+2}, 16, v{s_+1}")
            a(f"v_and_b32 v{d_+3}, 0xffff0000, v{s_+1}")
    stamp(a, 13)
    a.wait_vm('x')
    saved_vm_A = list(a.vm)
    a("s_branch K1_LN")

    a.label("K1_G1_PRE")
    a.vm = []
    srd(a, SA, 10, 448 * 896)
    a(f"s_sub_u32 s{sTMP}, s{sWV}, 4")
    a(f"s_mul_i32 s{sRING}, s{sTMP}, {RING}")
    a(f"s_add_u32 s{sRING3}, s{sRING}, {Y}")
    a(f"s_add_u32 s{sRING}, s{sRING}, {Q}")
    a(f"s_lshl_b32 s{sBASE}, s{sSL}, 6")
    a(f"s_lshl_b32 s{sT}, s{sTMP}, 4")
    a(f"s_add_u32 s{sBASE}, s{sBASE}, s{sT}")
    a("v_and_b32 v2, 15, v1")
    a(f"v_add_u32 v2, s{sBASE}, v2")
    a("v_lshlrev_b32 v2, 1, v2")
    a.vmem("global_load_ushort v104, v2, s[6:7]", 'par')
    a.vmem("global_load_ushort v105, v2, s[8:9]", 'par')
    a.vmem("global_load_ushort v106, v2, s[18:19]", 'par')
    for i in range(7):
        a.vmem(f"buffer_load_dwordx4 {vr(32+4*i,4)}, v10, s[{SX}:{SX+3}], s{sBASE2} offen offset:{128*i}", 'x')
    a(f"s_mul_i32 s{sBASE}, s{sBASE}, 896")
    if not opt.get('notouch'):
        a(f"s_mul_i32 s{sT}, s{sTMP}, 7")
        a(f"v_add_u32 v2, s{sT}, v1")
        a("v_lshlrev_b32 v3, 6, v2")
        a(f"s_lshl_b32 s{sT}, s{sSL}, 5")
        a(f"s_add_u32 s{sT}, s{sT}, s{sRB}")
        a(f"s_mul_i32 s{sT}, s{sT}, {2*896}")
        a(f"v_add_u32 v3, s{sT}, v3")
        a("v_lshrrev_b32 v4, 1, v2")
        a(f"s_mul_i32 s{sT}, s{sRB}, 14")
        a(f"v_add_u32 v4, s{sT}, v4")
        a("v_mul_u32_u24 v4, 896, v4")
        a("v_and_b32 v5, 1, v2")
        a("v_lshl_add_u32 v4, v5, 6, v4")
        a(f"s_lshl_b32 s{sT}, s{sSL}, 7")
        a(f"v_add_u32 v4, s{sT}, v4")
        a(f"v_mov_b32 v5, {OOB}")
        a("v_cmp_gt_u32 vcc, 7, v1")
        a("v_cndmask_b32 v3, v5, v3, vcc")
        a("v_cndmask_b32 v4, v5, v4, vcc")
        a.vmem(f"buffer_load_dword v252, v3, s[{SA}:{SA+3}], 0 offen", 'touch')
        a.vmem(f"buffer_load_dword v253, v3, s[{SBI}:{SBI+3}], 0 offen", 'touch')
        a.vmem(f"buffer_load_dword v254, v4, s[{SCR_}:{SCR_+3}], 0 offen", 'touch')
        a.vmem(f"buffer_load_dword v255, v4, s[{SCI}:{SCI+3}], 0 offen", 'touch')

    def b_issue(ds):
        sl_ = ds % 3
        a(f"s_add_u32 m0, s{sRING}, {sl_*4096}")
        a(f"s_add_u32 s{sT}, s{sBASE}, {128*ds}")
        a.vmem(f"buffer_load_dwordx4 v31, s[{SA}:{SA+3}], s{sT} offen lds", ('b', ds))
        a.vmem(f"buffer_load_dwordx4 v11, s[{SA}:{SA+3}], s{sT} offen offset:1024 lds", ('b', ds))
        a(f"s_add_u32 m0, s{sRING}, {sl_*4096+2048}")
        a.vmem(f"buffer_load_dwordx4 v31, s[{SBI}:{SBI+3}], s{sT} offen lds", ('b', ds))
        a.vmem(f"buffer_load_dwordx4 v11, s[{SBI}:{SBI+3}], s{sT} offen offset:1024 lds", ('b', ds))
    for ds in range(3):
        b_issue(ds)
    a.wait_vm('par')
    stamp(a, 12)
    LR, LI = 104, 105
    a("v_lshlrev_b32 v107, 16, v104")
    a("v_lshlrev_b32 v108, 16, v105")
    a("v_lshlrev_b32 v106, 16, v106")
    a(f"v_mul_f32 v106, {fhex(LOG2E)}, v106")
    a("v_exp_f32 v106, v106")
    bf16_round(a, 106, 106)
    a("v_mul_f32 v109, v106, v107")
    a("v_mul_f32 v110, v106, v108")
    a(f"v_mul_f32 v109, {fhex(LOG2E)}, v109")
    a("v_exp_f32 v109, v109")
    a(f"v_mul_f32 v110, {fhex(0.15915494309189535)}, v110")
    a("v_rndne_f32 v111, v110")
    a("v_sub_f32 v110, v110, v111")
    a("v_cos_f32 v111, v110")
    a("v_sin_f32 v112, v110")
    a("v_mul_f32 v104, v109, v111")
    a("v_mul_f32 v105, v109, v112")
    a("v_add_f32 v109, -1.0, v104")
    a("v_mul_f32 v110, v107, v107")
    a("v_fmac_f32 v110, v108, v108")
    a("v_rcp_f32 v110, v110")
    a("v_mul_f32 v111, v109, v107")
    a("v_fmac_f32 v111, v105, v108")
    a("v_mul_f32 v112, v105, v107")
    a("v_fma_f32 v112, -v109, v108, v112")
    a("v_add_f32 v110, v110, v110")
    CR, CI = 116, 117
    a(f"v_mul_f32 v{CR}, v111, v110")
    a(f"v_mul_f32 v{CI}, v112, v110")

    def csq(dr, di, sr, si):
        a(f"v_mul_f32 v{dr}, v{sr}, v{sr}")
        a(f"v_mul_f32 v{di}, v{sr}, v{si}")
        a(f"v_fma_f32 v{dr}, -v{si}, v{si}, v{dr}")
        a(f"v_add_f32 v{di}, v{di}, v{di}")

    def cmul(dr, di, xr, xi, yr, yi):
        a(f"v_mul_f32 v{dr}, v{xr}, v{yr}")
        a(f"v_mul_f32 v{di}, v{xr}, v{yi}")
        a(f"v_fma_f32 v{dr}, -v{xi}, v{yi}, v{dr}")
        a(f"v_fmac_f32 v{di}, v{xi}, v{yr}")
    L16R, L16I, PGR, PGI, MUR, MUI, M8R, M8I = 106, 107, 108, 109, 110, 111, 112, 113
    csq(118, 119, LR, LI)
    csq(120, 121, 118, 119)
    csq(118, 119, 120, 121)
    csq(L16R, L16I, 118, 119)
    csq(118, 119, L16R, L16I)
    cmul(120, 121, 118, 119, L16R, L16I)
    csq(MUR, MUI, 118, 119)
    a("v_lshrrev_b32 v2, 4, v1")
    a(f"v_mov_b32 v{PGR}, 1.0")
    a(f"v_mov_b32 v{PGI}, 0")
    a("v_cmp_eq_u32 vcc, 1, v2")
    a(f"v_cndmask_b32 v{PGR}, v{PGR}, v{L16R}, vcc")
    a(f"v_cndmask_b32 v{PGI}, v{PGI}, v{L16I}, vcc")
    a("v_cmp_eq_u32 vcc, 2, v2")
    a(f"v_cndmask_b32 v{PGR}, v{PGR}, v118, vcc")
    a(f"v_cndmask_b32 v{PGI}, v{PGI}, v119, vcc")
    a("v_cmp_eq_u32 vcc, 3, v2")
    a(f"v_cndmask_b32 v{PGR}, v{PGR}, v120, vcc")
    a(f"v_cndmask_b32 v{PGI}, v{PGI}, v121, vcc")
    csq(118, 119, MUR, MUI)
    csq(120, 121, 118, 119)
    csq(M8R, M8I, 120, 121)
    stamp(a, 13)
    a.wait_vm('x')
    saved_vm_B = list(a.vm)

    a.label("K1_LN")
    stamp(a, 1)
    a("v_mov_b32 v2, 0")
    a("v_mov_b32 v3, 0")
    a("v_mov_b32 v4, 0")
    a("v_mov_b32 v5, 0")
    a(f"v_mov_b32 v60, 0x3f803f80")
    for i in range(28):
        x = 32 + i
        a(f"v_dot2c_f32_bf16 v{2 + (i & 1)}, v60, v{x}")
        a(f"v_dot2c_f32_bf16 v{4 + (i & 1)}, v{x}, v{x}")
    a("v_add_f32 v2, v2, v3")
    a("v_add_f32 v4, v4, v5")
    for m in ("quad_perm:[1,0,3,2]", "quad_perm:[2,3,0,1]", "row_half_mirror"):
        a(f"v_add_f32_dpp v2, v2, v2 {m} row_mask:0xf bank_mask:0xf")
        a(f"v_add_f32_dpp v4, v4, v4 {m} row_mask:0xf bank_mask:0xf")
    inv = fhex(1.0 / 448.0)
    eps = fhex(1e-5)
    a(f"v_mul_f32 v2, {inv}, v2")
    a(f"v_mul_f32 v4, {inv}, v4")
    a("v_fma_f32 v4, -v2, v2, v4")
    a("v_max_f32 v4, 0, v4")
    bf16_round(a, 5, 2)
    bf16_round(a, 6, 4)
    a(f"v_add_f32 v6, {eps}, v6")
    bf16_round(a, 6, 6)
    a("v_sqrt_f32 v6, v6")
    bf16_round(a, 6, 6)
    a("v_rcp_f32 v6, v6")
    a("v_sub_f32 v7, v2, v5")
    a("v_mul_f32 v7, v7, v6")
    a("v_mul_f32 v8, v6, v6")
    a("v_mul_f32 v8, v8, v4")
    bf16_round(a, 7, 7)
    bf16_round(a, 8, 8)
    a(f"v_add_f32 v8, {eps}, v8")
    bf16_round(a, 8, 8)
    a("v_sqrt_f32 v8, v8")
    bf16_round(a, 8, 8)
    a("v_rcp_f32 v9, v8")
    a("v_mul_f32 v2, v6, v9")
    a("v_fma_f32 v3, v5, v6, v7")
    a("v_mul_f32 v3, v3, v9")
    a("v_sub_f32 v3, 0, v3")
    a("v_lshrrev_b32 v61, 3, v1")
    a(f"s_lshl_b32 s{sT}, s{sWV}, 3")
    a(f"v_add_u32 v62, s{sT}, v61")
    a("v_bfe_u32 v63, v62, 1, 3")
    a(f"s_lshr_b32 s{sT}, s{sWV}, 1")
    a(f"s_and_b32 s{sT2}, s{sT}, 1")
    a(f"s_mul_i32 s{sT2}, s{sT2}, 3")
    a(f"s_lshr_b32 s{sT}, s{sT}, 1")
    a(f"s_xor_b32 s{sT}, s{sT}, s{sT2}")
    a(f"s_lshl_b32 s{sT}, s{sT}, 1")
    a(f"v_xor_b32 v63, s{sT}, v63")
    a("v_and_b32 v4, 7, v1")
    a("v_xor_b32 v63, v63, v4")
    a("v_mul_u32_u24 v61, 896, v62")
    a("v_lshl_add_u32 v10, v63, 4, v61")
    a("v_lshlrev_b32 v62, 2, v62")
    a("v_cmp_eq_u32 vcc, 0, v4")
    a(f"s_and_saveexec_b64 s[{sTMP}:{sTMP+1}], vcc")
    a(f"v_add_u32 v26, {S2T}, v62")
    a(f"ds_write_b32 v26, v8")
    a(f"ds_write_b32 v26, v7 offset:{M2T-S2T}")
    a(f"s_cmp_lg_u32 s{sSL}, 0")
    a("s_cbranch_scc1 K1_NOSTAT")
    a("v_lshlrev_b32 v62, 1, v62")
    a(f"s_lshl_b32 s{sT}, s{sRB}, 9")
    a(f"s_add_u32 s{sT}, s{sT}, {STATS}")
    a("v_mov_b32 v24, v5")
    a("v_mov_b32 v25, v6")
    a(f"buffer_store_dwordx2 v[24:25], v62, s[{SWS}:{SWS+3}], s{sT} offen")
    a.label("K1_NOSTAT")
    a(f"s_mov_b64 exec, s[{sTMP}:{sTMP+1}]")
    a("v_mov_b32 v62, 0")
    a(f"v_mov_b32 v63, {CNT}")
    a("ds_write_b32 v63, v62")
    a("ds_write_b32 v63, v62 offset:4")
    for i in range(7):
        for d in range(4):
            x = 32 + 4 * i + d
            a(f"v_lshlrev_b32 v60, 16, v{x}")
            a(f"v_and_b32 v61, 0xffff0000, v{x}")
            a("v_fma_f32 v60, v60, v2, v3")
            a("v_fma_f32 v61, v61, v2, v3")
            a(f"v_cvt_pk_bf16_f32 v{x}, v60, v61")
        a(f"ds_write_b128 v10, {vr(32+4*i,4)} offset:{128*i}")
    a("s_waitcnt lgkmcnt(0)")
    stamp(a, 2)
    a("s_barrier")
    stamp(a, 3)
    if dbg == 'y2':
        dump_lds(a, 0, 57344)
        a("s_branch K1_END")
    a(f"s_cmp_ge_u32 s{sWV}, 4")
    a("s_cbranch_scc1 K1_G1")

    a.vm = list(saved_vm_A)
    a.lg = []
    a("v_lshrrev_b32 v2, 5, v1")
    a("v_bfe_u32 v3, v1, 2, 2")
    a("v_and_b32 v4, 3, v1")
    a("v_bfe_u32 v5, v1, 4, 1")
    a("v_lshlrev_b32 v6, 1, v5")
    a("v_lshrrev_b32 v7, 1, v4")
    a("v_or_b32 v6, v6, v7")
    a("v_lshrrev_b32 v7, 1, v3")
    a("v_lshlrev_b32 v7, 2, v7")
    a("v_xor_b32 v6, v6, v7")
    a("v_lshlrev_b32 v6, 4, v6")
    a("v_and_b32 v7, 1, v4")
    a("v_lshl_add_u32 v6, v7, 3, v6")
    a("v_lshl_add_u32 v7, v2, 3, v3")
    a("v_lshl_add_u32 v8, v7, 7, v6")
    a("v_lshl_add_u32 v7, v2, 2, v3")
    a("v_lshl_add_u32 v9, v7, 7, v6")
    a(f"v_add_u32 v12, s{sRING}, v8")
    a("v_xor_b32 v13, 64, v12")
    a(f"v_add_u32 v18, s{sRING3}, v9")
    a("v_xor_b32 v19, 64, v18")
    a(f"v_add_u32 v21, {Q + 8192}, v8")
    a("v_xor_b32 v22, 64, v21")
    a("v_and_b32 v3, 31, v1")
    a("v_bfe_u32 v4, v3, 1, 3")
    a("v_lshrrev_b32 v5, 4, v3")
    a("v_mul_u32_u24 v5, 6, v5")
    a("v_xor_b32 v4, v4, v5")
    a("v_xor_b32 v4, v4, v2")
    a("v_mul_u32_u24 v5, 896, v3")
    for j in range(4):
        a(f"v_xor_b32 v6, {2*j}, v4")
        a(f"v_lshl_add_u32 v{14+j}, v6, 4, v5")
    a("v_lshlrev_b32 v20, 4, v1")
    a(f"v_add_u32 v20, {Q}, v20")
    c_addr(a)

    FA = [192, 208]

    def g2_reads(s):
        b = FA[s & 1]
        so = (s % 6) * 2048
        for ft in range(2):
            for q in range(2):
                a.lds(f"ds_read_b64_tr_b16 {vr(b+4*ft+2*q,2)}, v{12+ft} offset:{so+512*q}", ('f', s))
        j = s & 3
        a.lds(f"ds_read_b128 {vr(b+8,4)}, v{14+j} offset:{128*(s>>2)}", ('f', s))
        a.lds(f"ds_read_b128 {vr(b+12,4)}, v{14+(j^1)} offset:{128*(s>>2)+28672}", ('f', s))

    stA.wait(0)
    g2_reads(0)
    for s in range(28):
        b = FA[s & 1]
        a.wait_lg(('f', s))
        stA.issue(s + 7)
        if s + 1 < 28:
            stA.wait(s + 1)
        ms = []
        for ft in range(2):
            for tt in range(2):
                acc = 64 + 32 * ft + 16 * tt
                c = vr(128 + 16 * ft, 16) if s == 0 else vr(acc, 16)
                ms.append(f"v_mfma_f32_32x32x16_bf16 {vr(acc,16)}, {vr(b+4*ft,4)}, {vr(b+8+4*tt,4)}, {c}")
        a(ms[0])
        if s + 1 < 28:
            g2_reads(s + 1)
        a(ms[1])
        a(ms[2])
        a(ms[3])
    stamp(a, 4)
    a("s_barrier")
    stamp(a, 5)
    if dbg == 'pre':
        dump_regs(a, 64, 64)
        a("s_branch K1_END")
    gelu(a)
    a.wait_lg_all()
    stamp(a, 6)
    a("s_barrier")
    stamp(a, 7)
    if dbg == 'H':
        dump_lds(a, Q, 49152)
        a("s_branch K1_END")
    g3(a, stA, 28, True)
    stamp(a, 10)
    stamp_out(a)
    a("s_branch K1_END")

    a.label("K1_G1")
    a.vm = list(saved_vm_B)
    a.lg = []
    a("v_and_b32 v2, 15, v1")
    a("v_lshrrev_b32 v3, 4, v1")
    a("v_bfe_u32 v4, v2, 1, 3")
    a("v_xor_b32 v4, v4, v3")
    a("v_lshlrev_b32 v4, 4, v4")
    a("v_lshl_add_u32 v4, v2, 7, v4")
    a(f"v_add_u32 v12, s{sRING}, v4")
    a("v_xor_b32 v13, 64, v12")
    a("v_lshrrev_b32 v4, 2, v2")
    a("v_and_b32 v5, 3, v2")
    a("v_lshl_add_u32 v6, v4, 4, v5")
    a("v_mul_u32_u24 v6, 896, v6")
    a("v_and_b32 v7, 1, v4")
    a("v_mul_u32_u24 v7, 3, v7")
    a("v_lshrrev_b32 v8, 1, v4")
    a("v_xor_b32 v7, v7, v8")
    a("v_lshlrev_b32 v7, 1, v7")
    a("v_lshrrev_b32 v8, 1, v5")
    a("v_xor_b32 v7, v7, v8")
    a("v_xor_b32 v7, v7, v3")
    for k in range(4):
        a(f"v_xor_b32 v8, {2*k}, v7")
        a(f"v_lshl_add_u32 v{14+k}, v8, 4, v6")
    for k in range(4):
        a(f"v_mov_b32 v{240+k}, 0x3f803f80")
    AF = [192, 208]
    BF = [224, 232]

    def g1_reads(s):
        ds, s1 = s >> 1, s & 1
        so = (ds % 3) * 4096
        a.lds(f"ds_read_b128 {vr(BF[s&1],4)}, v{12+s1} offset:{so}", ('f', s))
        a.lds(f"ds_read_b128 {vr(BF[s&1]+4,4)}, v{12+s1} offset:{so+2048}", ('f', s))
        for aa in range(4):
            k = (2 * s1) ^ aa
            a.lds(f"ds_read_b128 {vr(AF[s&1]+4*aa,4)}, v{14+k} offset:{aa*4*896+128*(s>>1)}", ('f', s))

    a.wait_vm(('b', 0))
    g1_reads(0)
    for s in range(14):
        a.wait_lg(('f', s))
        if s & 1 and (s >> 1) + 3 < 7:
            b_issue((s >> 1) + 3)
        if s + 1 < 14 and (s + 1) & 1 == 0:
            a.wait_vm(('b', (s + 1) >> 1))
        A_, B_ = AF[s & 1], BF[s & 1]
        ms = []
        for aa in range(4):
            for part in range(2):
                acc = 64 + 16 * part + 4 * aa
                c = "0" if s == 0 else vr(acc, 4)
                ms.append(f"v_mfma_f32_16x16x32_bf16 {vr(acc,4)}, {vr(A_+4*aa,4)}, {vr(B_+4*part,4)}, {c}")
        for part in range(2):
            acc = 96 + 4 * part
            c = "0" if s == 0 else vr(acc, 4)
            ms.append(f"v_mfma_f32_16x16x32_bf16 {vr(acc,4)}, v[240:243], {vr(B_+4*part,4)}, {c}")
        a(ms[0])
        if s + 1 < 14:
            g1_reads(s + 1)
        for m in ms[1:]:
            a(m)
    stamp(a, 4)
    a("v_lshrrev_b32 v3, 4, v1")
    a("v_lshlrev_b32 v4, 6, v3")
    a(f"v_add_u32 v4, {S2T}, v4")
    for k in range(4):
        a.lds(f"ds_read_b128 {vr(32+4*k,4)}, v4 offset:{16*k}", 'st')
        a.lds(f"ds_read_b128 {vr(48+4*k,4)}, v4 offset:{M2T-S2T+16*k}", 'st')
    a.wait_lg('st')
    for e in range(16):
        R_, I_ = 64 + e, 80 + e
        a(f"v_mul_f32 v2, v{48+e}, v96")
        a(f"v_mul_f32 v3, v{48+e}, v100")
        a(f"v_fma_f32 v2, v{32+e}, v{R_}, v2")
        a(f"v_fma_f32 v3, v{32+e}, v{I_}, v3")
        a(f"v_mul_f32 v{R_}, v{CR}, v2")
        a(f"v_mul_f32 v{I_}, v{CR}, v3")
        a(f"v_fma_f32 v{R_}, -v{CI}, v3, v{R_}")
        a(f"v_fmac_f32 v{I_}, v{CI}, v2")
    if dbg == 'bu':
        dump_regs(a, 64, 32)
        a("s_barrier\n s_barrier")
        a("s_branch K1_END")
    HR, HI, TR, TI = 2, 3, 4, 5
    a(f"v_mov_b32 v{HR}, v64")
    a(f"v_mov_b32 v{HI}, v80")
    for e in range(1, 16):
        a(f"v_fma_f32 v{TR}, v{LR}, v{HR}, v{64+e}")
        a(f"v_fma_f32 v{TI}, v{LR}, v{HI}, v{80+e}")
        a(f"v_fma_f32 v{TR}, -v{LI}, v{HI}, v{TR}")
        a(f"v_fma_f32 v{HI}, v{LI}, v{HR}, v{TI}")
        a(f"v_mov_b32 v{HR}, v{TR}")
    a("v_and_b32 v6, 15, v1")
    a("v_lshrrev_b32 v7, 4, v1")
    a("v_lshlrev_b32 v6, 5, v6")
    a(f"s_sub_u32 s{sTMP}, s{sWV}, 4")
    a(f"s_lshl_b32 s{sT}, s{sTMP}, 9")
    a(f"s_add_u32 s{sT}, s{sT}, {SCR}")
    a(f"v_add_u32 v24, s{sT}, v6")
    a("v_lshl_add_u32 v25, v7, 3, v24")
    a.lds(f"ds_write_b64 v25, v[{HR}:{HI}]", 'w')
    a.wait_lg('w')
    a.lds("ds_read_b128 v[32:35], v24", 'r')
    a.lds("ds_read_b128 v[36:39], v24 offset:16", 'r')
    a.wait_lg('r')
    def cmac(dr, di, xr, xi, yr, yi, ar, ai):
        a(f"v_fma_f32 v{dr}, v{xr}, v{yr}, v{ar}")
        a(f"v_fma_f32 v{di}, v{xr}, v{yi}, v{ai}")
        a(f"v_fma_f32 v{dr}, -v{xi}, v{yi}, v{dr}")
        a(f"v_fmac_f32 v{di}, v{xi}, v{yr}")
    cmac(40, 41, L16R, L16I, 32, 33, 34, 35)
    cmac(42, 43, L16R, L16I, 40, 41, 36, 37)
    cmac(44, 45, L16R, L16I, 42, 43, 38, 39)
    XR, XI = 122, 123
    a(f"v_mov_b32 v{XR}, 0")
    a(f"v_mov_b32 v{XI}, 0")
    for g, (r_, i_) in ((1, (32, 33)), (2, (40, 41)), (3, (42, 43))):
        a(f"v_cmp_eq_u32 vcc, {g}, v7")
        a(f"v_cndmask_b32 v{XR}, v{XR}, v{r_}, vcc")
        a(f"v_cndmask_b32 v{XI}, v{XI}, v{i_}, vcc")
    a(f"s_lshl_b32 s{sT}, s{sSL}, 5")
    a(f"s_add_u32 s{sT}, s{sT}, s{sRB}")
    a(f"s_lshl_b32 s{sT}, s{sT}, 9")
    a(f"s_lshl_b32 s{sT2}, s{sTMP}, 7")
    a(f"s_add_u32 s{sT}, s{sT}, s{sT2}")
    a("v_and_b32 v6, 15, v1")
    a("v_lshlrev_b32 v6, 3, v6")
    a("v_cmp_eq_u32 vcc, 0, v7")
    a(f"s_and_saveexec_b64 s[{sTMP+2}:{sTMP+3}], vcc")
    a(f"buffer_store_dwordx2 v[44:45], v6, s[{SWS}:{SWS+3}], s{sT} offen sc1")
    a(f"s_mov_b64 exec, s[{sTMP+2}:{sTMP+3}]")
    a("s_waitcnt vmcnt(0)")
    a.vm = []
    a(f"v_mov_b32 v8, {CNT}")
    a("v_mov_b32 v9, 1")
    a("v_cmp_eq_u32 vcc, 0, v1")
    a(f"s_and_saveexec_b64 s[{sTMP+2}:{sTMP+3}], vcc")
    a("ds_add_rtn_u32 v9, v8, v9")
    a("s_waitcnt lgkmcnt(0)")
    a(f"v_readfirstlane_b32 s{sT}, v9")
    a(f"s_cmp_lg_u32 s{sT}, 3")
    a("s_cbranch_scc1 K1_NOFLAG")
    a(f"s_lshl_b32 s{sT}, 1, s{sRB}")
    a(f"v_mov_b32 v9, s{sT}")
    a(f"s_lshl_b32 s{sT2}, s{sSL}, 5")
    a(f"v_mov_b32 v8, s{sT2}")
    a(f"buffer_atomic_or v9, v8, s[{SDBG}:{SDBG+3}], 0 offen sc1")
    a.label("K1_NOFLAG")
    a(f"s_mov_b64 exec, s[{sTMP+2}:{sTMP+3}]")
    stamp(a, 5)
    a(f"s_cmp_eq_u32 s{sWV}, 4")
    a("s_cbranch_scc0 K1_LPOLL")
    a(f"s_lshl_b32 s{sT}, 1, s{sRB}")
    a(f"s_sub_u32 s{sTMP+4}, s{sT}, 1")
    a(f"s_lshl_b32 s{sT2}, s{sSL}, 5")
    a(f"v_mov_b32 v8, s{sT2}")
    a.label("K1_POLL")
    a(f"buffer_load_dword v9, v8, s[{SDBG}:{SDBG+3}], 0 offen sc1")
    a("s_waitcnt vmcnt(0)")
    a(f"v_readfirstlane_b32 s{sT}, v9")
    a(f"s_and_b32 s{sT}, s{sT}, s{sTMP+4}")
    a(f"s_cmp_eq_u32 s{sT}, s{sTMP+4}")
    a("s_cbranch_scc1 K1_GOT")
    a("s_sleep 8")
    a("s_branch K1_POLL")
    a.label("K1_GOT")
    a(f"v_mov_b32 v8, {CNT+4}")
    a("v_mov_b32 v9, 1")
    a("ds_write_b32 v8, v9")
    a("s_waitcnt lgkmcnt(0)")
    a("s_branch K1_POLLED")
    a.label("K1_LPOLL")
    a(f"v_mov_b32 v8, {CNT+4}")
    a.label("K1_LPOLL2")
    a("ds_read_b32 v9, v8")
    a("s_waitcnt lgkmcnt(0)")
    a(f"v_readfirstlane_b32 s{sT}, v9")
    a(f"s_cmp_eq_u32 s{sT}, 1")
    a("s_cbranch_scc1 K1_POLLED")
    a("s_sleep 1")
    a("s_branch K1_LPOLL2")
    a.label("K1_POLLED")
    stamp(a, 6)
    a(f"s_sub_u32 s{sT}, s{sRB}, 32")
    a(f"v_lshl_add_u32 v8, v7, 3, s{sT}")
    a(f"s_lshl_b32 s{sT}, s{sSL}, 14")
    a(f"s_lshl_b32 s{sT2}, s{sTMP}, 7")
    a(f"s_add_u32 s{sT}, s{sT}, s{sT2}")
    a(f"v_add_u32 v6, s{sT}, v6")
    a(f"v_mov_b32 v26, {OOB}")
    for j in range(8):
        a(f"v_add_u32 v9, {j}, v8")
        a(f"v_lshl_add_u32 v23, v9, 9, v6")
        a("v_cmp_gt_i32 vcc, 0, v9")
        a("v_cndmask_b32 v23, v23, v26, vcc")
        a.vmem(f"buffer_load_dwordx2 {vr(32+2*j,2)}, v23, s[{SWS}:{SWS+3}], 0 offen sc1", 'e')
    a.wait_vm('e')
    a("v_mov_b32 v2, v32")
    a("v_mov_b32 v3, v33")
    for j in range(1, 8):
        cmac(4, 5, MUR, MUI, 2, 3, 32 + 2 * j, 33 + 2 * j)
        a("v_mov_b32 v2, v4")
        a("v_mov_b32 v3, v5")
    a.lds("ds_write_b64 v25, v[2:3]", 'w')
    a.wait_lg('w')
    a.lds("ds_read_b128 v[32:35], v24", 'r')
    a.lds("ds_read_b128 v[36:39], v24 offset:16", 'r')
    a.wait_lg('r')
    cmac(40, 41, M8R, M8I, 32, 33, 34, 35)
    cmac(42, 43, M8R, M8I, 40, 41, 36, 37)
    cmac(44, 45, M8R, M8I, 42, 43, 38, 39)
    cmac(HR, HI, PGR, PGI, 44, 45, XR, XI)
    prev = None
    for e in range(16):
        a(f"v_fma_f32 v{TR}, v{LR}, v{HR}, v{64+e}")
        a(f"v_fma_f32 v{TI}, v{LR}, v{HI}, v{80+e}")
        a(f"v_fma_f32 v{TR}, -v{LI}, v{HI}, v{TR}")
        a(f"v_fma_f32 v{HI}, v{LI}, v{HR}, v{TI}")
        a(f"v_mov_b32 v{HR}, v{TR}")
        if e & 1 == 0:
            a(f"v_mov_b32 v6, v{HR}")
            a(f"v_mov_b32 v7, v{HI}")
        else:
            a(f"v_cvt_pk_bf16_f32 v{32 + e//2}, v6, v{HR}")
            a(f"v_cvt_pk_bf16_f32 v{40 + e//2}, -v7, -v{HI}")
    a("v_and_b32 v2, 15, v1")
    a("v_lshrrev_b32 v3, 4, v1")
    a("v_lshlrev_b32 v3, 1, v3")
    a("v_bfe_u32 v4, v2, 1, 1")
    a("v_lshlrev_b32 v4, 2, v4")
    a("v_xor_b32 v3, v3, v4")
    a("v_lshlrev_b32 v3, 4, v3")
    a("v_lshl_add_u32 v3, v2, 7, v3")
    a(f"v_add_u32 v3, s{sRING}, v3")
    a.lds("ds_write_b128 v3, v[32:35] offset:8192", 'w')
    a.lds("ds_write_b128 v3, v[36:39] offset:8208", 'w')
    a.lds("ds_write_b128 v3, v[40:43] offset:10240", 'w')
    a.lds("ds_write_b128 v3, v[44:47] offset:10256", 'w')
    a("v_lshrrev_b32 v2, 5, v1")
    a("v_bfe_u32 v3, v1, 2, 2")
    a("v_and_b32 v4, 3, v1")
    a("v_bfe_u32 v5, v1, 4, 1")
    a("v_lshlrev_b32 v6, 1, v5")
    a("v_lshrrev_b32 v7, 1, v4")
    a("v_or_b32 v6, v6, v7")
    a("v_lshrrev_b32 v7, 1, v3")
    a("v_lshlrev_b32 v7, 2, v7")
    a("v_xor_b32 v6, v6, v7")
    a("v_lshlrev_b32 v6, 4, v6")
    a("v_and_b32 v7, 1, v4")
    a("v_lshl_add_u32 v6, v7, 3, v6")
    a("v_lshl_add_u32 v7, v2, 3, v3")
    a("v_lshl_add_u32 v8, v7, 7, v6")
    a("v_lshl_add_u32 v7, v2, 2, v3")
    a("v_lshl_add_u32 v9, v7, 7, v6")
    a(f"v_add_u32 v18, s{sRING3}, v9")
    a("v_xor_b32 v19, 64, v18")
    a(f"v_add_u32 v21, {Q + 8192}, v8")
    a("v_xor_b32 v22, 64, v21")
    a("v_lshlrev_b32 v20, 4, v1")
    a(f"v_add_u32 v20, {Q}, v20")
    c_addr(a)
    a.wait_lg_all()
    stamp(a, 7)
    a("s_barrier")
    stamp(a, 8)
    if dbg in ('pre',):
        a("s_branch K1_END")
    if dbg == 'H':
        a("s_barrier")
        a("s_branch K1_END")
    a(f"s_cmp_eq_u32 s{sWV}, 7")
    a("s_cbranch_scc0 K1_G3B")
    a("s_barrier")
    stamp(a, 10)
    stamp_out(a)
    a("s_branch K1_END")
    a.label("K1_G3B")
    stB = Stream(a, c_items + w2_items, 2)
    a.vm = []
    g3(a, stB, 0, False)
    stamp(a, 10)
    stamp_out(a)
    a.label("K1_END")
    a("s_endpgm")
    return a


def c_addr(a):
    a("v_and_b32 v3, 31, v1")
    a("v_lshrrev_b32 v2, 5, v1")
    a("v_bfe_u32 v4, v3, 1, 3")
    a("v_xor_b32 v4, v4, v2")
    a("v_lshlrev_b32 v4, 4, v4")
    a("v_lshl_add_u32 v4, v3, 7, v4")
    a(f"v_add_u32 v23, s{sRING3}, v4")
    for cg in range(1, 4):
        a(f"v_xor_b32 v{23+cg}, {32*cg}, v23")


def gelu(a):
    c1 = -2.0 * 0.7978845608028654 * LOG2E
    c2 = c1 * 0.044715
    a(f"s_mov_b32 s{sT}, {fhex(c1)}")
    a(f"s_mov_b32 s{sT2}, {fhex(c2)}")
    a(f"v_mov_b32 v60, s{sT}")
    a(f"s_mul_i32 s{sTMP}, s{sWV}, {RING}")
    a(f"s_add_u32 s{sTMP}, s{sTMP}, {Q}")
    a("v_lshlrev_b32 v61, 4, v1")
    a(f"v_add_u32 v61, s{sTMP}, v61")
    for ft in range(2):
        for tt in range(2):
            acc = 64 + 32 * ft + 16 * tt
            for half in range(2):
                xs = [acc + 8 * half + e for e in range(8)]
                T = [32 + e for e in range(8)]
                U = [40 + e for e in range(8)]
                for e in range(8):
                    a(f"v_mul_f32 v{T[e]}, v{xs[e]}, v{xs[e]}")
                for e in range(8):
                    a(f"v_fma_f32 v{T[e]}, v{T[e]}, s{sT2}, v60")
                for e in range(8):
                    a(f"v_mul_f32 v{T[e]}, v{T[e]}, v{xs[e]}")
                for e in range(8):
                    a(f"v_exp_f32 v{T[e]}, v{T[e]}")
                for e in range(8):
                    a(f"v_add_f32 v{T[e]}, 1.0, v{T[e]}")
                for e in range(8):
                    a(f"v_rcp_f32 v{T[e]}, v{T[e]}")
                for e in range(8):
                    a(f"v_mul_f32 v{T[e]}, v{T[e]}, v{xs[e]}")
                for d in range(4):
                    a(f"v_cvt_pk_bf16_f32 v{U[d]}, v{T[2*d]}, v{T[2*d+1]}")
                a.lds(f"ds_write_b128 v61, {vr(U[0],4)} offset:{((2*ft+half)*2+tt)*1024}", 'hw')
                if len(a.lg) >= 8:
                    a.wait_lg_all()


def g3(a, st, base, mlp_first):
    FA = [192, 208]
    CF = 224
    mlp_base = base if mlp_first else base + 8
    ssm_base = base + 16 if mlp_first else base
    first = [True]

    def mfmas(Aregs, Bregs):
        ms = []
        for tt in range(2):
            for nt in range(2):
                acc = 128 + 32 * tt + 16 * nt
                c = "0" if first[0] else vr(acc, 16)
                ms.append(f"v_mfma_f32_32x32x16_bf16 {vr(acc,16)}, {vr(Aregs[tt],4)}, {vr(Bregs[nt],4)}, {c}")
        first[0] = False
        return ms

    def mlp_reads(ks, buf):
        b = FA[buf]
        so = st.slot(mlp_base + ks) * 2048
        for nt in range(2):
            for q in range(2):
                a.lds(f"ds_read_b64_tr_b16 {vr(b+8+4*nt+2*q,2)}, v{18+nt} offset:{so+1024*q}", ('m', ks))
        for tt in range(2):
            a.lds(f"ds_read_b128 {vr(b+4*tt,4)}, v20 offset:{12288*(ks>>2)+((ks&3)*2+tt)*1024}", ('m', ks))

    def ssm_areads(k, buf):
        part, cg = k >> 2, k & 3
        b = FA[buf]
        for tt in range(2):
            for q in range(2):
                a.lds(f"ds_read_b64_tr_b16 {vr(b+4*tt+2*q,2)}, v{21+tt} offset:{12288*cg+2048*part+512*q}", ('s', k))

    def c_reads(part):
        for nt in range(2):
            i0 = ssm_base + 4 * part + 2 * nt
            so = st.slot(i0) * 2048
            assert st.slot(i0 + 1) == st.slot(i0) + 1
            for cg in range(4):
                a.lds(f"ds_read_b128 {vr(CF+8*cg+4*nt,4)}, v{23+cg} offset:{so}", ('c', part))

    def run_mlp():
        st.wait(mlp_base)
        mlp_reads(0, 0)
        for ks in range(16):
            a.wait_lg(('m', ks))
            st.issue(mlp_base + ks + 7)
            if ks + 1 < 16:
                st.wait(mlp_base + ks + 1)
            b = FA[ks & 1]
            ms = mfmas([b, b + 4], [b + 8, b + 12])
            a(ms[0])
            if ks + 1 < 16:
                mlp_reads(ks + 1, (ks + 1) & 1)
            for m in ms[1:]:
                a(m)

    def run_ssm():
        for part in range(2):
            st.wait(ssm_base + 4 * part + 3)
            c_reads(part)
            ssm_areads(4 * part, 0)
            a.wait_lg(('c', part))
            st.issue(ssm_base + 4 * part + 4 + 6)
            for cg in range(4):
                k = 4 * part + cg
                a.wait_lg(('s', k))
                b = FA[cg & 1]
                ms = mfmas([b, b + 4], [CF + 8 * cg, CF + 8 * cg + 4])
                a(ms[0])
                if cg + 1 < 4:
                    ssm_areads(k + 1, (cg + 1) & 1)
                for m in ms[1:]:
                    a(m)

    if mlp_first:
        run_mlp()
        stamp(a, 8)
        run_ssm()
        stamp(a, 9)
    else:
        st.issue(6)
        run_ssm()
        stamp(a, 9)
        a("s_barrier")
        run_mlp()
    a(f"s_mul_i32 s{sT}, s{sRB}, 7")
    a(f"s_add_u32 s{sT}, s{sT}, s{sWV}")
    a(f"s_mul_i32 s{sT}, s{sT}, 56")
    a(f"s_add_u32 s{sT}, s{sT}, s{sSL}")
    a(f"s_lshl_b32 s{sT}, s{sT}, 10")
    a(f"s_add_u32 s{sT}, s{sT}, {PBUF}")
    a("v_lshlrev_b32 v2, 4, v1")
    for tt in range(2):
        for nt in range(2):
            acc = 128 + 32 * tt + 16 * nt
            for hf in range(2):
                v_ = tt * 4 + nt * 2 + hf
                d = 32 + 4 * (v_ & 3)
                for k in range(4):
                    a(f"v_cvt_pk_bf16_f32 v{d+k}, v{acc+8*hf+2*k}, v{acc+8*hf+2*k+1}")
                a(f"s_add_u32 s{sT2}, s{sT}, {v_*7*1024}")
                a(f"buffer_store_dwordx4 {vr(d,4)}, v2, s[{SWS}:{SWS+3}], s{sT2} offen sc1")


def dump_lds(a, base, nbytes):
    a("s_lshl_b32 s90, s2, 16")
    a("s_add_u32 s90, s90, 0x800000")
    a("v_lshlrev_b32 v2, 4, v0")
    n = (nbytes + 8191) // 8192
    for i in range(n):
        a(f"v_add_u32 v3, {base + 8192*i}, v2")
        a("ds_read_b128 v[4:7], v3")
        a("s_waitcnt lgkmcnt(0)")
        a(f"v_add_u32 v3, {8192*i}, v2")
        a(f"buffer_store_dwordx4 v[4:7], v3, s[{SWS}:{SWS+3}], s90 offen")
        a("s_waitcnt vmcnt(0)")


def dump_regs(a, base, n):
    a("s_lshl_b32 s90, s2, 3")
    a(f"s_add_u32 s90, s90, s{sWV}")
    a("s_lshl_b32 s90, s90, 14")
    a("s_add_u32 s90, s90, 0x800000")
    a("v_lshlrev_b32 v2, 2, v1")
    a("s_nop 15")
    for i in range(n):
        a(f"buffer_store_dword v{base+i}, v2, s[{SWS}:{SWS+3}], s90 offen")
        a("s_add_u32 s90, s90, 256")
    a("s_waitcnt vmcnt(0)")


def gen_k2(opt):
    a = Asm()
    a("s_cmp_ge_u32 s2, 256")
    a("s_cbranch_scc1 K2_END")
    a("s_and_b32 s38, s2, 7")
    a("s_cmp_eq_u32 s38, 7")
    a("s_cbranch_scc1 K2_END")
    a("s_load_dwordx2 s[4:5], s[0:1], 0")
    a("s_load_dwordx2 s[6:7], s[0:1], 64")
    a("s_load_dwordx2 s[8:9], s[0:1], 104")
    a("s_load_dwordx2 s[10:11], s[0:1], 112")
    a("s_load_dwordx2 s[12:13], s[0:1], 128")
    a("s_lshr_b32 s39, s2, 3")
    a("v_lshrrev_b32 v2, 6, v0")
    a("v_and_b32 v1, 63, v0")
    a("v_readfirstlane_b32 s40, v2")
    a("v_and_b32 v3, 31, v1")
    a("v_lshrrev_b32 v4, 5, v1")
    a("s_lshr_b32 s41, s40, 2")
    a("s_bfe_u32 s42, s40, 0x10001")
    a("s_and_b32 s43, s40, 1")
    a("s_lshl_b32 s44, s38, 6")
    a("s_lshl_b32 s45, s42, 5")
    a("s_add_u32 s44, s44, s45")
    a("v_add_u32 v5, s44, v3")
    a("s_lshl_b32 s45, s39, 6")
    a("s_lshl_b32 s46, s41, 5")
    a("s_add_u32 s45, s45, s46")
    a("s_lshl_b32 s46, s43, 4")
    a("s_add_u32 s45, s45, s46")
    a("v_lshl_add_u32 v6, v4, 2, s45")
    a("s_mul_i32 s46, s39, 7")
    a("s_add_u32 s46, s46, s38")
    a("s_lshl_b32 s46, s46, 3")
    a("s_add_u32 s46, s46, s40")
    a("s_mul_i32 s46, s46, 7168")
    a(f"s_add_u32 s46, s46, {PBUF}")
    a("v_lshlrev_b32 v7, 4, v1")
    a("s_waitcnt lgkmcnt(0)")
    srd(a, 48, 4, 2048 * 896)
    srd(a, 52, 10, 2048 * 1792)
    srd(a, 56, 12, WS_SIZE)
    for s_ in range(7):
        a(f"buffer_load_dwordx4 {vr(32+4*s_,4)}, v7, s[56:59], s46 offen")
        a("s_add_u32 s46, s46, 1024")
    a("v_mul_u32_u24 v8, 896, v6")
    a("v_lshl_add_u32 v8, v5, 1, v8")
    for e in range(8):
        a(f"buffer_load_ushort v{16+e}, v8, s[48:51], 0 offen offset:{896*(8*(e>>2)+(e&3))}" if 896 * (8 * (e >> 2) + (e & 3)) < 4096 else "")
        if 896 * (8 * (e >> 2) + (e & 3)) >= 4096:
            a(f"v_add_u32 v9, {896*8}, v8")
            a(f"buffer_load_ushort v{16+e}, v9, s[48:51], 0 offen offset:{896*(e&3)}")
    a("v_lshlrev_b32 v10, 3, v6")
    a(f"s_mov_b32 s47, {STATS}")
    a("buffer_load_dwordx4 v[64:67], v10, s[56:59], s47 offen")
    a("buffer_load_dwordx4 v[68:71], v10, s[56:59], s47 offen offset:16")
    a("buffer_load_dwordx4 v[72:75], v10, s[56:59], s47 offen offset:64")
    a("buffer_load_dwordx4 v[76:79], v10, s[56:59], s47 offen offset:80")
    a("v_lshlrev_b32 v11, 1, v5")
    a("global_load_ushort v24, v11, s[6:7]")
    a("global_load_ushort v25, v11, s[8:9]")
    a("v_mul_u32_u24 v12, 1792, v6")
    a("v_lshl_add_u32 v12, v5, 2, v12")
    a(f"v_add_u32 v13, {1792*8}, v12")
    a("s_waitcnt vmcnt(0)")
    a("v_lshlrev_b32 v24, 16, v24")
    a("v_lshlrev_b32 v25, 16, v25")
    for e in range(8):
        d, hi = e >> 1, e & 1
        for s_ in range(7):
            r = 32 + 4 * s_ + d
            if hi:
                a(f"v_and_b32 v14, 0xffff0000, v{r}")
            else:
                a(f"v_lshlrev_b32 v14, 16, v{r}")
            if s_ == 0:
                a("v_add_f32 v15, v25, v14")
            else:
                a("v_add_f32 v15, v15, v14")
        m1 = 64 + 8 * (e >> 2) + 2 * (e & 3)
        a(f"v_lshlrev_b32 v26, 16, v{16+e}")
        a(f"v_sub_f32 v27, v26, v{m1}")
        a(f"v_mul_f32 v27, v27, v{m1+1}")
        bf16_round(a, 27, 27)
        a("v_fma_f32 v26, v27, v24, v26")
        a("v_add_f32 v15, v15, v26")
        base = 12 if e < 4 else 13
        a(f"buffer_store_dword v15, v{base}, s[52:55], 0 offen offset:{1792*(e&3)}" if 1792 * (e & 3) < 4096 else "")
        if 1792 * (e & 3) >= 4096:
            a(f"v_add_u32 v28, {1792*2}, v{base}")
            a(f"buffer_store_dword v15, v28, s[52:55], 0 offen offset:1792")
    a.label("K2_END")
    a("s_endpgm")
    return a


def desc(name, vgpr, sgpr=102):
    return f""".p2align 6
.amdhsa_kernel {name}
  .amdhsa_next_free_vgpr {vgpr}
  .amdhsa_next_free_sgpr {sgpr}
  .amdhsa_accum_offset {vgpr}
  .amdhsa_group_segment_fixed_size 0
  .amdhsa_kernarg_size 136
  .amdhsa_user_sgpr_count 2
  .amdhsa_user_sgpr_kernarg_segment_ptr 1
  .amdhsa_system_sgpr_workgroup_id_x 1
.end_amdhsa_kernel
"""


def build(opt):
    ref = open("parallel_sum__ssm_conv_s5__mixer_channel_mlp__prompt.s.ref").read() if opt.get('hdr', True) else ""
    hdr = [l for l in ref.split("\n") if l.startswith(";") and "@launch" not in l and "Override launch" not in l and "grid=ceil" not in l]
    out = "\n".join(hdr) + "\n"
    out += f"; @launch kernel=k1_kernel grid=(256,1,1) block=(512,1,1) lds={LDS_BYTES}\n"
    if not opt.get('dbg'):
        out += "; @launch kernel=k2_kernel grid=(256,1,1) block=(512,1,1) lds=0\n"
    out += '.amdgcn_target "amdgcn-amd-amdhsa--gfx950"\n.text\n'
    k1 = gen_k1(opt)
    out += ".globl k1_kernel\n.p2align 8\n.type k1_kernel,@function\nk1_kernel:\n" + k1.text()
    k2 = gen_k2(opt)
    out += ".globl k2_kernel\n.p2align 8\n.type k2_kernel,@function\nk2_kernel:\n" + k2.text()
    out += '.section .rodata,"a"\n' + desc("k1_kernel", 256) + desc("k2_kernel", 80)
    return out


if __name__ == "__main__":
    opt = {}
    outp = sys.argv[1]
    for kv in sys.argv[2:]:
        k, v = kv.split("=")
        opt[k] = v
    open(outp, "w").write(build(opt))
```

```python
import sys
from asmlib import Asm

KNAME = "parallel_sum__ssm_conv_s5__mixer_channel_mlp__prompt"

Y = 0
Q = 57344
P = 106496
RING = 12288
MISC = 155648
S2T = MISC
M2T = MISC + 256
SCR = MISC + 512
CNT = MISC + 2560
LDS_BYTES = 163840
EBUF = 0
STATS = 0x20000
INBOX = 0x40000
PBUF = 0x100000
WS_SIZE = 0x1000000
OOB = 0x7ff00000

sSL, sRB, sWV = 38, 39, 40
sRING, sT, sT2, sBASE, sBASE2 = 41, 42, 43, 76, 77
SX, SA, SW2, SCR_, SCI, SBI, SWS, SDBG = 44, 48, 52, 56, 60, 64, 68, 72
sRING3 = 78
sCB = 79
sW2B = 80
sTMP = 82
sP0, sINC0, sINC1, sOFF, sJS = 88, 89, 90, 91, 92
sPA = 94
sDUM = 97

LOG2E = 1.4426950408889634


def fhex(x):
    import struct
    return "0x%08x" % struct.unpack("<I", struct.pack("<f", x))[0]


def srd(a, dst, ptr, size):
    a(f"s_mov_b32 s{dst}, s{ptr}")
    a(f"s_mov_b32 s{dst+1}, s{ptr+1}")
    a(f"s_mov_b32 s{dst+2}, {size}")
    a(f"s_mov_b32 s{dst+3}, 0x20000")


def vr(b, n):
    return f"v[{b}:{b+n-1}]" if n > 1 else f"v{b}"


class Stream:
    def __init__(self, a, items, first_index=0):
        self.a = a
        self.items = items
        self.first = first_index
        self.next = 0

    def slot(self, i):
        return (self.first + i) % 6

    def issue(self, upto):
        a = self.a
        while self.next < min(upto, len(self.items)):
            it = self.items[self.next]
            sl = self.slot(self.next)
            a(f"s_add_u32 m0, s{it['ring']}, {sl*2048}")
            a(f"s_add_u32 s{sT}, s{it['sbase']}, {it['off']}")
            a.vmem(f"buffer_load_dwordx4 v{it['va']}, s[{it['srd']}:{it['srd']+3}], s{sT} offen lds", ('st', self.first + self.next))
            a.vmem(f"buffer_load_dwordx4 v{it['vb']}, s[{it['srd']}:{it['srd']+3}], s{sT} offen offset:1024 lds", ('st', self.first + self.next))
            self.next += 1

    def wait(self, i):
        self.a.wait_vm(('st', self.first + i))

    def parts(self, upto):
        a = self.a
        out = []
        while self.next < min(upto, len(self.items)):
            it = self.items[self.next]
            sl = self.slot(self.next)
            idx = self.first + self.next

            def setup(it=it, sl=sl):
                a(f"s_add_u32 m0, s{it['ring']}, {sl*2048}")
                a(f"s_add_u32 s{sT}, s{it['sbase']}, {it['off']}")

            def da(it=it, idx=idx):
                a.vmem(f"buffer_load_dwordx4 v{it['va']}, s[{it['srd']}:{it['srd']+3}], s{sT} offen lds", ('st', idx))

            def db(it=it, idx=idx):
                a.vmem(f"buffer_load_dwordx4 v{it['vb']}, s[{it['srd']}:{it['srd']+3}], s{sT} offen offset:1024 lds", ('st', idx))
            out.append((setup, da, db))
            self.next += 1
        return out


def signal(a, off):
    a(f"v_mov_b32 v2, {CNT+off}")
    a("v_mov_b32 v3, 1")
    a("s_mov_b64 exec, 1")
    a("ds_add_u32 v2, v3")
    a("s_mov_b64 exec, -1")


_spin = [0]
def spin(a, off, n):
    _spin[0] += 1
    L = f"K1_SPIN{_spin[0]}"
    a(f"v_mov_b32 v2, {CNT+off}")
    a.label(L)
    a("ds_read_b32 v3, v2")
    a("s_waitcnt lgkmcnt(0)")
    a(f"v_readfirstlane_b32 s{sT}, v3")
    a(f"s_cmp_ge_u32 s{sT}, {n}")
    a(f"s_cbranch_scc1 {L}_D")
    a("s_sleep 1")
    a(f"s_branch {L}")
    a.label(L + "_D")
    a.lg = []


def bf16_round(a, dst, src):
    a(f"v_cvt_pk_bf16_f32 v{dst}, v{src}, v{src}")
    a(f"v_lshlrev_b32 v{dst}, 16, v{dst}")


PROF = [False]
XS = [False]
STORESYNC = [True]
PRIOSW = [True]
def stamp(a, i):
    if not PROF[0]: return
    a("s_waitcnt lgkmcnt(0)")
    a("s_memtime s[100:101]")
    a("s_waitcnt lgkmcnt(0)")
    a(f"v_writelane_b32 v0, s100, {i}")
    a.lg = []

LS = [0]
def lstamp(a):
    if not PROF[0]: return
    a(f"s_memtime s[{4+2*LS[0]}:{5+2*LS[0]}]")
    LS[0] += 1

def lflush(a, lane0):
    if not PROF[0]: return
    a("s_waitcnt lgkmcnt(0)")
    a.lg = []
    for i in range(LS[0]):
        a(f"v_writelane_b32 v0, s{4+2*i}, {lane0+i}")
    LS[0] = 0

def stamp_out(a):
    if not PROF[0]: return
    a("s_memrealtime s[100:101]")
    a("s_lshl_b32 s87, s2, 3")
    a(f"s_add_u32 s87, s87, s{sWV}")
    a("s_lshl_b32 s87, s87, 8")
    a("s_add_u32 s87, s87, 0xE00000")
    a("s_waitcnt lgkmcnt(0)")
    a("v_writelane_b32 v0, s100, 62")
    a("v_writelane_b32 v0, s99, 63")
    a("v_lshlrev_b32 v2, 2, v1")
    a(f"buffer_store_dword v0, v2, s[{SWS}:{SWS+3}], s87 offen")

def gen_k1(opt):
    a = Asm()
    PROF[0] = bool(opt.get('prof'))
    XS[0] = bool(opt.get('x_g3'))
    STORESYNC[0] = opt.get('ssync', '0') == '1'
    PRIOSW[0] = opt.get('priosw', '1') == '1'
    D2 = int(opt.get('d2', 4))
    NPRE = 4
    a(f"s_cmp_ge_u32 s2, 256")
    a("s_cbranch_scc1 K1_END")
    R = int(opt.get('R', 2))
    S_ = 8 // R
    RBG = 32 // R
    lg = lambda x: x.bit_length() - 1
    a(f"s_and_b32 s{sT}, s2, 7")
    a(f"s_lshr_b32 s{sT2}, s2, 3")
    a(f"s_and_b32 s{sJS}, s{sT2}, {RBG-1}")
    a(f"s_lshr_b32 s{sRB}, s{sT}, {lg(S_)}")
    a(f"s_mul_i32 s{sSL}, s{sJS}, {R}")
    a(f"s_add_u32 s{sRB}, s{sRB}, s{sSL}")
    a(f"s_and_b32 s{sSL}, s{sT}, {S_-1}")
    a(f"s_mul_i32 s{sSL}, s{sSL}, {R}")
    a(f"s_lshr_b32 s{sT2}, s{sT2}, {lg(RBG)}")
    a(f"s_add_u32 s{sSL}, s{sSL}, s{sT2}")
    a(f"s_cmp_ge_u32 s{sSL}, 7")
    a("s_cbranch_scc1 K1_COLL")
    if PROF[0]:
        a("s_memrealtime s[100:101]\n s_waitcnt lgkmcnt(0)\n s_mov_b32 s99, s100")
        a("s_memtime s[100:101]\n s_waitcnt lgkmcnt(0)\n s_mov_b32 s98, s100")
    a("s_load_dwordx16 s[4:19], s[0:1], 0")
    a("s_load_dwordx16 s[20:35], s[0:1], 64")
    a("s_load_dwordx2 s[36:37], s[0:1], 128")
    a("v_lshrrev_b32 v2, 6, v0")
    a("v_and_b32 v1, 63, v0")
    if opt.get('ctouch', '1') == '1':
        NL = int(opt.get('cnl', 5))
        a("s_getpc_b64 s[94:95]")
        a.label("K1_PC")
        a("s_sub_u32 s94, s94, K1_PC-k1_kernel")
        a("s_subb_u32 s95, s95, 0")
        a("s_lshr_b32 s96, s2, 3")
        a(f"s_mul_i32 s96, s96, {NL*128}")
        a("v_lshlrev_b32 v3, 7, v0")
        a("v_add_u32 v3, s96, v3")
        a(f"v_cmp_gt_u32 s[84:85], {NL}, v0")
        a("v_cmp_gt_u32 vcc, K1_END-k1_kernel, v3")
        a("s_and_b64 vcc, vcc, s[84:85]")
        a("s_and_saveexec_b64 s[96:97], vcc")
        a("s_cbranch_execz K1_NOCT")
        a("global_load_dword v251, v3, s[94:95]")
        a.label("K1_NOCT")
        a("s_mov_b64 exec, s[96:97]")
    a(f"v_readfirstlane_b32 s{sWV}, v2")
    if opt.get('swap', '1') == '1':
        a(f"s_xor_b32 s{sWV}, s{sWV}, 4")
    if PROF[0]:
        a("v_writelane_b32 v0, s98, 0")
    a("v_lshrrev_b32 v3, 3, v1")
    a("v_and_b32 v4, 7, v1")
    a("v_mul_u32_u24 v5, 896, v3")
    a("v_lshl_add_u32 v10, v4, 4, v5")
    a("v_and_b32 v2, 15, v1")
    a(f"s_lshl_b32 s{sT}, s{sRB}, 3")
    a(f"s_add_u32 s{sT}, s{sT}, s{sWV}")
    a(f"s_mul_i32 s{sBASE2}, s{sT}, {8*896}")
    a(f"s_and_b32 s{sT}, s{sWV}, 3")
    a(f"s_lshl_b32 s{sT}, s{sT}, 4")
    a(f"s_lshl_b32 s{sT2}, s{sSL}, 6")
    a(f"s_add_u32 s{sP0}, s{sT}, s{sT2}")
    a(f"v_add_u32 v2, s{sP0}, v2")
    a("v_lshlrev_b32 v2, 1, v2")
    a("s_waitcnt lgkmcnt(0)")
    stamp(a, 11)
    def stouch_w1(m, nl=4, l0=0):
        NS = RBG
        nrow = 448 // NS
        a(f"s_add_u32 s{sT}, s{sWV}, {8*m}")
        skip = None
        if 8 * m + 7 >= nrow:
            _spin[0] += 1
            skip = f"K1_ST{m}_{_spin[0]}"
            a(f"s_cmp_ge_u32 s{sT}, {nrow}")
            a(f"s_cbranch_scc1 {skip}")
        a(f"s_mul_i32 s{sT}, s{sT}, {NS}")
        a(f"s_add_u32 s{sT}, s{sT}, s{sJS}")
        a(f"s_mul_i32 s{sT}, s{sT}, 3584")
        a(f"s_lshl_b32 s{sT2}, s{sSL}, 9")
        a(f"s_add_u32 s{sT}, s{sT}, s{sT2}")
        a(f"s_add_u32 s{sPA}, s24, s{sT}")
        a(f"s_addc_u32 s{sPA+1}, s25, 0")
        for k in range(l0, nl):
            a(f"s_load_dword s{sDUM}, s[{sPA}:{sPA+1}], {128*k}")
        if skip:
            a.label(skip)

    def stouch_b():
        NS = RBG
        per = 128 // NS
        if per < 8:
            a(f"s_cmp_ge_u32 s{sWV}, {per}")
            a("s_cbranch_scc1 K1_STB")
        reps = max(1, per // 8)
        for rep in range(reps):
            a(f"s_mul_i32 s{sT}, s{sJS}, {per}")
            a(f"s_add_u32 s{sT}, s{sT}, s{sWV}")
            if rep:
                a(f"s_add_u32 s{sT}, s{sT}, {8*rep}")
            a(f"s_and_b32 s{sT2}, s{sT}, 63")
            a(f"s_lshl_b32 s{sPA}, s{sSL}, 6")
            a(f"s_add_u32 s{sT2}, s{sT2}, s{sPA}")
            a(f"s_mul_i32 s{sT2}, s{sT2}, 896")
            a(f"s_cmp_ge_u32 s{sT}, 64")
            a(f"s_cselect_b32 s{sPA}, s12, s10")
            a(f"s_cselect_b32 s{sPA+1}, s13, s11")
            a(f"s_add_u32 s{sPA}, s{sPA}, s{sT2}")
            a(f"s_addc_u32 s{sPA+1}, s{sPA+1}, 0")
            for k in range(7):
                a(f"s_load_dword s{sDUM}, s[{sPA}:{sPA+1}], {128*k}")
        if per < 8:
            a.label("K1_STB")
    def stouch_w1g(m, nl=4, l0=0):
        n0 = len(a.items)
        stouch_w1(m, nl, l0)
        for i in range(n0, len(a.items)):
            k_, it = a.items[i]
            if k_ == 'label':
                a.items[i] = (k_, it + "G")
            elif k_ == 'ins' and 'K1_ST' in it.text:
                from asmlib import Ins
                a.items[i] = (k_, Ins(it.text + "G"))
    STOUCH = opt.get('stouch', '0') == '1'
    if STOUCH:
        stouch_b()
        stouch_w1(0)
        stouch_w1(1, 3)
    srd(a, SX, 4, 2048 * 896)
    if opt.get('warm'):
        srd(a, 48, 24, 448 * 3584); srd(a, 52, 28, 1792 * 896); srd(a, 56, 14, 448 * 896); srd(a, 60, 16, 448 * 896)
        srd(a, 64, 10, 448 * 896); srd(a, 68, 12, 448 * 896)
        a("v_lshlrev_b32 v6, 6, v0") if False else None
        a("v_and_b32 v7, 63, v1")
        a(f"s_lshl_b32 s{sT}, s{sWV}, 6")
        a(f"v_add_u32 v7, s{sT}, v1")
        for k in range(7):
            a(f"v_add_u32 v8, {512*k}, v7")
            a("v_lshrrev_b32 v9, 3, v8")
            a("v_mul_u32_u24 v9, 3584, v9")
            a("v_and_b32 v8, 7, v8")
            a("v_lshl_add_u32 v9, v8, 6, v9")
            a(f"s_lshl_b32 s{sT}, s{sSL}, 9")
            a(f"buffer_load_dword v250, v9, s[48:51], s{sT} offen")
        a(f"s_mul_i32 s{sT}, s{sSL}, {256*896}")
        for k in range(7):
            a(f"v_add_u32 v8, {512*k}, v7")
            a("v_lshlrev_b32 v9, 6, v8")
            a(f"buffer_load_dword v250, v9, s[52:55], s{sT} offen")
        a(f"s_mul_i32 s{sT}, s{sSL}, {64*896}")
        for k in range(2):
            a(f"v_add_u32 v8, {512*k}, v7")
            a("v_lshlrev_b32 v9, 6, v8")
            a(f"buffer_load_dword v250, v9, s[64:67], s{sT} offen")
            a(f"buffer_load_dword v250, v9, s[68:71], s{sT} offen")
        for k in range(2):
            a(f"v_add_u32 v8, {512*k}, v7")
            a("v_lshrrev_b32 v9, 1, v8")
            a("v_mul_u32_u24 v9, 896, v9")
            a("v_and_b32 v8, 1, v8")
            a("v_lshl_add_u32 v9, v8, 6, v9")
            a(f"s_lshl_b32 s{sT}, s{sSL}, 7")
            a(f"buffer_load_dword v250, v9, s[56:59], s{sT} offen")
            a(f"buffer_load_dword v250, v9, s[60:63], s{sT} offen")
        a(f"s_mul_i32 s{sT}, s{sRB}, {64*896}")
        for k in range(2):
            a(f"v_add_u32 v8, {512*k}, v7")
            a("v_lshlrev_b32 v9, 6, v8")
            a(f"buffer_load_dword v250, v9, s[{SX}:{SX+3}], s{sT} offen")
        a("s_waitcnt vmcnt(0)")
        a("s_barrier")
        a("s_sleep 64")
        a("s_barrier")
        if PROF[0]:
            a("s_memtime s[100:101]\n s_waitcnt lgkmcnt(0)\n v_writelane_b32 v0, s100, 0")
    a.vmem("global_load_ushort v104, v2, s[6:7]", 'par')
    a.vmem("global_load_ushort v105, v2, s[8:9]", 'par')
    a.vmem("global_load_ushort v106, v2, s[18:19]", 'par')
    for i in range(7):
        a.vmem(f"buffer_load_dwordx4 {vr(32+4*i,4)}, v10, s[{SX}:{SX+3}], s{sBASE2} offen offset:{128*i}", 'x')
    if opt.get('tlbw', '0') == '1':
        a("v_mov_b32 v2, 0")
        a("s_mov_b64 exec, 1")
        a.vmem("global_load_dword v250, v2, s[28:29]", 'tlb')
        a.vmem("global_load_dword v250, v2, s[14:15]", 'tlb')
        a.vmem("global_load_dword v250, v2, s[16:17]", 'tlb')
        a.vmem("global_load_dword v250, v2, s[36:37]", 'tlb')
        a("s_mov_b64 exec, -1")
    x_state = list(a.vm)

    srd(a, SW2, 28, 1792 * 896)
    srd(a, SCR_, 14, 448 * 896)
    srd(a, SCI, 16, 448 * 896)
    srd(a, SWS, 36, WS_SIZE)
    srd(a, SDBG, 34, 256)
    a("v_lshrrev_b32 v6, 4, v1")
    a("v_and_b32 v7, 1, v6")
    a("v_lshlrev_b32 v7, 2, v7")
    a("v_xor_b32 v7, v4, v7")
    a("v_xor_b32 v8, v4, v6")
    a("v_lshl_add_u32 v31, v8, 4, v5")
    a("v_xor_b32 v11, 64, v31")
    a(f"v_add_u32 v11, {8*896-1024}, v11")
    a("v_lshl_add_u32 v29, v7, 4, v5")
    a(f"v_add_u32 v30, {8*896-1024}, v29")
    NS = RBG
    nW = 448 * 4 // NS // 8
    a(f"s_mul_i32 s{sT}, s{sWV}, {nW}")
    a(f"v_add_u32 v6, s{sT}, v1")
    a("v_lshrrev_b32 v9, 2, v6")
    a(f"v_mul_u32_u24 v9, {NS}, v9")
    a(f"v_add_u32 v9, s{sJS}, v9")
    a("v_mul_u32_u24 v9, 3584, v9")
    a("v_and_b32 v6, 3, v6")
    a("v_lshl_add_u32 v248, v6, 7, v9")
    a(f"s_lshl_b32 s{sT}, s{sSL}, 9")
    a(f"v_add_u32 v248, s{sT}, v248")
    a("v_lshlrev_b32 v249, 7, v1")
    a("v_lshrrev_b32 v6, 4, v1")
    a(f"s_mul_i32 s{sW2B}, s{sSL}, {256*896}")
    a(f"s_lshl_b32 s{sT}, s{sWV}, 7")
    a(f"s_add_u32 s{sW2B}, s{sW2B}, s{sT}")
    a(f"s_mul_i32 s{sCB}, s{sWV}, {64*896}")
    a(f"s_lshl_b32 s{sT}, s{sSL}, 7")
    a(f"s_add_u32 s{sCB}, s{sCB}, s{sT}")
    a(f"s_lshl_b32 s{sT}, s{sWV}, 3")
    a(f"v_add_u32 v62, s{sT}, v3")
    a("v_bfe_u32 v63, v62, 1, 3")
    a(f"s_lshr_b32 s{sT}, s{sWV}, 1")
    a(f"s_and_b32 s{sT2}, s{sT}, 1")
    a(f"s_mul_i32 s{sT2}, s{sT2}, 3")
    a(f"s_lshr_b32 s{sT}, s{sT}, 1")
    a(f"s_xor_b32 s{sT}, s{sT}, s{sT2}")
    a(f"s_lshl_b32 s{sT}, s{sT}, 1")
    a(f"v_xor_b32 v63, s{sT}, v63")
    a("v_xor_b32 v63, v63, v4")
    a("v_mul_u32_u24 v61, 896, v62")
    a("v_lshl_add_u32 v10, v63, 4, v61")
    a("v_lshlrev_b32 v62, 2, v62")
    a("v_mov_b32 v60, 0")
    a(f"v_mov_b32 v63, {CNT}")
    for k in range(7):
        a(f"ds_write_b32 v63, v60 offset:{4*k}")
    a(f"s_cmp_ge_u32 s{sWV}, 4")
    a("s_cbranch_scc1 K1_G1_PRE")

    def touch1(sfx):
        if opt.get('touch1', '1') == '1':
            assert nW <= 64
            a(f"s_mov_b64 exec, {hex((1 << nW) - 1)}")
            a("global_load_dword v252, v248, s[24:25]")
            perB = 128 // NS
            for rep in range(max(1, perB // 8)):
                a(f"s_mul_i32 s{sT}, s{sJS}, {perB}")
                a(f"s_add_u32 s{sT}, s{sT}, s{sWV}")
                if rep:
                    a(f"s_add_u32 s{sT}, s{sT}, {8*rep}")
                a(f"s_and_b32 s{sT2}, s{sT}, 63")
                a(f"s_lshl_b32 s{sPA}, s{sSL}, 6")
                a(f"s_add_u32 s{sT2}, s{sT2}, s{sPA}")
                a(f"s_mul_i32 s{sT2}, s{sT2}, 896")
                a(f"s_cmp_ge_u32 s{sT}, 64")
                a(f"s_cselect_b32 s{sPA}, s12, s10")
                a(f"s_cselect_b32 s{sPA+1}, s13, s11")
                a(f"s_add_u32 s{sPA}, s{sPA}, s{sT2}")
                a(f"s_addc_u32 s{sPA+1}, s{sPA+1}, 0")
                if perB < 8:
                    a(f"s_cmp_lt_u32 s{sWV}, {perB}")
                    a(f"s_cselect_b32 s{sT}, 0x7f, 0")
                    a(f"s_mov_b32 exec_lo, s{sT}")
                    a("s_cbranch_execz K1_NOTB" + sfx)
                else:
                    a("s_mov_b64 exec, 0x7f")
                a(f"global_load_dword v253, v249, s[{sPA}:{sPA+1}]")
                if perB < 8:
                    a.label("K1_NOTB" + sfx)
            a("s_mov_b64 exec, -1")

    LR, LI = 104, 105
    CR, CI = 116, 117
    L16R, L16I, PGR, PGI, MUR, MUI, M8R, M8I = 106, 107, 108, 109, 110, 111, 112, 113

    def cmac(dr, di, xr, xi, yr, yi, ar, ai):
        a(f"v_fma_f32 v{dr}, v{xr}, v{yr}, v{ar}")
        a(f"v_fma_f32 v{di}, v{xr}, v{yi}, v{ai}")
        a(f"v_fma_f32 v{dr}, -v{xi}, v{yi}, v{dr}")
        a(f"v_fmac_f32 v{di}, v{xi}, v{yr}")

    def lam_block():
        a.wait_vm('par')
        if not STOUCH: stamp(a, 12)
        LR, LI = 104, 105
        a("v_lshlrev_b32 v107, 16, v104")
        a("v_lshlrev_b32 v108, 16, v105")
        a("v_lshlrev_b32 v106, 16, v106")
        a(f"v_mul_f32 v106, {fhex(LOG2E)}, v106")
        a("v_exp_f32 v106, v106")
        bf16_round(a, 106, 106)
        a("v_mul_f32 v109, v106, v107")
        a("v_mul_f32 v110, v106, v108")
        a(f"v_mul_f32 v109, {fhex(LOG2E)}, v109")
        a(f"v_mul_f32 v110, {fhex(0.15915494309189535)}, v110")
        a("v_exp_f32 v109, v109")
        a("v_rndne_f32 v111, v110")
        a("v_sub_f32 v110, v110, v111")
        a("v_cos_f32 v111, v110")
        a("v_sin_f32 v112, v110")
        a("v_mul_f32 v113, v107, v107")
        a("v_fmac_f32 v113, v108, v108")
        a("v_mul_f32 v104, v109, v111")
        a("v_mul_f32 v105, v109, v112")
        a("v_rcp_f32 v110, v113")
        a("v_add_f32 v109, -1.0, v104")
        a("v_mul_f32 v111, v109, v107")
        a("v_mul_f32 v112, v105, v107")
        a("v_fmac_f32 v111, v105, v108")
        a("v_fma_f32 v112, -v109, v108, v112")
        a("v_add_f32 v110, v110, v110")
        CR, CI = 116, 117
        a(f"v_mul_f32 v{CR}, v111, v110")
        a(f"v_mul_f32 v{CI}, v112, v110")

        def csq(dr, di, sr, si):
            a(f"v_mul_f32 v{dr}, v{sr}, v{sr}")
            a(f"v_mul_f32 v{di}, v{sr}, v{si}")
            a(f"v_fma_f32 v{dr}, -v{si}, v{si}, v{dr}")
            a(f"v_add_f32 v{di}, v{di}, v{di}")

        def cmul(dr, di, xr, xi, yr, yi):
            a(f"v_mul_f32 v{dr}, v{xr}, v{yr}")
            a(f"v_mul_f32 v{di}, v{xr}, v{yi}")
            a(f"v_fma_f32 v{dr}, -v{xi}, v{yi}, v{dr}")
            a(f"v_fmac_f32 v{di}, v{xi}, v{yr}")

        def cmac(dr, di, xr, xi, yr, yi, ar, ai):
            a(f"v_fma_f32 v{dr}, v{xr}, v{yr}, v{ar}")
            a(f"v_fma_f32 v{di}, v{xr}, v{yi}, v{ai}")
            a(f"v_fma_f32 v{dr}, -v{xi}, v{yi}, v{dr}")
            a(f"v_fmac_f32 v{di}, v{xi}, v{yr}")
        L16R, L16I, PGR, PGI, MUR, MUI, M8R, M8I = 106, 107, 108, 109, 110, 111, 112, 113
        csq(118, 119, LR, LI)
        csq(120, 121, 118, 119)
        csq(118, 119, 120, 121)
        csq(L16R, L16I, 118, 119)
        csq(118, 119, L16R, L16I)
        cmul(120, 121, 118, 119, L16R, L16I)
        a("v_lshrrev_b32 v2, 4, v1")
        a(f"v_mov_b32 v{PGR}, 1.0")
        a(f"v_mov_b32 v{PGI}, 0")
        a("v_cmp_eq_u32 vcc, 1, v2")
        a(f"v_cndmask_b32 v{PGR}, v{PGR}, v{L16R}, vcc")
        a(f"v_cndmask_b32 v{PGI}, v{PGI}, v{L16I}, vcc")
        a("v_cmp_eq_u32 vcc, 2, v2")
        a(f"v_cndmask_b32 v{PGR}, v{PGR}, v118, vcc")
        a(f"v_cndmask_b32 v{PGI}, v{PGI}, v119, vcc")
        a("v_cmp_eq_u32 vcc, 3, v2")
        a(f"v_cndmask_b32 v{PGR}, v{PGR}, v120, vcc")
        a(f"v_cndmask_b32 v{PGI}, v{PGI}, v121, vcc")

    def prefill(it):
        s_ = SA if it % 2 == 0 else SBI
        a(f"s_add_u32 m0, s{sRING}, {2048*it}")
        a("s_nop 0")
        a.vmem(f"buffer_load_dwordx4 v27, s[{s_}:{s_+3}], s{sOFF} offen lds", ('pre', it))
        a.vmem(f"buffer_load_dwordx4 v28, s[{s_}:{s_+3}], s{sOFF} offen offset:1024 lds", ('pre', it))
        a(f"s_add_u32 s{sOFF}, s{sOFF}, s{sINC0 if it % 2 == 0 else sINC1}")
    NEARLY = int(opt.get('nearly', 0))

    srd(a, SA, 24, 448 * 3584)
    srd(a, SBI, 24, 448 * 3584)
    a(f"s_mul_i32 s{sRING}, s{sWV}, {RING}")
    a(f"s_add_u32 s{sRING}, s{sRING}, {P}")
    a(f"s_mov_b32 s{sRING3}, s{sRING}")
    a(f"s_lshl_b32 s{sBASE}, s{sSL}, 9")
    a(f"s_lshl_b32 s{sT}, s{sWV}, 7")
    a(f"s_add_u32 s{sBASE}, s{sBASE}, s{sT}")
    a(f"s_mov_b32 s{sINC0}, {16*3584}")
    a(f"s_mov_b32 s{sINC1}, {16*3584}")
    a("v_mul_u32_u24 v27, 3584, v3")
    a("v_lshl_add_u32 v27, v7, 4, v27")
    a(f"v_add_u32 v28, {8*3584-1024}, v27")
    if opt.get('xbar', '1') == '1': a("s_barrier")
    if opt.get('tpos', 'ln') == 'pre': touch1("A")
    if opt.get('touch'):
        a(f"s_mul_i32 s{sT}, s{sWV}, 28")
        a(f"v_add_u32 v2, s{sT}, v1")
        a("v_lshrrev_b32 v8, 3, v2")
        a("v_and_b32 v9, 7, v2")
        a(f"s_mul_i32 s{sT}, s{sRB}, 14")
        a(f"v_add_u32 v8, s{sT}, v8")
        a("v_mul_u32_u24 v8, 3584, v8")
        a("v_lshl_add_u32 v8, v9, 6, v8")
        a(f"s_lshl_b32 s{sT}, s{sSL}, 9")
        a(f"v_add_u32 v8, s{sT}, v8")
        a("v_lshlrev_b32 v9, 6, v2")
        a(f"s_lshl_b32 s{sT}, s{sSL}, 5")
        a(f"s_add_u32 s{sT}, s{sT}, s{sRB}")
        a(f"s_mul_i32 s{sT}, s{sT}, {8*896}")
        a(f"v_add_u32 v9, s{sT}, v9")
        a(f"v_mov_b32 v2, {OOB}")
        a("v_cmp_gt_u32 vcc, 28, v1")
        a("v_cndmask_b32 v8, v2, v8, vcc")
        a("v_cndmask_b32 v9, v2, v9, vcc")
        a.vmem(f"buffer_load_dword v252, v8, s[{SA}:{SA+3}], 0 offen", 'touch')
        a.vmem(f"buffer_load_dword v253, v9, s[{SW2}:{SW2+3}], 0 offen", 'touch')
    a(f"s_mov_b32 s{sOFF}, s{sBASE}")
    for it in range(NEARLY):
        prefill(it)
    a("v_mov_b32 v247, 0")
    g3_addr(a)
    a(f"v_add_u32 v12, s{sRING}, v8")
    a("v_xor_b32 v13, 64, v12")
    a("v_lshrrev_b32 v2, 5, v1")
    a("v_and_b32 v3, 31, v1")
    a("v_bfe_u32 v4, v3, 1, 3")
    a("v_lshrrev_b32 v5, 4, v3")
    a("v_mul_u32_u24 v5, 6, v5")
    a("v_xor_b32 v4, v4, v5")
    a("v_xor_b32 v4, v4, v2")
    a("v_mul_u32_u24 v5, 896, v3")
    for j in range(4):
        a(f"v_xor_b32 v6, {2*j}, v4")
        a(f"v_lshl_add_u32 v{14+j}, v6, 4, v5")
    if STOUCH:
        a("s_waitcnt lgkmcnt(0)")
        stouch_w1(1, 4, 3)
        for m in range(2, (448 // RBG + 7) // 8):
            stouch_w1(m)
    if not STOUCH: stamp(a, 13)
    a.wait_vm('x')
    a("v_lshrrev_b32 v2, 5, v1")
    a("v_lshlrev_b32 v2, 3, v2")
    a(f"v_add_u32 v2, s{sBASE}, v2")
    for ft in range(2):
        for aa in range(4):
            a.vmem(f"global_load_dwordx2 {vr(224 + 2*(4*ft+aa), 2)}, v2, s[26:27] offset:{(32*ft+8*aa)*2}", 'bias')
    saved_vm_A = list(a.vm)
    a("s_branch K1_LN")

    a.label("K1_G1_PRE")
    a.vm = list(x_state)
    srd(a, SA, 10, 448 * 896)
    srd(a, SBI, 12, 448 * 896)
    a(f"s_sub_u32 s{sTMP}, s{sWV}, 4")
    a(f"s_mul_i32 s{sRING}, s{sTMP}, {RING}")
    a(f"s_add_u32 s{sRING3}, s{sRING}, {Y}")
    a(f"s_add_u32 s{sRING}, s{sRING}, {Q}")
    a(f"s_mul_i32 s{sBASE}, s{sP0}, 896")
    a(f"s_mov_b32 s{sINC0}, 0")
    a(f"s_mov_b32 s{sINC1}, 128")
    a("v_mov_b32 v27, v31")
    a("v_mov_b32 v28, v11")
    if opt.get('xbar', '1') == '1': a("s_barrier")
    if opt.get('tpos', 'ln') == 'pre': touch1("B")
    if opt.get('touch'):
        a(f"s_mul_i32 s{sT}, s{sTMP}, 7")
        a(f"v_add_u32 v2, s{sT}, v1")
        a("v_lshlrev_b32 v8, 6, v2")
        a(f"s_lshl_b32 s{sT}, s{sSL}, 5")
        a(f"s_add_u32 s{sT}, s{sT}, s{sRB}")
        a(f"s_mul_i32 s{sT}, s{sT}, {2*896}")
        a(f"v_add_u32 v8, s{sT}, v8")
        a("v_lshrrev_b32 v9, 1, v2")
        a(f"s_mul_i32 s{sT}, s{sRB}, 14")
        a(f"v_add_u32 v9, s{sT}, v9")
        a("v_mul_u32_u24 v9, 896, v9")
        a("v_and_b32 v6, 1, v2")
        a("v_lshl_add_u32 v9, v6, 6, v9")
        a(f"s_lshl_b32 s{sT}, s{sSL}, 7")
        a(f"v_add_u32 v9, s{sT}, v9")
        a(f"v_mov_b32 v2, {OOB}")
        a("v_cmp_gt_u32 vcc, 7, v1")
        a("v_cndmask_b32 v8, v2, v8, vcc")
        a("v_cndmask_b32 v9, v2, v9, vcc")
        a.vmem(f"buffer_load_dword v252, v8, s[{SA}:{SA+3}], 0 offen", 'touch')
        a.vmem(f"buffer_load_dword v253, v8, s[{SBI}:{SBI+3}], 0 offen", 'touch')
        a.vmem(f"buffer_load_dword v254, v9, s[{SCR_}:{SCR_+3}], 0 offen", 'touch')
        a.vmem(f"buffer_load_dword v255, v9, s[{SCI}:{SCI+3}], 0 offen", 'touch')
    a(f"s_mov_b32 s{sOFF}, s{sBASE}")
    for it in range(NEARLY):
        prefill(it)
    g3_addr(a)
    a("v_and_b32 v2, 15, v1")
    a("v_lshrrev_b32 v3, 4, v1")
    a("v_bfe_u32 v4, v2, 1, 3")
    a("v_xor_b32 v4, v4, v3")
    a("v_lshlrev_b32 v4, 4, v4")
    a("v_lshl_add_u32 v4, v2, 7, v4")
    a(f"v_add_u32 v12, s{sRING}, v4")
    a("v_xor_b32 v13, 64, v12")
    a("v_lshrrev_b32 v4, 2, v2")
    a("v_and_b32 v5, 3, v2")
    a("v_lshl_add_u32 v6, v4, 4, v5")
    a("v_mul_u32_u24 v6, 896, v6")
    a("v_and_b32 v7, 1, v4")
    a("v_mul_u32_u24 v7, 3, v7")
    a("v_lshrrev_b32 v8, 1, v4")
    a("v_xor_b32 v7, v7, v8")
    a("v_lshlrev_b32 v7, 1, v7")
    a("v_lshrrev_b32 v8, 1, v5")
    a("v_xor_b32 v7, v7, v8")
    a("v_xor_b32 v7, v7, v3")
    for k in range(4):
        a(f"v_xor_b32 v8, {2*k}, v7")
        a(f"v_lshl_add_u32 v{14+k}, v8, 4, v6")
    for k in range(4):
        a(f"v_mov_b32 v{240+k}, 0x3f803f80")
    a(f"s_lshl_b32 s{sT}, s{sTMP}, 9")
    a(f"s_add_u32 s{sT}, s{sT}, {SCR}")
    a("v_lshlrev_b32 v6, 5, v2")
    a(f"v_add_u32 v244, s{sT}, v6")
    a("v_lshl_add_u32 v245, v3, 3, v244")
    a("v_lshlrev_b32 v4, 1, v3")
    a("v_bfe_u32 v5, v2, 1, 1")
    a("v_lshlrev_b32 v5, 2, v5")
    a("v_xor_b32 v4, v4, v5")
    a("v_lshlrev_b32 v4, 4, v4")
    a("v_lshl_add_u32 v4, v2, 7, v4")
    a(f"v_add_u32 v246, s{sRING}, v4")
    a("v_lshlrev_b32 v247, 3, v2")
    a(f"s_lshl_b32 s{sT}, s{sSL}, 5")
    a(f"s_add_u32 s{sT}, s{sT}, s{sRB}")
    a(f"s_lshl_b32 s{sT}, s{sT}, 10")
    a(f"s_lshl_b32 s{sT2}, s{sTMP}, 8")
    a(f"s_add_u32 s{sT}, s{sT}, s{sT2}")
    a(f"s_add_u32 s{sT}, s{sT}, {INBOX}")
    a("v_lshlrev_b32 v250, 4, v2")
    a(f"v_add_u32 v250, s{sT}, v250")
    if STOUCH:
        a("s_waitcnt lgkmcnt(0)")
        stouch_w1g(1, 4, 3)
        for m in range(2, (448 // RBG + 7) // 8):
            stouch_w1g(m)
    if not STOUCH: stamp(a, 13)
    a.wait_vm('x')
    saved_vm_B = list(a.vm)

    a.label("K1_LN")
    if not STOUCH: stamp(a, 1)
    NLN0 = int(opt.get('nln0', 0))
    for it in range(NEARLY, max(NEARLY, NLN0)):
        prefill(it)
    if opt.get('tpos', 'ln') == 'ln': touch1("C")
    if opt.get('x_ln'): stamp(a, 40)
    U = 128
    a("v_mov_b32 v2, 0")
    a("v_mov_b32 v3, 0")
    a("v_mov_b32 v4, 0")
    a("v_mov_b32 v5, 0")
    a(f"v_mov_b32 v60, 0x3f803f80")
    for i in range(28):
        x = 32 + i
        a(f"v_dot2c_f32_bf16 v{2 + (i & 1)}, v60, v{x}")
        a(f"v_dot2c_f32_bf16 v{4 + (i & 1)}, v{x}, v{x}")
    if opt.get('x_ln'): stamp(a, 41)
    fill = []
    for i in range(28):
        fill.append(f"v_lshlrev_b32 v{U+2*i}, 16, v{32+i}")
        fill.append(f"v_and_b32 v{U+2*i+1}, 0xffff0000, v{32+i}")
    inv = fhex(1.0 / 448.0)
    eps = fhex(1e-5)
    chain = []
    chain += ["v_add_f32 v2, v2, v3", "v_add_f32 v4, v4, v5"]
    for m in ("quad_perm:[1,0,3,2]", "quad_perm:[2,3,0,1]", "row_half_mirror"):
        chain.append(f"v_add_f32_dpp v2, v2, v2 {m} row_mask:0xf bank_mask:0xf")
        chain.append(f"v_add_f32_dpp v4, v4, v4 {m} row_mask:0xf bank_mask:0xf")
    chain += [f"v_mul_f32 v2, {inv}, v2", f"v_mul_f32 v4, {inv}, v4", "v_fma_f32 v4, -v2, v2, v4", "v_max_f32 v4, 0, v4",
              "v_cvt_pk_bf16_f32 v5, v2, v2", "v_cvt_pk_bf16_f32 v6, v4, v4", "v_lshlrev_b32 v5, 16, v5", "v_lshlrev_b32 v6, 16, v6",
              f"v_add_f32 v6, {eps}, v6", "v_cvt_pk_bf16_f32 v6, v6, v6", "v_lshlrev_b32 v6, 16, v6", "v_sqrt_f32 v6, v6",
              "v_cvt_pk_bf16_f32 v6, v6, v6", "v_lshlrev_b32 v6, 16, v6", "v_rcp_f32 v6, v6",
              "v_sub_f32 v7, v2, v5", "v_mul_f32 v8, v6, v6", "v_mul_f32 v7, v7, v6", "v_mul_f32 v8, v8, v4",
              "v_cvt_pk_bf16_f32 v7, v7, v7", "v_cvt_pk_bf16_f32 v8, v8, v8", "v_lshlrev_b32 v7, 16, v7", "v_lshlrev_b32 v8, 16, v8",
              f"v_add_f32 v8, {eps}, v8", "v_cvt_pk_bf16_f32 v8, v8, v8", "v_lshlrev_b32 v8, 16, v8", "v_sqrt_f32 v8, v8",
              "v_cvt_pk_bf16_f32 v8, v8, v8", "v_lshlrev_b32 v8, 16, v8", "v_rcp_f32 v9, v8",
              "v_fma_f32 v3, v5, v6, v7", "v_mul_f32 v2, v6, v9", "v_mul_f32 v3, v3, v9", "v_sub_f32 v4, 0, v3", "v_mov_b32 v3, v2", "v_mov_b32 v2, v4"]
    for k, ins in enumerate(chain):
        a(ins)
        if fill:
            a(fill.pop(0))
    for f_ in fill:
        a(f_)
    if opt.get('x_ln'): stamp(a, 42)
    a("v_mov_b32 v60, v3")
    a("v_mov_b32 v61, v3")
    a("v_mov_b32 v4, v2")
    a("v_mov_b32 v63, v5")
    a("v_mov_b32 v5, v2")
    a("v_and_b32 v2, 7, v1")
    a("v_cmp_eq_u32 vcc, 0, v2")
    a(f"s_and_saveexec_b64 s[{sTMP}:{sTMP+1}], vcc")
    a(f"v_add_u32 v2, {S2T}, v62")
    a(f"ds_write_b32 v2, v8")
    a(f"ds_write_b32 v2, v7 offset:{M2T-S2T}")
    a("v_mov_b32 v8, v63")
    a("v_mov_b32 v9, v6")
    a(f"s_mov_b64 exec, s[{sTMP}:{sTMP+1}]")
    if opt.get('x_ln'): stamp(a, 43)
    for i in range(7):
        for d in range(4):
            u = U + 2 * (4 * i + d)
            a(f"v_pk_fma_f32 v[{u}:{u+1}], v[{u}:{u+1}], v[60:61], v[4:5]")
        for d in range(4):
            u = U + 2 * (4 * i + d)
            a(f"v_cvt_pk_bf16_f32 v{32+4*i+d}, v{u}, v{u+1}")
        a(f"ds_write_b128 v10, {vr(32+4*i,4)} offset:{128*i}")
    a("s_waitcnt lgkmcnt(0)")
    stamp(a, 2)
    a(f"s_cmp_ge_u32 s{sWV}, 4")
    a("s_cbranch_scc0 K1_B0G2")
    for it in range(6):
        prefill(it)
    for k in range(4):
        a(f"v_mov_b32 v{44+k}, 0")
    a("s_mov_b64 exec, 0xffff")
    a(f"buffer_store_dwordx4 v[44:47], v250, s[{SWS}:{SWS+3}], 0 offen sc1")
    a("s_mov_b64 exec, -1")
    lam_block()
    a(f"s_cmp_lg_u32 s{sSL}, 0")
    a("s_cbranch_scc1 K1_NOSTATB")
    a("v_and_b32 v2, 7, v1")
    a("v_cmp_eq_u32 vcc, 0, v2")
    a(f"s_and_saveexec_b64 s[{sTMP}:{sTMP+1}], vcc")
    a("v_lshlrev_b32 v62, 1, v62")
    a(f"s_lshl_b32 s{sT}, s{sRB}, 9")
    a(f"s_add_u32 s{sT}, s{sT}, {STATS}")
    a(f"buffer_store_dwordx2 v[8:9], v62, s[{SWS}:{SWS+3}], s{sT} offen")
    a(f"s_mov_b64 exec, s[{sTMP}:{sTMP+1}]")
    a.label("K1_NOSTATB")
    a("s_barrier")
    stamp(a, 3)
    a("s_branch K1_G1")
    a.label("K1_B0G2")
    a(f"s_mov_b32 s{sOFF}, s{sBASE}")
    a("s_barrier")
    stamp(a, 3)
    NG2 = int(opt.get('ng2', 2))
    for it in range(NG2):
        prefill(it)
    a(f"s_cmp_lg_u32 s{sSL}, 0")
    a("s_cbranch_scc1 K1_NOSTAT")
    a("v_and_b32 v2, 7, v1")
    a("v_cmp_eq_u32 vcc, 0, v2")
    a(f"s_and_saveexec_b64 s[{sTMP}:{sTMP+1}], vcc")
    a("v_lshlrev_b32 v62, 1, v62")
    a(f"s_lshl_b32 s{sT}, s{sRB}, 9")
    a(f"s_add_u32 s{sT}, s{sT}, {STATS}")
    a(f"buffer_store_dwordx2 v[8:9], v62, s[{SWS}:{SWS+3}], s{sT} offen")
    a(f"s_mov_b64 exec, s[{sTMP}:{sTMP+1}]")
    a.label("K1_NOSTAT")
    pre_tags = [('st', i // 2) for i in range(2 * NG2)]

    a.vm = [t for t in saved_vm_A if not (isinstance(t, tuple) and t[0] == 'pre')] + pre_tags
    a.lg = []
    w1_items = [dict(srd=SA, va=27, vb=28, sbase=sBASE, off=16 * s * 3584, ring=sRING) for s in range(28)]
    w2_items = [dict(srd=SW2, va=29, vb=30, sbase=sW2B, off=16 * ks * 896, ring=sRING3) for ks in range(16)]
    c_items = []
    for part in range(2):
        for nt in range(2):
            for pr in range(2):
                c_items.append(dict(srd=(SCR_, SCI)[part], va=31, vb=11, sbase=sCB, off=(32 * nt + 16 * pr) * 896, ring=sRING3))
    stA = Stream(a, w1_items + w2_items + c_items, 0)
    stA.next = NG2
    a.wait_vm('bias')
    for ft in range(2):
        for aa in range(4):
            s_ = 224 + 2 * (4 * ft + aa)
            d_ = 128 + 16 * ft + 4 * aa
            a(f"v_lshlrev_b32 v{d_}, 16, v{s_}")
            a(f"v_and_b32 v{d_+1}, 0xffff0000, v{s_}")
            a(f"v_lshlrev_b32 v{d_+2}, 16, v{s_+1}")
            a(f"v_and_b32 v{d_+3}, 0xffff0000, v{s_+1}")

    FA = [192, 208, 224]

    def g2_reads(s):
        b = FA[s % 3]
        so = (s % 6) * 2048
        out = []
        for ft in range(2):
            for q in range(2):
                out.append(f"ds_read_b64_tr_b16 {vr(b+4*ft+2*q,2)}, v{12+ft} offset:{so+512*q}")
        j = s & 3
        out.append(f"ds_read_b128 {vr(b+8,4)}, v{14+j} offset:{128*(s>>2)}")
        out.append(f"ds_read_b128 {vr(b+12,4)}, v{14+(j^1)} offset:{128*(s>>2)+28672}")
        return out

    if not opt.get('noprio'):
        a("s_setprio 1")
    if opt.get('serial', '1') == '1':
        spin(a, 20, 4)
    stA.issue(6)
    stA.wait(0)
    for r in g2_reads(0):
        a.lds(r, ('f', 0))
    stA.wait(1)
    for r in g2_reads(1):
        a.lds(r, ('f', 1))
    a.wait_lg(('f', 0))
    stA.issue(7)
    for s in range(28):
        b = FA[s % 3]
        ms = []
        for ft in range(2):
            for tt in range(2):
                acc = 64 + 32 * ft + 16 * tt
                c = vr(128 + 16 * ft, 16) if s == 0 else vr(acc, 16)
                ms.append(f"v_mfma_f32_32x32x16_bf16 {vr(acc,16)}, {vr(b+4*ft,4)}, {vr(b+8+4*tt,4)}, {c}")
        rd = g2_reads(s + 2) if s + 2 < 28 else []
        a(ms[0])
        if s + 2 < 28:
            stA.wait(s + 2)
        for r in rd[0:3]:
            a.lds(r, ('f', s + 2))
        a(ms[1])
        for r in rd[3:6]:
            a.lds(r, ('f', s + 2))
        pp = stA.parts(min(s + 8, 34))
        if pp:
            pp[0][0]()
        a(ms[2])
        if s + 1 < 28:
            a.wait_lg(('f', s + 1))
        if pp:
            pp[0][1]()
        a(ms[3])
        if pp:
            pp[0][2]()
        for extra_ in pp[1:]:
            for fn in extra_:
                fn()
        if opt.get('x_steps') and s % 3 == 2:
            lstamp(a)
    if opt.get('x_steps'):
        lflush(a, 16)
    stamp(a, 4)
    a.wait_lg_all()
    signal(a, 8)
    spin(a, 0, 4)
    stA.issue(34)
    def touch2():
        if opt.get('touch2', '1') == '1':
            NS = RBG
            n2 = 1792 // NS // 4
            nc = 448 // NS // 4
            for rep in range((n2 + 63) // 64):
                a(f"s_mul_i32 s{sT}, s{sWV}, {n2}")
                a(f"v_add_u32 v2, s{sT}, v1")
                if rep:
                    a(f"v_add_u32 v2, {64*rep}, v2")
                a(f"v_mul_u32_u24 v2, {NS}, v2")
                a(f"v_add_u32 v2, s{sJS}, v2")
                a("v_lshlrev_b32 v2, 7, v2")
                a(f"v_mov_b32 v3, {OOB}")
                a(f"v_cmp_gt_u32 vcc, {n2 - 64*rep}, v1")
                a("v_cndmask_b32 v2, v3, v2, vcc")
                a(f"s_mul_i32 s{sT}, s{sSL}, {256*896}")
                a.vmem(f"buffer_load_dword v252, v2, s[{SW2}:{SW2+3}], s{sT} offen", 'touch')
            a(f"s_mul_i32 s{sT}, s{sWV}, {nc}")
            a(f"v_add_u32 v2, s{sT}, v1")
            a(f"v_mul_u32_u24 v2, {NS}, v2")
            a(f"v_add_u32 v2, s{sJS}, v2")
            a("v_mul_u32_u24 v2, 896, v2")
            a(f"v_mov_b32 v3, {OOB}")
            a(f"v_cmp_gt_u32 vcc, {nc}, v1")
            a("v_cndmask_b32 v2, v3, v2, vcc")
            a(f"s_lshl_b32 s{sT}, s{sSL}, 7")
            a.vmem(f"buffer_load_dword v253, v2, s[{SCR_}:{SCR_+3}], s{sT} offen", 'touch')
            a.vmem(f"buffer_load_dword v254, v2, s[{SCI}:{SCI+3}], s{sT} offen", 'touch')
    a("s_setprio 0")
    stamp(a, 5)
    gelu(a, touch2, int(opt.get('t2pos', 1)))
    a.wait_lg_all()
    signal(a, 12)
    stamp(a, 6)
    g3_stream = stA
    a("s_branch K1_G3")

    a.label("K1_G1")
    a.vm = [t for t in saved_vm_B if not (isinstance(t, tuple) and t[0] == 'pre')] + [('b', i // 4) for i in range(12)]
    a.lg = []

    def b_issue(ds):
        sl_ = ds % 3
        a(f"s_add_u32 m0, s{sRING}, {sl_*4096}")
        a(f"s_add_u32 s{sT}, s{sBASE}, {128*ds}")
        a.vmem(f"buffer_load_dwordx4 v31, s[{SA}:{SA+3}], s{sT} offen lds", ('b', ds))
        a.vmem(f"buffer_load_dwordx4 v11, s[{SA}:{SA+3}], s{sT} offen offset:1024 lds", ('b', ds))
        a(f"s_add_u32 m0, s{sRING}, {sl_*4096+2048}")
        a.vmem(f"buffer_load_dwordx4 v31, s[{SBI}:{SBI+3}], s{sT} offen lds", ('b', ds))
        a.vmem(f"buffer_load_dwordx4 v11, s[{SBI}:{SBI+3}], s{sT} offen offset:1024 lds", ('b', ds))
    AF = [128, 144, 160]
    BF = [176, 192]

    def g1_breads(ds):
        so = (ds % 3) * 4096
        out = []
        for s1 in range(2):
            out.append(f"ds_read_b128 {vr(BF[ds&1]+8*s1,4)}, v{12+s1} offset:{so}")
            out.append(f"ds_read_b128 {vr(BF[ds&1]+8*s1+4,4)}, v{12+s1} offset:{so+2048}")
        return out

    def g1_areads(s):
        s1 = s & 1
        out = []
        for aa in range(4):
            k = (2 * s1) ^ aa
            out.append(f"ds_read_b128 {vr(AF[s%3]+4*aa,4)}, v{14+k} offset:{aa*4*896+128*(s>>1)}")
        return out

    if opt.get('x_g1sleep'):
        a("s_sleep 127\n s_sleep 127\n s_sleep 127\n s_sleep 127")
    if not opt.get('noprio'):
        a("s_setprio 2")
    a.wait_vm(('b', 0))
    for r in g1_breads(0):
        a.lds(r, ('B', 0))
    for s0 in range(2):
        for r in g1_areads(s0):
            a.lds(r, ('f', s0))
    for s in range(14):
        ds = s >> 1
        a.wait_lg(('f', s))
        if s == 0:
            b_issue(3)
        if PROF[0] and opt.get('x_g1') and s % 2 == 0:
            a("s_memtime s[100:101]")
            a("s_waitcnt lgkmcnt(0)")
            a(f"v_writelane_b32 v0, s100, {24 + s}")
        if s % 2 == 0 and ds + 1 < 7:
            a.wait_vm(('b', ds + 1))
        if PROF[0] and opt.get('x_g1') and s % 2 == 0:
            a("s_memtime s[100:101]")
            a("s_waitcnt lgkmcnt(0)")
            a(f"v_writelane_b32 v0, s100, {25 + s}")
            a.lg = []
        if s % 2 == 1 and ds + 1 < 7:
            a.wait_lg(('B', ds + 1))
            if ds + 4 < 7:
                b_issue(ds + 4)
                if ds + 4 == 6 and opt.get('serial', '1') == '1':
                    a(f"v_mov_b32 v2, {CNT+20}")
                    a("v_mov_b32 v3, 1")
                    a("s_mov_b64 exec, 1")
                    a.lds("ds_add_u32 v2, v3", 'sig')
                    a("s_mov_b64 exec, -1")
        A_, B_ = AF[s % 3], BF[ds & 1] + 8 * (s & 1)
        ms = []
        for aa in range(4):
            for part in range(2):
                acc = 64 + 16 * part + 4 * aa
                c = "0" if s == 0 else vr(acc, 4)
                ms.append(f"v_mfma_f32_16x16x32_bf16 {vr(acc,4)}, {vr(A_+4*aa,4)}, {vr(B_+4*part,4)}, {c}")
        for part in range(2):
            acc = 96 + 4 * part
            c = "0" if s == 0 else vr(acc, 4)
            ms.append(f"v_mfma_f32_16x16x32_bf16 {vr(acc,4)}, v[240:243], {vr(B_+4*part,4)}, {c}")
        rd = []
        if s % 2 == 0 and ds + 1 < 7:
            rd += [(r, ('B', ds + 1)) for r in g1_breads(ds + 1)]
        if s + 2 < 14:
            rd += [(r, ('f', s + 2)) for r in g1_areads(s + 2)]
        for k, m in enumerate(ms):
            a(m)
            if k < len(rd):
                a.lds(rd[k][0], rd[k][1])
    a("s_setprio 0")
    stamp(a, 4)
    a("v_lshrrev_b32 v7, 4, v1")
    a("v_lshlrev_b32 v4, 6, v7")
    a(f"v_add_u32 v4, {S2T}, v4")
    for k in range(4):
        a.lds(f"ds_read_b128 {vr(32+4*k,4)}, v4 offset:{16*k}", 'st')
        a.lds(f"ds_read_b128 {vr(48+4*k,4)}, v4 offset:{M2T-S2T+16*k}", 'st')
    a.wait_lg('st')
    PP = [(2, 3), (4, 5)]
    for e in range(16):
        R_, I_ = 64 + e, 80 + e
        a(f"v_mul_f32 v8, v{48+e}, v96")
        a(f"v_mul_f32 v9, v{48+e}, v100")
        a(f"v_fma_f32 v8, v{32+e}, v{R_}, v8")
        a(f"v_fma_f32 v9, v{32+e}, v{I_}, v9")
        a(f"v_mul_f32 v{R_}, v{CR}, v8")
        a(f"v_mul_f32 v{I_}, v{CR}, v9")
        a(f"v_fma_f32 v{R_}, -v{CI}, v9, v{R_}")
        a(f"v_fmac_f32 v{I_}, v{CI}, v8")
        nr, ni = PP[e & 1]
        hr, hi = PP[(e & 1) ^ 1]
        if e == 0:
            a(f"v_mov_b32 v{nr}, v{R_}")
            a(f"v_mov_b32 v{ni}, v{I_}")
        else:
            cmac(nr, ni, LR, LI, hr, hi, R_, I_)
    HE = PP[1]
    a.lds(f"ds_write_b64 v245, v[{HE[0]}:{HE[1]}]", 'w')
    a.wait_lg('w')
    a.lds("ds_read_b128 v[32:35], v244", 'r')
    a.lds("ds_read_b128 v[36:39], v244 offset:16", 'r')
    a.wait_lg('r')
    cmac(40, 41, L16R, L16I, 32, 33, 34, 35)
    cmac(42, 43, L16R, L16I, 40, 41, 36, 37)
    cmac(44, 45, L16R, L16I, 42, 43, 38, 39)
    a(f"s_lshl_b32 s{sT}, s{sSL}, 5")
    a(f"s_add_u32 s{sT}, s{sT}, s{sRB}")
    a(f"s_lshl_b32 s{sT}, s{sT}, 9")
    a(f"s_sub_u32 s{sTMP}, s{sWV}, 4")
    a(f"s_lshl_b32 s{sT2}, s{sTMP}, 7")
    a(f"s_add_u32 s{sT}, s{sT}, s{sT2}")
    a("s_mov_b64 exec, 0xffff")
    a(f"buffer_store_dwordx2 v[44:45], v247, s[{SWS}:{SWS+3}], s{sT} offen sc1")
    a("s_mov_b64 exec, -1")
    XR, XI = 122, 123
    a(f"v_mov_b32 v{XR}, 0")
    a(f"v_mov_b32 v{XI}, 0")
    for g_, (r_, i_) in ((1, (32, 33)), (2, (40, 41)), (3, (42, 43))):
        a(f"v_cmp_eq_u32 vcc, {g_}, v7")
        a(f"v_cndmask_b32 v{XR}, v{XR}, v{r_}, vcc")
        a(f"v_cndmask_b32 v{XI}, v{XI}, v{i_}, vcc")
    a("s_waitcnt vmcnt(0)")
    a.vm = []
    a(f"v_mov_b32 v8, {CNT}")
    a("v_mov_b32 v9, 1")
    a("s_mov_b64 exec, 1")
    a("ds_add_rtn_u32 v9, v8, v9")
    a("s_waitcnt lgkmcnt(0)")
    a(f"v_readfirstlane_b32 s{sT}, v9")
    a(f"s_cmp_lg_u32 s{sT}, 3")
    a("s_cbranch_scc1 K1_NOFLAG")
    a(f"s_lshl_b32 s{sT}, 1, s{sRB}")
    a(f"v_mov_b32 v9, s{sT}")
    a(f"s_lshl_b32 s{sT2}, s{sSL}, 5")
    a(f"v_mov_b32 v8, s{sT2}")
    a(f"buffer_atomic_or v9, v8, s[{SDBG}:{SDBG+3}], 0 offen sc1")
    a.label("K1_NOFLAG")
    a("s_mov_b64 exec, -1")
    stamp(a, 5)
    a("s_setprio 0")
    spin(a, 8, 4)
    stamp(a, 9)
    a(f"s_cmp_eq_u32 s{sWV}, 7")
    a("s_cbranch_scc1 K1_NOPRE")
    spin(a, 0, 4)
    stB = Stream(a, w2_items + c_items, 28)
    if opt.get('prefirst', '1') == '1':
        stB.issue(6)
    a.label("K1_NOPRE")
    a.vm = []
    def pass2(sfx, preloaded):
        if preloaded:
            a("s_branch K1_POLLW" + sfx)
        a.label("K1_POLL" + sfx)
        a(f"buffer_load_dwordx4 v[44:47], v250, s[{SWS}:{SWS+3}], 0 offen sc1")
        a.label("K1_POLLW" + sfx)
        a("s_waitcnt vmcnt(0)")
        a("v_cmp_ne_u32 vcc, 1, v46")
        a("s_cbranch_vccz K1_POLLED" + sfx)
        a(f"s_sleep {int(opt.get('psleep', 4))}")
        a("s_branch K1_POLL" + sfx)
        a.label("K1_POLLED" + sfx)
        stamp(a, 6)
        cmac(PP[1][0], PP[1][1], PGR, PGI, 44, 45, XR, XI)
        for e in range(16):
            nr, ni = PP[e & 1]
            hr, hi = PP[(e & 1) ^ 1]
            cmac(nr, ni, LR, LI, hr, hi, 64 + e, 80 + e)
            if e & 1:
                a(f"v_cvt_pk_bf16_f32 v{32 + e//2}, v{hr}, v{nr}")
                a(f"v_cvt_pk_bf16_f32 v{40 + e//2}, -v{hi}, -v{ni}")
        a.lds("ds_write_b128 v246, v[32:35] offset:8192", 'w')
        a.lds("ds_write_b128 v246, v[36:39] offset:8208", 'w')
        a.lds("ds_write_b128 v246, v[40:43] offset:10240", 'w')
        a.lds("ds_write_b128 v246, v[44:47] offset:10256", 'w')
        a.wait_lg_all()
        signal(a, 16)
        stamp(a, 7)
    if opt.get('g3prio', '1') == '1':
        a("s_setprio 1")
    a(f"s_cmp_eq_u32 s{sWV}, 7")
    a("s_cbranch_scc0 K1_G3")
    a("s_setprio 0")
    pass2("A", False)
    stamp(a, 10)
    stamp_out(a)
    a("s_branch K1_END")

    a.label("K1_G3")
    assert g3_stream.next == 34
    a.vm = [('st', 28 + i // 2) for i in range(12)]
    a.lg = []
    spin(a, 12, 4)
    stamp(a, 8)
    def hook_load():
        a(f"s_cmp_ge_u32 s{sWV}, 4")
        a("s_cbranch_scc0 K1_HL")
        a(f"buffer_load_dwordx4 v[44:47], v250, s[{SWS}:{SWS+3}], 0 offen sc1")
        a.label("K1_HL")

    def hook_pass2():
        a(f"s_cmp_ge_u32 s{sWV}, 4")
        a("s_cbranch_scc0 K1_HP")
        sv = (list(a.vm), list(a.lg))
        pass2("B", True)
        a.vm, a.lg = sv[0], []
        if PRIOSW[0]:
            a("s_setprio 0")
            a("s_branch K1_HP2")
        a.label("K1_HP")
        if PRIOSW[0]:
            a("s_setprio 1")
            a.label("K1_HP2")
    g3(a, g3_stream, 28, D2, hook_load, hook_pass2)
    stamp(a, 10)
    stamp_out(a)
    a("s_branch K1_END")

    a.label("K1_COLL")
    a(f"s_cmp_lg_u32 s{sSL}, 7")
    a("s_cbranch_scc1 K1_END")
    a(f"s_mul_i32 s{sT}, s{sJS}, {R}")
    a(f"s_cmp_lg_u32 s{sT}, s{sRB}")
    a("s_cbranch_scc1 K1_END")
    a(f"s_cmp_ge_u32 s{sJS}, 7")
    a("s_cbranch_scc1 K1_END")
    a("v_lshrrev_b32 v2, 6, v0")
    a(f"v_readfirstlane_b32 s{sT}, v2")
    a(f"s_cmp_lg_u32 s{sT}, 0")
    a("s_cbranch_scc1 K1_END")
    a(f"s_mov_b32 s{sSL}, s{sJS}")
    a("s_load_dwordx4 s[4:7], s[0:1], 8")
    a("s_load_dwordx2 s[18:19], s[0:1], 56")
    a("s_load_dwordx4 s[32:35], s[0:1], 112")
    a("s_load_dwordx2 s[36:37], s[0:1], 128")
    a(f"s_lshl_b32 s{sT}, s{sSL}, 6")
    a(f"v_add_u32 v2, s{sT}, v0")
    a("v_lshlrev_b32 v2, 1, v2")
    a("s_waitcnt lgkmcnt(0)")
    srd(a, SWS, 36, WS_SIZE)
    srd(a, SDBG, 34, 256)
    a("global_load_ushort v104, v2, s[4:5]")
    a("global_load_ushort v105, v2, s[6:7]")
    a("global_load_ushort v106, v2, s[18:19]")
    a("s_waitcnt vmcnt(0)")
    a("v_lshlrev_b32 v107, 16, v104")
    a("v_lshlrev_b32 v108, 16, v105")
    a("v_lshlrev_b32 v106, 16, v106")
    a(f"v_mul_f32 v106, {fhex(LOG2E)}, v106")
    a("v_exp_f32 v106, v106")
    bf16_round(a, 106, 106)
    a("v_mul_f32 v109, v106, v107")
    a("v_mul_f32 v110, v106, v108")
    a(f"v_mul_f32 v109, {fhex(LOG2E)}, v109")
    a(f"v_mul_f32 v110, {fhex(0.15915494309189535)}, v110")
    a("v_exp_f32 v109, v109")
    a("v_rndne_f32 v111, v110")
    a("v_sub_f32 v110, v110, v111")
    a("v_cos_f32 v111, v110")
    a("v_sin_f32 v112, v110")
    a("v_mul_f32 v104, v109, v111")
    a("v_mul_f32 v105, v109, v112")
    cur_ = (104, 105)
    for k in range(6):
        nx = (118, 119) if k % 2 == 0 else (120, 121)
        a(f"v_mul_f32 v{nx[0]}, v{cur_[0]}, v{cur_[0]}")
        a(f"v_mul_f32 v{nx[1]}, v{cur_[0]}, v{cur_[1]}")
        a(f"v_fma_f32 v{nx[0]}, -v{cur_[1]}, v{cur_[1]}, v{nx[0]}")
        a(f"v_add_f32 v{nx[1]}, v{nx[1]}, v{nx[1]}")
        cur_ = nx
    MR, MI = cur_
    a("v_lshlrev_b32 v3, 3, v0")
    a(f"s_lshl_b32 s{sT}, s{sSL}, 14")
    a(f"v_add_u32 v3, s{sT}, v3")
    a("v_lshlrev_b32 v4, 4, v0")
    a(f"s_lshl_b32 s{sT}, s{sSL}, 15")
    a(f"s_add_u32 s{sT}, s{sT}, {INBOX}")
    a(f"v_add_u32 v4, s{sT}, v4")
    a(f"s_lshl_b32 s{sT}, s{sSL}, 5")
    a(f"v_mov_b32 v5, s{sT}")
    a("s_mov_b32 s84, 0")
    a.label("K1_CPOLL")
    a(f"buffer_load_dword v6, v5, s[{SDBG}:{SDBG+3}], 0 offen sc1")
    a("s_waitcnt vmcnt(0)")
    a("v_readfirstlane_b32 s85, v6")
    a("s_andn2_b32 s86, s85, s84")
    a("s_mov_b32 s84, s85")
    for c in range(31):
        a(f"s_bitcmp1_b32 s86, {c}")
        a(f"s_cbranch_scc0 K1_CN{c}")
        a(f"s_mov_b32 s{sT}, {512*c}")
        a(f"buffer_load_dwordx2 v[{128+2*c}:{129+2*c}], v3, s[{SWS}:{SWS+3}], s{sT} offen sc1")
        a.label(f"K1_CN{c}")
    a("s_cmp_eq_u32 s84, -1")
    a("s_cbranch_scc1 K1_CALL")
    a("s_sleep 2")
    a("s_branch K1_CPOLL")
    a.label("K1_CALL")
    a("s_waitcnt vmcnt(0)")
    Q4 = [(8, 9, 10, 11), (12, 13, 14, 15)]
    for q in Q4:
        a(f"v_mov_b32 v{q[2]}, 1")
        a(f"v_mov_b32 v{q[3]}, 0")
    a("v_mov_b32 v8, 0")
    a("v_mov_b32 v9, 0")
    for rb in range(32):
        q = Q4[rb & 1]
        n = Q4[(rb + 1) & 1]
        a(f"s_mov_b32 s{sT}, {1024*rb}")
        a(f"buffer_store_dwordx4 v[{q[0]}:{q[3]}], v4, s[{SWS}:{SWS+3}], s{sT} offen sc1")
        if rb < 31:
            e = 128 + 2 * rb
            a(f"v_fma_f32 v{n[0]}, v{MR}, v{q[0]}, v{e}")
            a(f"v_fma_f32 v{n[1]}, v{MR}, v{q[1]}, v{e+1}")
            a(f"v_fma_f32 v{n[0]}, -v{MI}, v{q[1]}, v{n[0]}")
            a(f"v_fmac_f32 v{n[1]}, v{MI}, v{q[0]}")
    a.label("K1_END")
    a("s_endpgm")
    return a


def g3_addr(a):
    a("v_lshrrev_b32 v2, 5, v1")
    a("v_bfe_u32 v3, v1, 2, 2")
    a("v_and_b32 v4, 3, v1")
    a("v_bfe_u32 v5, v1, 4, 1")
    a("v_lshlrev_b32 v6, 1, v5")
    a("v_lshrrev_b32 v7, 1, v4")
    a("v_or_b32 v6, v6, v7")
    a("v_lshrrev_b32 v7, 1, v3")
    a("v_lshlrev_b32 v7, 2, v7")
    a("v_xor_b32 v6, v6, v7")
    a("v_lshlrev_b32 v6, 4, v6")
    a("v_and_b32 v7, 1, v4")
    a("v_lshl_add_u32 v6, v7, 3, v6")
    a("v_lshl_add_u32 v7, v2, 3, v3")
    a("v_lshl_add_u32 v8, v7, 7, v6")
    a("v_lshl_add_u32 v7, v2, 2, v3")
    a("v_lshl_add_u32 v9, v7, 7, v6")
    a(f"v_add_u32 v18, s{sRING3}, v9")
    a("v_xor_b32 v19, 64, v18")
    a(f"v_add_u32 v21, {Q + 8192}, v8")
    a("v_xor_b32 v22, 64, v21")
    a("v_lshlrev_b32 v20, 4, v1")
    a(f"v_add_u32 v20, {Q}, v20")
    c_addr(a)


def c_addr(a):
    a("v_and_b32 v3, 31, v1")
    a("v_lshrrev_b32 v2, 5, v1")
    a("v_bfe_u32 v4, v3, 1, 3")
    a("v_xor_b32 v4, v4, v2")
    a("v_lshlrev_b32 v4, 4, v4")
    a("v_lshl_add_u32 v4, v3, 7, v4")
    a(f"v_add_u32 v23, s{sRING3}, v4")
    for cg in range(1, 4):
        a(f"v_xor_b32 v{23+cg}, {32*cg}, v23")


def gelu(a, hook=None, hookpos=1):
    c1 = -2.0 * 0.7978845608028654 * LOG2E
    c2 = c1 * 0.044715
    a(f"s_mov_b32 s{sT}, {fhex(c1)}")
    a(f"s_mov_b32 s{sT2}, {fhex(c2)}")
    a(f"v_mov_b32 v60, s{sT}")
    a(f"s_mul_i32 s{sTMP}, s{sWV}, {RING}")
    a(f"s_add_u32 s{sTMP}, s{sTMP}, {Q}")
    a("v_lshlrev_b32 v61, 4, v1")
    a(f"v_add_u32 v61, s{sTMP}, v61")
    grp = 0
    for ft in range(2):
        for tt in range(2):
            acc = 64 + 32 * ft + 16 * tt
            for half in range(2):
                if hook is not None and grp == hookpos:
                    hook()
                grp += 1
                xs = [acc + 8 * half + e for e in range(8)]
                T = [32 + e for e in range(8)]
                U = [40 + e for e in range(8)]
                for e in range(8):
                    a(f"v_mul_f32 v{T[e]}, v{xs[e]}, v{xs[e]}")
                for e in range(8):
                    a(f"v_fma_f32 v{T[e]}, v{T[e]}, s{sT2}, v60")
                for e in range(8):
                    a(f"v_mul_f32 v{T[e]}, v{T[e]}, v{xs[e]}")
                for e in range(8):
                    a(f"v_exp_f32 v{T[e]}, v{T[e]}")
                for e in range(8):
                    a(f"v_add_f32 v{T[e]}, 1.0, v{T[e]}")
                for e in range(8):
                    a(f"v_rcp_f32 v{T[e]}, v{T[e]}")
                for e in range(8):
                    a(f"v_mul_f32 v{T[e]}, v{T[e]}, v{xs[e]}")
                for d in range(4):
                    a(f"v_cvt_pk_bf16_f32 v{U[d]}, v{T[2*d]}, v{T[2*d+1]}")
                a.lds(f"ds_write_b128 v61, {vr(U[0],4)} offset:{((2*ft+half)*2+tt)*1024}", 'hw')
                if len(a.lg) >= 8:
                    a.wait_lg_all()


def g3(a, st, base, D2, hook_load=None, hook_pass2=None):
    FA = [192, 208, 224]
    CF = 64
    mlp_base = base
    ssm_base = base + 16
    first = [True]

    def mfmas(Aregs, Bregs):
        ms = []
        for tt in range(2):
            for nt in range(2):
                acc = 128 + 32 * tt + 16 * nt
                c = "0" if first[0] else vr(acc, 16)
                ms.append(f"v_mfma_f32_32x32x16_bf16 {vr(acc,16)}, {vr(Aregs[tt],4)}, {vr(Bregs[nt],4)}, {c}")
        first[0] = False
        return ms

    def mlp_reads(ks):
        b = FA[ks % 3]
        so = st.slot(mlp_base + ks) * 2048
        out = []
        for nt in range(2):
            for q in range(2):
                out.append(f"ds_read_b64_tr_b16 {vr(b+8+4*nt+2*q,2)}, v{18+nt} offset:{so+1024*q}")
        for tt in range(2):
            out.append(f"ds_read_b128 {vr(b+4*tt,4)}, v20 offset:{12288*(ks>>2)+((ks&3)*2+tt)*1024}")
        return out

    def ssm_areads(k):
        part, cg = k >> 2, k & 3
        b = FA[(16 + k) % 3]
        out = []
        for tt in range(2):
            for q in range(2):
                out.append(f"ds_read_b64_tr_b16 {vr(b+4*tt+2*q,2)}, v{21+tt} offset:{12288*cg+2048*part+512*q}")
        return out

    def c_reads(part):
        out = []
        for nt in range(2):
            i0 = ssm_base + 4 * part + 2 * nt
            so = st.slot(i0) * 2048
            assert st.slot(i0 + 1) == st.slot(i0) + 1
            for cg in range(4):
                out.append(f"ds_read_b128 {vr(CF+32*part+8*cg+4*nt,4)}, v{23+cg} offset:{so}")
        return out

    def step_reads(m):
        return mlp_reads(m) if m < 16 else ssm_areads(m - 16)

    st.wait(mlp_base)
    for r in step_reads(0):
        a.lds(r, ('m', 0))
    st.wait(mlp_base + 1)
    for r in step_reads(1):
        a.lds(r, ('m', 1))
    a.wait_lg(('m', 0))
    for m in range(24):
        b = FA[m % 3]
        if m < 16:
            ms = mfmas([b, b + 4], [b + 8, b + 12])
        else:
            k = m - 16
            cb = CF + 32 * (k >> 2) + 8 * (k & 3)
            ms = mfmas([b, b + 4], [cb, cb + 4])
        if m == 14:
            a.wait_lg_all()
            stamp(a, 14)
            hook_pass2()
            spin(a, 16, 4)
            stamp(a, 15)
        if m == 9:
            hook_load()
        rd = [(r, ('m', m + 2)) for r in step_reads(m + 2)] if m + 2 < 24 else []
        cr = []
        if m == 14:
            cr = [(r, ('c', 0)) for r in c_reads(0)[0:4]]
        elif m == 15:
            cr = [(r, ('c', 1)) for r in c_reads(0)[4:8]]
        elif m == 17:
            cr = [(r, ('c', 2)) for r in c_reads(1)[0:4]]
        elif m == 19:
            cr = [(r, ('c', 3)) for r in c_reads(1)[4:8]]
        if m == 16:
            a.wait_lg(('c', 1))
        if m == 20:
            a.wait_lg(('c', 3))
        a(ms[0])
        if m + 2 < 16:
            st.wait(mlp_base + m + 2)
        if m == 14:
            st.wait(ssm_base + 1)
        if m == 15:
            a.wait_lg(('m', 16))
            st.wait(ssm_base + 3)
        if m == 17:
            st.wait(ssm_base + 5)
        if m == 19:
            a.wait_lg(('c', 2))
            st.wait(ssm_base + 7)
            if STORESYNC[0]:
                a(f"v_mov_b32 v2, {CNT+24}")
                a("v_mov_b32 v3, 1")
                a("s_mov_b64 exec, 1")
                a.lds("ds_add_u32 v2, v3", 'sig')
                a("s_mov_b64 exec, -1")
        allr = rd + cr
        h1 = (len(allr) + 1) // 2
        for r, t in allr[:h1]:
            a.lds(r, t)
        a(ms[1])
        for r, t in allr[h1:]:
            a.lds(r, t)
        if m == 15:
            a.wait_lg(('c', 0))
            pp = st.parts(ssm_base + 8)
        else:
            pp = st.parts(min(mlp_base + m + 8, ssm_base + 6))
        if pp:
            pp[0][0]()
        a(ms[2])
        if m + 1 < 24:
            a.wait_lg(('m', m + 1))
        if pp:
            pp[0][1]()
        a(ms[3])
        if pp:
            pp[0][2]()
        for extra_ in pp[1:]:
            for fn in extra_:
                fn()
        if XS[0] and m % 3 == 2:
            lstamp(a)
    if XS[0]:
        lflush(a, 26)
    if STORESYNC[0]:
        a.wait_lg_all()
        spin(a, 24, 7)
    a(f"s_mul_i32 s{sT}, s{sRB}, 7")
    a(f"s_add_u32 s{sT}, s{sT}, s{sWV}")
    a(f"s_mul_i32 s{sT}, s{sT}, 56")
    a(f"s_add_u32 s{sT}, s{sT}, s{sSL}")
    a(f"s_lshl_b32 s{sT}, s{sT}, 10")
    a(f"s_add_u32 s{sT}, s{sT}, {PBUF}")
    a("v_lshlrev_b32 v2, 4, v1")
    for tt in range(2):
        for nt in range(2):
            acc = 128 + 32 * tt + 16 * nt
            for hf in range(2):
                v_ = tt * 4 + nt * 2 + hf
                d = 32 + 4 * (v_ & 3)
                for k in range(4):
                    a(f"v_cvt_pk_bf16_f32 v{d+k}, v{acc+8*hf+2*k}, v{acc+8*hf+2*k+1}")
                a(f"s_add_u32 s{sT2}, s{sT}, {v_*7*1024}")
                a(f"buffer_store_dwordx4 {vr(d,4)}, v2, s[{SWS}:{SWS+3}], s{sT2} offen sc1")


def dump_lds(a, base, nbytes):
    a("s_lshl_b32 s90, s2, 16")
    a("s_add_u32 s90, s90, 0x800000")
    a("v_lshlrev_b32 v2, 4, v0")
    n = (nbytes + 8191) // 8192
    for i in range(n):
        a(f"v_add_u32 v3, {base + 8192*i}, v2")
        a("ds_read_b128 v[4:7], v3")
        a("s_waitcnt lgkmcnt(0)")
        a(f"v_add_u32 v3, {8192*i}, v2")
        a(f"buffer_store_dwordx4 v[4:7], v3, s[{SWS}:{SWS+3}], s90 offen")
        a("s_waitcnt vmcnt(0)")


def dump_regs(a, base, n):
    a("s_lshl_b32 s90, s2, 3")
    a(f"s_add_u32 s90, s90, s{sWV}")
    a("s_lshl_b32 s90, s90, 14")
    a("s_add_u32 s90, s90, 0x800000")
    a("v_lshlrev_b32 v2, 2, v1")
    a("s_nop 15")
    for i in range(n):
        a(f"buffer_store_dword v{base+i}, v2, s[{SWS}:{SWS+3}], s90 offen")
        a("s_add_u32 s90, s90, 256")
    a("s_waitcnt vmcnt(0)")


def gen_k2(opt):
    a = Asm()
    a("s_cmp_ge_u32 s2, 256")
    a("s_cbranch_scc1 K2_END")
    a("s_and_b32 s38, s2, 7")
    a("s_cmp_eq_u32 s38, 7")
    a("s_cbranch_scc1 K2_END")
    a("s_load_dwordx2 s[4:5], s[0:1], 0")
    a("s_load_dwordx2 s[6:7], s[0:1], 64")
    a("s_load_dwordx2 s[8:9], s[0:1], 104")
    a("s_load_dwordx2 s[10:11], s[0:1], 112")
    a("s_load_dwordx2 s[12:13], s[0:1], 128")
    a("s_lshr_b32 s39, s2, 3")
    a("v_lshrrev_b32 v2, 6, v0")
    a("v_and_b32 v1, 63, v0")
    a("v_readfirstlane_b32 s40, v2")
    a("v_and_b32 v3, 31, v1")
    a("v_lshrrev_b32 v4, 5, v1")
    a("s_lshr_b32 s41, s40, 2")
    a("s_bfe_u32 s42, s40, 0x10001")
    a("s_and_b32 s43, s40, 1")
    a("s_lshl_b32 s44, s38, 6")
    a("s_lshl_b32 s45, s42, 5")
    a("s_add_u32 s44, s44, s45")
    a("v_add_u32 v5, s44, v3")
    a("s_lshl_b32 s45, s39, 6")
    a("s_lshl_b32 s46, s41, 5")
    a("s_add_u32 s45, s45, s46")
    a("s_lshl_b32 s46, s43, 4")
    a("s_add_u32 s45, s45, s46")
    a("v_lshl_add_u32 v6, v4, 2, s45")
    a("s_mul_i32 s46, s39, 7")
    a("s_add_u32 s46, s46, s38")
    a("s_lshl_b32 s46, s46, 3")
    a("s_add_u32 s46, s46, s40")
    a("s_mul_i32 s46, s46, 7168")
    a(f"s_add_u32 s46, s46, {PBUF}")
    a("v_lshlrev_b32 v7, 4, v1")
    a("s_waitcnt lgkmcnt(0)")
    srd(a, 48, 4, 2048 * 896)
    srd(a, 52, 10, 2048 * 1792)
    srd(a, 56, 12, WS_SIZE)
    for s_ in range(7):
        a(f"buffer_load_dwordx4 {vr(32+4*s_,4)}, v7, s[56:59], s46 offen")
        a("s_add_u32 s46, s46, 1024")
    a("v_mul_u32_u24 v8, 896, v6")
    a("v_lshl_add_u32 v8, v5, 1, v8")
    for e in range(8):
        a(f"buffer_load_ushort v{16+e}, v8, s[48:51], 0 offen offset:{896*(8*(e>>2)+(e&3))}" if 896 * (8 * (e >> 2) + (e & 3)) < 4096 else "")
        if 896 * (8 * (e >> 2) + (e & 3)) >= 4096:
            a(f"v_add_u32 v9, {896*8}, v8")
            a(f"buffer_load_ushort v{16+e}, v9, s[48:51], 0 offen offset:{896*(e&3)}")
    a("v_lshlrev_b32 v10, 3, v6")
    a(f"s_mov_b32 s47, {STATS}")
    a("buffer_load_dwordx4 v[64:67], v10, s[56:59], s47 offen")
    a("buffer_load_dwordx4 v[68:71], v10, s[56:59], s47 offen offset:16")
    a("buffer_load_dwordx4 v[72:75], v10, s[56:59], s47 offen offset:64")
    a("buffer_load_dwordx4 v[76:79], v10, s[56:59], s47 offen offset:80")
    a("v_lshlrev_b32 v11, 1, v5")
    a("global_load_ushort v24, v11, s[6:7]")
    a("global_load_ushort v25, v11, s[8:9]")
    a("v_mul_u32_u24 v12, 1792, v6")
    a("v_lshl_add_u32 v12, v5, 2, v12")
    a(f"v_add_u32 v13, {1792*8}, v12")
    a("s_waitcnt vmcnt(0)")
    a("v_lshlrev_b32 v24, 16, v24")
    a("v_lshlrev_b32 v25, 16, v25")
    for e in range(8):
        d, hi = e >> 1, e & 1
        for s_ in range(7):
            r = 32 + 4 * s_ + d
            if hi:
                a(f"v_and_b32 v14, 0xffff0000, v{r}")
            else:
                a(f"v_lshlrev_b32 v14, 16, v{r}")
            if s_ == 0:
                a("v_add_f32 v15, v25, v14")
            else:
                a("v_add_f32 v15, v15, v14")
        m1 = 64 + 8 * (e >> 2) + 2 * (e & 3)
        a(f"v_lshlrev_b32 v26, 16, v{16+e}")
        a(f"v_sub_f32 v27, v26, v{m1}")
        a(f"v_mul_f32 v27, v27, v{m1+1}")
        bf16_round(a, 27, 27)
        a("v_fma_f32 v26, v27, v24, v26")
        a("v_add_f32 v15, v15, v26")
        base = 12 if e < 4 else 13
        a(f"buffer_store_dword v15, v{base}, s[52:55], 0 offen offset:{1792*(e&3)}" if 1792 * (e & 3) < 4096 else "")
        if 1792 * (e & 3) >= 4096:
            a(f"v_add_u32 v28, {1792*2}, v{base}")
            a(f"buffer_store_dword v15, v28, s[52:55], 0 offen offset:1792")
    a.label("K2_END")
    a("s_endpgm")
    return a


def desc(name, vgpr, sgpr=102):
    return f""".p2align 6
.amdhsa_kernel {name}
  .amdhsa_next_free_vgpr {vgpr}
  .amdhsa_next_free_sgpr {sgpr}
  .amdhsa_accum_offset {vgpr}
  .amdhsa_group_segment_fixed_size 0
  .amdhsa_kernarg_size 136
  .amdhsa_user_sgpr_count 2
  .amdhsa_user_sgpr_kernarg_segment_ptr 1
  .amdhsa_system_sgpr_workgroup_id_x 1
.end_amdhsa_kernel
"""


def build(opt):
    ref = open("parallel_sum__ssm_conv_s5__mixer_channel_mlp__prompt.s.ref").read() if opt.get('hdr', True) else ""
    hdr = [l for l in ref.split("\n") if l.startswith(";") and "@launch" not in l and "Override launch" not in l and "grid=ceil" not in l]
    out = "\n".join(hdr) + "\n"
    out += f"; @launch kernel=k1_kernel grid=(256,1,1) block=(512,1,1) lds={LDS_BYTES}\n"
    if not opt.get('dbg'):
        out += "; @launch kernel=k2_kernel grid=(256,1,1) block=(512,1,1) lds=0\n"
    out += '.amdgcn_target "amdgcn-amd-amdhsa--gfx950"\n.text\n'
    k1 = gen_k1(opt)
    out += ".globl k1_kernel\n.p2align 8\n.type k1_kernel,@function\nk1_kernel:\n" + k1.text()
    k2 = gen_k2(opt)
    out += ".globl k2_kernel\n.p2align 8\n.type k2_kernel,@function\nk2_kernel:\n" + k2.text()
    out += '.section .rodata,"a"\n' + desc("k1_kernel", 256) + desc("k2_kernel", 80)
    return out


if __name__ == "__main__":
    opt = {}
    outp = sys.argv[1]
    for kv in sys.argv[2:]:
        k, v = kv.split("=")
        opt[k] = v
    open(outp, "w").write(build(opt))
```

```python
import sys
from asmlib import Asm

KNAME = "parallel_sum__ssm_conv_s5__mixer_channel_mlp__prompt"

Y = 0
Q = 57344
P = 106496
RING = 12288
MISC = 155648
S2T = MISC
M2T = MISC + 256
SCR = MISC + 512
CNT = MISC + 2560
LDS_BYTES = 163840
EBUF = 0
STATS = 0x20000
EIN = 0x80000
INBOX = 0x40000
PBUF = 0x100000
WS_SIZE = 0x1000000
OOB = 0x7ff00000

sSL, sRB, sWV = 38, 39, 40
sRING, sT, sT2, sBASE, sBASE2 = 41, 42, 43, 76, 77
SX, SA, SW2, SCR_, SCI, SBI, SWS, SDBG = 44, 48, 52, 56, 60, 64, 68, 72
sRING3 = 78
sCB = 79
sW2B = 80
sTMP = 82
sP0, sINC0, sINC1, sOFF, sJS = 88, 89, 90, 91, 92
sPA = 94
sDUM = 97

LOG2E = 1.4426950408889634


def fhex(x):
    import struct
    return "0x%08x" % struct.unpack("<I", struct.pack("<f", x))[0]


def srd(a, dst, ptr, size):
    a(f"s_mov_b32 s{dst}, s{ptr}")
    a(f"s_mov_b32 s{dst+1}, s{ptr+1}")
    a(f"s_mov_b32 s{dst+2}, {size}")
    a(f"s_mov_b32 s{dst+3}, 0x20000")


def vr(b, n):
    return f"v[{b}:{b+n-1}]" if n > 1 else f"v{b}"


class Stream:
    def __init__(self, a, items, first_index=0):
        self.a = a
        self.items = items
        self.first = first_index
        self.next = 0

    def slot(self, i):
        return (self.first + i) % 6

    def issue(self, upto):
        a = self.a
        while self.next < min(upto, len(self.items)):
            it = self.items[self.next]
            sl = self.slot(self.next)
            a(f"s_add_u32 m0, s{it['ring']}, {sl*2048}")
            a(f"s_add_u32 s{sT}, s{it['sbase']}, {it['off']}")
            a.vmem(f"buffer_load_dwordx4 v{it['va']}, s[{it['srd']}:{it['srd']+3}], s{sT} offen lds", ('st', self.first + self.next))
            a.vmem(f"buffer_load_dwordx4 v{it['vb']}, s[{it['srd']}:{it['srd']+3}], s{sT} offen offset:1024 lds", ('st', self.first + self.next))
            self.next += 1

    def wait(self, i):
        self.a.wait_vm(('st', self.first + i))

    def parts(self, upto):
        a = self.a
        out = []
        while self.next < min(upto, len(self.items)):
            it = self.items[self.next]
            sl = self.slot(self.next)
            idx = self.first + self.next

            def setup(it=it, sl=sl):
                a(f"s_add_u32 m0, s{it['ring']}, {sl*2048}")
                a(f"s_add_u32 s{sT}, s{it['sbase']}, {it['off']}")

            def da(it=it, idx=idx):
                a.vmem(f"buffer_load_dwordx4 v{it['va']}, s[{it['srd']}:{it['srd']+3}], s{sT} offen lds", ('st', idx))

            def db(it=it, idx=idx):
                a.vmem(f"buffer_load_dwordx4 v{it['vb']}, s[{it['srd']}:{it['srd']+3}], s{sT} offen offset:1024 lds", ('st', idx))
            out.append((setup, da, db))
            self.next += 1
        return out


def signal(a, off):
    a(f"v_mov_b32 v2, {CNT+off}")
    a("v_mov_b32 v3, 1")
    a("s_mov_b64 exec, 1")
    a("ds_add_u32 v2, v3")
    a("s_mov_b64 exec, -1")


_spin = [0]
SLOW = []
def spin(a, off, n):
    _spin[0] += 1
    L = f"K1_SPIN{_spin[0]}"
    a(f"v_mov_b32 v2, {CNT+off}")
    a.label(L)
    a("ds_read_b32 v3, v2")
    a("s_waitcnt lgkmcnt(0)")
    a(f"v_readfirstlane_b32 s{sT}, v3")
    a(f"s_cmp_ge_u32 s{sT}, {n}")
    a(f"s_cbranch_scc0 {L}_S")
    SLOW.append((L + "_S", ["s_sleep 1", f"s_branch {L}"]))
    a.lg = []


def bf16_round(a, dst, src):
    a(f"v_cvt_pk_bf16_f32 v{dst}, v{src}, v{src}")
    a(f"v_lshlrev_b32 v{dst}, 16, v{dst}")


PROF = [False]
XS = [False]
STORESYNC = [True]
PRIOSW = [True]
PRIO16 = [1]
XNOVM = [False]
def stamp(a, i):
    if not PROF[0]: return
    a("s_waitcnt lgkmcnt(0)")
    a("s_memtime s[100:101]")
    a("s_waitcnt lgkmcnt(0)")
    a(f"v_writelane_b32 v0, s100, {i}")
    a.lg = []

LS = [0]
def lstamp(a):
    if not PROF[0]: return
    a(f"s_memtime s[{4+2*LS[0]}:{5+2*LS[0]}]")
    LS[0] += 1

def lflush(a, lane0):
    if not PROF[0]: return
    a("s_waitcnt lgkmcnt(0)")
    a.lg = []
    for i in range(LS[0]):
        a(f"v_writelane_b32 v0, s{4+2*i}, {lane0+i}")
    LS[0] = 0

def stamp_out(a):
    if not PROF[0]: return
    a("s_memrealtime s[100:101]")
    a("s_lshl_b32 s87, s2, 3")
    a(f"s_add_u32 s87, s87, s{sWV}")
    a("s_lshl_b32 s87, s87, 8")
    a("s_add_u32 s87, s87, 0xE00000")
    a("s_waitcnt lgkmcnt(0)")
    a("v_writelane_b32 v0, s100, 62")
    a("v_writelane_b32 v0, s99, 63")
    a("v_lshlrev_b32 v2, 2, v1")
    a(f"buffer_store_dword v0, v2, s[{SWS}:{SWS+3}], s87 offen")

def gen_k1(opt):
    a = Asm()
    PROF[0] = bool(opt.get('prof'))
    XS[0] = bool(opt.get('x_g3'))
    STORESYNC[0] = opt.get('ssync', '0') == '1'
    PRIOSW[0] = opt.get('priosw', '1') == '1'
    PRIO16[0] = int(opt.get('prio16', 1))
    XNOVM[0] = bool(opt.get('x_novm3'))
    D2 = int(opt.get('d2', 4))
    NPRE = 4
    a(f"s_cmp_ge_u32 s2, 256")
    a("s_cbranch_scc1 K1_END")
    R = int(opt.get('R', 2))
    S_ = 8 // R
    RBG = 32 // R
    lg = lambda x: x.bit_length() - 1
    a(f"s_and_b32 s{sT}, s2, 7")
    a(f"s_lshr_b32 s{sT2}, s2, 3")
    a(f"s_and_b32 s{sJS}, s{sT2}, {RBG-1}")
    a(f"s_lshr_b32 s{sRB}, s{sT}, {lg(S_)}")
    a(f"s_mul_i32 s{sSL}, s{sJS}, {R}")
    a(f"s_add_u32 s{sRB}, s{sRB}, s{sSL}")
    a(f"s_and_b32 s{sSL}, s{sT}, {S_-1}")
    a(f"s_mul_i32 s{sSL}, s{sSL}, {R}")
    a(f"s_lshr_b32 s{sT2}, s{sT2}, {lg(RBG)}")
    a(f"s_add_u32 s{sSL}, s{sSL}, s{sT2}")
    a(f"s_cmp_ge_u32 s{sSL}, 7")
    a("s_cbranch_scc1 K1_COLL")
    if PROF[0]:
        a("s_memrealtime s[100:101]\n s_waitcnt lgkmcnt(0)\n s_mov_b32 s99, s100")
        a("s_memtime s[100:101]\n s_waitcnt lgkmcnt(0)\n s_mov_b32 s98, s100")
    a("s_load_dwordx16 s[4:19], s[0:1], 0")
    a("s_load_dwordx16 s[20:35], s[0:1], 64")
    a("s_load_dwordx2 s[36:37], s[0:1], 128")
    a("v_lshrrev_b32 v2, 6, v0")
    a("v_and_b32 v1, 63, v0")
    if opt.get('ctouch', '1') == '1':
        NL = int(opt.get('cnl', 6))
        a("s_getpc_b64 s[94:95]")
        a.label("K1_PC")
        a("s_sub_u32 s94, s94, K1_PC-k1_kernel")
        a("s_subb_u32 s95, s95, 0")
        a("s_lshr_b32 s96, s2, 3")
        a(f"s_mul_i32 s96, s96, {NL*128}")
        a("v_lshlrev_b32 v3, 7, v0")
        a("v_add_u32 v3, s96, v3")
        a(f"v_cmp_gt_u32 s[84:85], {NL}, v0")
        a("v_cmp_gt_u32 vcc, K1_END-k1_kernel, v3")
        a("s_and_b64 vcc, vcc, s[84:85]")
        a("s_and_saveexec_b64 s[96:97], vcc")
        a("s_cbranch_execz K1_NOCT")
        a("global_load_dword v251, v3, s[94:95]")
        a.label("K1_NOCT")
        a("s_mov_b64 exec, s[96:97]")
    a(f"v_readfirstlane_b32 s{sWV}, v2")
    if opt.get('swap', '1') == '1':
        a(f"s_xor_b32 s{sWV}, s{sWV}, 4")
    if PROF[0]:
        a("v_writelane_b32 v0, s98, 0")
    a("v_lshrrev_b32 v3, 3, v1")
    a("v_and_b32 v4, 7, v1")
    a("v_mul_u32_u24 v5, 896, v3")
    a("v_lshl_add_u32 v10, v4, 4, v5")
    a("v_and_b32 v2, 15, v1")
    a(f"s_lshl_b32 s{sT}, s{sRB}, 3")
    a(f"s_add_u32 s{sT}, s{sT}, s{sWV}")
    a(f"s_mul_i32 s{sBASE2}, s{sT}, {8*896}")
    a(f"s_and_b32 s{sT}, s{sWV}, 3")
    a(f"s_lshl_b32 s{sT}, s{sT}, 4")
    a(f"s_lshl_b32 s{sT2}, s{sSL}, 6")
    a(f"s_add_u32 s{sP0}, s{sT}, s{sT2}")
    a(f"v_add_u32 v2, s{sP0}, v2")
    a("v_lshlrev_b32 v2, 1, v2")
    a("s_waitcnt lgkmcnt(0)")
    stamp(a, 11)
    def stouch_w1(m, nl=4, l0=0):
        NS = RBG
        nrow = 448 // NS
        a(f"s_add_u32 s{sT}, s{sWV}, {8*m}")
        skip = None
        if 8 * m + 7 >= nrow:
            _spin[0] += 1
            skip = f"K1_ST{m}_{_spin[0]}"
            a(f"s_cmp_ge_u32 s{sT}, {nrow}")
            a(f"s_cbranch_scc1 {skip}")
        a(f"s_mul_i32 s{sT}, s{sT}, {NS}")
        a(f"s_add_u32 s{sT}, s{sT}, s{sJS}")
        a(f"s_mul_i32 s{sT}, s{sT}, 3584")
        a(f"s_lshl_b32 s{sT2}, s{sSL}, 9")
        a(f"s_add_u32 s{sT}, s{sT}, s{sT2}")
        a(f"s_add_u32 s{sPA}, s24, s{sT}")
        a(f"s_addc_u32 s{sPA+1}, s25, 0")
        for k in range(l0, nl):
            a(f"s_load_dword s{sDUM}, s[{sPA}:{sPA+1}], {128*k}")
        if skip:
            a.label(skip)

    def stouch_b():
        NS = RBG
        per = 128 // NS
        if per < 8:
            a(f"s_cmp_ge_u32 s{sWV}, {per}")
            a("s_cbranch_scc1 K1_STB")
        reps = max(1, per // 8)
        for rep in range(reps):
            a(f"s_mul_i32 s{sT}, s{sJS}, {per}")
            a(f"s_add_u32 s{sT}, s{sT}, s{sWV}")
            if rep:
                a(f"s_add_u32 s{sT}, s{sT}, {8*rep}")
            a(f"s_and_b32 s{sT2}, s{sT}, 63")
            a(f"s_lshl_b32 s{sPA}, s{sSL}, 6")
            a(f"s_add_u32 s{sT2}, s{sT2}, s{sPA}")
            a(f"s_mul_i32 s{sT2}, s{sT2}, 896")
            a(f"s_cmp_ge_u32 s{sT}, 64")
            a(f"s_cselect_b32 s{sPA}, s12, s10")
            a(f"s_cselect_b32 s{sPA+1}, s13, s11")
            a(f"s_add_u32 s{sPA}, s{sPA}, s{sT2}")
            a(f"s_addc_u32 s{sPA+1}, s{sPA+1}, 0")
            for k in range(7):
                a(f"s_load_dword s{sDUM}, s[{sPA}:{sPA+1}], {128*k}")
        if per < 8:
            a.label("K1_STB")
    def stouch_w1g(m, nl=4, l0=0):
        n0 = len(a.items)
        stouch_w1(m, nl, l0)
        for i in range(n0, len(a.items)):
            k_, it = a.items[i]
            if k_ == 'label':
                a.items[i] = (k_, it + "G")
            elif k_ == 'ins' and 'K1_ST' in it.text:
                from asmlib import Ins
                a.items[i] = (k_, Ins(it.text + "G"))
    STOUCH = opt.get('stouch', '0') == '1'
    if STOUCH:
        stouch_b()
        stouch_w1(0)
        stouch_w1(1, 3)
    srd(a, SX, 4, 2048 * 896)
    if opt.get('warm'):
        srd(a, 48, 24, 448 * 3584); srd(a, 52, 28, 1792 * 896); srd(a, 56, 14, 448 * 896); srd(a, 60, 16, 448 * 896)
        srd(a, 64, 10, 448 * 896); srd(a, 68, 12, 448 * 896)
        a("v_lshlrev_b32 v6, 6, v0") if False else None
        a("v_and_b32 v7, 63, v1")
        a(f"s_lshl_b32 s{sT}, s{sWV}, 6")
        a(f"v_add_u32 v7, s{sT}, v1")
        for k in range(7):
            a(f"v_add_u32 v8, {512*k}, v7")
            a("v_lshrrev_b32 v9, 3, v8")
            a("v_mul_u32_u24 v9, 3584, v9")
            a("v_and_b32 v8, 7, v8")
            a("v_lshl_add_u32 v9, v8, 6, v9")
            a(f"s_lshl_b32 s{sT}, s{sSL}, 9")
            a(f"buffer_load_dword v250, v9, s[48:51], s{sT} offen")
        a(f"s_mul_i32 s{sT}, s{sSL}, {256*896}")
        for k in range(7):
            a(f"v_add_u32 v8, {512*k}, v7")
            a("v_lshlrev_b32 v9, 6, v8")
            a(f"buffer_load_dword v250, v9, s[52:55], s{sT} offen")
        a(f"s_mul_i32 s{sT}, s{sSL}, {64*896}")
        for k in range(2):
            a(f"v_add_u32 v8, {512*k}, v7")
            a("v_lshlrev_b32 v9, 6, v8")
            a(f"buffer_load_dword v250, v9, s[64:67], s{sT} offen")
            a(f"buffer_load_dword v250, v9, s[68:71], s{sT} offen")
        for k in range(2):
            a(f"v_add_u32 v8, {512*k}, v7")
            a("v_lshrrev_b32 v9, 1, v8")
            a("v_mul_u32_u24 v9, 896, v9")
            a("v_and_b32 v8, 1, v8")
            a("v_lshl_add_u32 v9, v8, 6, v9")
            a(f"s_lshl_b32 s{sT}, s{sSL}, 7")
            a(f"buffer_load_dword v250, v9, s[56:59], s{sT} offen")
            a(f"buffer_load_dword v250, v9, s[60:63], s{sT} offen")
        a(f"s_mul_i32 s{sT}, s{sRB}, {64*896}")
        for k in range(2):
            a(f"v_add_u32 v8, {512*k}, v7")
            a("v_lshlrev_b32 v9, 6, v8")
            a(f"buffer_load_dword v250, v9, s[{SX}:{SX+3}], s{sT} offen")
        a("s_waitcnt vmcnt(0)")
        a("s_barrier")
        a("s_sleep 64")
        a("s_barrier")
        if PROF[0]:
            a("s_memtime s[100:101]\n s_waitcnt lgkmcnt(0)\n v_writelane_b32 v0, s100, 0")
    a.vmem("global_load_ushort v104, v2, s[6:7]", 'par')
    a.vmem("global_load_ushort v105, v2, s[8:9]", 'par')
    a.vmem("global_load_ushort v106, v2, s[18:19]", 'par')
    for i in range(7):
        a.vmem(f"buffer_load_dwordx4 {vr(32+4*i,4)}, v10, s[{SX}:{SX+3}], s{sBASE2} offen offset:{128*i}", 'x')
    if opt.get('tlbw', '0') == '1':
        a("v_mov_b32 v2, 0")
        a("s_mov_b64 exec, 1")
        a.vmem("global_load_dword v250, v2, s[28:29]", 'tlb')
        a.vmem("global_load_dword v250, v2, s[14:15]", 'tlb')
        a.vmem("global_load_dword v250, v2, s[16:17]", 'tlb')
        a.vmem("global_load_dword v250, v2, s[36:37]", 'tlb')
        a("s_mov_b64 exec, -1")
    x_state = list(a.vm)

    srd(a, SW2, 28, 1792 * 896)
    srd(a, SCR_, 14, 448 * 896)
    srd(a, SCI, 16, 448 * 896)
    srd(a, SWS, 36, WS_SIZE)
    srd(a, SDBG, 34, 256)
    a("v_lshrrev_b32 v6, 4, v1")
    a("v_and_b32 v7, 1, v6")
    a("v_lshlrev_b32 v7, 2, v7")
    a("v_xor_b32 v7, v4, v7")
    a("v_xor_b32 v8, v4, v6")
    a("v_lshl_add_u32 v31, v8, 4, v5")
    a("v_xor_b32 v11, 64, v31")
    a(f"v_add_u32 v11, {8*896-1024}, v11")
    a("v_lshl_add_u32 v29, v7, 4, v5")
    a(f"v_add_u32 v30, {8*896-1024}, v29")
    NS = RBG
    nW = 448 * 4 // NS // 8
    a(f"s_mul_i32 s{sT}, s{sWV}, {nW}")
    a(f"v_add_u32 v6, s{sT}, v1")
    a("v_lshrrev_b32 v9, 2, v6")
    a(f"v_mul_u32_u24 v9, {NS}, v9")
    a(f"v_add_u32 v9, s{sJS}, v9")
    a("v_mul_u32_u24 v9, 3584, v9")
    a("v_and_b32 v6, 3, v6")
    a("v_lshl_add_u32 v248, v6, 7, v9")
    a(f"s_lshl_b32 s{sT}, s{sSL}, 9")
    a(f"v_add_u32 v248, s{sT}, v248")
    a("v_lshlrev_b32 v249, 7, v1")
    a("v_lshrrev_b32 v6, 4, v1")
    a(f"s_mul_i32 s{sW2B}, s{sSL}, {256*896}")
    a(f"s_lshl_b32 s{sT}, s{sWV}, 7")
    a(f"s_add_u32 s{sW2B}, s{sW2B}, s{sT}")
    a(f"s_mul_i32 s{sCB}, s{sWV}, {64*896}")
    a(f"s_lshl_b32 s{sT}, s{sSL}, 7")
    a(f"s_add_u32 s{sCB}, s{sCB}, s{sT}")
    a(f"s_lshl_b32 s{sT}, s{sWV}, 3")
    a(f"v_add_u32 v62, s{sT}, v3")
    a("v_bfe_u32 v63, v62, 1, 3")
    a(f"s_lshr_b32 s{sT}, s{sWV}, 1")
    a(f"s_and_b32 s{sT2}, s{sT}, 1")
    a(f"s_mul_i32 s{sT2}, s{sT2}, 3")
    a(f"s_lshr_b32 s{sT}, s{sT}, 1")
    a(f"s_xor_b32 s{sT}, s{sT}, s{sT2}")
    a(f"s_lshl_b32 s{sT}, s{sT}, 1")
    a(f"v_xor_b32 v63, s{sT}, v63")
    a("v_xor_b32 v63, v63, v4")
    a("v_mul_u32_u24 v61, 896, v62")
    a("v_lshl_add_u32 v10, v63, 4, v61")
    a("v_lshlrev_b32 v62, 2, v62")
    a("v_mov_b32 v60, 0")
    a(f"v_mov_b32 v63, {CNT}")
    for k in range(7):
        a(f"ds_write_b32 v63, v60 offset:{4*k}")
    a(f"s_cmp_ge_u32 s{sWV}, 4")
    a("s_cbranch_scc1 K1_G1_PRE")

    def touch1(sfx):
        if opt.get('touch1', '1') == '1':
            assert nW <= 64
            a(f"s_mov_b64 exec, {hex((1 << nW) - 1)}")
            a("global_load_dword v252, v248, s[24:25]")
            perB = 128 // NS
            for rep in range(max(1, perB // 8)):
                a(f"s_mul_i32 s{sT}, s{sJS}, {perB}")
                a(f"s_add_u32 s{sT}, s{sT}, s{sWV}")
                if rep:
                    a(f"s_add_u32 s{sT}, s{sT}, {8*rep}")
                a(f"s_and_b32 s{sT2}, s{sT}, 63")
                a(f"s_lshl_b32 s{sPA}, s{sSL}, 6")
                a(f"s_add_u32 s{sT2}, s{sT2}, s{sPA}")
                a(f"s_mul_i32 s{sT2}, s{sT2}, 896")
                a(f"s_cmp_ge_u32 s{sT}, 64")
                a(f"s_cselect_b32 s{sPA}, s12, s10")
                a(f"s_cselect_b32 s{sPA+1}, s13, s11")
                a(f"s_add_u32 s{sPA}, s{sPA}, s{sT2}")
                a(f"s_addc_u32 s{sPA+1}, s{sPA+1}, 0")
                if perB < 8:
                    a(f"s_cmp_lt_u32 s{sWV}, {perB}")
                    a(f"s_cselect_b32 s{sT}, 0x7f, 0")
                    a(f"s_mov_b32 exec_lo, s{sT}")
                    a("s_cbranch_execz K1_NOTB" + sfx)
                else:
                    a("s_mov_b64 exec, 0x7f")
                a(f"global_load_dword v253, v249, s[{sPA}:{sPA+1}]")
                if perB < 8:
                    a.label("K1_NOTB" + sfx)
            if opt.get('touchw2', '0') == '1':
                nl = 672 // NS
                per = (nl + 7) // 8
                a("s_mov_b64 exec, -1")
                a(f"s_mul_i32 s{sT}, s{sWV}, {per}")
                a(f"v_add_u32 v2, s{sT}, v1")
                a(f"v_cmp_gt_u32 vcc, {nl}, v2")
                a(f"v_mul_u32_u24 v2, {NS}, v2")
                a(f"v_add_u32 v2, s{sJS}, v2")
                a("v_lshlrev_b32 v2, 7, v2")
                a(f"s_mul_i32 s{sT}, s{sSL}, {256*896}")
                a(f"v_add_u32 v2, s{sT}, v2")
                a(f"s_and_b64 exec, vcc, {hex((1 << per) - 1)}")
                a("s_cbranch_execz K1_NOTW" + sfx)
                a("global_load_dword v251, v2, s[28:29]")
                a.label("K1_NOTW" + sfx)
            a("s_mov_b64 exec, -1")

    LR, LI = 104, 105
    CR, CI = 116, 117
    L16R, L16I, PGR, PGI, MUR, MUI, M8R, M8I = 106, 107, 108, 109, 110, 111, 112, 113

    def cmac(dr, di, xr, xi, yr, yi, ar, ai):
        a(f"v_fma_f32 v{dr}, v{xr}, v{yr}, v{ar}")
        a(f"v_fma_f32 v{di}, v{xr}, v{yi}, v{ai}")
        a(f"v_fma_f32 v{dr}, -v{xi}, v{yi}, v{dr}")
        a(f"v_fmac_f32 v{di}, v{xi}, v{yr}")

    def lam_block():
        a.wait_vm('par')
        if not STOUCH: stamp(a, 12)
        LR, LI = 104, 105
        a("v_lshlrev_b32 v107, 16, v104")
        a("v_lshlrev_b32 v108, 16, v105")
        a("v_lshlrev_b32 v106, 16, v106")
        a(f"v_mul_f32 v106, {fhex(LOG2E)}, v106")
        a("v_exp_f32 v106, v106")
        bf16_round(a, 106, 106)
        a("v_mul_f32 v109, v106, v107")
        a("v_mul_f32 v110, v106, v108")
        a(f"v_mul_f32 v109, {fhex(LOG2E)}, v109")
        a(f"v_mul_f32 v110, {fhex(0.15915494309189535)}, v110")
        a("v_exp_f32 v109, v109")
        a("v_rndne_f32 v111, v110")
        a("v_sub_f32 v110, v110, v111")
        a("v_cos_f32 v111, v110")
        a("v_sin_f32 v112, v110")
        a("v_mul_f32 v113, v107, v107")
        a("v_fmac_f32 v113, v108, v108")
        a("v_mul_f32 v104, v109, v111")
        a("v_mul_f32 v105, v109, v112")
        a("v_rcp_f32 v110, v113")
        a("v_add_f32 v109, -1.0, v104")
        a("v_mul_f32 v111, v109, v107")
        a("v_mul_f32 v112, v105, v107")
        a("v_fmac_f32 v111, v105, v108")
        a("v_fma_f32 v112, -v109, v108, v112")
        a("v_add_f32 v110, v110, v110")
        CR, CI = 116, 117
        a(f"v_mul_f32 v{CR}, v111, v110")
        a(f"v_mul_f32 v{CI}, v112, v110")

        def csq(dr, di, sr, si):
            a(f"v_mul_f32 v{dr}, v{sr}, v{sr}")
            a(f"v_mul_f32 v{di}, v{sr}, v{si}")
            a(f"v_fma_f32 v{dr}, -v{si}, v{si}, v{dr}")
            a(f"v_add_f32 v{di}, v{di}, v{di}")

        def cmul(dr, di, xr, xi, yr, yi):
            a(f"v_mul_f32 v{dr}, v{xr}, v{yr}")
            a(f"v_mul_f32 v{di}, v{xr}, v{yi}")
            a(f"v_fma_f32 v{dr}, -v{xi}, v{yi}, v{dr}")
            a(f"v_fmac_f32 v{di}, v{xi}, v{yr}")

        def cmac(dr, di, xr, xi, yr, yi, ar, ai):
            a(f"v_fma_f32 v{dr}, v{xr}, v{yr}, v{ar}")
            a(f"v_fma_f32 v{di}, v{xr}, v{yi}, v{ai}")
            a(f"v_fma_f32 v{dr}, -v{xi}, v{yi}, v{dr}")
            a(f"v_fmac_f32 v{di}, v{xi}, v{yr}")
        L16R, L16I, PGR, PGI, MUR, MUI, M8R, M8I = 106, 107, 108, 109, 110, 111, 112, 113
        csq(118, 119, LR, LI)
        csq(120, 121, 118, 119)
        csq(118, 119, 120, 121)
        csq(L16R, L16I, 118, 119)
        csq(118, 119, L16R, L16I)
        cmul(120, 121, 118, 119, L16R, L16I)
        a("v_lshrrev_b32 v2, 4, v1")
        a(f"v_mov_b32 v{PGR}, 1.0")
        a(f"v_mov_b32 v{PGI}, 0")
        a("v_cmp_eq_u32 vcc, 1, v2")
        a(f"v_cndmask_b32 v{PGR}, v{PGR}, v{L16R}, vcc")
        a(f"v_cndmask_b32 v{PGI}, v{PGI}, v{L16I}, vcc")
        a("v_cmp_eq_u32 vcc, 2, v2")
        a(f"v_cndmask_b32 v{PGR}, v{PGR}, v118, vcc")
        a(f"v_cndmask_b32 v{PGI}, v{PGI}, v119, vcc")
        a("v_cmp_eq_u32 vcc, 3, v2")
        a(f"v_cndmask_b32 v{PGR}, v{PGR}, v120, vcc")
        a(f"v_cndmask_b32 v{PGI}, v{PGI}, v121, vcc")

    def prefill(it):
        s_ = SA if it % 2 == 0 else SBI
        a(f"s_add_u32 m0, s{sRING}, {2048*it}")
        a("s_nop 0")
        a.vmem(f"buffer_load_dwordx4 v27, s[{s_}:{s_+3}], s{sOFF} offen lds", ('pre', it))
        a.vmem(f"buffer_load_dwordx4 v28, s[{s_}:{s_+3}], s{sOFF} offen offset:1024 lds", ('pre', it))
        a(f"s_add_u32 s{sOFF}, s{sOFF}, s{sINC0 if it % 2 == 0 else sINC1}")
    NEARLY = int(opt.get('nearly', 0))

    srd(a, SA, 24, 448 * 3584)
    srd(a, SBI, 24, 448 * 3584)
    a(f"s_mul_i32 s{sRING}, s{sWV}, {RING}")
    a(f"s_add_u32 s{sRING}, s{sRING}, {P}")
    a(f"s_mov_b32 s{sRING3}, s{sRING}")
    a(f"s_lshl_b32 s{sBASE}, s{sSL}, 9")
    a(f"s_lshl_b32 s{sT}, s{sWV}, 7")
    a(f"s_add_u32 s{sBASE}, s{sBASE}, s{sT}")
    a(f"s_mov_b32 s{sINC0}, {16*3584}")
    a(f"s_mov_b32 s{sINC1}, {16*3584}")
    a("v_mul_u32_u24 v27, 3584, v3")
    a("v_lshl_add_u32 v27, v7, 4, v27")
    a(f"v_add_u32 v28, {8*3584-1024}, v27")
    if opt.get('tpos', 'ln') == 'pre': touch1("A")
    if opt.get('touch'):
        a(f"s_mul_i32 s{sT}, s{sWV}, 28")
        a(f"v_add_u32 v2, s{sT}, v1")
        a("v_lshrrev_b32 v8, 3, v2")
        a("v_and_b32 v9, 7, v2")
        a(f"s_mul_i32 s{sT}, s{sRB}, 14")
        a(f"v_add_u32 v8, s{sT}, v8")
        a("v_mul_u32_u24 v8, 3584, v8")
        a("v_lshl_add_u32 v8, v9, 6, v8")
        a(f"s_lshl_b32 s{sT}, s{sSL}, 9")
        a(f"v_add_u32 v8, s{sT}, v8")
        a("v_lshlrev_b32 v9, 6, v2")
        a(f"s_lshl_b32 s{sT}, s{sSL}, 5")
        a(f"s_add_u32 s{sT}, s{sT}, s{sRB}")
        a(f"s_mul_i32 s{sT}, s{sT}, {8*896}")
        a(f"v_add_u32 v9, s{sT}, v9")
        a(f"v_mov_b32 v2, {OOB}")
        a("v_cmp_gt_u32 vcc, 28, v1")
        a("v_cndmask_b32 v8, v2, v8, vcc")
        a("v_cndmask_b32 v9, v2, v9, vcc")
        a.vmem(f"buffer_load_dword v252, v8, s[{SA}:{SA+3}], 0 offen", 'touch')
        a.vmem(f"buffer_load_dword v253, v9, s[{SW2}:{SW2+3}], 0 offen", 'touch')
    a(f"s_mov_b32 s{sOFF}, s{sBASE}")
    for it in range(NEARLY):
        prefill(it)
    a("v_mov_b32 v247, 0")
    g3_addr(a)
    a(f"v_add_u32 v12, s{sRING}, v8")
    a("v_xor_b32 v13, 64, v12")
    a("v_lshrrev_b32 v2, 5, v1")
    a("v_and_b32 v3, 31, v1")
    a("v_bfe_u32 v4, v3, 1, 3")
    a("v_lshrrev_b32 v5, 4, v3")
    a("v_mul_u32_u24 v5, 6, v5")
    a("v_xor_b32 v4, v4, v5")
    a("v_xor_b32 v4, v4, v2")
    a("v_mul_u32_u24 v5, 896, v3")
    for j in range(4):
        a(f"v_xor_b32 v6, {2*j}, v4")
        a(f"v_lshl_add_u32 v{14+j}, v6, 4, v5")
    if STOUCH:
        a("s_waitcnt lgkmcnt(0)")
        stouch_w1(1, 4, 3)
        for m in range(2, (448 // RBG + 7) // 8):
            stouch_w1(m)
    if opt.get('xbar', '1') == '1': a("s_barrier")
    if not STOUCH: stamp(a, 13)
    a.wait_vm('x')
    a("v_lshrrev_b32 v2, 5, v1")
    a("v_lshlrev_b32 v2, 3, v2")
    a(f"v_add_u32 v2, s{sBASE}, v2")
    for ft in range(2):
        for aa in range(4):
            a.vmem(f"global_load_dwordx2 {vr(224 + 2*(4*ft+aa), 2)}, v2, s[26:27] offset:{(32*ft+8*aa)*2}", 'bias')
    saved_vm_A = list(a.vm)

    def emit_ln(role):
        if not STOUCH: stamp(a, 1)
        NLN0 = int(opt.get('nln0', 0))
        for it in range(NEARLY, max(NEARLY, NLN0)):
            prefill(it)
        if opt.get('tpos', 'ln') == 'ln': touch1("C" + role)
        if opt.get('x_ln'): stamp(a, 40)
        U = 128
        a("v_mov_b32 v2, 0")
        a("v_mov_b32 v3, 0")
        a("v_mov_b32 v4, 0")
        a("v_mov_b32 v5, 0")
        a(f"v_mov_b32 v60, 0x3f803f80")
        for i in range(28):
            x = 32 + i
            a(f"v_dot2c_f32_bf16 v{2 + (i & 1)}, v60, v{x}")
            a(f"v_dot2c_f32_bf16 v{4 + (i & 1)}, v{x}, v{x}")
        if opt.get('x_ln'): stamp(a, 41)
        fill = []
        for i in range(28):
            fill.append(f"v_lshlrev_b32 v{U+2*i}, 16, v{32+i}")
            fill.append(f"v_and_b32 v{U+2*i+1}, 0xffff0000, v{32+i}")
        inv = fhex(1.0 / 448.0)
        eps = fhex(1e-5)
        chain = []
        chain += ["v_add_f32 v2, v2, v3", "v_add_f32 v4, v4, v5"]
        for m in ("quad_perm:[1,0,3,2]", "quad_perm:[2,3,0,1]", "row_half_mirror"):
            chain.append(f"v_add_f32_dpp v2, v2, v2 {m} row_mask:0xf bank_mask:0xf")
            chain.append(f"v_add_f32_dpp v4, v4, v4 {m} row_mask:0xf bank_mask:0xf")
        chain += [f"v_mul_f32 v2, {inv}, v2", f"v_mul_f32 v4, {inv}, v4", "v_fma_f32 v4, -v2, v2, v4", "v_max_f32 v4, 0, v4",
                  "v_cvt_pk_bf16_f32 v5, v2, v2", "v_cvt_pk_bf16_f32 v6, v4, v4", "v_lshlrev_b32 v5, 16, v5", "v_lshlrev_b32 v6, 16, v6",
                  f"v_add_f32 v6, {eps}, v6", "v_cvt_pk_bf16_f32 v6, v6, v6", "v_lshlrev_b32 v6, 16, v6", "v_sqrt_f32 v6, v6",
                  "v_cvt_pk_bf16_f32 v6, v6, v6", "v_lshlrev_b32 v6, 16, v6", "v_rcp_f32 v6, v6",
                  "v_sub_f32 v7, v2, v5", "v_mul_f32 v8, v6, v6", "v_mul_f32 v7, v7, v6", "v_mul_f32 v8, v8, v4",
                  "v_cvt_pk_bf16_f32 v7, v7, v7", "v_cvt_pk_bf16_f32 v8, v8, v8", "v_lshlrev_b32 v7, 16, v7", "v_lshlrev_b32 v8, 16, v8",
                  f"v_add_f32 v8, {eps}, v8", "v_cvt_pk_bf16_f32 v8, v8, v8", "v_lshlrev_b32 v8, 16, v8", "v_sqrt_f32 v8, v8",
                  "v_cvt_pk_bf16_f32 v8, v8, v8", "v_lshlrev_b32 v8, 16, v8", "v_rcp_f32 v9, v8",
                  "v_fma_f32 v3, v5, v6, v7", "v_mul_f32 v2, v6, v9", "v_mul_f32 v3, v3, v9", "v_sub_f32 v4, 0, v3", "v_mov_b32 v3, v2", "v_mov_b32 v2, v4"]
        for k, ins in enumerate(chain):
            a(ins)
            if fill:
                a(fill.pop(0))
        for f_ in fill:
            a(f_)
        if opt.get('x_ln'): stamp(a, 42)
        a("v_mov_b32 v60, v3")
        a("v_mov_b32 v61, v3")
        a("v_mov_b32 v4, v2")
        a("v_mov_b32 v63, v5")
        a("v_mov_b32 v5, v2")
        a("v_and_b32 v2, 7, v1")
        a("v_cmp_eq_u32 vcc, 0, v2")
        a(f"s_and_saveexec_b64 s[{sTMP}:{sTMP+1}], vcc")
        a(f"v_add_u32 v2, {S2T}, v62")
        a(f"ds_write_b32 v2, v8")
        a(f"ds_write_b32 v2, v7 offset:{M2T-S2T}")
        a("v_mov_b32 v8, v63")
        a("v_mov_b32 v9, v6")
        a(f"s_mov_b64 exec, s[{sTMP}:{sTMP+1}]")
        if opt.get('x_ln'): stamp(a, 43)
        for i in range(7):
            for d in range(4):
                u = U + 2 * (4 * i + d)
                a(f"v_pk_fma_f32 v[{u}:{u+1}], v[{u}:{u+1}], v[60:61], v[4:5]")
            for d in range(4):
                u = U + 2 * (4 * i + d)
                a(f"v_cvt_pk_bf16_f32 v{32+4*i+d}, v{u}, v{u+1}")
            a(f"ds_write_b128 v10, {vr(32+4*i,4)} offset:{128*i}")
        a("s_waitcnt lgkmcnt(0)")
        stamp(a, 2)
    emit_ln("A")
    a(f"s_mov_b32 s{sOFF}, s{sBASE}")
    a("s_barrier")
    stamp(a, 3)
    NG2 = int(opt.get('ng2', 2))
    for it in range(NG2):
        prefill(it)
    a(f"s_cmp_lg_u32 s{sSL}, 0")
    a("s_cbranch_scc1 K1_NOSTAT")
    a("v_and_b32 v2, 7, v1")
    a("v_cmp_eq_u32 vcc, 0, v2")
    a(f"s_and_saveexec_b64 s[{sTMP}:{sTMP+1}], vcc")
    a("v_lshlrev_b32 v62, 1, v62")
    a(f"s_lshl_b32 s{sT}, s{sRB}, 9")
    a(f"s_add_u32 s{sT}, s{sT}, {STATS}")
    a(f"buffer_store_dwordx2 v[8:9], v62, s[{SWS}:{SWS+3}], s{sT} offen")
    a(f"s_mov_b64 exec, s[{sTMP}:{sTMP+1}]")
    a.label("K1_NOSTAT")
    pre_tags = [('st', i // 2) for i in range(2 * NG2)]

    PP = [(2, 3), (4, 5)]
    XR, XI = 122, 123
    def pass2(sfx, preloaded):
        if preloaded:
            a("s_branch K1_POLLW" + sfx)
        a.label("K1_POLL" + sfx)
        a(f"buffer_load_dwordx4 v[44:47], v250, s[{SWS}:{SWS+3}], 0 offen sc1")
        a.label("K1_POLLW" + sfx)
        a("s_waitcnt vmcnt(0)")
        a("v_cmp_ne_u32 vcc, 1, v46")
        a("s_cbranch_vccz K1_POLLED" + sfx)
        a(f"s_sleep {int(opt.get('psleep', 4))}")
        a("s_branch K1_POLL" + sfx)
        a.label("K1_POLLED" + sfx)
        stamp(a, 6)
        cmac(PP[1][0], PP[1][1], PGR, PGI, 44, 45, XR, XI)
        for e in range(16):
            nr, ni = PP[e & 1]
            hr, hi = PP[(e & 1) ^ 1]
            cmac(nr, ni, LR, LI, hr, hi, 64 + e, 80 + e)
            if e & 1:
                a(f"v_cvt_pk_bf16_f32 v{32 + e//2}, v{hr}, v{nr}")
                a(f"v_cvt_pk_bf16_f32 v{40 + e//2}, -v{hi}, -v{ni}")
        a.lds("ds_write_b128 v246, v[32:35] offset:8192", 'w')
        a.lds("ds_write_b128 v246, v[36:39] offset:8208", 'w')
        a.lds("ds_write_b128 v246, v[40:43] offset:10240", 'w')
        a.lds("ds_write_b128 v246, v[44:47] offset:10256", 'w')
        a.wait_lg_all()
        signal(a, 16)
        stamp(a, 7)
    a.vm = [t for t in saved_vm_A if not (isinstance(t, tuple) and t[0] == 'pre')] + pre_tags
    a.lg = []
    w1_items = [dict(srd=SA, va=27, vb=28, sbase=sBASE, off=16 * s * 3584, ring=sRING) for s in range(28)]
    w2_items = [dict(srd=SW2, va=29, vb=30, sbase=sW2B, off=16 * ks * 896, ring=sRING3) for ks in range(16)]
    c_items = []
    for part in range(2):
        for nt in range(2):
            for pr in range(2):
                c_items.append(dict(srd=(SCR_, SCI)[part], va=31, vb=11, sbase=sCB, off=(32 * nt + 16 * pr) * 896, ring=sRING3))
    stA = Stream(a, w1_items + w2_items + c_items, 0)
    stA.next = NG2
    a.wait_vm('bias')
    for ft in range(2):
        for aa in range(4):
            s_ = 224 + 2 * (4 * ft + aa)
            d_ = 128 + 16 * ft + 4 * aa
            a(f"v_lshlrev_b32 v{d_}, 16, v{s_}")
            a(f"v_and_b32 v{d_+1}, 0xffff0000, v{s_}")
            a(f"v_lshlrev_b32 v{d_+2}, 16, v{s_+1}")
            a(f"v_and_b32 v{d_+3}, 0xffff0000, v{s_+1}")

    FA = [192, 208, 224]

    def g2_reads(s):
        b = FA[s % 3]
        so = (s % 6) * 2048
        out = []
        for ft in range(2):
            for q in range(2):
                out.append(f"ds_read_b64_tr_b16 {vr(b+4*ft+2*q,2)}, v{12+ft} offset:{so+512*q}")
        j = s & 3
        out.append(f"ds_read_b128 {vr(b+8,4)}, v{14+j} offset:{128*(s>>2)}")
        out.append(f"ds_read_b128 {vr(b+12,4)}, v{14+(j^1)} offset:{128*(s>>2)+28672}")
        return out

    if not opt.get('noprio'):
        a("s_setprio 1")
    if opt.get('serial', '1') == '1':
        spin(a, 20, 4)
    if opt.get('x_rep2'):
        a("s_mov_b32 s87, 0")
        a("s_waitcnt vmcnt(0)")
        a.vm = []
        a.label("K1_REP")
        stA.next = 0
        stamp(a, 44)
    stA.issue(6)
    stA.wait(0)
    for r in g2_reads(0):
        a.lds(r, ('f', 0))
    stA.wait(1)
    for r in g2_reads(1):
        a.lds(r, ('f', 1))
    a.wait_lg(('f', 0))
    stA.issue(7)
    for s in range(28):
        b = FA[s % 3]
        ms = []
        for ft in range(2):
            for tt in range(2):
                acc = 64 + 32 * ft + 16 * tt
                c = vr(128 + 16 * ft, 16) if s == 0 else vr(acc, 16)
                ms.append(f"v_mfma_f32_32x32x16_bf16 {vr(acc,16)}, {vr(b+4*ft,4)}, {vr(b+8+4*tt,4)}, {c}")
        rd = g2_reads(s + 2) if s + 2 < 28 else []
        a(ms[0])
        if s + 2 < 28:
            stA.wait(s + 2)
        for r in rd[0:3]:
            a.lds(r, ('f', s + 2))
        a(ms[1])
        for r in rd[3:6]:
            a.lds(r, ('f', s + 2))
        pp = stA.parts(min(s + 8, int(opt.get('g2cap', 34))))
        if pp:
            pp[0][0]()
        a(ms[2])
        if s + 1 < 28:
            a.wait_lg(('f', s + 1))
        if pp:
            pp[0][1]()
        a(ms[3])
        if pp:
            pp[0][2]()
        for extra_ in pp[1:]:
            for fn in extra_:
                fn()
        if opt.get('x_steps') and s % 3 == 2:
            lstamp(a)
    if opt.get('x_steps') and opt.get('x_rep2'):
        a("s_waitcnt lgkmcnt(0)")
        a.lg = []
        for i in range(LS[0]):
            a(f"s_mul_i32 s86, s87, 10")
            a(f"s_add_u32 m0, s86, {16+i}")
            a("s_nop 4")
            a(f"v_writelane_b32 v0, s{4+2*i}, m0")
        LS[0] = 0
    elif opt.get('x_steps'):
        lflush(a, 16)
    if opt.get('x_rep2'):
        a.wait_lg_all()
        a("s_waitcnt vmcnt(0)")
        a("s_cmp_eq_u32 s87, 1")
        a("s_cbranch_scc1 K1_REPD")
        stamp(a, 45)
        a("s_memtime s[100:101]\n s_waitcnt lgkmcnt(0)\n v_writelane_b32 v0, s100, 46")
        a("v_readlane_b32 s100, v0, 44")
        a("s_nop 4")
        a("v_writelane_b32 v0, s100, 47")
        a("s_mov_b32 s87, 1")
        a("s_branch K1_REP")
        a.label("K1_REPD")
        a.vm = []
    stamp(a, 4)
    a.wait_lg_all()
    signal(a, 8)
    spin(a, 0, 4)
    stA.issue(34)
    def touch2():
        if opt.get('touch2', '1') == '1':
            NS = RBG
            n2 = 1792 // NS // 4
            nc = 448 // NS // 4
            for rep in range((n2 + 63) // 64):
                a(f"s_mul_i32 s{sT}, s{sWV}, {n2}")
                a(f"v_add_u32 v2, s{sT}, v1")
                if rep:
                    a(f"v_add_u32 v2, {64*rep}, v2")
                a(f"v_mul_u32_u24 v2, {NS}, v2")
                a(f"v_add_u32 v2, s{sJS}, v2")
                a("v_lshlrev_b32 v2, 7, v2")
                a(f"v_mov_b32 v3, {OOB}")
                a(f"v_cmp_gt_u32 vcc, {n2 - 64*rep}, v1")
                a("v_cndmask_b32 v2, v3, v2, vcc")
                a(f"s_mul_i32 s{sT}, s{sSL}, {256*896}")
                a.vmem(f"buffer_load_dword v252, v2, s[{SW2}:{SW2+3}], s{sT} offen", 'touch')
            a(f"s_mul_i32 s{sT}, s{sWV}, {nc}")
            a(f"v_add_u32 v2, s{sT}, v1")
            a(f"v_mul_u32_u24 v2, {NS}, v2")
            a(f"v_add_u32 v2, s{sJS}, v2")
            a("v_mul_u32_u24 v2, 896, v2")
            a(f"v_mov_b32 v3, {OOB}")
            a(f"v_cmp_gt_u32 vcc, {nc}, v1")
            a("v_cndmask_b32 v2, v3, v2, vcc")
            a(f"s_lshl_b32 s{sT}, s{sSL}, 7")
            a.vmem(f"buffer_load_dword v253, v2, s[{SCR_}:{SCR_+3}], s{sT} offen", 'touch')
            a.vmem(f"buffer_load_dword v254, v2, s[{SCI}:{SCI+3}], s{sT} offen", 'touch')
    a("s_setprio 0")
    stamp(a, 5)
    gelu(a, touch2, int(opt.get('t2pos', 1)))
    a.wait_lg_all()
    signal(a, 12)
    a("s_setprio 1")
    stamp(a, 6)
    g3_stream = stA

    a.label("K1_G3")
    assert g3_stream.next == 34
    a.vm = [('st', 28 + i // 2) for i in range(12)]
    a.lg = []
    spin(a, 12, 4)
    stamp(a, 8)
    def hook_load():
        a(f"s_cmp_ge_u32 s{sWV}, 4")
        a("s_cbranch_scc0 K1_HL")
        a(f"buffer_load_dwordx4 v[44:47], v250, s[{SWS}:{SWS+3}], 0 offen sc1")
        a.label("K1_HL")

    def hook_pass2():
        a(f"s_cmp_ge_u32 s{sWV}, 4")
        a("s_cbranch_scc0 K1_HP")
        sv = (list(a.vm), list(a.lg))
        a("s_setprio 0")
        pass2("B", True)
        a.vm, a.lg = sv[0], []
        a.label("K1_HP")
    g3(a, g3_stream, 28, D2, hook_load, hook_pass2)
    stamp(a, 10)
    stamp_out(a)
    a("s_endpgm")

    a.label("K1_G1_PRE")
    a.vm = list(x_state)
    srd(a, SA, 10, 448 * 896)
    srd(a, SBI, 12, 448 * 896)
    a(f"s_sub_u32 s{sTMP}, s{sWV}, 4")
    a(f"s_mul_i32 s{sRING}, s{sTMP}, {RING}")
    a(f"s_add_u32 s{sRING3}, s{sRING}, {Y}")
    a(f"s_add_u32 s{sRING}, s{sRING}, {Q}")
    a(f"s_mul_i32 s{sBASE}, s{sP0}, 896")
    a(f"s_mov_b32 s{sINC0}, 0")
    a(f"s_mov_b32 s{sINC1}, 128")
    a("v_mov_b32 v27, v31")
    a("v_mov_b32 v28, v11")
    if opt.get('tpos', 'ln') == 'pre': touch1("B")
    if opt.get('touch'):
        a(f"s_mul_i32 s{sT}, s{sTMP}, 7")
        a(f"v_add_u32 v2, s{sT}, v1")
        a("v_lshlrev_b32 v8, 6, v2")
        a(f"s_lshl_b32 s{sT}, s{sSL}, 5")
        a(f"s_add_u32 s{sT}, s{sT}, s{sRB}")
        a(f"s_mul_i32 s{sT}, s{sT}, {2*896}")
        a(f"v_add_u32 v8, s{sT}, v8")
        a("v_lshrrev_b32 v9, 1, v2")
        a(f"s_mul_i32 s{sT}, s{sRB}, 14")
        a(f"v_add_u32 v9, s{sT}, v9")
        a("v_mul_u32_u24 v9, 896, v9")
        a("v_and_b32 v6, 1, v2")
        a("v_lshl_add_u32 v9, v6, 6, v9")
        a(f"s_lshl_b32 s{sT}, s{sSL}, 7")
        a(f"v_add_u32 v9, s{sT}, v9")
        a(f"v_mov_b32 v2, {OOB}")
        a("v_cmp_gt_u32 vcc, 7, v1")
        a("v_cndmask_b32 v8, v2, v8, vcc")
        a("v_cndmask_b32 v9, v2, v9, vcc")
        a.vmem(f"buffer_load_dword v252, v8, s[{SA}:{SA+3}], 0 offen", 'touch')
        a.vmem(f"buffer_load_dword v253, v8, s[{SBI}:{SBI+3}], 0 offen", 'touch')
        a.vmem(f"buffer_load_dword v254, v9, s[{SCR_}:{SCR_+3}], 0 offen", 'touch')
        a.vmem(f"buffer_load_dword v255, v9, s[{SCI}:{SCI+3}], 0 offen", 'touch')
    a(f"s_mov_b32 s{sOFF}, s{sBASE}")
    for it in range(NEARLY):
        prefill(it)
    g3_addr(a)
    a("v_and_b32 v2, 15, v1")
    a("v_lshrrev_b32 v3, 4, v1")
    a("v_bfe_u32 v4, v2, 1, 3")
    a("v_xor_b32 v4, v4, v3")
    a("v_lshlrev_b32 v4, 4, v4")
    a("v_lshl_add_u32 v4, v2, 7, v4")
    a(f"v_add_u32 v12, s{sRING}, v4")
    a("v_xor_b32 v13, 64, v12")
    a("v_lshrrev_b32 v4, 2, v2")
    a("v_and_b32 v5, 3, v2")
    a("v_lshl_add_u32 v6, v4, 4, v5")
    a("v_mul_u32_u24 v6, 896, v6")
    a("v_and_b32 v7, 1, v4")
    a("v_mul_u32_u24 v7, 3, v7")
    a("v_lshrrev_b32 v8, 1, v4")
    a("v_xor_b32 v7, v7, v8")
    a("v_lshlrev_b32 v7, 1, v7")
    a("v_lshrrev_b32 v8, 1, v5")
    a("v_xor_b32 v7, v7, v8")
    a("v_xor_b32 v7, v7, v3")
    for k in range(4):
        a(f"v_xor_b32 v8, {2*k}, v7")
        a(f"v_lshl_add_u32 v{14+k}, v8, 4, v6")
    for k in range(4):
        a(f"v_mov_b32 v{240+k}, 0x3f803f80")
    a(f"s_lshl_b32 s{sT}, s{sTMP}, 9")
    a(f"s_add_u32 s{sT}, s{sT}, {SCR}")
    a("v_lshlrev_b32 v6, 5, v2")
    a(f"v_add_u32 v244, s{sT}, v6")
    a("v_lshl_add_u32 v245, v3, 3, v244")
    a("v_lshlrev_b32 v4, 1, v3")
    a("v_bfe_u32 v5, v2, 1, 1")
    a("v_lshlrev_b32 v5, 2, v5")
    a("v_xor_b32 v4, v4, v5")
    a("v_lshlrev_b32 v4, 4, v4")
    a("v_lshl_add_u32 v4, v2, 7, v4")
    a(f"v_add_u32 v246, s{sRING}, v4")
    a("v_lshlrev_b32 v247, 3, v2")
    a(f"s_lshl_b32 s{sT}, s{sSL}, 5")
    a(f"s_add_u32 s{sT}, s{sT}, s{sRB}")
    a(f"s_lshl_b32 s{sT}, s{sT}, 10")
    a(f"s_lshl_b32 s{sT2}, s{sTMP}, 8")
    a(f"s_add_u32 s{sT}, s{sT}, s{sT2}")
    a(f"s_add_u32 s{sT}, s{sT}, {INBOX}")
    a("v_lshlrev_b32 v250, 4, v2")
    a(f"v_add_u32 v250, s{sT}, v250")
    if STOUCH:
        a("s_waitcnt lgkmcnt(0)")
        stouch_w1g(1, 4, 3)
        for m in range(2, (448 // RBG + 7) // 8):
            stouch_w1g(m)
    if opt.get('xbar', '1') == '1': a("s_barrier")
    if not STOUCH: stamp(a, 13)
    a.wait_vm('x')
    saved_vm_B = list(a.vm)

    emit_ln("B")
    for it in range(6):
        prefill(it)
    for k in range(4):
        a(f"v_mov_b32 v{44+k}, 0")
    a("s_mov_b64 exec, 0xffff")
    a(f"buffer_store_dwordx4 v[44:47], v250, s[{SWS}:{SWS+3}], 0 offen sc1")
    a("s_mov_b64 exec, -1")
    a(f"s_lshl_b32 s{sT}, s{sSL}, 5")
    a(f"v_mov_b32 v249, s{sT}")
    a(f"s_cmp_eq_u32 s{sWV}, 4")
    a("s_cbranch_scc0 K1_NORDY")
    a(f"buffer_load_dword v251, v249, s[{SDBG}:{SDBG+3}], 0 offen sc1")
    a.label("K1_NORDY")
    if opt.get('lampos', 'post') == 'pre': lam_block()
    a(f"s_cmp_lg_u32 s{sSL}, 0")
    a("s_cbranch_scc1 K1_NOSTATB")
    a("v_and_b32 v2, 7, v1")
    a("v_cmp_eq_u32 vcc, 0, v2")
    a(f"s_and_saveexec_b64 s[{sTMP}:{sTMP+1}], vcc")
    a("v_lshlrev_b32 v62, 1, v62")
    a(f"s_lshl_b32 s{sT}, s{sRB}, 9")
    a(f"s_add_u32 s{sT}, s{sT}, {STATS}")
    a(f"buffer_store_dwordx2 v[8:9], v62, s[{SWS}:{SWS+3}], s{sT} offen")
    a(f"s_mov_b64 exec, s[{sTMP}:{sTMP+1}]")
    a.label("K1_NOSTATB")
    a("s_barrier")
    stamp(a, 3)
    a.vm = [t for t in saved_vm_B if not (isinstance(t, tuple) and t[0] == 'pre')] + [('b', i // 4) for i in range(12)]
    a.lg = []

    def b_parts(ds):
        sl_ = ds % 3
        return [
            lambda: (a(f"s_add_u32 m0, s{sRING}, {sl_*4096}"), a(f"s_add_u32 s{sT}, s{sBASE}, {128*ds}")),
            lambda: a.vmem(f"buffer_load_dwordx4 v31, s[{SA}:{SA+3}], s{sT} offen lds", ('b', ds)),
            lambda: a.vmem(f"buffer_load_dwordx4 v11, s[{SA}:{SA+3}], s{sT} offen offset:1024 lds", ('b', ds)),
            lambda: a(f"s_add_u32 m0, s{sRING}, {sl_*4096+2048}"),
            lambda: a.vmem(f"buffer_load_dwordx4 v31, s[{SBI}:{SBI+3}], s{sT} offen lds", ('b', ds)),
            lambda: a.vmem(f"buffer_load_dwordx4 v11, s[{SBI}:{SBI+3}], s{sT} offen offset:1024 lds", ('b', ds)),
        ]

    def b_issue(ds):
        for f_ in b_parts(ds):
            f_()
    AF = [128, 144, 160]
    BF = [176, 192]

    def g1_breads(ds):
        so = (ds % 3) * 4096
        out = []
        for s1 in range(2):
            out.append(f"ds_read_b128 {vr(BF[ds&1]+8*s1,4)}, v{12+s1} offset:{so}")
            out.append(f"ds_read_b128 {vr(BF[ds&1]+8*s1+4,4)}, v{12+s1} offset:{so+2048}")
        return out

    def g1_areads(s):
        s1 = s & 1
        out = []
        for aa in range(4):
            k = (2 * s1) ^ aa
            out.append(f"ds_read_b128 {vr(AF[s%3]+4*aa,4)}, v{14+k} offset:{aa*4*896+128*(s>>1)}")
        return out

    if opt.get('x_g1sleep'):
        a("s_sleep 127\n s_sleep 127\n s_sleep 127\n s_sleep 127")
    if not opt.get('noprio'):
        a("s_setprio 2")
    a.wait_vm(('b', 0))
    for r in g1_breads(0):
        a.lds(r, ('B', 0))
    for s0 in range(2):
        for r in g1_areads(s0):
            a.lds(r, ('f', s0))
    for s in range(14):
        ds = s >> 1
        a.wait_lg(('f', s))
        if s == 0:
            b_issue(3)
        if PROF[0] and opt.get('x_g1') and s % 2 == 0:
            a("s_memtime s[100:101]")
            a("s_waitcnt lgkmcnt(0)")
            a(f"v_writelane_b32 v0, s100, {24 + s}")
        if s % 2 == 0 and ds + 1 < 7:
            a.wait_vm(('b', ds + 1))
        if PROF[0] and opt.get('x_g1') and s % 2 == 0:
            a("s_memtime s[100:101]")
            a("s_waitcnt lgkmcnt(0)")
            a(f"v_writelane_b32 v0, s100, {25 + s}")
            a.lg = []
        bp = []
        if s % 2 == 1 and ds + 1 < 7:
            a.wait_lg(('B', ds + 1))
            if ds + 4 < 7:
                bp = b_parts(ds + 4)
        A_, B_ = AF[s % 3], BF[ds & 1] + 8 * (s & 1)
        ms = []
        for aa in range(4):
            for part in range(2):
                acc = 64 + 16 * part + 4 * aa
                c = "0" if s == 0 else vr(acc, 4)
                ms.append(f"v_mfma_f32_16x16x32_bf16 {vr(acc,4)}, {vr(A_+4*aa,4)}, {vr(B_+4*part,4)}, {c}")
        for part in range(2):
            acc = 96 + 4 * part
            c = "0" if s == 0 else vr(acc, 4)
            ms.append(f"v_mfma_f32_16x16x32_bf16 {vr(acc,4)}, v[240:243], {vr(B_+4*part,4)}, {c}")
        rd = []
        if s % 2 == 0 and ds + 1 < 7:
            rd += [(r, ('B', ds + 1)) for r in g1_breads(ds + 1)]
        if s + 2 < 14:
            rd += [(r, ('f', s + 2)) for r in g1_areads(s + 2)]
        fill = [lambda r=r, t=t: a.lds(r, t) for (r, t) in rd] + bp
        for k, m in enumerate(ms):
            a(m)
            if k < len(fill):
                fill[k]()
        for f_ in fill[len(ms):]:
            f_()
        if bp and ds + 4 == 6 and opt.get('serial', '1') == '1':
            a(f"v_mov_b32 v2, {CNT+20}")
            a("v_mov_b32 v3, 1")
            a("s_mov_b64 exec, 1")
            a.lds("ds_add_u32 v2, v3", 'sig')
            a("s_mov_b64 exec, -1")
    a("s_setprio 0")
    stamp(a, 4)
    a.wait_lg_all()
    signal(a, 0)
    a(f"s_cmp_eq_u32 s{sWV}, 4")
    a("s_cbranch_scc0 K1_RDY2")
    a.label("K1_RDY1")
    a("s_waitcnt vmcnt(0)")
    a(f"v_readfirstlane_b32 s{sT}, v251")
    a(f"s_cmp_eq_u32 s{sT}, 1")
    a("s_cbranch_scc0 K1_RDYS")
    SLOW.append(("K1_RDYS", ["s_sleep 4", f"buffer_load_dword v251, v249, s[{SDBG}:{SDBG+3}], 0 offen sc1", "s_branch K1_RDY1"]))
    signal(a, 4)
    a.label("K1_RDY2")
    if opt.get('lampos', 'post') == 'post': lam_block()
    a("v_lshrrev_b32 v7, 4, v1")
    a("v_lshlrev_b32 v4, 6, v7")
    a(f"v_add_u32 v4, {S2T}, v4")
    for k in range(4):
        a.lds(f"ds_read_b128 {vr(32+4*k,4)}, v4 offset:{16*k}", 'st')
        a.lds(f"ds_read_b128 {vr(48+4*k,4)}, v4 offset:{M2T-S2T+16*k}", 'st')
    a.wait_lg('st')
    for e in range(16):
        R_, I_ = 64 + e, 80 + e
        a(f"v_mul_f32 v8, v{48+e}, v96")
        a(f"v_mul_f32 v9, v{48+e}, v100")
        a(f"v_fma_f32 v8, v{32+e}, v{R_}, v8")
        a(f"v_fma_f32 v9, v{32+e}, v{I_}, v9")
        a(f"v_mul_f32 v{R_}, v{CR}, v8")
        a(f"v_mul_f32 v{I_}, v{CR}, v9")
        a(f"v_fma_f32 v{R_}, -v{CI}, v9, v{R_}")
        a(f"v_fmac_f32 v{I_}, v{CI}, v8")
        nr, ni = PP[e & 1]
        hr, hi = PP[(e & 1) ^ 1]
        if e == 0:
            a(f"v_mov_b32 v{nr}, v{R_}")
            a(f"v_mov_b32 v{ni}, v{I_}")
        else:
            cmac(nr, ni, LR, LI, hr, hi, R_, I_)
    HE = PP[1]
    a.lds(f"ds_write_b64 v245, v[{HE[0]}:{HE[1]}]", 'w')
    a.wait_lg('w')
    a.lds("ds_read_b128 v[32:35], v244", 'r')
    a.lds("ds_read_b128 v[36:39], v244 offset:16", 'r')
    a.wait_lg('r')
    cmac(40, 41, L16R, L16I, 32, 33, 34, 35)
    cmac(42, 43, L16R, L16I, 40, 41, 36, 37)
    cmac(44, 45, L16R, L16I, 42, 43, 38, 39)
    a("v_mov_b32 v46, 1")
    a("v_mov_b32 v47, 0")
    a.wait_lg_all()
    spin(a, 4, 1)
    a(f"s_mov_b32 s{sT}, {EIN - INBOX}")
    a("s_mov_b64 exec, 0xffff")
    a(f"buffer_store_dwordx4 v[44:47], v250, s[{SWS}:{SWS+3}], s{sT} offen sc1")
    a("s_mov_b64 exec, -1")
    a.vm = []
    a(f"v_mov_b32 v{XR}, 0")
    a(f"v_mov_b32 v{XI}, 0")
    for g_, (r_, i_) in ((1, (32, 33)), (2, (40, 41)), (3, (42, 43))):
        a(f"v_cmp_eq_u32 vcc, {g_}, v7")
        a(f"v_cndmask_b32 v{XR}, v{XR}, v{r_}, vcc")
        a(f"v_cndmask_b32 v{XI}, v{XI}, v{i_}, vcc")
    stamp(a, 5)
    a("s_setprio 0")
    spin(a, 8, 4)
    stamp(a, 9)
    a(f"s_cmp_eq_u32 s{sWV}, 7")
    a("s_cbranch_scc1 K1_NOPRE")
    spin(a, 0, 4)
    stB = Stream(a, w2_items + c_items, 28)
    if opt.get('prefirst', '1') == '1':
        stB.issue(6)
    a.label("K1_NOPRE")
    a.vm = []
    if opt.get('g3prio', '1') == '1':
        a("s_setprio 2")
    a(f"s_cmp_eq_u32 s{sWV}, 7")
    a("s_cbranch_scc0 K1_G3")
    a("s_setprio 0")
    pass2("A", False)
    stamp(a, 10)
    stamp_out(a)
    a("s_branch K1_END")

    a.label("K1_COLL")
    a(f"s_cmp_lg_u32 s{sSL}, 7")
    a("s_cbranch_scc1 K1_END")
    a(f"s_mul_i32 s{sT}, s{sJS}, {R}")
    a(f"s_cmp_lg_u32 s{sT}, s{sRB}")
    a("s_cbranch_scc1 K1_END")
    a(f"s_cmp_ge_u32 s{sJS}, 7")
    a("s_cbranch_scc1 K1_END")
    a("v_lshrrev_b32 v2, 6, v0")
    a("v_and_b32 v1, 63, v0")
    a(f"v_readfirstlane_b32 s{sWV}, v2")
    a(f"s_mov_b32 s{sSL}, s{sJS}")
    a("s_load_dwordx4 s[4:7], s[0:1], 8")
    a("s_load_dwordx2 s[18:19], s[0:1], 56")
    a("s_load_dwordx4 s[32:35], s[0:1], 112")
    a("s_load_dwordx2 s[36:37], s[0:1], 128")
    a(f"s_lshl_b32 s{sT}, s{sSL}, 6")
    a(f"v_add_u32 v2, s{sT}, v1")
    a("v_lshlrev_b32 v2, 1, v2")
    a(f"s_lshl_b32 s{sT}, s{sSL}, 15")
    a(f"s_lshl_b32 s{sT2}, s{sWV}, 12")
    a(f"s_add_u32 s{sT}, s{sT}, s{sT2}")
    a(f"s_add_u32 s{sT}, s{sT}, {EIN}")
    a("v_lshlrev_b32 v3, 4, v1")
    a(f"v_add_u32 v3, s{sT}, v3")
    for k in range(4):
        a(f"v_mov_b32 v{8+k}, 0")
    a("s_waitcnt lgkmcnt(0)")
    srd(a, SWS, 36, WS_SIZE)
    srd(a, SDBG, 34, 256)
    for k in range(4):
        a(f"buffer_store_dwordx4 v[8:11], v3, s[{SWS}:{SWS+3}], 0 offen offset:{1024*k} sc1")
    a("global_load_ushort v104, v2, s[4:5]")
    a("global_load_ushort v105, v2, s[6:7]")
    a("global_load_ushort v106, v2, s[18:19]")
    a("s_waitcnt vmcnt(0)")
    a("s_barrier")
    a(f"s_cmp_lg_u32 s{sWV}, 0")
    a("s_cbranch_scc1 K1_CPOLL")
    a(f"s_lshl_b32 s{sT}, s{sSL}, 5")
    a(f"v_mov_b32 v5, s{sT}")
    a("v_mov_b32 v6, 1")
    a("s_mov_b64 exec, 1")
    a(f"buffer_store_dword v6, v5, s[{SDBG}:{SDBG+3}], 0 offen sc1")
    a("s_mov_b64 exec, -1")
    a("v_lshlrev_b32 v107, 16, v104")
    a("v_lshlrev_b32 v108, 16, v105")
    a("v_lshlrev_b32 v106, 16, v106")
    a(f"v_mul_f32 v106, {fhex(LOG2E)}, v106")
    a("v_exp_f32 v106, v106")
    bf16_round(a, 106, 106)
    a("v_mul_f32 v109, v106, v107")
    a("v_mul_f32 v110, v106, v108")
    a(f"v_mul_f32 v109, {fhex(LOG2E)}, v109")
    a(f"v_mul_f32 v110, {fhex(0.15915494309189535)}, v110")
    a("v_exp_f32 v109, v109")
    a("v_rndne_f32 v111, v110")
    a("v_sub_f32 v110, v110, v111")
    a("v_cos_f32 v111, v110")
    a("v_sin_f32 v112, v110")
    a("v_mul_f32 v104, v109, v111")
    a("v_mul_f32 v105, v109, v112")
    cur_ = (104, 105)
    for k in range(6):
        nx = (118, 119) if k % 2 == 0 else (120, 121)
        a(f"v_mul_f32 v{nx[0]}, v{cur_[0]}, v{cur_[0]}")
        a(f"v_mul_f32 v{nx[1]}, v{cur_[0]}, v{cur_[1]}")
        a(f"v_fma_f32 v{nx[0]}, -v{cur_[1]}, v{cur_[1]}, v{nx[0]}")
        a(f"v_add_f32 v{nx[1]}, v{nx[1]}, v{nx[1]}")
        cur_ = nx
    MR, MI = cur_
    a.label("K1_CPOLL")
    for k in range(4):
        a(f"buffer_load_dwordx4 v[{16+4*k}:{19+4*k}], v3, s[{SWS}:{SWS+3}], 0 offen offset:{1024*k} sc1")
    a("s_waitcnt vmcnt(0)")
    a("v_and_b32 v12, v18, v22")
    a("v_and_b32 v13, v26, v30")
    a("v_and_b32 v12, v12, v13")
    a("v_cmp_ne_u32 vcc, 1, v12")
    a("s_cbranch_vccnz K1_CPOLLS")
    SLOW.append(("K1_CPOLLS", [f"s_sleep {int(opt.get('csleep', 2))}", "s_branch K1_CPOLL"]))
    if PROF[0]: a("s_memrealtime s[8:9]")
    a("v_lshlrev_b32 v4, 3, v1")
    a(f"s_lshl_b32 s{sT}, s{sWV}, 11")
    a(f"v_add_u32 v4, s{sT}, v4")
    for k in range(4):
        a(f"ds_write_b64 v4, v[{16+4*k}:{17+4*k}] offset:{512*k}")
    a("s_waitcnt lgkmcnt(0)")
    a("s_barrier")
    a(f"s_cmp_lg_u32 s{sWV}, 0")
    a("s_cbranch_scc1 K1_END")
    if PROF[0]: a("s_memrealtime s[10:11]")
    a("v_lshlrev_b32 v4, 3, v1")
    for c in range(31):
        a(f"ds_read_b64 v[{128+2*c}:{129+2*c}], v4 offset:{512*c}")
        if c % 8 == 7:
            a("s_waitcnt lgkmcnt(0)")
    a("v_lshlrev_b32 v4, 4, v1")
    a(f"s_lshl_b32 s{sT}, s{sSL}, 15")
    a(f"s_add_u32 s{sT}, s{sT}, {INBOX}")
    a(f"v_add_u32 v4, s{sT}, v4")
    Q4 = [(8, 9, 10, 11), (12, 13, 14, 15)]
    for q in Q4:
        a(f"v_mov_b32 v{q[2]}, 1")
        a(f"v_mov_b32 v{q[3]}, 0")
    a("v_mov_b32 v8, 0")
    a("v_mov_b32 v9, 0")
    a("s_waitcnt lgkmcnt(0)")
    for rb in range(32):
        q = Q4[rb & 1]
        n = Q4[(rb + 1) & 1]
        a(f"s_mov_b32 s{sT}, {1024*rb}")
        a(f"buffer_store_dwordx4 v[{q[0]}:{q[3]}], v4, s[{SWS}:{SWS+3}], s{sT} offen sc1")
        if rb < 31:
            e = 128 + 2 * rb
            a(f"v_fma_f32 v{n[0]}, v{MR}, v{q[0]}, v{e}")
            a(f"v_fma_f32 v{n[1]}, v{MR}, v{q[1]}, v{e+1}")
            a(f"v_fma_f32 v{n[0]}, -v{MI}, v{q[1]}, v{n[0]}")
            a(f"v_fmac_f32 v{n[1]}, v{MI}, v{q[0]}")
    if PROF[0]:
        a("s_memrealtime s[12:13]")
        a("s_waitcnt vmcnt(0)")
        a("s_memrealtime s[14:15]")
        a("s_waitcnt lgkmcnt(0)")
        a(f"s_lshl_b32 s{sT+8}, s{sSL}, 4")
        a(f"s_add_u32 s{sT+8}, s{sT+8}, 0xF00000")
        a("v_mov_b32 v2, 0")
        for i, r in enumerate((8, 10, 12, 14)):
            a(f"v_mov_b32 v3, s{r}")
            a(f"buffer_store_dword v3, v2, s[{SWS}:{SWS+3}], s{sT+8} offen offset:{4*i}")
    a("s_endpgm")
    for lab, ins in SLOW:
        a.label(lab)
        for t in ins:
            a(t)
    del SLOW[:]
    a.label("K1_END")
    a("s_endpgm")
    return a


def g3_addr(a):
    a("v_lshrrev_b32 v2, 5, v1")
    a("v_bfe_u32 v3, v1, 2, 2")
    a("v_and_b32 v4, 3, v1")
    a("v_bfe_u32 v5, v1, 4, 1")
    a("v_lshlrev_b32 v6, 1, v5")
    a("v_lshrrev_b32 v7, 1, v4")
    a("v_or_b32 v6, v6, v7")
    a("v_lshrrev_b32 v7, 1, v3")
    a("v_lshlrev_b32 v7, 2, v7")
    a("v_xor_b32 v6, v6, v7")
    a("v_lshlrev_b32 v6, 4, v6")
    a("v_and_b32 v7, 1, v4")
    a("v_lshl_add_u32 v6, v7, 3, v6")
    a("v_lshl_add_u32 v7, v2, 3, v3")
    a("v_lshl_add_u32 v8, v7, 7, v6")
    a("v_lshl_add_u32 v7, v2, 2, v3")
    a("v_lshl_add_u32 v9, v7, 7, v6")
    a(f"v_add_u32 v18, s{sRING3}, v9")
    a("v_xor_b32 v19, 64, v18")
    a(f"v_add_u32 v21, {Q + 8192}, v8")
    a("v_xor_b32 v22, 64, v21")
    a("v_lshlrev_b32 v20, 4, v1")
    a(f"v_add_u32 v20, {Q}, v20")
    c_addr(a)


def c_addr(a):
    a("v_and_b32 v3, 31, v1")
    a("v_lshrrev_b32 v2, 5, v1")
    a("v_bfe_u32 v4, v3, 1, 3")
    a("v_xor_b32 v4, v4, v2")
    a("v_lshlrev_b32 v4, 4, v4")
    a("v_lshl_add_u32 v4, v3, 7, v4")
    a(f"v_add_u32 v23, s{sRING3}, v4")
    for cg in range(1, 4):
        a(f"v_xor_b32 v{23+cg}, {32*cg}, v23")


def gelu(a, hook=None, hookpos=1, pk=True):
    c1 = -2.0 * 0.7978845608028654 * LOG2E
    c2 = c1 * 0.044715
    a(f"v_mov_b32 v56, {fhex(c1)}")
    a(f"v_mov_b32 v57, {fhex(c1)}")
    a(f"v_mov_b32 v58, {fhex(c2)}")
    a(f"v_mov_b32 v59, {fhex(c2)}")
    a("v_mov_b32 v62, 1.0")
    a("v_mov_b32 v63, 1.0")
    a(f"s_mul_i32 s{sTMP}, s{sWV}, {RING}")
    a(f"s_add_u32 s{sTMP}, s{sTMP}, {Q}")
    a("v_lshlrev_b32 v61, 4, v1")
    a(f"v_add_u32 v61, s{sTMP}, v61")
    grp = 0
    for ft in range(2):
        for tt in range(2):
            acc = 64 + 32 * ft + 16 * tt
            if hook is not None and grp == hookpos:
                hook()
            grp += 1
            X = [acc + 2 * e for e in range(8)]
            T = [32 + 2 * e for e in range(8)]
            P = lambda r: f"v[{r}:{r+1}]"
            for e in range(8):
                a(f"v_pk_mul_f32 {P(T[e])}, {P(X[e])}, {P(X[e])}")
            for e in range(8):
                a(f"v_pk_fma_f32 {P(T[e])}, {P(T[e])}, v[58:59], v[56:57]")
            for e in range(8):
                a(f"v_pk_mul_f32 {P(T[e])}, {P(T[e])}, {P(X[e])}")
            for e in range(16):
                a(f"v_exp_f32 v{32+e}, v{32+e}")
            for e in range(8):
                a(f"v_pk_add_f32 {P(T[e])}, {P(T[e])}, v[62:63]")
            for e in range(16):
                a(f"v_rcp_f32 v{32+e}, v{32+e}")
            for e in range(8):
                a(f"v_pk_mul_f32 {P(T[e])}, {P(T[e])}, {P(X[e])}")
            for half in range(2):
                for d in range(4):
                    a(f"v_cvt_pk_bf16_f32 v{48+4*half+d}, v{32+8*half+2*d}, v{32+8*half+2*d+1}")
                a.lds(f"ds_write_b128 v61, {vr(48+4*half,4)} offset:{((2*ft+half)*2+tt)*1024}", 'hw')
            if len(a.lg) >= 8:
                a.wait_lg_all()


def g3(a, st, base, D2, hook_load=None, hook_pass2=None):
    FA = [192, 208, 224]
    CF = 64
    mlp_base = base
    ssm_base = base + 16
    first = [True]

    def mfmas(Aregs, Bregs):
        ms = []
        for tt in range(2):
            for nt in range(2):
                acc = 128 + 32 * tt + 16 * nt
                c = "0" if first[0] else vr(acc, 16)
                ms.append(f"v_mfma_f32_32x32x16_bf16 {vr(acc,16)}, {vr(Aregs[tt],4)}, {vr(Bregs[nt],4)}, {c}")
        first[0] = False
        return ms

    def mlp_reads(ks):
        b = FA[ks % 3]
        so = st.slot(mlp_base + ks) * 2048
        out = []
        for nt in range(2):
            for q in range(2):
                out.append(f"ds_read_b64_tr_b16 {vr(b+8+4*nt+2*q,2)}, v{18+nt} offset:{so+1024*q}")
        for tt in range(2):
            out.append(f"ds_read_b128 {vr(b+4*tt,4)}, v20 offset:{12288*(ks>>2)+((ks&3)*2+tt)*1024}")
        return out

    def ssm_areads(k):
        part, cg = k >> 2, k & 3
        b = FA[(16 + k) % 3]
        out = []
        for tt in range(2):
            for q in range(2):
                out.append(f"ds_read_b64_tr_b16 {vr(b+4*tt+2*q,2)}, v{21+tt} offset:{12288*cg+2048*part+512*q}")
        return out

    def c_reads(part):
        out = []
        for nt in range(2):
            i0 = ssm_base + 4 * part + 2 * nt
            so = st.slot(i0) * 2048
            assert st.slot(i0 + 1) == st.slot(i0) + 1
            for cg in range(4):
                out.append(f"ds_read_b128 {vr(CF+32*part+8*cg+4*nt,4)}, v{23+cg} offset:{so}")
        return out

    def step_reads(m):
        return mlp_reads(m) if m < 16 else ssm_areads(m - 16)

    st.wait(mlp_base)
    for r in step_reads(0):
        a.lds(r, ('m', 0))
    st.wait(mlp_base + 1)
    for r in step_reads(1):
        a.lds(r, ('m', 1))
    a.wait_lg(('m', 0))
    for m in range(24):
        b = FA[m % 3]
        if m < 16:
            ms = mfmas([b, b + 4], [b + 8, b + 12])
        else:
            k = m - 16
            cb = CF + 32 * (k >> 2) + 8 * (k & 3)
            ms = mfmas([b, b + 4], [cb, cb + 4])
        if m == 14:
            a.wait_lg_all()
            stamp(a, 14)
            hook_pass2()
            spin(a, 16, 4)
            a("s_setprio 3")
            stamp(a, 15)
        if m == 9:
            hook_load()
        rd = [(r, ('m', m + 2)) for r in step_reads(m + 2)] if m + 2 < 24 else []
        cr = []
        if m == 14:
            cr = [(r, ('c', 0)) for r in c_reads(0)[0:4]]
        elif m == 15:
            cr = [(r, ('c', 1)) for r in c_reads(0)[4:8]]
        elif m == 17:
            cr = [(r, ('c', 2)) for r in c_reads(1)[0:4]]
        elif m == 19:
            cr = [(r, ('c', 3)) for r in c_reads(1)[4:8]]
        if m == 16:
            a(f"s_setprio {PRIO16[0]}")
            a.wait_lg(('c', 1))
        if m == 20:
            a.wait_lg(('c', 3))
        a(ms[0])
        if m + 2 < 16:
            if XNOVM[0]:
                a.vm = [t for t in a.vm if t != ('st', st.first + mlp_base + m + 2 - st.first)]
            else:
                st.wait(mlp_base + m + 2)
        if m == 14:
            st.wait(ssm_base + 1)
        if m == 15:
            a.wait_lg(('m', 16))
            st.wait(ssm_base + 3)
        if m == 17:
            st.wait(ssm_base + 5)
        if m == 19:
            a.wait_lg(('c', 2))
            st.wait(ssm_base + 7)
            if STORESYNC[0]:
                a(f"v_mov_b32 v2, {CNT+24}")
                a("v_mov_b32 v3, 1")
                a("s_mov_b64 exec, 1")
                a.lds("ds_add_u32 v2, v3", 'sig')
                a("s_mov_b64 exec, -1")
        allr = rd + cr
        h1 = (len(allr) + 1) // 2
        for r, t in allr[:h1]:
            a.lds(r, t)
        a(ms[1])
        for r, t in allr[h1:]:
            a.lds(r, t)
        if m == 15:
            a.wait_lg(('c', 0))
            pp = st.parts(ssm_base + 8)
        else:
            pp = st.parts(min(mlp_base + m + 8, ssm_base + 6))
        if pp:
            pp[0][0]()
        a(ms[2])
        if m + 1 < 24:
            a.wait_lg(('m', m + 1))
        if pp:
            pp[0][1]()
        a(ms[3])
        if pp:
            pp[0][2]()
        for extra_ in pp[1:]:
            for fn in extra_:
                fn()
        if XS[0] and m % 3 == 2:
            lstamp(a)
    if XS[0]:
        lflush(a, 26)
    if STORESYNC[0]:
        a.wait_lg_all()
        spin(a, 24, 7)
    a(f"s_mul_i32 s{sT}, s{sRB}, 7")
    a(f"s_add_u32 s{sT}, s{sT}, s{sWV}")
    a(f"s_mul_i32 s{sT}, s{sT}, 56")
    a(f"s_add_u32 s{sT}, s{sT}, s{sSL}")
    a(f"s_lshl_b32 s{sT}, s{sT}, 10")
    a(f"s_add_u32 s{sT}, s{sT}, {PBUF}")
    a("v_lshlrev_b32 v2, 4, v1")
    for tt in range(2):
        for nt in range(2):
            acc = 128 + 32 * tt + 16 * nt
            for hf in range(2):
                v_ = tt * 4 + nt * 2 + hf
                d = 32 + 4 * (v_ & 3)
                for k in range(4):
                    a(f"v_cvt_pk_bf16_f32 v{d+k}, v{acc+8*hf+2*k}, v{acc+8*hf+2*k+1}")
                a(f"s_add_u32 s{sT2}, s{sT}, {v_*7*1024}")
                a(f"buffer_store_dwordx4 {vr(d,4)}, v2, s[{SWS}:{SWS+3}], s{sT2} offen sc1")


def dump_lds(a, base, nbytes):
    a("s_lshl_b32 s90, s2, 16")
    a("s_add_u32 s90, s90, 0x800000")
    a("v_lshlrev_b32 v2, 4, v0")
    n = (nbytes + 8191) // 8192
    for i in range(n):
        a(f"v_add_u32 v3, {base + 8192*i}, v2")
        a("ds_read_b128 v[4:7], v3")
        a("s_waitcnt lgkmcnt(0)")
        a(f"v_add_u32 v3, {8192*i}, v2")
        a(f"buffer_store_dwordx4 v[4:7], v3, s[{SWS}:{SWS+3}], s90 offen")
        a("s_waitcnt vmcnt(0)")


def dump_regs(a, base, n):
    a("s_lshl_b32 s90, s2, 3")
    a(f"s_add_u32 s90, s90, s{sWV}")
    a("s_lshl_b32 s90, s90, 14")
    a("s_add_u32 s90, s90, 0x800000")
    a("v_lshlrev_b32 v2, 2, v1")
    a("s_nop 15")
    for i in range(n):
        a(f"buffer_store_dword v{base+i}, v2, s[{SWS}:{SWS+3}], s90 offen")
        a("s_add_u32 s90, s90, 256")
    a("s_waitcnt vmcnt(0)")


def gen_k2(opt):
    a = Asm()
    a("s_cmp_ge_u32 s2, 256")
    a("s_cbranch_scc1 K2_END")
    a("s_and_b32 s38, s2, 7")
    a("s_cmp_eq_u32 s38, 7")
    a("s_cbranch_scc1 K2_END")
    a("s_load_dwordx2 s[4:5], s[0:1], 0")
    a("s_load_dwordx2 s[6:7], s[0:1], 64")
    a("s_load_dwordx2 s[8:9], s[0:1], 104")
    a("s_load_dwordx2 s[10:11], s[0:1], 112")
    a("s_load_dwordx2 s[12:13], s[0:1], 128")
    a("s_lshr_b32 s39, s2, 3")
    a("v_lshrrev_b32 v2, 6, v0")
    a("v_and_b32 v1, 63, v0")
    a("v_readfirstlane_b32 s40, v2")
    a("v_and_b32 v3, 31, v1")
    a("v_lshrrev_b32 v4, 5, v1")
    a("s_lshr_b32 s41, s40, 2")
    a("s_bfe_u32 s42, s40, 0x10001")
    a("s_and_b32 s43, s40, 1")
    a("s_lshl_b32 s44, s38, 6")
    a("s_lshl_b32 s45, s42, 5")
    a("s_add_u32 s44, s44, s45")
    a("v_add_u32 v5, s44, v3")
    a("s_lshl_b32 s45, s39, 6")
    a("s_lshl_b32 s46, s41, 5")
    a("s_add_u32 s45, s45, s46")
    a("s_lshl_b32 s46, s43, 4")
    a("s_add_u32 s45, s45, s46")
    a("v_lshl_add_u32 v6, v4, 2, s45")
    a("s_mul_i32 s46, s39, 7")
    a("s_add_u32 s46, s46, s38")
    a("s_lshl_b32 s46, s46, 3")
    a("s_add_u32 s46, s46, s40")
    a("s_mul_i32 s46, s46, 7168")
    a(f"s_add_u32 s46, s46, {PBUF}")
    a("v_lshlrev_b32 v7, 4, v1")
    a("s_waitcnt lgkmcnt(0)")
    srd(a, 48, 4, 2048 * 896)
    srd(a, 52, 10, 2048 * 1792)
    srd(a, 56, 12, WS_SIZE)
    for s_ in range(7):
        a(f"buffer_load_dwordx4 {vr(32+4*s_,4)}, v7, s[56:59], s46 offen")
        a("s_add_u32 s46, s46, 1024")
    a("v_mul_u32_u24 v8, 896, v6")
    a("v_lshl_add_u32 v8, v5, 1, v8")
    for e in range(8):
        a(f"buffer_load_ushort v{16+e}, v8, s[48:51], 0 offen offset:{896*(8*(e>>2)+(e&3))}" if 896 * (8 * (e >> 2) + (e & 3)) < 4096 else "")
        if 896 * (8 * (e >> 2) + (e & 3)) >= 4096:
            a(f"v_add_u32 v9, {896*8}, v8")
            a(f"buffer_load_ushort v{16+e}, v9, s[48:51], 0 offen offset:{896*(e&3)}")
    a("v_lshlrev_b32 v10, 3, v6")
    a(f"s_mov_b32 s47, {STATS}")
    a("buffer_load_dwordx4 v[64:67], v10, s[56:59], s47 offen")
    a("buffer_load_dwordx4 v[68:71], v10, s[56:59], s47 offen offset:16")
    a("buffer_load_dwordx4 v[72:75], v10, s[56:59], s47 offen offset:64")
    a("buffer_load_dwordx4 v[76:79], v10, s[56:59], s47 offen offset:80")
    a("v_lshlrev_b32 v11, 1, v5")
    a("global_load_ushort v24, v11, s[6:7]")
    a("global_load_ushort v25, v11, s[8:9]")
    a("v_mul_u32_u24 v12, 1792, v6")
    a("v_lshl_add_u32 v12, v5, 2, v12")
    a(f"v_add_u32 v13, {1792*8}, v12")
    a("s_waitcnt vmcnt(0)")
    a("v_lshlrev_b32 v24, 16, v24")
    a("v_lshlrev_b32 v25, 16, v25")
    for e in range(8):
        d, hi = e >> 1, e & 1
        for s_ in range(7):
            r = 32 + 4 * s_ + d
            if hi:
                a(f"v_and_b32 v14, 0xffff0000, v{r}")
            else:
                a(f"v_lshlrev_b32 v14, 16, v{r}")
            if s_ == 0:
                a("v_add_f32 v15, v25, v14")
            else:
                a("v_add_f32 v15, v15, v14")
        m1 = 64 + 8 * (e >> 2) + 2 * (e & 3)
        a(f"v_lshlrev_b32 v26, 16, v{16+e}")
        a(f"v_sub_f32 v27, v26, v{m1}")
        a(f"v_mul_f32 v27, v27, v{m1+1}")
        bf16_round(a, 27, 27)
        a("v_fma_f32 v26, v27, v24, v26")
        a("v_add_f32 v15, v15, v26")
        base = 12 if e < 4 else 13
        a(f"buffer_store_dword v15, v{base}, s[52:55], 0 offen offset:{1792*(e&3)}" if 1792 * (e & 3) < 4096 else "")
        if 1792 * (e & 3) >= 4096:
            a(f"v_add_u32 v28, {1792*2}, v{base}")
            a(f"buffer_store_dword v15, v28, s[52:55], 0 offen offset:1792")
    a.label("K2_END")
    a("s_endpgm")
    return a


def desc(name, vgpr, sgpr=102):
    return f""".p2align 6
.amdhsa_kernel {name}
  .amdhsa_next_free_vgpr {vgpr}
  .amdhsa_next_free_sgpr {sgpr}
  .amdhsa_accum_offset {vgpr}
  .amdhsa_group_segment_fixed_size 0
  .amdhsa_kernarg_size 136
  .amdhsa_user_sgpr_count 2
  .amdhsa_user_sgpr_kernarg_segment_ptr 1
  .amdhsa_system_sgpr_workgroup_id_x 1
.end_amdhsa_kernel
"""


def build(opt):
    ref = open("parallel_sum__ssm_conv_s5__mixer_channel_mlp__prompt.s.ref").read() if opt.get('hdr', True) else ""
    hdr = [l for l in ref.split("\n") if l.startswith(";") and "@launch" not in l and "Override launch" not in l and "grid=ceil" not in l]
    out = "\n".join(hdr) + "\n"
    out += f"; @launch kernel=k1_kernel grid=(256,1,1) block=(512,1,1) lds={LDS_BYTES}\n"
    if not opt.get('dbg'):
        out += "; @launch kernel=k2_kernel grid=(256,1,1) block=(512,1,1) lds=0\n"
    out += '.amdgcn_target "amdgcn-amd-amdhsa--gfx950"\n.text\n'
    k1 = gen_k1(opt)
    out += ".globl k1_kernel\n.p2align 8\n.type k1_kernel,@function\nk1_kernel:\n" + k1.text()
    k2 = gen_k2(opt)
    out += ".globl k2_kernel\n.p2align 8\n.type k2_kernel,@function\nk2_kernel:\n" + k2.text()
    out += '.section .rodata,"a"\n' + desc("k1_kernel", 256) + desc("k2_kernel", 80)
    return out


if __name__ == "__main__":
    opt = {}
    outp = sys.argv[1]
    for kv in sys.argv[2:]:
        k, v = kv.split("=")
        opt[k] = v
    open(outp, "w").write(build(opt))
```

```python
import sys
from asmlib import Asm

KNAME = "parallel_sum__ssm_conv_s5__mixer_channel_mlp__prompt"

Y = 0
Q = 57344
P = 106496
RING = 12288
MISC = 155648
S2T = MISC
M2T = MISC + 256
SCR = MISC + 512
CNT = MISC + 2560
LDS_BYTES = 163840
EBUF = 0
STATS = 0x20000
EIN = 0x80000
INBOX = 0x40000
PBUF = 0x100000
WS_SIZE = 0x1000000
OOB = 0x7ff00000

sSL, sRB, sWV = 38, 39, 40
sRING, sT, sT2, sBASE, sBASE2 = 41, 42, 43, 76, 77
SX, SA, SW2, SCR_, SCI, SBI, SWS, SDBG = 44, 48, 52, 56, 60, 64, 68, 72
sRING3 = 78
sCB = 79
sW2B = 80
sTMP = 82
sP0, sINC0, sINC1, sOFF, sJS = 88, 89, 90, 91, 92
sPA = 94
sDUM = 97

LOG2E = 1.4426950408889634


def fhex(x):
    import struct
    return "0x%08x" % struct.unpack("<I", struct.pack("<f", x))[0]


def srd(a, dst, ptr, size):
    a(f"s_mov_b32 s{dst}, s{ptr}")
    a(f"s_mov_b32 s{dst+1}, s{ptr+1}")
    a(f"s_mov_b32 s{dst+2}, {size}")
    a(f"s_mov_b32 s{dst+3}, 0x20000")


def vr(b, n):
    return f"v[{b}:{b+n-1}]" if n > 1 else f"v{b}"


class Stream:
    def __init__(self, a, items, first_index=0):
        self.a = a
        self.items = items
        self.first = first_index
        self.next = 0

    def slot(self, i):
        return (self.first + i) % 6

    def issue(self, upto):
        a = self.a
        while self.next < min(upto, len(self.items)):
            it = self.items[self.next]
            sl = self.slot(self.next)
            a(f"s_add_u32 m0, s{it['ring']}, {sl*2048}")
            a(f"s_add_u32 s{sT}, s{it['sbase']}, {it['off']}")
            a.vmem(f"buffer_load_dwordx4 v{it['va']}, s[{it['srd']}:{it['srd']+3}], s{sT} offen lds", ('st', self.first + self.next))
            a.vmem(f"buffer_load_dwordx4 v{it['vb']}, s[{it['srd']}:{it['srd']+3}], s{sT} offen offset:1024 lds", ('st', self.first + self.next))
            self.next += 1

    def wait(self, i):
        self.a.wait_vm(('st', self.first + i))

    def parts(self, upto):
        a = self.a
        out = []
        while self.next < min(upto, len(self.items)):
            it = self.items[self.next]
            sl = self.slot(self.next)
            idx = self.first + self.next

            def setup(it=it, sl=sl):
                a(f"s_add_u32 m0, s{it['ring']}, {sl*2048}")
                a(f"s_add_u32 s{sT}, s{it['sbase']}, {it['off']}")

            def da(it=it, idx=idx):
                a.vmem(f"buffer_load_dwordx4 v{it['va']}, s[{it['srd']}:{it['srd']+3}], s{sT} offen lds", ('st', idx))

            def db(it=it, idx=idx):
                a.vmem(f"buffer_load_dwordx4 v{it['vb']}, s[{it['srd']}:{it['srd']+3}], s{sT} offen offset:1024 lds", ('st', idx))
            out.append((setup, da, db))
            self.next += 1
        return out


def signal(a, off):
    a(f"v_mov_b32 v2, {CNT+off}")
    a("v_mov_b32 v3, 1")
    a("s_mov_b64 exec, 1")
    a("ds_add_u32 v2, v3")
    a("s_mov_b64 exec, -1")


_spin = [0]
SLOW = []
def spin(a, off, n):
    _spin[0] += 1
    L = f"K1_SPIN{_spin[0]}"
    a(f"v_mov_b32 v2, {CNT+off}")
    a.label(L)
    a("ds_read_b32 v3, v2")
    a("s_waitcnt lgkmcnt(0)")
    a(f"v_readfirstlane_b32 s{sT}, v3")
    a(f"s_cmp_ge_u32 s{sT}, {n}")
    a(f"s_cbranch_scc0 {L}_S")
    SLOW.append((L + "_S", ["s_sleep 1", f"s_branch {L}"]))
    a.lg = []


def bf16_round(a, dst, src):
    a(f"v_cvt_pk_bf16_f32 v{dst}, v{src}, v{src}")
    a(f"v_lshlrev_b32 v{dst}, 16, v{dst}")


PROF = [False]
XS = [False]
STORESYNC = [True]
PRIOSW = [True]
PRIO16 = [1]
XNOVM = [False]
def stamp(a, i):
    if not PROF[0]: return
    a("s_waitcnt lgkmcnt(0)")
    a("s_memtime s[100:101]")
    a("s_waitcnt lgkmcnt(0)")
    a(f"v_writelane_b32 v0, s100, {i}")
    a.lg = []

LS = [0]
def lstamp(a):
    if not PROF[0]: return
    a(f"s_memtime s[{4+2*LS[0]}:{5+2*LS[0]}]")
    LS[0] += 1

def lflush(a, lane0):
    if not PROF[0]: return
    a("s_waitcnt lgkmcnt(0)")
    a.lg = []
    for i in range(LS[0]):
        a(f"v_writelane_b32 v0, s{4+2*i}, {lane0+i}")
    LS[0] = 0

def stamp_out(a):
    if not PROF[0]: return
    a("s_memrealtime s[100:101]")
    a("s_lshl_b32 s87, s2, 3")
    a(f"s_add_u32 s87, s87, s{sWV}")
    a("s_lshl_b32 s87, s87, 8")
    a("s_add_u32 s87, s87, 0xE00000")
    a("s_waitcnt lgkmcnt(0)")
    a("v_writelane_b32 v0, s100, 62")
    a("v_writelane_b32 v0, s99, 63")
    a("v_lshlrev_b32 v2, 2, v1")
    a(f"buffer_store_dword v0, v2, s[{SWS}:{SWS+3}], s87 offen")

def gen_k1(opt):
    a = Asm()
    PROF[0] = bool(opt.get('prof'))
    XS[0] = bool(opt.get('x_g3'))
    STORESYNC[0] = opt.get('ssync', '0') == '1'
    PRIOSW[0] = opt.get('priosw', '1') == '1'
    PRIO16[0] = int(opt.get('prio16', 1))
    XNOVM[0] = bool(opt.get('x_novm3'))
    D2 = int(opt.get('d2', 4))
    NPRE = 4
    a(f"s_cmp_ge_u32 s2, 256")
    a("s_cbranch_scc1 K1_END")
    R = int(opt.get('R', 2))
    S_ = 8 // R
    RBG = 32 // R
    lg = lambda x: x.bit_length() - 1
    a(f"s_and_b32 s{sT}, s2, 7")
    a(f"s_lshr_b32 s{sT2}, s2, 3")
    a(f"s_and_b32 s{sJS}, s{sT2}, {RBG-1}")
    a(f"s_lshr_b32 s{sRB}, s{sT}, {lg(S_)}")
    a(f"s_mul_i32 s{sSL}, s{sJS}, {R}")
    a(f"s_add_u32 s{sRB}, s{sRB}, s{sSL}")
    a(f"s_and_b32 s{sSL}, s{sT}, {S_-1}")
    a(f"s_mul_i32 s{sSL}, s{sSL}, {R}")
    a(f"s_lshr_b32 s{sT2}, s{sT2}, {lg(RBG)}")
    a(f"s_add_u32 s{sSL}, s{sSL}, s{sT2}")
    a(f"s_cmp_ge_u32 s{sSL}, 7")
    a("s_cbranch_scc1 K1_COLL")
    if PROF[0]:
        a("s_memrealtime s[100:101]\n s_waitcnt lgkmcnt(0)\n s_mov_b32 s99, s100")
        a("s_memtime s[100:101]\n s_waitcnt lgkmcnt(0)\n s_mov_b32 s98, s100")
    a("s_load_dwordx16 s[4:19], s[0:1], 0")
    a("s_load_dwordx16 s[20:35], s[0:1], 64")
    a("s_load_dwordx2 s[36:37], s[0:1], 128")
    a("v_lshrrev_b32 v2, 6, v0")
    a("v_and_b32 v1, 63, v0")
    if opt.get('ctouch', '1') == '1':
        NL = int(opt.get('cnl', 6))
        a("s_getpc_b64 s[94:95]")
        a.label("K1_PC")
        a("s_sub_u32 s94, s94, K1_PC-k1_kernel")
        a("s_subb_u32 s95, s95, 0")
        a("s_lshr_b32 s96, s2, 3")
        a(f"s_mul_i32 s96, s96, {NL*128}")
        a("v_lshlrev_b32 v3, 7, v0")
        a("v_add_u32 v3, s96, v3")
        a(f"v_cmp_gt_u32 s[84:85], {NL}, v0")
        a("v_cmp_gt_u32 vcc, K1_END-k1_kernel, v3")
        a("s_and_b64 vcc, vcc, s[84:85]")
        a("s_and_saveexec_b64 s[96:97], vcc")
        a("s_cbranch_execz K1_NOCT")
        a("global_load_dword v251, v3, s[94:95]")
        a.label("K1_NOCT")
        a("s_mov_b64 exec, s[96:97]")
    a(f"v_readfirstlane_b32 s{sWV}, v2")
    if opt.get('swap', '1') == '1':
        a(f"s_xor_b32 s{sWV}, s{sWV}, 4")
    if PROF[0]:
        a("v_writelane_b32 v0, s98, 0")
    a("v_lshrrev_b32 v3, 3, v1")
    a("v_and_b32 v4, 7, v1")
    a("v_mul_u32_u24 v5, 896, v3")
    a("v_lshl_add_u32 v10, v4, 4, v5")
    a("v_and_b32 v2, 15, v1")
    a(f"s_lshl_b32 s{sT}, s{sRB}, 3")
    a(f"s_add_u32 s{sT}, s{sT}, s{sWV}")
    a(f"s_mul_i32 s{sBASE2}, s{sT}, {8*896}")
    a(f"s_and_b32 s{sT}, s{sWV}, 3")
    a(f"s_lshl_b32 s{sT}, s{sT}, 4")
    a(f"s_lshl_b32 s{sT2}, s{sSL}, 6")
    a(f"s_add_u32 s{sP0}, s{sT}, s{sT2}")
    a(f"v_add_u32 v2, s{sP0}, v2")
    a("v_lshlrev_b32 v2, 1, v2")
    a("s_waitcnt lgkmcnt(0)")
    stamp(a, 11)
    def stouch_w1(m, nl=4, l0=0):
        NS = RBG
        nrow = 448 // NS
        a(f"s_add_u32 s{sT}, s{sWV}, {8*m}")
        skip = None
        if 8 * m + 7 >= nrow:
            _spin[0] += 1
            skip = f"K1_ST{m}_{_spin[0]}"
            a(f"s_cmp_ge_u32 s{sT}, {nrow}")
            a(f"s_cbranch_scc1 {skip}")
        a(f"s_mul_i32 s{sT}, s{sT}, {NS}")
        a(f"s_add_u32 s{sT}, s{sT}, s{sJS}")
        a(f"s_mul_i32 s{sT}, s{sT}, 3584")
        a(f"s_lshl_b32 s{sT2}, s{sSL}, 9")
        a(f"s_add_u32 s{sT}, s{sT}, s{sT2}")
        a(f"s_add_u32 s{sPA}, s24, s{sT}")
        a(f"s_addc_u32 s{sPA+1}, s25, 0")
        for k in range(l0, nl):
            a(f"s_load_dword s{sDUM}, s[{sPA}:{sPA+1}], {128*k}")
        if skip:
            a.label(skip)

    def stouch_b():
        NS = RBG
        per = 128 // NS
        if per < 8:
            a(f"s_cmp_ge_u32 s{sWV}, {per}")
            a("s_cbranch_scc1 K1_STB")
        reps = max(1, per // 8)
        for rep in range(reps):
            a(f"s_mul_i32 s{sT}, s{sJS}, {per}")
            a(f"s_add_u32 s{sT}, s{sT}, s{sWV}")
            if rep:
                a(f"s_add_u32 s{sT}, s{sT}, {8*rep}")
            a(f"s_and_b32 s{sT2}, s{sT}, 63")
            a(f"s_lshl_b32 s{sPA}, s{sSL}, 6")
            a(f"s_add_u32 s{sT2}, s{sT2}, s{sPA}")
            a(f"s_mul_i32 s{sT2}, s{sT2}, 896")
            a(f"s_cmp_ge_u32 s{sT}, 64")
            a(f"s_cselect_b32 s{sPA}, s12, s10")
            a(f"s_cselect_b32 s{sPA+1}, s13, s11")
            a(f"s_add_u32 s{sPA}, s{sPA}, s{sT2}")
            a(f"s_addc_u32 s{sPA+1}, s{sPA+1}, 0")
            for k in range(7):
                a(f"s_load_dword s{sDUM}, s[{sPA}:{sPA+1}], {128*k}")
        if per < 8:
            a.label("K1_STB")
    def stouch_w1g(m, nl=4, l0=0):
        n0 = len(a.items)
        stouch_w1(m, nl, l0)
        for i in range(n0, len(a.items)):
            k_, it = a.items[i]
            if k_ == 'label':
                a.items[i] = (k_, it + "G")
            elif k_ == 'ins' and 'K1_ST' in it.text:
                from asmlib import Ins
                a.items[i] = (k_, Ins(it.text + "G"))
    STOUCH = opt.get('stouch', '0') == '1'
    if STOUCH:
        stouch_b()
        stouch_w1(0)
        stouch_w1(1, 3)
    srd(a, SX, 4, 2048 * 896)
    if opt.get('warm'):
        srd(a, 48, 24, 448 * 3584); srd(a, 52, 28, 1792 * 896); srd(a, 56, 14, 448 * 896); srd(a, 60, 16, 448 * 896)
        srd(a, 64, 10, 448 * 896); srd(a, 68, 12, 448 * 896)
        a("v_lshlrev_b32 v6, 6, v0") if False else None
        a("v_and_b32 v7, 63, v1")
        a(f"s_lshl_b32 s{sT}, s{sWV}, 6")
        a(f"v_add_u32 v7, s{sT}, v1")
        for k in range(7):
            a(f"v_add_u32 v8, {512*k}, v7")
            a("v_lshrrev_b32 v9, 3, v8")
            a("v_mul_u32_u24 v9, 3584, v9")
            a("v_and_b32 v8, 7, v8")
            a("v_lshl_add_u32 v9, v8, 6, v9")
            a(f"s_lshl_b32 s{sT}, s{sSL}, 9")
            a(f"buffer_load_dword v250, v9, s[48:51], s{sT} offen")
        a(f"s_mul_i32 s{sT}, s{sSL}, {256*896}")
        for k in range(7):
            a(f"v_add_u32 v8, {512*k}, v7")
            a("v_lshlrev_b32 v9, 6, v8")
            a(f"buffer_load_dword v250, v9, s[52:55], s{sT} offen")
        a(f"s_mul_i32 s{sT}, s{sSL}, {64*896}")
        for k in range(2):
            a(f"v_add_u32 v8, {512*k}, v7")
            a("v_lshlrev_b32 v9, 6, v8")
            a(f"buffer_load_dword v250, v9, s[64:67], s{sT} offen")
            a(f"buffer_load_dword v250, v9, s[68:71], s{sT} offen")
        for k in range(2):
            a(f"v_add_u32 v8, {512*k}, v7")
            a("v_lshrrev_b32 v9, 1, v8")
            a("v_mul_u32_u24 v9, 896, v9")
            a("v_and_b32 v8, 1, v8")
            a("v_lshl_add_u32 v9, v8, 6, v9")
            a(f"s_lshl_b32 s{sT}, s{sSL}, 7")
            a(f"buffer_load_dword v250, v9, s[56:59], s{sT} offen")
            a(f"buffer_load_dword v250, v9, s[60:63], s{sT} offen")
        a(f"s_mul_i32 s{sT}, s{sRB}, {64*896}")
        for k in range(2):
            a(f"v_add_u32 v8, {512*k}, v7")
            a("v_lshlrev_b32 v9, 6, v8")
            a(f"buffer_load_dword v250, v9, s[{SX}:{SX+3}], s{sT} offen")
        a("s_waitcnt vmcnt(0)")
        a("s_barrier")
        a("s_sleep 64")
        a("s_barrier")
        if PROF[0]:
            a("s_memtime s[100:101]\n s_waitcnt lgkmcnt(0)\n v_writelane_b32 v0, s100, 0")
    a.vmem("global_load_ushort v104, v2, s[6:7]", 'par')
    a.vmem("global_load_ushort v105, v2, s[8:9]", 'par')
    a.vmem("global_load_ushort v106, v2, s[18:19]", 'par')
    for i in range(7):
        a.vmem(f"buffer_load_dwordx4 {vr(32+4*i,4)}, v10, s[{SX}:{SX+3}], s{sBASE2} offen offset:{128*i}", 'x')
    if opt.get('tlbw', '0') == '1':
        a("v_mov_b32 v2, 0")
        a("s_mov_b64 exec, 1")
        a.vmem("global_load_dword v250, v2, s[28:29]", 'tlb')
        a.vmem("global_load_dword v250, v2, s[14:15]", 'tlb')
        a.vmem("global_load_dword v250, v2, s[16:17]", 'tlb')
        a.vmem("global_load_dword v250, v2, s[36:37]", 'tlb')
        a("s_mov_b64 exec, -1")
    x_state = list(a.vm)

    srd(a, SW2, 28, 1792 * 896)
    srd(a, SCR_, 14, 448 * 896)
    srd(a, SCI, 16, 448 * 896)
    srd(a, SWS, 36, WS_SIZE)
    srd(a, SDBG, 34, 256)
    a("v_lshrrev_b32 v6, 4, v1")
    a("v_and_b32 v7, 1, v6")
    a("v_lshlrev_b32 v7, 2, v7")
    a("v_xor_b32 v7, v4, v7")
    a("v_xor_b32 v8, v4, v6")
    a("v_lshl_add_u32 v31, v8, 4, v5")
    a("v_xor_b32 v11, 64, v31")
    a(f"v_add_u32 v11, {8*896-1024}, v11")
    a("v_lshl_add_u32 v29, v7, 4, v5")
    a(f"v_add_u32 v30, {8*896-1024}, v29")
    NS = RBG
    nW = 448 * 4 // NS // 8
    a(f"s_mul_i32 s{sT}, s{sWV}, {nW}")
    a(f"v_add_u32 v6, s{sT}, v1")
    a("v_lshrrev_b32 v9, 2, v6")
    a(f"v_mul_u32_u24 v9, {NS}, v9")
    a(f"v_add_u32 v9, s{sJS}, v9")
    a("v_mul_u32_u24 v9, 3584, v9")
    a("v_and_b32 v6, 3, v6")
    a("v_lshl_add_u32 v248, v6, 7, v9")
    a(f"s_lshl_b32 s{sT}, s{sSL}, 9")
    a(f"v_add_u32 v248, s{sT}, v248")
    a("v_lshlrev_b32 v249, 7, v1")
    a("v_lshrrev_b32 v6, 4, v1")
    a(f"s_mul_i32 s{sW2B}, s{sSL}, {256*896}")
    a(f"s_lshl_b32 s{sT}, s{sWV}, 7")
    a(f"s_add_u32 s{sW2B}, s{sW2B}, s{sT}")
    a(f"s_mul_i32 s{sCB}, s{sWV}, {64*896}")
    a(f"s_lshl_b32 s{sT}, s{sSL}, 7")
    a(f"s_add_u32 s{sCB}, s{sCB}, s{sT}")
    a(f"s_lshl_b32 s{sT}, s{sWV}, 3")
    a(f"v_add_u32 v62, s{sT}, v3")
    a("v_bfe_u32 v63, v62, 1, 3")
    a(f"s_lshr_b32 s{sT}, s{sWV}, 1")
    a(f"s_and_b32 s{sT2}, s{sT}, 1")
    a(f"s_mul_i32 s{sT2}, s{sT2}, 3")
    a(f"s_lshr_b32 s{sT}, s{sT}, 1")
    a(f"s_xor_b32 s{sT}, s{sT}, s{sT2}")
    a(f"s_lshl_b32 s{sT}, s{sT}, 1")
    a(f"v_xor_b32 v63, s{sT}, v63")
    a("v_xor_b32 v63, v63, v4")
    a("v_mul_u32_u24 v61, 896, v62")
    a("v_lshl_add_u32 v10, v63, 4, v61")
    a("v_lshlrev_b32 v62, 2, v62")
    a("v_mov_b32 v60, 0")
    a(f"v_mov_b32 v63, {CNT}")
    for k in range(7):
        a(f"ds_write_b32 v63, v60 offset:{4*k}")
    a(f"s_cmp_ge_u32 s{sWV}, 4")
    a("s_cbranch_scc1 K1_G1_PRE")

    def touch1(sfx):
        if opt.get('touch1', '1') == '1':
            assert nW <= 64
            a(f"s_mov_b64 exec, {hex((1 << nW) - 1)}")
            a("global_load_dword v252, v248, s[24:25]")
            perB = 128 // NS
            for rep in range(max(1, perB // 8)):
                a(f"s_mul_i32 s{sT}, s{sJS}, {perB}")
                a(f"s_add_u32 s{sT}, s{sT}, s{sWV}")
                if rep:
                    a(f"s_add_u32 s{sT}, s{sT}, {8*rep}")
                a(f"s_and_b32 s{sT2}, s{sT}, 63")
                a(f"s_lshl_b32 s{sPA}, s{sSL}, 6")
                a(f"s_add_u32 s{sT2}, s{sT2}, s{sPA}")
                a(f"s_mul_i32 s{sT2}, s{sT2}, 896")
                a(f"s_cmp_ge_u32 s{sT}, 64")
                a(f"s_cselect_b32 s{sPA}, s12, s10")
                a(f"s_cselect_b32 s{sPA+1}, s13, s11")
                a(f"s_add_u32 s{sPA}, s{sPA}, s{sT2}")
                a(f"s_addc_u32 s{sPA+1}, s{sPA+1}, 0")
                if perB < 8:
                    a(f"s_cmp_lt_u32 s{sWV}, {perB}")
                    a(f"s_cselect_b32 s{sT}, 0x7f, 0")
                    a(f"s_mov_b32 exec_lo, s{sT}")
                    a("s_cbranch_execz K1_NOTB" + sfx)
                else:
                    a("s_mov_b64 exec, 0x7f")
                a(f"global_load_dword v253, v249, s[{sPA}:{sPA+1}]")
                if perB < 8:
                    a.label("K1_NOTB" + sfx)
            if opt.get('touchw2', '0') == '1':
                nl = 672 // NS
                per = (nl + 7) // 8
                a("s_mov_b64 exec, -1")
                a(f"s_mul_i32 s{sT}, s{sWV}, {per}")
                a(f"v_add_u32 v2, s{sT}, v1")
                a(f"v_cmp_gt_u32 vcc, {nl}, v2")
                a(f"v_mul_u32_u24 v2, {NS}, v2")
                a(f"v_add_u32 v2, s{sJS}, v2")
                a("v_lshlrev_b32 v2, 7, v2")
                a(f"s_mul_i32 s{sT}, s{sSL}, {256*896}")
                a(f"v_add_u32 v2, s{sT}, v2")
                a(f"s_and_b64 exec, vcc, {hex((1 << per) - 1)}")
                a("s_cbranch_execz K1_NOTW" + sfx)
                a("global_load_dword v251, v2, s[28:29]")
                a.label("K1_NOTW" + sfx)
            a("s_mov_b64 exec, -1")

    LR, LI = 104, 105
    CR, CI = 116, 117
    L16R, L16I, PGR, PGI, MUR, MUI, M8R, M8I = 106, 107, 108, 109, 110, 111, 112, 113

    def cmac(dr, di, xr, xi, yr, yi, ar, ai):
        a(f"v_fma_f32 v{dr}, v{xr}, v{yr}, v{ar}")
        a(f"v_fma_f32 v{di}, v{xr}, v{yi}, v{ai}")
        a(f"v_fma_f32 v{dr}, -v{xi}, v{yi}, v{dr}")
        a(f"v_fmac_f32 v{di}, v{xi}, v{yr}")

    def lam_block():
        a.wait_vm('par')
        if not STOUCH: stamp(a, 12)
        LR, LI = 104, 105
        a("v_lshlrev_b32 v107, 16, v104")
        a("v_lshlrev_b32 v108, 16, v105")
        a("v_lshlrev_b32 v106, 16, v106")
        a(f"v_mul_f32 v106, {fhex(LOG2E)}, v106")
        a("v_exp_f32 v106, v106")
        bf16_round(a, 106, 106)
        a("v_mul_f32 v109, v106, v107")
        a("v_mul_f32 v110, v106, v108")
        a(f"v_mul_f32 v109, {fhex(LOG2E)}, v109")
        a(f"v_mul_f32 v110, {fhex(0.15915494309189535)}, v110")
        a("v_exp_f32 v109, v109")
        a("v_rndne_f32 v111, v110")
        a("v_sub_f32 v110, v110, v111")
        a("v_cos_f32 v111, v110")
        a("v_sin_f32 v112, v110")
        a("v_mul_f32 v113, v107, v107")
        a("v_fmac_f32 v113, v108, v108")
        a("v_mul_f32 v104, v109, v111")
        a("v_mul_f32 v105, v109, v112")
        a("v_rcp_f32 v110, v113")
        a("v_add_f32 v109, -1.0, v104")
        a("v_mul_f32 v111, v109, v107")
        a("v_mul_f32 v112, v105, v107")
        a("v_fmac_f32 v111, v105, v108")
        a("v_fma_f32 v112, -v109, v108, v112")
        a("v_add_f32 v110, v110, v110")
        CR, CI = 116, 117
        a(f"v_mul_f32 v{CR}, v111, v110")
        a(f"v_mul_f32 v{CI}, v112, v110")

        def csq(dr, di, sr, si):
            a(f"v_mul_f32 v{dr}, v{sr}, v{sr}")
            a(f"v_mul_f32 v{di}, v{sr}, v{si}")
            a(f"v_fma_f32 v{dr}, -v{si}, v{si}, v{dr}")
            a(f"v_add_f32 v{di}, v{di}, v{di}")

        def cmul(dr, di, xr, xi, yr, yi):
            a(f"v_mul_f32 v{dr}, v{xr}, v{yr}")
            a(f"v_mul_f32 v{di}, v{xr}, v{yi}")
            a(f"v_fma_f32 v{dr}, -v{xi}, v{yi}, v{dr}")
            a(f"v_fmac_f32 v{di}, v{xi}, v{yr}")

        def cmac(dr, di, xr, xi, yr, yi, ar, ai):
            a(f"v_fma_f32 v{dr}, v{xr}, v{yr}, v{ar}")
            a(f"v_fma_f32 v{di}, v{xr}, v{yi}, v{ai}")
            a(f"v_fma_f32 v{dr}, -v{xi}, v{yi}, v{dr}")
            a(f"v_fmac_f32 v{di}, v{xi}, v{yr}")
        L16R, L16I, PGR, PGI, MUR, MUI, M8R, M8I = 106, 107, 108, 109, 110, 111, 112, 113
        csq(118, 119, LR, LI)
        csq(120, 121, 118, 119)
        csq(118, 119, 120, 121)
        csq(L16R, L16I, 118, 119)
        csq(118, 119, L16R, L16I)
        cmul(120, 121, 118, 119, L16R, L16I)
        a("v_lshrrev_b32 v2, 4, v1")
        a(f"v_mov_b32 v{PGR}, 1.0")
        a(f"v_mov_b32 v{PGI}, 0")
        a("v_cmp_eq_u32 vcc, 1, v2")
        a(f"v_cndmask_b32 v{PGR}, v{PGR}, v{L16R}, vcc")
        a(f"v_cndmask_b32 v{PGI}, v{PGI}, v{L16I}, vcc")
        a("v_cmp_eq_u32 vcc, 2, v2")
        a(f"v_cndmask_b32 v{PGR}, v{PGR}, v118, vcc")
        a(f"v_cndmask_b32 v{PGI}, v{PGI}, v119, vcc")
        a("v_cmp_eq_u32 vcc, 3, v2")
        a(f"v_cndmask_b32 v{PGR}, v{PGR}, v120, vcc")
        a(f"v_cndmask_b32 v{PGI}, v{PGI}, v121, vcc")

    def prefill(it):
        s_ = SA if it % 2 == 0 else SBI
        a(f"s_add_u32 m0, s{sRING}, {2048*it}")
        a("s_nop 0")
        a.vmem(f"buffer_load_dwordx4 v27, s[{s_}:{s_+3}], s{sOFF} offen lds", ('pre', it))
        a.vmem(f"buffer_load_dwordx4 v28, s[{s_}:{s_+3}], s{sOFF} offen offset:1024 lds", ('pre', it))
        a(f"s_add_u32 s{sOFF}, s{sOFF}, s{sINC0 if it % 2 == 0 else sINC1}")
    NEARLY = int(opt.get('nearly', 0))

    srd(a, SA, 24, 448 * 3584)
    srd(a, SBI, 24, 448 * 3584)
    a(f"s_mul_i32 s{sRING}, s{sWV}, {RING}")
    a(f"s_add_u32 s{sRING}, s{sRING}, {P}")
    a(f"s_mov_b32 s{sRING3}, s{sRING}")
    a(f"s_lshl_b32 s{sBASE}, s{sSL}, 9")
    a(f"s_lshl_b32 s{sT}, s{sWV}, 7")
    a(f"s_add_u32 s{sBASE}, s{sBASE}, s{sT}")
    a(f"s_mov_b32 s{sINC0}, {16*3584}")
    a(f"s_mov_b32 s{sINC1}, {16*3584}")
    a("v_mul_u32_u24 v27, 3584, v3")
    a("v_lshl_add_u32 v27, v7, 4, v27")
    a(f"v_add_u32 v28, {8*3584-1024}, v27")
    if opt.get('tpos', 'ln') == 'pre': touch1("A")
    if opt.get('touch'):
        a(f"s_mul_i32 s{sT}, s{sWV}, 28")
        a(f"v_add_u32 v2, s{sT}, v1")
        a("v_lshrrev_b32 v8, 3, v2")
        a("v_and_b32 v9, 7, v2")
        a(f"s_mul_i32 s{sT}, s{sRB}, 14")
        a(f"v_add_u32 v8, s{sT}, v8")
        a("v_mul_u32_u24 v8, 3584, v8")
        a("v_lshl_add_u32 v8, v9, 6, v8")
        a(f"s_lshl_b32 s{sT}, s{sSL}, 9")
        a(f"v_add_u32 v8, s{sT}, v8")
        a("v_lshlrev_b32 v9, 6, v2")
        a(f"s_lshl_b32 s{sT}, s{sSL}, 5")
        a(f"s_add_u32 s{sT}, s{sT}, s{sRB}")
        a(f"s_mul_i32 s{sT}, s{sT}, {8*896}")
        a(f"v_add_u32 v9, s{sT}, v9")
        a(f"v_mov_b32 v2, {OOB}")
        a("v_cmp_gt_u32 vcc, 28, v1")
        a("v_cndmask_b32 v8, v2, v8, vcc")
        a("v_cndmask_b32 v9, v2, v9, vcc")
        a.vmem(f"buffer_load_dword v252, v8, s[{SA}:{SA+3}], 0 offen", 'touch')
        a.vmem(f"buffer_load_dword v253, v9, s[{SW2}:{SW2+3}], 0 offen", 'touch')
    a(f"s_mov_b32 s{sOFF}, s{sBASE}")
    for it in range(NEARLY):
        prefill(it)
    a("v_mov_b32 v247, 0")
    a("v_mov_b32 v250, 0")
    g3_addr(a)
    a(f"v_add_u32 v12, s{sRING}, v8")
    a("v_xor_b32 v13, 64, v12")
    a("v_lshrrev_b32 v2, 5, v1")
    a("v_and_b32 v3, 31, v1")
    a("v_bfe_u32 v4, v3, 1, 3")
    a("v_lshrrev_b32 v5, 4, v3")
    a("v_mul_u32_u24 v5, 6, v5")
    a("v_xor_b32 v4, v4, v5")
    a("v_xor_b32 v4, v4, v2")
    a("v_mul_u32_u24 v5, 896, v3")
    for j in range(4):
        a(f"v_xor_b32 v6, {2*j}, v4")
        a(f"v_lshl_add_u32 v{14+j}, v6, 4, v5")
    if STOUCH:
        a("s_waitcnt lgkmcnt(0)")
        stouch_w1(1, 4, 3)
        for m in range(2, (448 // RBG + 7) // 8):
            stouch_w1(m)
    if opt.get('xbar', '1') == '1': a("s_barrier")
    if not STOUCH: stamp(a, 13)
    a.wait_vm('x')
    a("v_lshrrev_b32 v2, 5, v1")
    a("v_lshlrev_b32 v2, 3, v2")
    a(f"v_add_u32 v2, s{sBASE}, v2")
    for ft in range(2):
        for aa in range(4):
            a.vmem(f"global_load_dwordx2 {vr(224 + 2*(4*ft+aa), 2)}, v2, s[26:27] offset:{(32*ft+8*aa)*2}", 'bias')
    saved_vm_A = list(a.vm)

    def emit_ln(role):
        if not STOUCH: stamp(a, 1)
        NLN0 = int(opt.get('nln0', 0))
        for it in range(NEARLY, max(NEARLY, NLN0)):
            prefill(it)
        if opt.get('tpos', 'ln') == 'ln': touch1("C" + role)
        if opt.get('x_ln'): stamp(a, 40)
        U = 128
        a("v_mov_b32 v2, 0")
        a("v_mov_b32 v3, 0")
        a("v_mov_b32 v4, 0")
        a("v_mov_b32 v5, 0")
        a(f"v_mov_b32 v60, 0x3f803f80")
        for i in range(28):
            x = 32 + i
            a(f"v_dot2c_f32_bf16 v{2 + (i & 1)}, v60, v{x}")
            a(f"v_dot2c_f32_bf16 v{4 + (i & 1)}, v{x}, v{x}")
        if opt.get('x_ln'): stamp(a, 41)
        fill = []
        for i in range(28):
            fill.append(f"v_lshlrev_b32 v{U+2*i}, 16, v{32+i}")
            fill.append(f"v_and_b32 v{U+2*i+1}, 0xffff0000, v{32+i}")
        inv = fhex(1.0 / 448.0)
        eps = fhex(1e-5)
        chain = []
        chain += ["v_add_f32 v2, v2, v3", "v_add_f32 v4, v4, v5"]
        for m in ("quad_perm:[1,0,3,2]", "quad_perm:[2,3,0,1]", "row_half_mirror"):
            chain.append(f"v_add_f32_dpp v2, v2, v2 {m} row_mask:0xf bank_mask:0xf")
            chain.append(f"v_add_f32_dpp v4, v4, v4 {m} row_mask:0xf bank_mask:0xf")
        chain += [f"v_mul_f32 v2, {inv}, v2", f"v_mul_f32 v4, {inv}, v4", "v_fma_f32 v4, -v2, v2, v4", "v_max_f32 v4, 0, v4",
                  "v_cvt_pk_bf16_f32 v5, v2, v2", "v_cvt_pk_bf16_f32 v6, v4, v4", "v_lshlrev_b32 v5, 16, v5", "v_lshlrev_b32 v6, 16, v6",
                  f"v_add_f32 v6, {eps}, v6", "v_cvt_pk_bf16_f32 v6, v6, v6", "v_lshlrev_b32 v6, 16, v6", "v_sqrt_f32 v6, v6",
                  "v_cvt_pk_bf16_f32 v6, v6, v6", "v_lshlrev_b32 v6, 16, v6", "v_rcp_f32 v6, v6",
                  "v_sub_f32 v7, v2, v5", "v_mul_f32 v8, v6, v6", "v_mul_f32 v7, v7, v6", "v_mul_f32 v8, v8, v4",
                  "v_cvt_pk_bf16_f32 v7, v7, v7", "v_cvt_pk_bf16_f32 v8, v8, v8", "v_lshlrev_b32 v7, 16, v7", "v_lshlrev_b32 v8, 16, v8",
                  f"v_add_f32 v8, {eps}, v8", "v_cvt_pk_bf16_f32 v8, v8, v8", "v_lshlrev_b32 v8, 16, v8", "v_sqrt_f32 v8, v8",
                  "v_cvt_pk_bf16_f32 v8, v8, v8", "v_lshlrev_b32 v8, 16, v8", "v_rcp_f32 v9, v8",
                  "v_fma_f32 v3, v5, v6, v7", "v_mul_f32 v2, v6, v9", "v_mul_f32 v3, v3, v9", "v_sub_f32 v4, 0, v3", "v_mov_b32 v3, v2", "v_mov_b32 v2, v4"]
        for k, ins in enumerate(chain):
            a(ins)
            if fill:
                a(fill.pop(0))
        for f_ in fill:
            a(f_)
        if opt.get('x_ln'): stamp(a, 42)
        a("v_mov_b32 v60, v3")
        a("v_mov_b32 v61, v3")
        a("v_mov_b32 v4, v2")
        a("v_mov_b32 v63, v5")
        a("v_mov_b32 v5, v2")
        a("v_and_b32 v2, 7, v1")
        a("v_cmp_eq_u32 vcc, 0, v2")
        a(f"s_and_saveexec_b64 s[{sTMP}:{sTMP+1}], vcc")
        a(f"v_add_u32 v2, {S2T}, v62")
        a(f"ds_write_b32 v2, v8")
        a(f"ds_write_b32 v2, v7 offset:{M2T-S2T}")
        a("v_mov_b32 v8, v63")
        a("v_mov_b32 v9, v6")
        a(f"s_mov_b64 exec, s[{sTMP}:{sTMP+1}]")
        if opt.get('x_ln'): stamp(a, 43)
        for i in range(7):
            for d in range(4):
                u = U + 2 * (4 * i + d)
                a(f"v_pk_fma_f32 v[{u}:{u+1}], v[{u}:{u+1}], v[60:61], v[4:5]")
            for d in range(4):
                u = U + 2 * (4 * i + d)
                a(f"v_cvt_pk_bf16_f32 v{32+4*i+d}, v{u}, v{u+1}")
            a(f"ds_write_b128 v10, {vr(32+4*i,4)} offset:{128*i}")
        a("s_waitcnt lgkmcnt(0)")
        stamp(a, 2)
    emit_ln("A")
    a(f"s_mov_b32 s{sOFF}, s{sBASE}")
    a("s_barrier")
    stamp(a, 3)
    NG2 = int(opt.get('ng2', 2))
    for it in range(NG2):
        prefill(it)
    a(f"s_cmp_lg_u32 s{sSL}, 0")
    a("s_cbranch_scc1 K1_NOSTAT")
    a("v_and_b32 v2, 7, v1")
    a("v_cmp_eq_u32 vcc, 0, v2")
    a(f"s_and_saveexec_b64 s[{sTMP}:{sTMP+1}], vcc")
    a("v_lshlrev_b32 v62, 1, v62")
    a(f"s_lshl_b32 s{sT}, s{sRB}, 9")
    a(f"s_add_u32 s{sT}, s{sT}, {STATS}")
    a(f"buffer_store_dwordx2 v[8:9], v62, s[{SWS}:{SWS+3}], s{sT} offen")
    a(f"s_mov_b64 exec, s[{sTMP}:{sTMP+1}]")
    a.label("K1_NOSTAT")
    pre_tags = [('st', i // 2) for i in range(2 * NG2)]

    PP = [(2, 3), (4, 5)]
    XR, XI = 122, 123
    def pass2(sfx, preloaded):
        if preloaded:
            a("s_branch K1_POLLW" + sfx)
        a.label("K1_POLL" + sfx)
        a(f"buffer_load_dwordx4 v[44:47], v250, s[{SWS}:{SWS+3}], 0 offen sc1")
        a.label("K1_POLLW" + sfx)
        a("s_waitcnt vmcnt(0)")
        a("v_cmp_ne_u32 vcc, 1, v46")
        a("s_cbranch_vccz K1_POLLED" + sfx)
        a(f"s_sleep {int(opt.get('psleep', 4))}")
        a("s_branch K1_POLL" + sfx)
        a.label("K1_POLLED" + sfx)
        stamp(a, 6)
        cmac(PP[1][0], PP[1][1], PGR, PGI, 44, 45, XR, XI)
        for e in range(16):
            nr, ni = PP[e & 1]
            hr, hi = PP[(e & 1) ^ 1]
            cmac(nr, ni, LR, LI, hr, hi, 64 + e, 80 + e)
            if e & 1:
                a(f"v_cvt_pk_bf16_f32 v{32 + e//2}, v{hr}, v{nr}")
                a(f"v_cvt_pk_bf16_f32 v{40 + e//2}, -v{hi}, -v{ni}")
        a.lds("ds_write_b128 v246, v[32:35] offset:8192", 'w')
        a.lds("ds_write_b128 v246, v[36:39] offset:8208", 'w')
        a.lds("ds_write_b128 v246, v[40:43] offset:10240", 'w')
        a.lds("ds_write_b128 v246, v[44:47] offset:10256", 'w')
        a.wait_lg_all()
        signal(a, 16)
        stamp(a, 7)
    a.vm = [t for t in saved_vm_A if not (isinstance(t, tuple) and t[0] == 'pre')] + pre_tags
    a.lg = []
    w1_items = [dict(srd=SA, va=27, vb=28, sbase=sBASE, off=16 * s * 3584, ring=sRING) for s in range(28)]
    w2_items = [dict(srd=SW2, va=29, vb=30, sbase=sW2B, off=16 * ks * 896, ring=sRING3) for ks in range(16)]
    c_items = []
    for part in range(2):
        for nt in range(2):
            for pr in range(2):
                c_items.append(dict(srd=(SCR_, SCI)[part], va=31, vb=11, sbase=sCB, off=(32 * nt + 16 * pr) * 896, ring=sRING3))
    stA = Stream(a, w1_items + w2_items + c_items, 0)
    stA.next = NG2
    a.wait_vm('bias')
    for ft in range(2):
        for aa in range(4):
            s_ = 224 + 2 * (4 * ft + aa)
            d_ = 128 + 16 * ft + 4 * aa
            a(f"v_lshlrev_b32 v{d_}, 16, v{s_}")
            a(f"v_and_b32 v{d_+1}, 0xffff0000, v{s_}")
            a(f"v_lshlrev_b32 v{d_+2}, 16, v{s_+1}")
            a(f"v_and_b32 v{d_+3}, 0xffff0000, v{s_+1}")

    FA = [192, 208, 224]

    def g2_reads(s):
        b = FA[s % 3]
        so = (s % 6) * 2048
        out = []
        for ft in range(2):
            for q in range(2):
                out.append(f"ds_read_b64_tr_b16 {vr(b+4*ft+2*q,2)}, v{12+ft} offset:{so+512*q}")
        j = s & 3
        out.append(f"ds_read_b128 {vr(b+8,4)}, v{14+j} offset:{128*(s>>2)}")
        out.append(f"ds_read_b128 {vr(b+12,4)}, v{14+(j^1)} offset:{128*(s>>2)+28672}")
        return out

    if not opt.get('noprio'):
        a("s_setprio 1")
    if opt.get('serial', '1') == '1':
        spin(a, 20, 4)
    if opt.get('x_rep2'):
        a("s_mov_b32 s87, 0")
        a("s_waitcnt vmcnt(0)")
        a.vm = []
        a.label("K1_REP")
        stA.next = 0
        stamp(a, 44)
    stA.issue(6)
    stA.wait(0)
    for r in g2_reads(0):
        a.lds(r, ('f', 0))
    stA.wait(1)
    for r in g2_reads(1):
        a.lds(r, ('f', 1))
    a.wait_lg(('f', 0))
    stA.issue(7)
    for s in range(28):
        b = FA[s % 3]
        ms = []
        for ft in range(2):
            for tt in range(2):
                acc = 64 + 32 * ft + 16 * tt
                c = vr(128 + 16 * ft, 16) if s == 0 else vr(acc, 16)
                ms.append(f"v_mfma_f32_32x32x16_bf16 {vr(acc,16)}, {vr(b+4*ft,4)}, {vr(b+8+4*tt,4)}, {c}")
        rd = g2_reads(s + 2) if s + 2 < 28 else []
        a(ms[0])
        if s + 2 < 28:
            stA.wait(s + 2)
        for r in rd[0:3]:
            a.lds(r, ('f', s + 2))
        a(ms[1])
        for r in rd[3:6]:
            a.lds(r, ('f', s + 2))
        pp = stA.parts(min(s + 8, int(opt.get('g2cap', 34))))
        if pp:
            pp[0][0]()
        a(ms[2])
        if s + 1 < 28:
            a.wait_lg(('f', s + 1))
        if pp:
            pp[0][1]()
        a(ms[3])
        if pp:
            pp[0][2]()
        for extra_ in pp[1:]:
            for fn in extra_:
                fn()
        if opt.get('x_steps') and s % 3 == 2:
            lstamp(a)
    if opt.get('x_steps') and opt.get('x_rep2'):
        a("s_waitcnt lgkmcnt(0)")
        a.lg = []
        for i in range(LS[0]):
            a(f"s_mul_i32 s86, s87, 10")
            a(f"s_add_u32 m0, s86, {16+i}")
            a("s_nop 4")
            a(f"v_writelane_b32 v0, s{4+2*i}, m0")
        LS[0] = 0
    elif opt.get('x_steps'):
        lflush(a, 16)
    if opt.get('x_rep2'):
        a.wait_lg_all()
        a("s_waitcnt vmcnt(0)")
        a("s_cmp_eq_u32 s87, 1")
        a("s_cbranch_scc1 K1_REPD")
        stamp(a, 45)
        a("s_memtime s[100:101]\n s_waitcnt lgkmcnt(0)\n v_writelane_b32 v0, s100, 46")
        a("v_readlane_b32 s100, v0, 44")
        a("s_nop 4")
        a("v_writelane_b32 v0, s100, 47")
        a("s_mov_b32 s87, 1")
        a("s_branch K1_REP")
        a.label("K1_REPD")
        a.vm = []
    stamp(a, 4)
    a.wait_lg_all()
    signal(a, 8)
    spin(a, 0, 4)
    stA.issue(34)
    def touch2():
        if opt.get('touch2', '1') == '1':
            NS = RBG
            n2 = 1792 // NS // 4
            nc = 448 // NS // 4
            for rep in range((n2 + 63) // 64):
                a(f"s_mul_i32 s{sT}, s{sWV}, {n2}")
                a(f"v_add_u32 v2, s{sT}, v1")
                if rep:
                    a(f"v_add_u32 v2, {64*rep}, v2")
                a(f"v_mul_u32_u24 v2, {NS}, v2")
                a(f"v_add_u32 v2, s{sJS}, v2")
                a("v_lshlrev_b32 v2, 7, v2")
                a(f"v_mov_b32 v3, {OOB}")
                a(f"v_cmp_gt_u32 vcc, {n2 - 64*rep}, v1")
                a("v_cndmask_b32 v2, v3, v2, vcc")
                a(f"s_mul_i32 s{sT}, s{sSL}, {256*896}")
                a.vmem(f"buffer_load_dword v252, v2, s[{SW2}:{SW2+3}], s{sT} offen", 'touch')
            a(f"s_mul_i32 s{sT}, s{sWV}, {nc}")
            a(f"v_add_u32 v2, s{sT}, v1")
            a(f"v_mul_u32_u24 v2, {NS}, v2")
            a(f"v_add_u32 v2, s{sJS}, v2")
            a("v_mul_u32_u24 v2, 896, v2")
            a(f"v_mov_b32 v3, {OOB}")
            a(f"v_cmp_gt_u32 vcc, {nc}, v1")
            a("v_cndmask_b32 v2, v3, v2, vcc")
            a(f"s_lshl_b32 s{sT}, s{sSL}, 7")
            a.vmem(f"buffer_load_dword v253, v2, s[{SCR_}:{SCR_+3}], s{sT} offen", 'touch')
            a.vmem(f"buffer_load_dword v254, v2, s[{SCI}:{SCI+3}], s{sT} offen", 'touch')
    a("s_setprio 0")
    stamp(a, 5)
    gelu(a, touch2, int(opt.get('t2pos', 1)))
    a.wait_lg_all()
    signal(a, 12)
    a("s_setprio 1")
    stamp(a, 6)
    g3_stream = stA

    a.label("K1_G3")
    assert g3_stream.next == 34
    a.vm = [('st', 28 + i // 2) for i in range(12)]
    a.lg = []
    spin(a, 12, 4)
    stamp(a, 8)
    def hook_load():
        a(f"s_cmp_ge_u32 s{sWV}, 4")
        a("s_cbranch_scc0 K1_HL")
        a(f"buffer_load_dwordx4 v[44:47], v250, s[{SWS}:{SWS+3}], 0 offen sc1")
        a.label("K1_HL")

    def hook_pass2():
        a(f"s_cmp_ge_u32 s{sWV}, 4")
        a("s_cbranch_scc0 K1_HP")
        sv = (list(a.vm), list(a.lg))
        a("s_setprio 0")
        pass2("B", True)
        a.vm, a.lg = sv[0], []
        a.label("K1_HP")
    g3(a, g3_stream, 28, D2, hook_load, hook_pass2)
    stamp(a, 10)
    stamp_out(a)
    a("s_endpgm")

    a.label("K1_G1_PRE")
    a.vm = list(x_state)
    srd(a, SA, 10, 448 * 896)
    srd(a, SBI, 12, 448 * 896)
    a(f"s_sub_u32 s{sTMP}, s{sWV}, 4")
    a(f"s_mul_i32 s{sRING}, s{sTMP}, {RING}")
    a(f"s_add_u32 s{sRING3}, s{sRING}, {Y}")
    a(f"s_add_u32 s{sRING}, s{sRING}, {Q}")
    a(f"s_mul_i32 s{sBASE}, s{sP0}, 896")
    a(f"s_mov_b32 s{sINC0}, 0")
    a(f"s_mov_b32 s{sINC1}, 128")
    a("v_mov_b32 v27, v31")
    a("v_mov_b32 v28, v11")
    if opt.get('tpos', 'ln') == 'pre': touch1("B")
    if opt.get('touch'):
        a(f"s_mul_i32 s{sT}, s{sTMP}, 7")
        a(f"v_add_u32 v2, s{sT}, v1")
        a("v_lshlrev_b32 v8, 6, v2")
        a(f"s_lshl_b32 s{sT}, s{sSL}, 5")
        a(f"s_add_u32 s{sT}, s{sT}, s{sRB}")
        a(f"s_mul_i32 s{sT}, s{sT}, {2*896}")
        a(f"v_add_u32 v8, s{sT}, v8")
        a("v_lshrrev_b32 v9, 1, v2")
        a(f"s_mul_i32 s{sT}, s{sRB}, 14")
        a(f"v_add_u32 v9, s{sT}, v9")
        a("v_mul_u32_u24 v9, 896, v9")
        a("v_and_b32 v6, 1, v2")
        a("v_lshl_add_u32 v9, v6, 6, v9")
        a(f"s_lshl_b32 s{sT}, s{sSL}, 7")
        a(f"v_add_u32 v9, s{sT}, v9")
        a(f"v_mov_b32 v2, {OOB}")
        a("v_cmp_gt_u32 vcc, 7, v1")
        a("v_cndmask_b32 v8, v2, v8, vcc")
        a("v_cndmask_b32 v9, v2, v9, vcc")
        a.vmem(f"buffer_load_dword v252, v8, s[{SA}:{SA+3}], 0 offen", 'touch')
        a.vmem(f"buffer_load_dword v253, v8, s[{SBI}:{SBI+3}], 0 offen", 'touch')
        a.vmem(f"buffer_load_dword v254, v9, s[{SCR_}:{SCR_+3}], 0 offen", 'touch')
        a.vmem(f"buffer_load_dword v255, v9, s[{SCI}:{SCI+3}], 0 offen", 'touch')
    a(f"s_mov_b32 s{sOFF}, s{sBASE}")
    for it in range(NEARLY):
        prefill(it)
    g3_addr(a)
    a("v_and_b32 v2, 15, v1")
    a("v_lshrrev_b32 v3, 4, v1")
    a("v_bfe_u32 v4, v2, 1, 3")
    a("v_xor_b32 v4, v4, v3")
    a("v_lshlrev_b32 v4, 4, v4")
    a("v_lshl_add_u32 v4, v2, 7, v4")
    a(f"v_add_u32 v12, s{sRING}, v4")
    a("v_xor_b32 v13, 64, v12")
    a("v_lshrrev_b32 v4, 2, v2")
    a("v_and_b32 v5, 3, v2")
    a("v_lshl_add_u32 v6, v4, 4, v5")
    a("v_mul_u32_u24 v6, 896, v6")
    a("v_and_b32 v7, 1, v4")
    a("v_mul_u32_u24 v7, 3, v7")
    a("v_lshrrev_b32 v8, 1, v4")
    a("v_xor_b32 v7, v7, v8")
    a("v_lshlrev_b32 v7, 1, v7")
    a("v_lshrrev_b32 v8, 1, v5")
    a("v_xor_b32 v7, v7, v8")
    a("v_xor_b32 v7, v7, v3")
    for k in range(4):
        a(f"v_xor_b32 v8, {2*k}, v7")
        a(f"v_lshl_add_u32 v{14+k}, v8, 4, v6")
    for k in range(4):
        a(f"v_mov_b32 v{240+k}, 0x3f803f80")
    a(f"s_lshl_b32 s{sT}, s{sTMP}, 9")
    a(f"s_add_u32 s{sT}, s{sT}, {SCR}")
    a("v_lshlrev_b32 v6, 5, v2")
    a(f"v_add_u32 v244, s{sT}, v6")
    a("v_lshl_add_u32 v245, v3, 3, v244")
    a("v_lshlrev_b32 v4, 1, v3")
    a("v_bfe_u32 v5, v2, 1, 1")
    a("v_lshlrev_b32 v5, 2, v5")
    a("v_xor_b32 v4, v4, v5")
    a("v_lshlrev_b32 v4, 4, v4")
    a("v_lshl_add_u32 v4, v2, 7, v4")
    a(f"v_add_u32 v246, s{sRING}, v4")
    a("v_lshlrev_b32 v247, 3, v2")
    a(f"s_lshl_b32 s{sT}, s{sSL}, 5")
    a(f"s_add_u32 s{sT}, s{sT}, s{sRB}")
    a(f"s_lshl_b32 s{sT}, s{sT}, 10")
    a(f"s_lshl_b32 s{sT2}, s{sTMP}, 8")
    a(f"s_add_u32 s{sT}, s{sT}, s{sT2}")
    a(f"s_add_u32 s{sT}, s{sT}, {INBOX}")
    a("v_lshlrev_b32 v250, 4, v2")
    a(f"v_add_u32 v250, s{sT}, v250")
    if STOUCH:
        a("s_waitcnt lgkmcnt(0)")
        stouch_w1g(1, 4, 3)
        for m in range(2, (448 // RBG + 7) // 8):
            stouch_w1g(m)
    if opt.get('xbar', '1') == '1': a("s_barrier")
    if not STOUCH: stamp(a, 13)
    a.wait_vm('x')
    saved_vm_B = list(a.vm)

    emit_ln("B")
    for it in range(6):
        prefill(it)
    for k in range(4):
        a(f"v_mov_b32 v{44+k}, 0")
    a("s_mov_b64 exec, 0xffff")
    a(f"buffer_store_dwordx4 v[44:47], v250, s[{SWS}:{SWS+3}], 0 offen sc1")
    a("s_mov_b64 exec, -1")
    a(f"s_lshl_b32 s{sT}, s{sSL}, 5")
    a(f"v_mov_b32 v249, s{sT}")
    a(f"s_cmp_eq_u32 s{sWV}, 4")
    a("s_cbranch_scc0 K1_NORDY")
    a(f"buffer_load_dword v251, v249, s[{SDBG}:{SDBG+3}], 0 offen sc1")
    a.label("K1_NORDY")
    if opt.get('lampos', 'post') == 'pre': lam_block()
    a(f"s_cmp_lg_u32 s{sSL}, 0")
    a("s_cbranch_scc1 K1_NOSTATB")
    a("v_and_b32 v2, 7, v1")
    a("v_cmp_eq_u32 vcc, 0, v2")
    a(f"s_and_saveexec_b64 s[{sTMP}:{sTMP+1}], vcc")
    a("v_lshlrev_b32 v62, 1, v62")
    a(f"s_lshl_b32 s{sT}, s{sRB}, 9")
    a(f"s_add_u32 s{sT}, s{sT}, {STATS}")
    a(f"buffer_store_dwordx2 v[8:9], v62, s[{SWS}:{SWS+3}], s{sT} offen")
    a(f"s_mov_b64 exec, s[{sTMP}:{sTMP+1}]")
    a.label("K1_NOSTATB")
    a("s_barrier")
    stamp(a, 3)
    a.vm = [t for t in saved_vm_B if not (isinstance(t, tuple) and t[0] == 'pre')] + [('b', i // 4) for i in range(12)]
    a.lg = []

    def b_parts(ds):
        sl_ = ds % 3
        return [
            lambda: (a(f"s_add_u32 m0, s{sRING}, {sl_*4096}"), a(f"s_add_u32 s{sT}, s{sBASE}, {128*ds}")),
            lambda: a.vmem(f"buffer_load_dwordx4 v31, s[{SA}:{SA+3}], s{sT} offen lds", ('b', ds)),
            lambda: a.vmem(f"buffer_load_dwordx4 v11, s[{SA}:{SA+3}], s{sT} offen offset:1024 lds", ('b', ds)),
            lambda: a(f"s_add_u32 m0, s{sRING}, {sl_*4096+2048}"),
            lambda: a.vmem(f"buffer_load_dwordx4 v31, s[{SBI}:{SBI+3}], s{sT} offen lds", ('b', ds)),
            lambda: a.vmem(f"buffer_load_dwordx4 v11, s[{SBI}:{SBI+3}], s{sT} offen offset:1024 lds", ('b', ds)),
        ]

    def b_issue(ds):
        for f_ in b_parts(ds):
            f_()
    AF = [128, 144, 160]
    BF = [176, 192]

    def g1_breads(ds):
        so = (ds % 3) * 4096
        out = []
        for s1 in range(2):
            out.append(f"ds_read_b128 {vr(BF[ds&1]+8*s1,4)}, v{12+s1} offset:{so}")
            out.append(f"ds_read_b128 {vr(BF[ds&1]+8*s1+4,4)}, v{12+s1} offset:{so+2048}")
        return out

    def g1_areads(s):
        s1 = s & 1
        out = []
        for aa in range(4):
            k = (2 * s1) ^ aa
            out.append(f"ds_read_b128 {vr(AF[s%3]+4*aa,4)}, v{14+k} offset:{aa*4*896+128*(s>>1)}")
        return out

    if opt.get('x_g1sleep'):
        a("s_sleep 127\n s_sleep 127\n s_sleep 127\n s_sleep 127")
    if not opt.get('noprio'):
        a("s_setprio 2")
    a.wait_vm(('b', 0))
    for r in g1_breads(0):
        a.lds(r, ('B', 0))
    for s0 in range(2):
        for r in g1_areads(s0):
            a.lds(r, ('f', s0))
    for s in range(14):
        ds = s >> 1
        a.wait_lg(('f', s))
        if s == 0:
            b_issue(3)
        if PROF[0] and opt.get('x_g1') and s % 2 == 0:
            a("s_memtime s[100:101]")
            a("s_waitcnt lgkmcnt(0)")
            a(f"v_writelane_b32 v0, s100, {24 + s}")
        if s % 2 == 0 and ds + 1 < 7:
            a.wait_vm(('b', ds + 1))
        if PROF[0] and opt.get('x_g1') and s % 2 == 0:
            a("s_memtime s[100:101]")
            a("s_waitcnt lgkmcnt(0)")
            a(f"v_writelane_b32 v0, s100, {25 + s}")
            a.lg = []
        bp = []
        if s % 2 == 1 and ds + 1 < 7:
            a.wait_lg(('B', ds + 1))
            if ds + 4 < 7:
                bp = b_parts(ds + 4)
        A_, B_ = AF[s % 3], BF[ds & 1] + 8 * (s & 1)
        ms = []
        for aa in range(4):
            for part in range(2):
                acc = 64 + 16 * part + 4 * aa
                c = "0" if s == 0 else vr(acc, 4)
                ms.append(f"v_mfma_f32_16x16x32_bf16 {vr(acc,4)}, {vr(A_+4*aa,4)}, {vr(B_+4*part,4)}, {c}")
        for part in range(2):
            acc = 96 + 4 * part
            c = "0" if s == 0 else vr(acc, 4)
            ms.append(f"v_mfma_f32_16x16x32_bf16 {vr(acc,4)}, v[240:243], {vr(B_+4*part,4)}, {c}")
        rd = []
        if s % 2 == 0 and ds + 1 < 7:
            rd += [(r, ('B', ds + 1)) for r in g1_breads(ds + 1)]
        if s + 2 < 14:
            rd += [(r, ('f', s + 2)) for r in g1_areads(s + 2)]
        fill = [lambda r=r, t=t: a.lds(r, t) for (r, t) in rd] + bp
        for k, m in enumerate(ms):
            a(m)
            if k < len(fill):
                fill[k]()
        for f_ in fill[len(ms):]:
            f_()
        if bp and ds + 4 == 6 and opt.get('serial', '1') == '1':
            a(f"v_mov_b32 v2, {CNT+20}")
            a("v_mov_b32 v3, 1")
            a("s_mov_b64 exec, 1")
            a.lds("ds_add_u32 v2, v3", 'sig')
            a("s_mov_b64 exec, -1")
    a("s_setprio 0")
    stamp(a, 4)
    a.wait_lg_all()
    signal(a, 0)
    a(f"s_cmp_eq_u32 s{sWV}, 4")
    a("s_cbranch_scc0 K1_RDY2")
    a.label("K1_RDY1")
    a("s_waitcnt vmcnt(0)")
    a(f"v_readfirstlane_b32 s{sT}, v251")
    a(f"s_cmp_eq_u32 s{sT}, 1")
    a("s_cbranch_scc0 K1_RDYS")
    SLOW.append(("K1_RDYS", ["s_sleep 4", f"buffer_load_dword v251, v249, s[{SDBG}:{SDBG+3}], 0 offen sc1", "s_branch K1_RDY1"]))
    signal(a, 4)
    a.label("K1_RDY2")
    if opt.get('lampos', 'post') == 'post': lam_block()
    a("v_lshrrev_b32 v7, 4, v1")
    a("v_lshlrev_b32 v4, 6, v7")
    a(f"v_add_u32 v4, {S2T}, v4")
    for k in range(4):
        a.lds(f"ds_read_b128 {vr(32+4*k,4)}, v4 offset:{16*k}", 'st')
        a.lds(f"ds_read_b128 {vr(48+4*k,4)}, v4 offset:{M2T-S2T+16*k}", 'st')
    a.wait_lg('st')
    for e in range(16):
        R_, I_ = 64 + e, 80 + e
        a(f"v_mul_f32 v8, v{48+e}, v96")
        a(f"v_mul_f32 v9, v{48+e}, v100")
        a(f"v_fma_f32 v8, v{32+e}, v{R_}, v8")
        a(f"v_fma_f32 v9, v{32+e}, v{I_}, v9")
        a(f"v_mul_f32 v{R_}, v{CR}, v8")
        a(f"v_mul_f32 v{I_}, v{CR}, v9")
        a(f"v_fma_f32 v{R_}, -v{CI}, v9, v{R_}")
        a(f"v_fmac_f32 v{I_}, v{CI}, v8")
        nr, ni = PP[e & 1]
        hr, hi = PP[(e & 1) ^ 1]
        if e == 0:
            a(f"v_mov_b32 v{nr}, v{R_}")
            a(f"v_mov_b32 v{ni}, v{I_}")
        else:
            cmac(nr, ni, LR, LI, hr, hi, R_, I_)
    HE = PP[1]
    a.lds(f"ds_write_b64 v245, v[{HE[0]}:{HE[1]}]", 'w')
    a.wait_lg('w')
    a.lds("ds_read_b128 v[32:35], v244", 'r')
    a.lds("ds_read_b128 v[36:39], v244 offset:16", 'r')
    a.wait_lg('r')
    cmac(40, 41, L16R, L16I, 32, 33, 34, 35)
    cmac(42, 43, L16R, L16I, 40, 41, 36, 37)
    cmac(44, 45, L16R, L16I, 42, 43, 38, 39)
    a("v_mov_b32 v46, 1")
    a("v_mov_b32 v47, 0")
    a.wait_lg_all()
    spin(a, 4, 1)
    a(f"s_mov_b32 s{sT}, {EIN - INBOX}")
    a("s_mov_b64 exec, 0xffff")
    a(f"buffer_store_dwordx4 v[44:47], v250, s[{SWS}:{SWS+3}], s{sT} offen sc1")
    a("s_mov_b64 exec, -1")
    a.vm = []
    a(f"v_mov_b32 v{XR}, 0")
    a(f"v_mov_b32 v{XI}, 0")
    for g_, (r_, i_) in ((1, (32, 33)), (2, (40, 41)), (3, (42, 43))):
        a(f"v_cmp_eq_u32 vcc, {g_}, v7")
        a(f"v_cndmask_b32 v{XR}, v{XR}, v{r_}, vcc")
        a(f"v_cndmask_b32 v{XI}, v{XI}, v{i_}, vcc")
    stamp(a, 5)
    a("s_setprio 0")
    spin(a, 8, 4)
    stamp(a, 9)
    a(f"s_cmp_eq_u32 s{sWV}, 7")
    a("s_cbranch_scc1 K1_NOPRE")
    spin(a, 0, 4)
    stB = Stream(a, w2_items + c_items, 28)
    if opt.get('prefirst', '1') == '1':
        stB.issue(6)
    a.label("K1_NOPRE")
    a.vm = []
    if opt.get('g3prio', '1') == '1':
        a("s_setprio 2")
    a(f"s_cmp_eq_u32 s{sWV}, 7")
    a("s_cbranch_scc0 K1_G3")
    a("s_setprio 0")
    pass2("A", False)
    stamp(a, 10)
    stamp_out(a)
    a("s_branch K1_END")

    a.label("K1_COLL")
    a(f"s_cmp_lg_u32 s{sSL}, 7")
    a("s_cbranch_scc1 K1_END")
    a(f"s_mul_i32 s{sT}, s{sJS}, {R}")
    a(f"s_cmp_lg_u32 s{sT}, s{sRB}")
    a("s_cbranch_scc1 K1_END")
    a(f"s_cmp_ge_u32 s{sJS}, 7")
    a("s_cbranch_scc1 K1_END")
    a("v_lshrrev_b32 v2, 6, v0")
    a("v_and_b32 v1, 63, v0")
    a(f"v_readfirstlane_b32 s{sWV}, v2")
    a(f"s_mov_b32 s{sSL}, s{sJS}")
    a("s_load_dwordx4 s[4:7], s[0:1], 8")
    a("s_load_dwordx2 s[18:19], s[0:1], 56")
    a("s_load_dwordx4 s[32:35], s[0:1], 112")
    a("s_load_dwordx2 s[36:37], s[0:1], 128")
    a(f"s_lshl_b32 s{sT}, s{sSL}, 6")
    a(f"v_add_u32 v2, s{sT}, v1")
    a("v_lshlrev_b32 v2, 1, v2")
    a(f"s_lshl_b32 s{sT}, s{sSL}, 15")
    a(f"s_lshl_b32 s{sT2}, s{sWV}, 12")
    a(f"s_add_u32 s{sT}, s{sT}, s{sT2}")
    a(f"s_add_u32 s{sT}, s{sT}, {EIN}")
    a("v_lshlrev_b32 v3, 4, v1")
    a(f"v_add_u32 v3, s{sT}, v3")
    for k in range(4):
        a(f"v_mov_b32 v{8+k}, 0")
    a("s_waitcnt lgkmcnt(0)")
    srd(a, SWS, 36, WS_SIZE)
    srd(a, SDBG, 34, 256)
    for k in range(4):
        a(f"buffer_store_dwordx4 v[8:11], v3, s[{SWS}:{SWS+3}], 0 offen offset:{1024*k} sc1")
    a("global_load_ushort v104, v2, s[4:5]")
    a("global_load_ushort v105, v2, s[6:7]")
    a("global_load_ushort v106, v2, s[18:19]")
    a("s_waitcnt vmcnt(0)")
    a("s_barrier")
    a(f"s_cmp_lg_u32 s{sWV}, 0")
    a("s_cbranch_scc1 K1_CPOLL")
    a(f"s_lshl_b32 s{sT}, s{sSL}, 5")
    a(f"v_mov_b32 v5, s{sT}")
    a("v_mov_b32 v6, 1")
    a("s_mov_b64 exec, 1")
    a(f"buffer_store_dword v6, v5, s[{SDBG}:{SDBG+3}], 0 offen sc1")
    a("s_mov_b64 exec, -1")
    a("v_lshlrev_b32 v107, 16, v104")
    a("v_lshlrev_b32 v108, 16, v105")
    a("v_lshlrev_b32 v106, 16, v106")
    a(f"v_mul_f32 v106, {fhex(LOG2E)}, v106")
    a("v_exp_f32 v106, v106")
    bf16_round(a, 106, 106)
    a("v_mul_f32 v109, v106, v107")
    a("v_mul_f32 v110, v106, v108")
    a(f"v_mul_f32 v109, {fhex(LOG2E)}, v109")
    a(f"v_mul_f32 v110, {fhex(0.15915494309189535)}, v110")
    a("v_exp_f32 v109, v109")
    a("v_rndne_f32 v111, v110")
    a("v_sub_f32 v110, v110, v111")
    a("v_cos_f32 v111, v110")
    a("v_sin_f32 v112, v110")
    a("v_mul_f32 v104, v109, v111")
    a("v_mul_f32 v105, v109, v112")
    cur_ = (104, 105)
    for k in range(6):
        nx = (118, 119) if k % 2 == 0 else (120, 121)
        a(f"v_mul_f32 v{nx[0]}, v{cur_[0]}, v{cur_[0]}")
        a(f"v_mul_f32 v{nx[1]}, v{cur_[0]}, v{cur_[1]}")
        a(f"v_fma_f32 v{nx[0]}, -v{cur_[1]}, v{cur_[1]}, v{nx[0]}")
        a(f"v_add_f32 v{nx[1]}, v{nx[1]}, v{nx[1]}")
        cur_ = nx
    MR, MI = cur_
    a.label("K1_CPOLL")
    for k in range(4):
        a(f"buffer_load_dwordx4 v[{16+4*k}:{19+4*k}], v3, s[{SWS}:{SWS+3}], 0 offen offset:{1024*k} sc1")
    a("s_waitcnt vmcnt(0)")
    a("v_and_b32 v12, v18, v22")
    a("v_and_b32 v13, v26, v30")
    a("v_and_b32 v12, v12, v13")
    a("v_cmp_ne_u32 vcc, 1, v12")
    a("s_cbranch_vccnz K1_CPOLLS")
    SLOW.append(("K1_CPOLLS", [f"s_sleep {int(opt.get('csleep', 2))}", "s_branch K1_CPOLL"]))
    if PROF[0]: a("s_memrealtime s[8:9]")
    a("v_lshlrev_b32 v4, 3, v1")
    a(f"s_lshl_b32 s{sT}, s{sWV}, 11")
    a(f"v_add_u32 v4, s{sT}, v4")
    for k in range(4):
        a(f"ds_write_b64 v4, v[{16+4*k}:{17+4*k}] offset:{512*k}")
    a("s_waitcnt lgkmcnt(0)")
    a("s_barrier")
    a(f"s_cmp_lg_u32 s{sWV}, 0")
    a("s_cbranch_scc1 K1_END")
    if PROF[0]: a("s_memrealtime s[10:11]")
    a("v_lshlrev_b32 v4, 3, v1")
    for c in range(31):
        a(f"ds_read_b64 v[{128+2*c}:{129+2*c}], v4 offset:{512*c}")
        if c % 8 == 7:
            a("s_waitcnt lgkmcnt(0)")
    a("v_lshlrev_b32 v4, 4, v1")
    a(f"s_lshl_b32 s{sT}, s{sSL}, 15")
    a(f"s_add_u32 s{sT}, s{sT}, {INBOX}")
    a(f"v_add_u32 v4, s{sT}, v4")
    Q4 = [(8, 9, 10, 11), (12, 13, 14, 15)]
    for q in Q4:
        a(f"v_mov_b32 v{q[2]}, 1")
        a(f"v_mov_b32 v{q[3]}, 0")
    a("v_mov_b32 v8, 0")
    a("v_mov_b32 v9, 0")
    a("s_waitcnt lgkmcnt(0)")
    for rb in range(32):
        q = Q4[rb & 1]
        n = Q4[(rb + 1) & 1]
        a(f"s_mov_b32 s{sT}, {1024*rb}")
        a(f"buffer_store_dwordx4 v[{q[0]}:{q[3]}], v4, s[{SWS}:{SWS+3}], s{sT} offen sc1")
        if rb < 31:
            e = 128 + 2 * rb
            a(f"v_fma_f32 v{n[0]}, v{MR}, v{q[0]}, v{e}")
            a(f"v_fma_f32 v{n[1]}, v{MR}, v{q[1]}, v{e+1}")
            a(f"v_fma_f32 v{n[0]}, -v{MI}, v{q[1]}, v{n[0]}")
            a(f"v_fmac_f32 v{n[1]}, v{MI}, v{q[0]}")
    if PROF[0]:
        a("s_memrealtime s[12:13]")
        a("s_waitcnt vmcnt(0)")
        a("s_memrealtime s[14:15]")
        a("s_waitcnt lgkmcnt(0)")
        a(f"s_lshl_b32 s{sT+8}, s{sSL}, 4")
        a(f"s_add_u32 s{sT+8}, s{sT+8}, 0xF00000")
        a("v_mov_b32 v2, 0")
        for i, r in enumerate((8, 10, 12, 14)):
            a(f"v_mov_b32 v3, s{r}")
            a(f"buffer_store_dword v3, v2, s[{SWS}:{SWS+3}], s{sT+8} offen offset:{4*i}")
    a("s_endpgm")
    for lab, ins in SLOW:
        a.label(lab)
        for t in ins:
            a(t)
    del SLOW[:]
    a.label("K1_END")
    a("s_endpgm")
    return a


def g3_addr(a):
    a("v_lshrrev_b32 v2, 5, v1")
    a("v_bfe_u32 v3, v1, 2, 2")
    a("v_and_b32 v4, 3, v1")
    a("v_bfe_u32 v5, v1, 4, 1")
    a("v_lshlrev_b32 v6, 1, v5")
    a("v_lshrrev_b32 v7, 1, v4")
    a("v_or_b32 v6, v6, v7")
    a("v_lshrrev_b32 v7, 1, v3")
    a("v_lshlrev_b32 v7, 2, v7")
    a("v_xor_b32 v6, v6, v7")
    a("v_lshlrev_b32 v6, 4, v6")
    a("v_and_b32 v7, 1, v4")
    a("v_lshl_add_u32 v6, v7, 3, v6")
    a("v_lshl_add_u32 v7, v2, 3, v3")
    a("v_lshl_add_u32 v8, v7, 7, v6")
    a("v_lshl_add_u32 v7, v2, 2, v3")
    a("v_lshl_add_u32 v9, v7, 7, v6")
    a(f"v_add_u32 v18, s{sRING3}, v9")
    a("v_xor_b32 v19, 64, v18")
    a(f"v_add_u32 v21, {Q + 8192}, v8")
    a("v_xor_b32 v22, 64, v21")
    a("v_lshlrev_b32 v20, 4, v1")
    a(f"v_add_u32 v20, {Q}, v20")
    c_addr(a)


def c_addr(a):
    a("v_and_b32 v3, 31, v1")
    a("v_lshrrev_b32 v2, 5, v1")
    a("v_bfe_u32 v4, v3, 1, 3")
    a("v_xor_b32 v4, v4, v2")
    a("v_lshlrev_b32 v4, 4, v4")
    a("v_lshl_add_u32 v4, v3, 7, v4")
    a(f"v_add_u32 v23, s{sRING3}, v4")
    for cg in range(1, 4):
        a(f"v_xor_b32 v{23+cg}, {32*cg}, v23")


def gelu(a, hook=None, hookpos=1, pk=True):
    c1 = -2.0 * 0.7978845608028654 * LOG2E
    c2 = c1 * 0.044715
    a(f"v_mov_b32 v56, {fhex(c1)}")
    a(f"v_mov_b32 v57, {fhex(c1)}")
    a(f"v_mov_b32 v58, {fhex(c2)}")
    a(f"v_mov_b32 v59, {fhex(c2)}")
    a("v_mov_b32 v62, 1.0")
    a("v_mov_b32 v63, 1.0")
    a(f"s_mul_i32 s{sTMP}, s{sWV}, {RING}")
    a(f"s_add_u32 s{sTMP}, s{sTMP}, {Q}")
    a("v_lshlrev_b32 v61, 4, v1")
    a(f"v_add_u32 v61, s{sTMP}, v61")
    grp = 0
    for ft in range(2):
        for tt in range(2):
            acc = 64 + 32 * ft + 16 * tt
            if hook is not None and grp == hookpos:
                hook()
            grp += 1
            X = [acc + 2 * e for e in range(8)]
            T = [32 + 2 * e for e in range(8)]
            P = lambda r: f"v[{r}:{r+1}]"
            for e in range(8):
                a(f"v_pk_mul_f32 {P(T[e])}, {P(X[e])}, {P(X[e])}")
            for e in range(8):
                a(f"v_pk_fma_f32 {P(T[e])}, {P(T[e])}, v[58:59], v[56:57]")
            for e in range(8):
                a(f"v_pk_mul_f32 {P(T[e])}, {P(T[e])}, {P(X[e])}")
            for e in range(16):
                a(f"v_exp_f32 v{32+e}, v{32+e}")
            for e in range(8):
                a(f"v_pk_add_f32 {P(T[e])}, {P(T[e])}, v[62:63]")
            for e in range(16):
                a(f"v_rcp_f32 v{32+e}, v{32+e}")
            for e in range(8):
                a(f"v_pk_mul_f32 {P(T[e])}, {P(T[e])}, {P(X[e])}")
            for half in range(2):
                for d in range(4):
                    a(f"v_cvt_pk_bf16_f32 v{48+4*half+d}, v{32+8*half+2*d}, v{32+8*half+2*d+1}")
                a.lds(f"ds_write_b128 v61, {vr(48+4*half,4)} offset:{((2*ft+half)*2+tt)*1024}", 'hw')
            if len(a.lg) >= 8:
                a.wait_lg_all()


def g3(a, st, base, D2, hook_load=None, hook_pass2=None):
    FA = [192, 208, 224]
    CF = 64
    mlp_base = base
    ssm_base = base + 16
    first = [True]

    def mfmas(Aregs, Bregs):
        ms = []
        for tt in range(2):
            for nt in range(2):
                acc = 128 + 32 * tt + 16 * nt
                c = "0" if first[0] else vr(acc, 16)
                ms.append(f"v_mfma_f32_32x32x16_bf16 {vr(acc,16)}, {vr(Aregs[tt],4)}, {vr(Bregs[nt],4)}, {c}")
        first[0] = False
        return ms

    def mlp_reads(ks):
        b = FA[ks % 3]
        so = st.slot(mlp_base + ks) * 2048
        out = []
        for nt in range(2):
            for q in range(2):
                out.append(f"ds_read_b64_tr_b16 {vr(b+8+4*nt+2*q,2)}, v{18+nt} offset:{so+1024*q}")
        for tt in range(2):
            out.append(f"ds_read_b128 {vr(b+4*tt,4)}, v20 offset:{12288*(ks>>2)+((ks&3)*2+tt)*1024}")
        return out

    def ssm_areads(k):
        part, cg = k >> 2, k & 3
        b = FA[(16 + k) % 3]
        out = []
        for tt in range(2):
            for q in range(2):
                out.append(f"ds_read_b64_tr_b16 {vr(b+4*tt+2*q,2)}, v{21+tt} offset:{12288*cg+2048*part+512*q}")
        return out

    def c_reads(part):
        out = []
        for nt in range(2):
            i0 = ssm_base + 4 * part + 2 * nt
            so = st.slot(i0) * 2048
            assert st.slot(i0 + 1) == st.slot(i0) + 1
            for cg in range(4):
                out.append(f"ds_read_b128 {vr(CF+32*part+8*cg+4*nt,4)}, v{23+cg} offset:{so}")
        return out

    def step_reads(m):
        return mlp_reads(m) if m < 16 else ssm_areads(m - 16)

    st.wait(mlp_base)
    for r in step_reads(0):
        a.lds(r, ('m', 0))
    st.wait(mlp_base + 1)
    for r in step_reads(1):
        a.lds(r, ('m', 1))
    a.wait_lg(('m', 0))
    for m in range(24):
        b = FA[m % 3]
        if m < 16:
            ms = mfmas([b, b + 4], [b + 8, b + 12])
        else:
            k = m - 16
            cb = CF + 32 * (k >> 2) + 8 * (k & 3)
            ms = mfmas([b, b + 4], [cb, cb + 4])
        if m == 14:
            a.wait_lg_all()
            stamp(a, 14)
            hook_pass2()
            spin(a, 16, 4)
            a("s_setprio 3")
            stamp(a, 15)
        if m == 9:
            hook_load()
        rd = [(r, ('m', m + 2)) for r in step_reads(m + 2)] if m + 2 < 24 else []
        cr = []
        if m == 14:
            cr = [(r, ('c', 0)) for r in c_reads(0)[0:4]]
        elif m == 15:
            cr = [(r, ('c', 1)) for r in c_reads(0)[4:8]]
        elif m == 17:
            cr = [(r, ('c', 2)) for r in c_reads(1)[0:4]]
        elif m == 19:
            cr = [(r, ('c', 3)) for r in c_reads(1)[4:8]]
        if m == 16:
            if PRIO16[0] == 9:
                a(f"s_cmp_ge_u32 s{sWV}, 4")
                a("s_cbranch_scc1 K1_P16")
                a("s_setprio 2")
                a("s_branch K1_P16B")
                a.label("K1_P16")
                a("s_setprio 0")
                a.label("K1_P16B")
            elif PRIO16[0] == 8:
                a(f"s_cmp_ge_u32 s{sWV}, 4")
                a("s_cbranch_scc0 K1_P16")
                a("s_setprio 2")
                a("s_branch K1_P16B")
                a.label("K1_P16")
                a("s_setprio 0")
                a.label("K1_P16B")
            else:
                a(f"s_setprio {PRIO16[0]}")
            a.wait_lg(('c', 1))
        if m == 20:
            a.wait_lg(('c', 3))
        a(ms[0])
        if m + 2 < 16:
            if XNOVM[0]:
                a.vm = [t for t in a.vm if t != ('st', st.first + mlp_base + m + 2 - st.first)]
            else:
                st.wait(mlp_base + m + 2)
        if m == 14:
            st.wait(ssm_base + 1)
        if m == 15:
            a.wait_lg(('m', 16))
            st.wait(ssm_base + 3)
        if m == 17:
            st.wait(ssm_base + 5)
        if m == 19:
            a.wait_lg(('c', 2))
            st.wait(ssm_base + 7)
            if STORESYNC[0]:
                a(f"v_mov_b32 v2, {CNT+24}")
                a("v_mov_b32 v3, 1")
                a("s_mov_b64 exec, 1")
                a.lds("ds_add_u32 v2, v3", 'sig')
                a("s_mov_b64 exec, -1")
        allr = rd + cr
        h1 = (len(allr) + 1) // 2
        for r, t in allr[:h1]:
            a.lds(r, t)
        a(ms[1])
        for r, t in allr[h1:]:
            a.lds(r, t)
        if m == 15:
            a.wait_lg(('c', 0))
            pp = st.parts(ssm_base + 8)
        else:
            pp = st.parts(min(mlp_base + m + 8, ssm_base + 6))
        if pp:
            pp[0][0]()
        a(ms[2])
        if m + 1 < 24:
            a.wait_lg(('m', m + 1))
        if pp:
            pp[0][1]()
        a(ms[3])
        if pp:
            pp[0][2]()
        for extra_ in pp[1:]:
            for fn in extra_:
                fn()
        if XS[0] and m % 3 == 2:
            lstamp(a)
    if XS[0]:
        lflush(a, 26)
    if STORESYNC[0]:
        a.wait_lg_all()
        spin(a, 24, 7)
    a(f"s_mul_i32 s{sT}, s{sRB}, 7")
    a(f"s_add_u32 s{sT}, s{sT}, s{sWV}")
    a(f"s_mul_i32 s{sT}, s{sT}, 56")
    a(f"s_add_u32 s{sT}, s{sT}, s{sSL}")
    a(f"s_lshl_b32 s{sT}, s{sT}, 10")
    a(f"s_add_u32 s{sT}, s{sT}, {PBUF}")
    a("v_lshlrev_b32 v2, 4, v1")
    for tt in range(2):
        for nt in range(2):
            acc = 128 + 32 * tt + 16 * nt
            for hf in range(2):
                v_ = tt * 4 + nt * 2 + hf
                d = 32 + 4 * (v_ & 3)
                for k in range(4):
                    a(f"v_cvt_pk_bf16_f32 v{d+k}, v{acc+8*hf+2*k}, v{acc+8*hf+2*k+1}")
                a(f"s_add_u32 s{sT2}, s{sT}, {v_*7*1024}")
                a(f"buffer_store_dwordx4 {vr(d,4)}, v2, s[{SWS}:{SWS+3}], s{sT2} offen sc1")


def dump_lds(a, base, nbytes):
    a("s_lshl_b32 s90, s2, 16")
    a("s_add_u32 s90, s90, 0x800000")
    a("v_lshlrev_b32 v2, 4, v0")
    n = (nbytes + 8191) // 8192
    for i in range(n):
        a(f"v_add_u32 v3, {base + 8192*i}, v2")
        a("ds_read_b128 v[4:7], v3")
        a("s_waitcnt lgkmcnt(0)")
        a(f"v_add_u32 v3, {8192*i}, v2")
        a(f"buffer_store_dwordx4 v[4:7], v3, s[{SWS}:{SWS+3}], s90 offen")
        a("s_waitcnt vmcnt(0)")


def dump_regs(a, base, n):
    a("s_lshl_b32 s90, s2, 3")
    a(f"s_add_u32 s90, s90, s{sWV}")
    a("s_lshl_b32 s90, s90, 14")
    a("s_add_u32 s90, s90, 0x800000")
    a("v_lshlrev_b32 v2, 2, v1")
    a("s_nop 15")
    for i in range(n):
        a(f"buffer_store_dword v{base+i}, v2, s[{SWS}:{SWS+3}], s90 offen")
        a("s_add_u32 s90, s90, 256")
    a("s_waitcnt vmcnt(0)")


def gen_k2(opt):
    a = Asm()
    a("s_cmp_ge_u32 s2, 256")
    a("s_cbranch_scc1 K2_END")
    a("s_and_b32 s38, s2, 7")
    a("s_cmp_eq_u32 s38, 7")
    a("s_cbranch_scc1 K2_END")
    a("s_load_dwordx2 s[4:5], s[0:1], 0")
    a("s_load_dwordx2 s[6:7], s[0:1], 64")
    a("s_load_dwordx2 s[8:9], s[0:1], 104")
    a("s_load_dwordx2 s[10:11], s[0:1], 112")
    a("s_load_dwordx2 s[12:13], s[0:1], 128")
    a("s_lshr_b32 s39, s2, 3")
    a("v_lshrrev_b32 v2, 6, v0")
    a("v_and_b32 v1, 63, v0")
    a("v_readfirstlane_b32 s40, v2")
    a("v_and_b32 v3, 31, v1")
    a("v_lshrrev_b32 v4, 5, v1")
    a("s_lshr_b32 s41, s40, 2")
    a("s_bfe_u32 s42, s40, 0x10001")
    a("s_and_b32 s43, s40, 1")
    a("s_lshl_b32 s44, s38, 6")
    a("s_lshl_b32 s45, s42, 5")
    a("s_add_u32 s44, s44, s45")
    a("v_add_u32 v5, s44, v3")
    a("s_lshl_b32 s45, s39, 6")
    a("s_lshl_b32 s46, s41, 5")
    a("s_add_u32 s45, s45, s46")
    a("s_lshl_b32 s46, s43, 4")
    a("s_add_u32 s45, s45, s46")
    a("v_lshl_add_u32 v6, v4, 2, s45")
    a("s_mul_i32 s46, s39, 7")
    a("s_add_u32 s46, s46, s38")
    a("s_lshl_b32 s46, s46, 3")
    a("s_add_u32 s46, s46, s40")
    a("s_mul_i32 s46, s46, 7168")
    a(f"s_add_u32 s46, s46, {PBUF}")
    a("v_lshlrev_b32 v7, 4, v1")
    a("s_waitcnt lgkmcnt(0)")
    srd(a, 48, 4, 2048 * 896)
    srd(a, 52, 10, 2048 * 1792)
    srd(a, 56, 12, WS_SIZE)
    for s_ in range(7):
        a(f"buffer_load_dwordx4 {vr(32+4*s_,4)}, v7, s[56:59], s46 offen")
        a("s_add_u32 s46, s46, 1024")
    a("v_mul_u32_u24 v8, 896, v6")
    a("v_lshl_add_u32 v8, v5, 1, v8")
    for e in range(8):
        a(f"buffer_load_ushort v{16+e}, v8, s[48:51], 0 offen offset:{896*(8*(e>>2)+(e&3))}" if 896 * (8 * (e >> 2) + (e & 3)) < 4096 else "")
        if 896 * (8 * (e >> 2) + (e & 3)) >= 4096:
            a(f"v_add_u32 v9, {896*8}, v8")
            a(f"buffer_load_ushort v{16+e}, v9, s[48:51], 0 offen offset:{896*(e&3)}")
    a("v_lshlrev_b32 v10, 3, v6")
    a(f"s_mov_b32 s47, {STATS}")
    a("buffer_load_dwordx4 v[64:67], v10, s[56:59], s47 offen")
    a("buffer_load_dwordx4 v[68:71], v10, s[56:59], s47 offen offset:16")
    a("buffer_load_dwordx4 v[72:75], v10, s[56:59], s47 offen offset:64")
    a("buffer_load_dwordx4 v[76:79], v10, s[56:59], s47 offen offset:80")
    a("v_lshlrev_b32 v11, 1, v5")
    a("global_load_ushort v24, v11, s[6:7]")
    a("global_load_ushort v25, v11, s[8:9]")
    a("v_mul_u32_u24 v12, 1792, v6")
    a("v_lshl_add_u32 v12, v5, 2, v12")
    a(f"v_add_u32 v13, {1792*8}, v12")
    a("s_waitcnt vmcnt(0)")
    a("v_lshlrev_b32 v24, 16, v24")
    a("v_lshlrev_b32 v25, 16, v25")
    for e in range(8):
        d, hi = e >> 1, e & 1
        for s_ in range(7):
            r = 32 + 4 * s_ + d
            if hi:
                a(f"v_and_b32 v14, 0xffff0000, v{r}")
            else:
                a(f"v_lshlrev_b32 v14, 16, v{r}")
            if s_ == 0:
                a("v_add_f32 v15, v25, v14")
            else:
                a("v_add_f32 v15, v15, v14")
        m1 = 64 + 8 * (e >> 2) + 2 * (e & 3)
        a(f"v_lshlrev_b32 v26, 16, v{16+e}")
        a(f"v_sub_f32 v27, v26, v{m1}")
        a(f"v_mul_f32 v27, v27, v{m1+1}")
        bf16_round(a, 27, 27)
        a("v_fma_f32 v26, v27, v24, v26")
        a("v_add_f32 v15, v15, v26")
        base = 12 if e < 4 else 13
        a(f"buffer_store_dword v15, v{base}, s[52:55], 0 offen offset:{1792*(e&3)}" if 1792 * (e & 3) < 4096 else "")
        if 1792 * (e & 3) >= 4096:
            a(f"v_add_u32 v28, {1792*2}, v{base}")
            a(f"buffer_store_dword v15, v28, s[52:55], 0 offen offset:1792")
    a.label("K2_END")
    a("s_endpgm")
    return a


def desc(name, vgpr, sgpr=102):
    return f""".p2align 6
.amdhsa_kernel {name}
  .amdhsa_next_free_vgpr {vgpr}
  .amdhsa_next_free_sgpr {sgpr}
  .amdhsa_accum_offset {vgpr}
  .amdhsa_group_segment_fixed_size 0
  .amdhsa_kernarg_size 136
  .amdhsa_user_sgpr_count 2
  .amdhsa_user_sgpr_kernarg_segment_ptr 1
  .amdhsa_system_sgpr_workgroup_id_x 1
.end_amdhsa_kernel
"""


def build(opt):
    ref = open("parallel_sum__ssm_conv_s5__mixer_channel_mlp__prompt.s.ref").read() if opt.get('hdr', True) else ""
    hdr = [l for l in ref.split("\n") if l.startswith(";") and "@launch" not in l and "Override launch" not in l and "grid=ceil" not in l]
    out = "\n".join(hdr) + "\n"
    out += f"; @launch kernel=k1_kernel grid=(256,1,1) block=(512,1,1) lds={LDS_BYTES}\n"
    if not opt.get('dbg'):
        out += "; @launch kernel=k2_kernel grid=(256,1,1) block=(512,1,1) lds=0\n"
    out += '.amdgcn_target "amdgcn-amd-amdhsa--gfx950"\n.text\n'
    k1 = gen_k1(opt)
    out += ".globl k1_kernel\n.p2align 8\n.type k1_kernel,@function\nk1_kernel:\n" + k1.text()
    k2 = gen_k2(opt)
    out += ".globl k2_kernel\n.p2align 8\n.type k2_kernel,@function\nk2_kernel:\n" + k2.text()
    out += '.section .rodata,"a"\n' + desc("k1_kernel", 256) + desc("k2_kernel", 80)
    return out


if __name__ == "__main__":
    opt = {}
    outp = sys.argv[1]
    for kv in sys.argv[2:]:
        k, v = kv.split("=")
        opt[k] = v
    open(outp, "w").write(build(opt))
```

```python
import sys
from asmlib import Asm

KNAME = "parallel_sum__ssm_conv_s5__mixer_channel_mlp__prompt"

Y = 0
Q = 57344
P = 106496
RING = 12288
MISC = 155648
S2T = MISC
M2T = MISC + 256
AT = MISC + 2816
SCR = MISC + 512
CNT = MISC + 2560
LDS_BYTES = 163840
EBUF = 0
STATS = 0x20000
EIN = 0x80000
RFLAG = 0xC0000
INBOX = 0x40000
PBUF = 0x100000
WS_SIZE = 0x1000000
OOB = 0x7ff00000

sSL, sRB, sWV = 38, 39, 40
sRING, sT, sT2, sBASE, sBASE2 = 41, 42, 43, 76, 77
SX, SA, SW2, SCR_, SCI, SBI, SWS, SDBG = 44, 48, 52, 56, 60, 64, 68, 72
sRING3 = 78
sCB = 79
sW2B = 80
sTMP = 82
sP0, sINC0, sINC1, sOFF, sJS = 88, 89, 90, 91, 92
sPA = 94
sDUM = 97

LOG2E = 1.4426950408889634


def fhex(x):
    import struct
    return "0x%08x" % struct.unpack("<I", struct.pack("<f", x))[0]


def srd(a, dst, ptr, size):
    a(f"s_mov_b32 s{dst}, s{ptr}")
    a(f"s_mov_b32 s{dst+1}, s{ptr+1}")
    a(f"s_mov_b32 s{dst+2}, {size}")
    a(f"s_mov_b32 s{dst+3}, 0x20000")


def vr(b, n):
    return f"v[{b}:{b+n-1}]" if n > 1 else f"v{b}"


class Stream:
    def __init__(self, a, items, first_index=0):
        self.a = a
        self.items = items
        self.first = first_index
        self.next = 0

    def slot(self, i):
        return (self.first + i) % 6

    def issue(self, upto):
        a = self.a
        while self.next < min(upto, len(self.items)):
            it = self.items[self.next]
            sl = self.slot(self.next)
            a(f"s_add_u32 m0, s{it['ring']}, {sl*2048}")
            a(f"s_add_u32 s{sT}, s{it['sbase']}, {it['off']}")
            a.vmem(f"buffer_load_dwordx4 v{it['va']}, s[{it['srd']}:{it['srd']+3}], s{sT} offen lds", ('st', self.first + self.next))
            a.vmem(f"buffer_load_dwordx4 v{it['vb']}, s[{it['srd']}:{it['srd']+3}], s{sT} offen offset:1024 lds", ('st', self.first + self.next))
            self.next += 1

    def wait(self, i):
        self.a.wait_vm(('st', self.first + i))

    def parts(self, upto):
        a = self.a
        out = []
        while self.next < min(upto, len(self.items)):
            it = self.items[self.next]
            sl = self.slot(self.next)
            idx = self.first + self.next

            def setup(it=it, sl=sl):
                a(f"s_add_u32 m0, s{it['ring']}, {sl*2048}")
                a(f"s_add_u32 s{sT}, s{it['sbase']}, {it['off']}")

            def da(it=it, idx=idx):
                a.vmem(f"buffer_load_dwordx4 v{it['va']}, s[{it['srd']}:{it['srd']+3}], s{sT} offen lds", ('st', idx))

            def db(it=it, idx=idx):
                a.vmem(f"buffer_load_dwordx4 v{it['vb']}, s[{it['srd']}:{it['srd']+3}], s{sT} offen offset:1024 lds", ('st', idx))
            out.append((setup, da, db))
            self.next += 1
        return out


def signal(a, off):
    a(f"v_mov_b32 v2, {CNT+off}")
    a("v_mov_b32 v3, 1")
    a("s_mov_b64 exec, 1")
    a("ds_add_u32 v2, v3")
    a("s_mov_b64 exec, -1")


_spin = [0]
SLOW = []
def spin(a, off, n):
    _spin[0] += 1
    L = f"K1_SPIN{_spin[0]}"
    a(f"v_mov_b32 v2, {CNT+off}")
    a.label(L)
    a("ds_read_b32 v3, v2")
    a("s_waitcnt lgkmcnt(0)")
    a(f"v_readfirstlane_b32 s{sT}, v3")
    a(f"s_cmp_ge_u32 s{sT}, {n}")
    a(f"s_cbranch_scc0 {L}_S")
    SLOW.append((L + "_S", ["s_sleep 1", f"s_branch {L}"]))
    a.lg = []


def bf16_round(a, dst, src):
    a(f"v_cvt_pk_bf16_f32 v{dst}, v{src}, v{src}")
    a(f"v_lshlrev_b32 v{dst}, 16, v{dst}")


PROF = [False]
XS = [False]
STORESYNC = [True]
KORDER = [0, 1, 4, 5, 8, 9, 12, 13, 2, 3, 6, 7, 10, 11, 14, 15]
HALF = [True]
PRIOSW = [True]
PRIO16 = [1]
PSW = [None]
P14 = [3]
XNOVM = [False]
def stamp(a, i):
    if not PROF[0]: return
    a("s_waitcnt lgkmcnt(0)")
    a("s_memtime s[100:101]")
    a("s_waitcnt lgkmcnt(0)")
    a(f"v_writelane_b32 v0, s100, {i}")
    a.lg = []

LS = [0]
def lstamp(a):
    if not PROF[0]: return
    a(f"s_memtime s[{4+2*LS[0]}:{5+2*LS[0]}]")
    LS[0] += 1

def lflush(a, lane0):
    if not PROF[0]: return
    a("s_waitcnt lgkmcnt(0)")
    a.lg = []
    for i in range(LS[0]):
        a(f"v_writelane_b32 v0, s{4+2*i}, {lane0+i}")
    LS[0] = 0

def stamp_out(a):
    if not PROF[0]: return
    a("s_memrealtime s[100:101]")
    a("s_lshl_b32 s87, s2, 3")
    a(f"s_add_u32 s87, s87, s{sWV}")
    a("s_lshl_b32 s87, s87, 8")
    a("s_add_u32 s87, s87, 0xE00000")
    a("s_waitcnt lgkmcnt(0)")
    a("v_writelane_b32 v0, s100, 62")
    a("v_writelane_b32 v0, s99, 63")
    a("v_lshlrev_b32 v2, 2, v1")
    a(f"buffer_store_dword v0, v2, s[{SWS}:{SWS+3}], s87 offen")

def gen_k1(opt):
    a = Asm()
    PROF[0] = bool(opt.get('prof'))
    XS[0] = bool(opt.get('x_g3'))
    STORESYNC[0] = opt.get('ssync', '0') == '1'
    HALF[0] = opt.get('half', '0') == '1'
    PRIOSW[0] = opt.get('priosw', '1') == '1'
    PRIO16[0] = int(opt.get('prio16', 1))
    PSW[0] = tuple(int(x) for x in opt.get('psw', '8_1_1').split('_')) if opt.get('psw', '8_1_1') != 'none' else None
    P14[0] = int(opt.get('p14', 3))
    XNOVM[0] = bool(opt.get('x_novm3'))
    D2 = int(opt.get('d2', 4))
    NPRE = 4
    a(f"s_cmp_ge_u32 s2, 256")
    a("s_cbranch_scc1 K1_END")
    R = int(opt.get('R', 2))
    S_ = 8 // R
    RBG = 32 // R
    lg = lambda x: x.bit_length() - 1
    a(f"s_and_b32 s{sT}, s2, 7")
    a(f"s_lshr_b32 s{sT2}, s2, 3")
    a(f"s_and_b32 s{sJS}, s{sT2}, {RBG-1}")
    a(f"s_lshr_b32 s{sRB}, s{sT}, {lg(S_)}")
    a(f"s_mul_i32 s{sSL}, s{sJS}, {R}")
    a(f"s_add_u32 s{sRB}, s{sRB}, s{sSL}")
    a(f"s_and_b32 s{sSL}, s{sT}, {S_-1}")
    a(f"s_mul_i32 s{sSL}, s{sSL}, {R}")
    a(f"s_lshr_b32 s{sT2}, s{sT2}, {lg(RBG)}")
    a(f"s_add_u32 s{sSL}, s{sSL}, s{sT2}")
    a(f"s_cmp_ge_u32 s{sSL}, 7")
    a("s_cbranch_scc1 K1_COLL")
    if PROF[0]:
        a("s_memrealtime s[100:101]\n s_waitcnt lgkmcnt(0)\n s_mov_b32 s99, s100")
        a("s_memtime s[100:101]\n s_waitcnt lgkmcnt(0)\n s_mov_b32 s98, s100")
    if opt.get('span'):
        a("s_memrealtime s[98:99]")
    a("s_load_dwordx16 s[4:19], s[0:1], 0")
    a("s_load_dwordx16 s[20:35], s[0:1], 64")
    a("s_load_dwordx2 s[36:37], s[0:1], 128")
    a("v_lshrrev_b32 v2, 6, v0")
    a("v_and_b32 v1, 63, v0")
    if opt.get('ctouch', '1') == '1':
        NL = int(opt.get('cnl', 6))
        a("s_getpc_b64 s[94:95]")
        a.label("K1_PC")
        a("s_sub_u32 s94, s94, K1_PC-k1_kernel")
        a("s_subb_u32 s95, s95, 0")
        a("s_lshr_b32 s96, s2, 3")
        a(f"s_mul_i32 s96, s96, {NL*128}")
        a("v_lshlrev_b32 v3, 7, v0")
        a("v_add_u32 v3, s96, v3")
        a(f"v_cmp_gt_u32 s[84:85], {NL}, v0")
        a("v_cmp_gt_u32 vcc, K1_END-k1_kernel, v3")
        a("s_and_b64 vcc, vcc, s[84:85]")
        a("s_and_saveexec_b64 s[96:97], vcc")
        a("s_cbranch_execz K1_NOCT")
        a("global_load_dword v251, v3, s[94:95]")
        a.label("K1_NOCT")
        a("s_mov_b64 exec, s[96:97]")
    a(f"v_readfirstlane_b32 s{sWV}, v2")
    if opt.get('swap', '1') == '1':
        a(f"s_xor_b32 s{sWV}, s{sWV}, 4")
    if PROF[0]:
        a("v_writelane_b32 v0, s98, 0")
    a("v_lshrrev_b32 v3, 3, v1")
    a("v_and_b32 v4, 7, v1")
    a("v_mul_u32_u24 v5, 896, v3")
    a("v_lshl_add_u32 v10, v4, 4, v5")
    a("v_and_b32 v2, 15, v1")
    a(f"s_lshl_b32 s{sT}, s{sRB}, 3")
    a(f"s_add_u32 s{sT}, s{sT}, s{sWV}")
    a(f"s_mul_i32 s{sBASE2}, s{sT}, {8*896}")
    a(f"s_and_b32 s{sT}, s{sWV}, 3")
    a(f"s_lshl_b32 s{sT}, s{sT}, 4")
    a(f"s_lshl_b32 s{sT2}, s{sSL}, 6")
    a(f"s_add_u32 s{sP0}, s{sT}, s{sT2}")
    a(f"v_add_u32 v2, s{sP0}, v2")
    a("v_lshlrev_b32 v2, 1, v2")
    a("s_waitcnt lgkmcnt(0)")
    stamp(a, 11)
    def stouch_w1(m, nl=4, l0=0):
        NS = RBG
        nrow = 448 // NS
        a(f"s_add_u32 s{sT}, s{sWV}, {8*m}")
        skip = None
        if 8 * m + 7 >= nrow:
            _spin[0] += 1
            skip = f"K1_ST{m}_{_spin[0]}"
            a(f"s_cmp_ge_u32 s{sT}, {nrow}")
            a(f"s_cbranch_scc1 {skip}")
        a(f"s_mul_i32 s{sT}, s{sT}, {NS}")
        a(f"s_add_u32 s{sT}, s{sT}, s{sJS}")
        a(f"s_mul_i32 s{sT}, s{sT}, 3584")
        a(f"s_lshl_b32 s{sT2}, s{sSL}, 9")
        a(f"s_add_u32 s{sT}, s{sT}, s{sT2}")
        a(f"s_add_u32 s{sPA}, s24, s{sT}")
        a(f"s_addc_u32 s{sPA+1}, s25, 0")
        for k in range(l0, nl):
            a(f"s_load_dword s{sDUM}, s[{sPA}:{sPA+1}], {128*k}")
        if skip:
            a.label(skip)

    def stouch_b():
        NS = RBG
        per = 128 // NS
        if per < 8:
            a(f"s_cmp_ge_u32 s{sWV}, {per}")
            a("s_cbranch_scc1 K1_STB")
        reps = max(1, per // 8)
        for rep in range(reps):
            a(f"s_mul_i32 s{sT}, s{sJS}, {per}")
            a(f"s_add_u32 s{sT}, s{sT}, s{sWV}")
            if rep:
                a(f"s_add_u32 s{sT}, s{sT}, {8*rep}")
            a(f"s_and_b32 s{sT2}, s{sT}, 63")
            a(f"s_lshl_b32 s{sPA}, s{sSL}, 6")
            a(f"s_add_u32 s{sT2}, s{sT2}, s{sPA}")
            a(f"s_mul_i32 s{sT2}, s{sT2}, 896")
            a(f"s_cmp_ge_u32 s{sT}, 64")
            a(f"s_cselect_b32 s{sPA}, s12, s10")
            a(f"s_cselect_b32 s{sPA+1}, s13, s11")
            a(f"s_add_u32 s{sPA}, s{sPA}, s{sT2}")
            a(f"s_addc_u32 s{sPA+1}, s{sPA+1}, 0")
            for k in range(7):
                a(f"s_load_dword s{sDUM}, s[{sPA}:{sPA+1}], {128*k}")
        if per < 8:
            a.label("K1_STB")
    def stouch_w1g(m, nl=4, l0=0):
        n0 = len(a.items)
        stouch_w1(m, nl, l0)
        for i in range(n0, len(a.items)):
            k_, it = a.items[i]
            if k_ == 'label':
                a.items[i] = (k_, it + "G")
            elif k_ == 'ins' and 'K1_ST' in it.text:
                from asmlib import Ins
                a.items[i] = (k_, Ins(it.text + "G"))
    STOUCH = opt.get('stouch', '0') == '1'
    if STOUCH:
        stouch_b()
        stouch_w1(0)
        stouch_w1(1, 3)
    srd(a, SX, 4, 2048 * 896)
    if opt.get('warm'):
        srd(a, 48, 24, 448 * 3584); srd(a, 52, 28, 1792 * 896); srd(a, 56, 14, 448 * 896); srd(a, 60, 16, 448 * 896)
        srd(a, 64, 10, 448 * 896); srd(a, 68, 12, 448 * 896)
        a("v_lshlrev_b32 v6, 6, v0") if False else None
        a("v_and_b32 v7, 63, v1")
        a(f"s_lshl_b32 s{sT}, s{sWV}, 6")
        a(f"v_add_u32 v7, s{sT}, v1")
        for k in range(7):
            a(f"v_add_u32 v8, {512*k}, v7")
            a("v_lshrrev_b32 v9, 3, v8")
            a("v_mul_u32_u24 v9, 3584, v9")
            a("v_and_b32 v8, 7, v8")
            a("v_lshl_add_u32 v9, v8, 6, v9")
            a(f"s_lshl_b32 s{sT}, s{sSL}, 9")
            a(f"buffer_load_dword v250, v9, s[48:51], s{sT} offen")
        a(f"s_mul_i32 s{sT}, s{sSL}, {256*896}")
        for k in range(7):
            a(f"v_add_u32 v8, {512*k}, v7")
            a("v_lshlrev_b32 v9, 6, v8")
            a(f"buffer_load_dword v250, v9, s[52:55], s{sT} offen")
        a(f"s_mul_i32 s{sT}, s{sSL}, {64*896}")
        for k in range(2):
            a(f"v_add_u32 v8, {512*k}, v7")
            a("v_lshlrev_b32 v9, 6, v8")
            a(f"buffer_load_dword v250, v9, s[64:67], s{sT} offen")
            a(f"buffer_load_dword v250, v9, s[68:71], s{sT} offen")
        for k in range(2):
            a(f"v_add_u32 v8, {512*k}, v7")
            a("v_lshrrev_b32 v9, 1, v8")
            a("v_mul_u32_u24 v9, 896, v9")
            a("v_and_b32 v8, 1, v8")
            a("v_lshl_add_u32 v9, v8, 6, v9")
            a(f"s_lshl_b32 s{sT}, s{sSL}, 7")
            a(f"buffer_load_dword v250, v9, s[56:59], s{sT} offen")
            a(f"buffer_load_dword v250, v9, s[60:63], s{sT} offen")
        a(f"s_mul_i32 s{sT}, s{sRB}, {64*896}")
        for k in range(2):
            a(f"v_add_u32 v8, {512*k}, v7")
            a("v_lshlrev_b32 v9, 6, v8")
            a(f"buffer_load_dword v250, v9, s[{SX}:{SX+3}], s{sT} offen")
        a("s_waitcnt vmcnt(0)")
        a("s_barrier")
        a("s_sleep 64")
        a("s_barrier")
        if PROF[0]:
            a("s_memtime s[100:101]\n s_waitcnt lgkmcnt(0)\n v_writelane_b32 v0, s100, 0")
    a.vmem("global_load_ushort v104, v2, s[6:7]", 'par')
    a.vmem("global_load_ushort v105, v2, s[8:9]", 'par')
    a.vmem("global_load_ushort v106, v2, s[18:19]", 'par')
    for i in range(7):
        a.vmem(f"buffer_load_dwordx4 {vr(32+4*i,4)}, v10, s[{SX}:{SX+3}], s{sBASE2} offen offset:{128*i}", 'x')
    if opt.get('tlbw', '0') == '1':
        a("v_mov_b32 v2, 0")
        a("s_mov_b64 exec, 1")
        a.vmem("global_load_dword v250, v2, s[28:29]", 'tlb')
        a.vmem("global_load_dword v250, v2, s[14:15]", 'tlb')
        a.vmem("global_load_dword v250, v2, s[16:17]", 'tlb')
        a.vmem("global_load_dword v250, v2, s[36:37]", 'tlb')
        a("s_mov_b64 exec, -1")
    x_state = list(a.vm)

    srd(a, SW2, 28, 1792 * 896)
    srd(a, SCR_, 14, 448 * 896)
    srd(a, SCI, 16, 448 * 896)
    srd(a, SWS, 36, WS_SIZE)
    srd(a, SDBG, 34, 256)
    if opt.get('span'):
        a(f"s_lshl_b32 s{sT}, s2, 2")
        a(f"s_add_u32 s{sT}, s{sT}, 0xF80000")
        a("v_mov_b32 v250, s98")
        a("v_mov_b32 v251, 0")
        a("s_mov_b64 exec, 1")
        a(f"buffer_store_dword v250, v251, s[{SWS}:{SWS+3}], s{sT} offen")
        a("s_mov_b64 exec, -1")
    a("v_lshrrev_b32 v6, 4, v1")
    a("v_and_b32 v7, 1, v6")
    a("v_lshlrev_b32 v7, 2, v7")
    a("v_xor_b32 v7, v4, v7")
    a("v_xor_b32 v8, v4, v6")
    a("v_lshl_add_u32 v31, v8, 4, v5")
    a("v_xor_b32 v11, 64, v31")
    a(f"v_add_u32 v11, {8*896-1024}, v11")
    a("v_lshl_add_u32 v29, v7, 4, v5")
    a(f"v_add_u32 v30, {8*896-1024}, v29")
    NS = RBG
    nW = 448 * 4 // NS // 4
    a(f"s_mul_i32 s{sT}, s{sWV}, {nW}")
    a(f"v_add_u32 v6, s{sT}, v1")
    a("v_lshrrev_b32 v9, 2, v6")
    a(f"v_mul_u32_u24 v9, {NS}, v9")
    a(f"v_add_u32 v9, s{sJS}, v9")
    a("v_mul_u32_u24 v9, 3584, v9")
    a("v_and_b32 v6, 3, v6")
    a("v_lshl_add_u32 v248, v6, 7, v9")
    a(f"s_lshl_b32 s{sT}, s{sSL}, 9")
    a(f"v_add_u32 v248, s{sT}, v248")
    a("v_lshlrev_b32 v249, 7, v1")
    a("v_lshrrev_b32 v6, 4, v1")
    a(f"s_mul_i32 s{sW2B}, s{sSL}, {256*896}")
    a(f"s_lshl_b32 s{sT}, s{sWV}, 7")
    a(f"s_add_u32 s{sW2B}, s{sW2B}, s{sT}")
    a(f"s_mul_i32 s{sCB}, s{sWV}, {64*896}")
    a(f"s_lshl_b32 s{sT}, s{sSL}, 7")
    a(f"s_add_u32 s{sCB}, s{sCB}, s{sT}")
    a(f"s_lshl_b32 s{sT}, s{sWV}, 3")
    a(f"v_add_u32 v62, s{sT}, v3")
    a("v_bfe_u32 v63, v62, 1, 3")
    a(f"s_lshr_b32 s{sT}, s{sWV}, 1")
    a(f"s_and_b32 s{sT2}, s{sT}, 1")
    a(f"s_mul_i32 s{sT2}, s{sT2}, 3")
    a(f"s_lshr_b32 s{sT}, s{sT}, 1")
    a(f"s_xor_b32 s{sT}, s{sT}, s{sT2}")
    a(f"s_lshl_b32 s{sT}, s{sT}, 1")
    a(f"v_xor_b32 v63, s{sT}, v63")
    a("v_xor_b32 v63, v63, v4")
    a("v_mul_u32_u24 v61, 896, v62")
    a("v_lshl_add_u32 v10, v63, 4, v61")
    a("v_lshlrev_b32 v62, 2, v62")
    a("v_mov_b32 v60, 0")
    a(f"v_mov_b32 v63, {CNT}")
    for k in range(10):
        a(f"ds_write_b32 v63, v60 offset:{4*k}")
    a(f"s_cmp_ge_u32 s{sWV}, 4")
    a("s_cbranch_scc1 K1_G1_PRE")

    def touch1(sfx):
        if opt.get('touch1', '1') != '1':
            return
        if sfx.endswith("A"):
            nl = 448 * 4 // NS // 4
            assert nl <= 64
            a(f"s_mov_b64 exec, {hex((1 << nl) - 1)}")
            a("global_load_dword v252, v248, s[24:25]")
        else:
            perB = 128 // NS
            perW = perB // 4
            assert perW >= 1 and 7 * perW <= 64
            a(f"s_mul_i32 s{sT}, s{sJS}, {perB}")
            a(f"s_sub_u32 s{sT2}, s{sWV}, 4")
            a(f"s_mul_i32 s{sT2}, s{sT2}, {perW}")
            a(f"s_add_u32 s{sT}, s{sT}, s{sT2}")
            a(f"s_and_b32 s{sT2}, s{sT}, 63")
            a(f"s_lshl_b32 s{sPA}, s{sSL}, 6")
            a(f"s_add_u32 s{sT2}, s{sT2}, s{sPA}")
            a(f"s_mul_i32 s{sT2}, s{sT2}, 896")
            a(f"s_cmp_ge_u32 s{sT}, 64")
            a(f"s_cselect_b32 s{sPA}, s12, s10")
            a(f"s_cselect_b32 s{sPA+1}, s13, s11")
            a(f"s_add_u32 s{sPA}, s{sPA}, s{sT2}")
            a(f"s_addc_u32 s{sPA+1}, s{sPA+1}, 0")
            a(f"s_mov_b64 exec, {hex((1 << (7 * perW)) - 1)}")
            a(f"global_load_dword v253, v249, s[{sPA}:{sPA+1}]")
        a("s_mov_b64 exec, -1")

    LR, LI = 104, 105
    CR, CI = 116, 117
    L16R, L16I, PGR, PGI, MUR, MUI, M8R, M8I = 106, 107, 108, 109, 110, 111, 112, 113

    def cmac(dr, di, xr, xi, yr, yi, ar, ai):
        a(f"v_fma_f32 v{dr}, v{xr}, v{yr}, v{ar}")
        a(f"v_fma_f32 v{di}, v{xr}, v{yi}, v{ai}")
        a(f"v_fma_f32 v{dr}, -v{xi}, v{yi}, v{dr}")
        a(f"v_fmac_f32 v{di}, v{xi}, v{yr}")

    def lam_block():
        a.wait_vm('par')
        if not STOUCH: stamp(a, 12)
        LR, LI = 104, 105
        a("v_lshlrev_b32 v107, 16, v104")
        a("v_lshlrev_b32 v108, 16, v105")
        a("v_lshlrev_b32 v106, 16, v106")
        a(f"v_mul_f32 v106, {fhex(LOG2E)}, v106")
        a("v_exp_f32 v106, v106")
        bf16_round(a, 106, 106)
        a("v_mul_f32 v109, v106, v107")
        a("v_mul_f32 v110, v106, v108")
        a(f"v_mul_f32 v109, {fhex(LOG2E)}, v109")
        a(f"v_mul_f32 v110, {fhex(0.15915494309189535)}, v110")
        a("v_exp_f32 v109, v109")
        a("v_rndne_f32 v111, v110")
        a("v_sub_f32 v110, v110, v111")
        a("v_cos_f32 v111, v110")
        a("v_sin_f32 v112, v110")
        a("v_mul_f32 v113, v107, v107")
        a("v_fmac_f32 v113, v108, v108")
        a("v_mul_f32 v104, v109, v111")
        a("v_mul_f32 v105, v109, v112")
        a("v_rcp_f32 v110, v113")
        a("v_add_f32 v109, -1.0, v104")
        a("v_mul_f32 v111, v109, v107")
        a("v_mul_f32 v112, v105, v107")
        a("v_fmac_f32 v111, v105, v108")
        a("v_fma_f32 v112, -v109, v108, v112")
        a("v_add_f32 v110, v110, v110")
        CR, CI = 116, 117
        a(f"v_mul_f32 v{CR}, v111, v110")
        a(f"v_mul_f32 v{CI}, v112, v110")

        def csq(dr, di, sr, si):
            a(f"v_mul_f32 v{dr}, v{sr}, v{sr}")
            a(f"v_mul_f32 v{di}, v{sr}, v{si}")
            a(f"v_fma_f32 v{dr}, -v{si}, v{si}, v{dr}")
            a(f"v_add_f32 v{di}, v{di}, v{di}")

        def cmul(dr, di, xr, xi, yr, yi):
            a(f"v_mul_f32 v{dr}, v{xr}, v{yr}")
            a(f"v_mul_f32 v{di}, v{xr}, v{yi}")
            a(f"v_fma_f32 v{dr}, -v{xi}, v{yi}, v{dr}")
            a(f"v_fmac_f32 v{di}, v{xi}, v{yr}")

        def cmac(dr, di, xr, xi, yr, yi, ar, ai):
            a(f"v_fma_f32 v{dr}, v{xr}, v{yr}, v{ar}")
            a(f"v_fma_f32 v{di}, v{xr}, v{yi}, v{ai}")
            a(f"v_fma_f32 v{dr}, -v{xi}, v{yi}, v{dr}")
            a(f"v_fmac_f32 v{di}, v{xi}, v{yr}")
        L16R, L16I, PGR, PGI, MUR, MUI, M8R, M8I = 106, 107, 108, 109, 110, 111, 112, 113
        csq(118, 119, LR, LI)
        csq(120, 121, 118, 119)
        csq(118, 119, 120, 121)
        csq(L16R, L16I, 118, 119)
        csq(118, 119, L16R, L16I)
        cmul(120, 121, 118, 119, L16R, L16I)
        a("v_lshrrev_b32 v2, 4, v1")
        a(f"v_mov_b32 v{PGR}, 1.0")
        a(f"v_mov_b32 v{PGI}, 0")
        a("v_cmp_eq_u32 vcc, 1, v2")
        a(f"v_cndmask_b32 v{PGR}, v{PGR}, v{L16R}, vcc")
        a(f"v_cndmask_b32 v{PGI}, v{PGI}, v{L16I}, vcc")
        a("v_cmp_eq_u32 vcc, 2, v2")
        a(f"v_cndmask_b32 v{PGR}, v{PGR}, v118, vcc")
        a(f"v_cndmask_b32 v{PGI}, v{PGI}, v119, vcc")
        a("v_cmp_eq_u32 vcc, 3, v2")
        a(f"v_cndmask_b32 v{PGR}, v{PGR}, v120, vcc")
        a(f"v_cndmask_b32 v{PGI}, v{PGI}, v121, vcc")

    def prefill(it):
        s_ = SA if it % 2 == 0 else SBI
        a(f"s_add_u32 m0, s{sRING}, {2048*it}")
        a("s_nop 0")
        a.vmem(f"buffer_load_dwordx4 v27, s[{s_}:{s_+3}], s{sOFF} offen lds", ('pre', it))
        a.vmem(f"buffer_load_dwordx4 v28, s[{s_}:{s_+3}], s{sOFF} offen offset:1024 lds", ('pre', it))
        a(f"s_add_u32 s{sOFF}, s{sOFF}, s{sINC0 if it % 2 == 0 else sINC1}")
    NEARLY = int(opt.get('nearly', 0))

    srd(a, SA, 24, 448 * 3584)
    srd(a, SBI, 24, 448 * 3584)
    a(f"s_mul_i32 s{sRING}, s{sWV}, {RING}")
    a(f"s_add_u32 s{sRING}, s{sRING}, {P}")
    a(f"s_mov_b32 s{sRING3}, s{sRING}")
    a(f"s_lshl_b32 s{sBASE}, s{sSL}, 9")
    a(f"s_lshl_b32 s{sT}, s{sWV}, 7")
    a(f"s_add_u32 s{sBASE}, s{sBASE}, s{sT}")
    a(f"s_mov_b32 s{sINC0}, {16*3584}")
    a(f"s_mov_b32 s{sINC1}, {16*3584}")
    a("v_mul_u32_u24 v27, 3584, v3")
    a("v_lshl_add_u32 v27, v7, 4, v27")
    a(f"v_add_u32 v28, {8*3584-1024}, v27")
    if opt.get('tpos', 'ln') == 'pre': touch1("A")
    if opt.get('touch'):
        a(f"s_mul_i32 s{sT}, s{sWV}, 28")
        a(f"v_add_u32 v2, s{sT}, v1")
        a("v_lshrrev_b32 v8, 3, v2")
        a("v_and_b32 v9, 7, v2")
        a(f"s_mul_i32 s{sT}, s{sRB}, 14")
        a(f"v_add_u32 v8, s{sT}, v8")
        a("v_mul_u32_u24 v8, 3584, v8")
        a("v_lshl_add_u32 v8, v9, 6, v8")
        a(f"s_lshl_b32 s{sT}, s{sSL}, 9")
        a(f"v_add_u32 v8, s{sT}, v8")
        a("v_lshlrev_b32 v9, 6, v2")
        a(f"s_lshl_b32 s{sT}, s{sSL}, 5")
        a(f"s_add_u32 s{sT}, s{sT}, s{sRB}")
        a(f"s_mul_i32 s{sT}, s{sT}, {8*896}")
        a(f"v_add_u32 v9, s{sT}, v9")
        a(f"v_mov_b32 v2, {OOB}")
        a("v_cmp_gt_u32 vcc, 28, v1")
        a("v_cndmask_b32 v8, v2, v8, vcc")
        a("v_cndmask_b32 v9, v2, v9, vcc")
        a.vmem(f"buffer_load_dword v252, v8, s[{SA}:{SA+3}], 0 offen", 'touch')
        a.vmem(f"buffer_load_dword v253, v9, s[{SW2}:{SW2+3}], 0 offen", 'touch')
    a(f"s_mov_b32 s{sOFF}, s{sBASE}")
    for it in range(NEARLY):
        prefill(it)
    a("v_mov_b32 v247, 0")
    a("v_mov_b32 v250, 0")
    g3_addr(a)
    a(f"v_add_u32 v12, s{sRING}, v8")
    a("v_xor_b32 v13, 64, v12")
    a("v_lshrrev_b32 v2, 5, v1")
    a("v_and_b32 v3, 31, v1")
    a("v_bfe_u32 v4, v3, 1, 3")
    a("v_lshrrev_b32 v5, 4, v3")
    a("v_mul_u32_u24 v5, 6, v5")
    a("v_xor_b32 v4, v4, v5")
    a("v_xor_b32 v4, v4, v2")
    a("v_mul_u32_u24 v5, 896, v3")
    for j in range(4):
        a(f"v_xor_b32 v6, {2*j}, v4")
        a(f"v_lshl_add_u32 v{14+j}, v6, 4, v5")
    if STOUCH:
        a("s_waitcnt lgkmcnt(0)")
        stouch_w1(1, 4, 3)
        for m in range(2, (448 // RBG + 7) // 8):
            stouch_w1(m)
    if opt.get('xbar', '1') == '1': a("s_barrier")
    if not STOUCH: stamp(a, 13)
    a.wait_vm('x')
    a("v_lshrrev_b32 v2, 5, v1")
    a("v_lshlrev_b32 v2, 3, v2")
    a(f"v_add_u32 v2, s{sBASE}, v2")
    for ft in range(2):
        for aa in range(4):
            a.vmem(f"global_load_dwordx2 {vr(224 + 2*(4*ft+aa), 2)}, v2, s[26:27] offset:{(32*ft+8*aa)*2}", 'bias')
    saved_vm_A = list(a.vm)

    def emit_ln(role):
        if not STOUCH: stamp(a, 1)
        NLN0 = int(opt.get('nln0', 0))
        for it in range(NEARLY, max(NEARLY, NLN0)):
            prefill(it)
        if opt.get('tpos', 'ln') == 'ln' and (role == "B" or opt.get('w1pos', 'ln') == 'ln'): touch1("C" + role)
        if opt.get('x_ln'): stamp(a, 40)
        U = 128
        a("v_mov_b32 v2, 0")
        a("v_mov_b32 v3, 0")
        a("v_mov_b32 v4, 0")
        a("v_mov_b32 v5, 0")
        a(f"v_mov_b32 v60, 0x3f803f80")
        for i in range(28):
            x = 32 + i
            a(f"v_dot2c_f32_bf16 v{2 + (i & 1)}, v60, v{x}")
            a(f"v_dot2c_f32_bf16 v{4 + (i & 1)}, v{x}, v{x}")
        if opt.get('x_ln'): stamp(a, 41)
        fill = []
        for i in range(28):
            fill.append(f"v_lshlrev_b32 v{U+2*i}, 16, v{32+i}")
            fill.append(f"v_and_b32 v{U+2*i+1}, 0xffff0000, v{32+i}")
        inv = fhex(1.0 / 448.0)
        eps = fhex(1e-5)
        chain = []
        chain += ["v_add_f32 v2, v2, v3", "v_add_f32 v4, v4, v5"]
        for m in ("quad_perm:[1,0,3,2]", "quad_perm:[2,3,0,1]", "row_half_mirror"):
            chain.append(f"v_add_f32_dpp v2, v2, v2 {m} row_mask:0xf bank_mask:0xf")
            chain.append(f"v_add_f32_dpp v4, v4, v4 {m} row_mask:0xf bank_mask:0xf")
        chain += [f"v_mul_f32 v5, {inv}, v2", f"v_mul_f32 v4, {inv}, v4", "v_fma_f32 v4, -v5, v5, v4", "v_max_f32 v4, 0, v4",
                  f"v_add_f32 v6, {eps}, v4", "v_rsq_f32 v6, v6",
                  "v_mul_f32 v7, v6, v6", "v_mul_f32 v7, v7, v4", f"v_add_f32 v7, {eps}, v7", "v_rsq_f32 v9, v7",
                  "v_mul_f32 v3, v6, v9", "v_mul_f32 v8, v7, v9", "v_mul_f32 v2, v5, v3", "v_sub_f32 v2, 0, v2"]
        for k, ins in enumerate(chain):
            a(ins)
            if fill:
                a(fill.pop(0))
        for f_ in fill:
            a(f_)
        if opt.get('x_ln'): stamp(a, 42)
        a("v_mov_b32 v60, v3")
        a("v_mov_b32 v61, v3")
        a("v_mov_b32 v4, v2")
        a("v_mov_b32 v63, v5")
        a("v_mov_b32 v5, v2")
        a("v_and_b32 v2, 7, v1")
        a("v_cmp_eq_u32 vcc, 0, v2")
        a(f"s_and_saveexec_b64 s[{sTMP}:{sTMP+1}], vcc")
        a(f"v_add_u32 v2, {S2T}, v62")
        a(f"ds_write_b32 v2, v8")
        a(f"ds_write_b32 v2, v63 offset:{M2T-S2T}")
        a(f"ds_write_b32 v2, v6 offset:{AT-S2T}")
        a(f"s_mov_b64 exec, s[{sTMP}:{sTMP+1}]")
        if opt.get('x_ln'): stamp(a, 43)
        if role == "B" and opt.get('g1pre', 'end') == 'mid':
            for it in range(6):
                prefill(it)
        for i in range(7):
            for d in range(4):
                u = U + 2 * (4 * i + d)
                a(f"v_pk_fma_f32 v[{u}:{u+1}], v[{u}:{u+1}], v[60:61], v[4:5]")
            for d in range(4):
                u = U + 2 * (4 * i + d)
                a(f"v_cvt_pk_bf16_f32 v{32+4*i+d}, v{u}, v{u+1}")
            a(f"ds_write_b128 v10, {vr(32+4*i,4)} offset:{128*i}")
        a("s_waitcnt lgkmcnt(0)")
        stamp(a, 2)
    emit_ln("A")
    a(f"s_mov_b32 s{sOFF}, s{sBASE}")
    a("s_barrier")
    stamp(a, 3)
    NG2 = int(opt.get('ng2', 2))
    for it in range(NG2):
        prefill(it)
    pre_tags = [('st', i // 2) for i in range(2 * NG2)]

    PP = [(2, 3), (4, 5)]
    XR, XI = 122, 123
    def pass2(sfx, preloaded):
        if preloaded:
            a("s_branch K1_POLLW" + sfx)
        a.label("K1_POLL" + sfx)
        a(f"buffer_load_dwordx4 v[44:47], v250, s[{SWS}:{SWS+3}], 0 offen sc1")
        a("s_waitcnt vmcnt(0)")
        a.label("K1_POLLW" + sfx)
        a("v_cmp_ne_u32 vcc, 1, v46")
        a("s_cbranch_vccz K1_POLLED" + sfx)
        a(f"s_sleep {int(opt.get('psleep', 4))}")
        a("s_branch K1_POLL" + sfx)
        a.label("K1_POLLED" + sfx)
        stamp(a, 6)
        cmac(PP[1][0], PP[1][1], PGR, PGI, 44, 45, XR, XI)
        for e in range(16):
            nr, ni = PP[e & 1]
            hr, hi = PP[(e & 1) ^ 1]
            cmac(nr, ni, LR, LI, hr, hi, 64 + e, 80 + e)
            if e & 1:
                a(f"v_cvt_pk_bf16_f32 v{32 + e//2}, v{hr}, v{nr}")
                a(f"v_cvt_pk_bf16_f32 v{40 + e//2}, -v{hi}, -v{ni}")
        a.lds("ds_write_b128 v246, v[32:35] offset:8192", 'w')
        a.lds("ds_write_b128 v246, v[36:39] offset:8208", 'w')
        a.lds("ds_write_b128 v246, v[40:43] offset:10240", 'w')
        a.lds("ds_write_b128 v246, v[44:47] offset:10256", 'w')
        a.wait_lg_all()
        signal(a, 16)
        stamp(a, 7)
    a.vm = [t for t in saved_vm_A if not (isinstance(t, tuple) and t[0] == 'pre')] + pre_tags
    a.lg = []
    w1_items = [dict(srd=SA, va=27, vb=28, sbase=sBASE, off=16 * s * 3584, ring=sRING) for s in range(28)]
    w2_items = [dict(srd=SW2, va=29, vb=30, sbase=sW2B, off=16 * ks * 896, ring=sRING3) for ks in KORDER]
    c_items = []
    for part in range(2):
        for nt in range(2):
            for pr in range(2):
                c_items.append(dict(srd=(SCR_, SCI)[part], va=31, vb=11, sbase=sCB, off=(32 * nt + 16 * pr) * 896, ring=sRING3))
    stA = Stream(a, w1_items + w2_items + c_items, 0)
    stA.next = NG2
    a.wait_vm('bias')
    for ft in range(2):
        for aa in range(4):
            s_ = 224 + 2 * (4 * ft + aa)
            d_ = 128 + 16 * ft + 4 * aa
            a(f"v_lshlrev_b32 v{d_}, 16, v{s_}")
            a(f"v_and_b32 v{d_+1}, 0xffff0000, v{s_}")
            a(f"v_lshlrev_b32 v{d_+2}, 16, v{s_+1}")
            a(f"v_and_b32 v{d_+3}, 0xffff0000, v{s_+1}")

    FA = [192, 208, 224]

    def g2_reads(s):
        b = FA[s % 3]
        so = (s % 6) * 2048
        out = []
        for ft in range(2):
            for q in range(2):
                out.append(f"ds_read_b64_tr_b16 {vr(b+4*ft+2*q,2)}, v{12+ft} offset:{so+512*q}")
        j = s & 3
        out.append(f"ds_read_b128 {vr(b+8,4)}, v{14+j} offset:{128*(s>>2)}")
        out.append(f"ds_read_b128 {vr(b+12,4)}, v{14+(j^1)} offset:{128*(s>>2)+28672}")
        return out

    a(f"s_setprio {int(opt.get('g2p', 1))}")
    if opt.get('x_g2sleep'):
        a("s_sleep 127\n s_sleep 127")
    if opt.get('serial', '1') == '1':
        spin(a, 20, 4)
    if opt.get('w1pos', 'ln') == 'sig':
        touch1("DA")
    if opt.get('x_rep2'):
        a("s_mov_b32 s87, 0")
        a("s_waitcnt vmcnt(0)")
        a.vm = []
        a.label("K1_REP")
        stA.next = 0
        stamp(a, 44)
    stA.issue(6)
    stA.wait(0)
    for r in g2_reads(0):
        a.lds(r, ('f', 0))
    stA.wait(1)
    for r in g2_reads(1):
        a.lds(r, ('f', 1))
    a.wait_lg(('f', 0))
    stA.issue(7)
    for s in range(28):
        b = FA[s % 3]
        ms = []
        for ft in range(2):
            for tt in range(2):
                acc = 64 + 32 * ft + 16 * tt
                c = vr(128 + 16 * ft, 16) if s == 0 else vr(acc, 16)
                ms.append(f"v_mfma_f32_32x32x16_bf16 {vr(acc,16)}, {vr(b+4*ft,4)}, {vr(b+8+4*tt,4)}, {c}")
        rd = g2_reads(s + 2) if s + 2 < 28 else []
        a(ms[0])
        if s + 2 < 28:
            stA.wait(s + 2)
        for r in rd[0:3]:
            a.lds(r, ('f', s + 2))
        a(ms[1])
        for r in rd[3:6]:
            a.lds(r, ('f', s + 2))
        pp = stA.parts(min(s + 8, int(opt.get('g2cap', 34))))
        if pp:
            pp[0][0]()
        a(ms[2])
        if s + 1 < 28:
            a.wait_lg(('f', s + 1))
        if pp:
            pp[0][1]()
        a(ms[3])
        if pp:
            pp[0][2]()
        for extra_ in pp[1:]:
            for fn in extra_:
                fn()
        if opt.get('x_steps') and s % 3 == 2:
            lstamp(a)
    if opt.get('x_steps') and opt.get('x_rep2'):
        a("s_waitcnt lgkmcnt(0)")
        a.lg = []
        for i in range(LS[0]):
            a(f"s_mul_i32 s86, s87, 10")
            a(f"s_add_u32 m0, s86, {16+i}")
            a("s_nop 4")
            a(f"v_writelane_b32 v0, s{4+2*i}, m0")
        LS[0] = 0
    elif opt.get('x_steps'):
        lflush(a, 16)
    if opt.get('x_rep2'):
        a.wait_lg_all()
        a("s_waitcnt vmcnt(0)")
        a("s_cmp_eq_u32 s87, 1")
        a("s_cbranch_scc1 K1_REPD")
        stamp(a, 45)
        a("s_memtime s[100:101]\n s_waitcnt lgkmcnt(0)\n v_writelane_b32 v0, s100, 46")
        a("v_readlane_b32 s100, v0, 44")
        a("s_nop 4")
        a("v_writelane_b32 v0, s100, 47")
        a("s_mov_b32 s87, 1")
        a("s_branch K1_REP")
        a.label("K1_REPD")
        a.vm = []
    stamp(a, 4)
    a.wait_lg_all()
    signal(a, 8)
    spin(a, 0, 4)
    stA.issue(34)
    def touch2():
        if opt.get('touch2', '1') == '1':
            NS = RBG
            n2 = 1792 // NS // 4
            nc = 448 // NS // 4
            for rep in range((n2 + 63) // 64):
                a(f"s_mul_i32 s{sT}, s{sWV}, {n2}")
                a(f"v_add_u32 v2, s{sT}, v1")
                if rep:
                    a(f"v_add_u32 v2, {64*rep}, v2")
                a(f"v_mul_u32_u24 v2, {NS}, v2")
                a(f"v_add_u32 v2, s{sJS}, v2")
                a("v_lshlrev_b32 v2, 7, v2")
                a(f"v_mov_b32 v3, {OOB}")
                a(f"v_cmp_gt_u32 vcc, {n2 - 64*rep}, v1")
                a("v_cndmask_b32 v2, v3, v2, vcc")
                a(f"s_mul_i32 s{sT}, s{sSL}, {256*896}")
                a.vmem(f"buffer_load_dword v252, v2, s[{SW2}:{SW2+3}], s{sT} offen", 'touch')
            a(f"s_mul_i32 s{sT}, s{sWV}, {nc}")
            a(f"v_add_u32 v2, s{sT}, v1")
            a(f"v_mul_u32_u24 v2, {NS}, v2")
            a(f"v_add_u32 v2, s{sJS}, v2")
            a("v_mul_u32_u24 v2, 896, v2")
            a(f"v_mov_b32 v3, {OOB}")
            a(f"v_cmp_gt_u32 vcc, {nc}, v1")
            a("v_cndmask_b32 v2, v3, v2, vcc")
            a(f"s_lshl_b32 s{sT}, s{sSL}, 7")
            a.vmem(f"buffer_load_dword v253, v2, s[{SCR_}:{SCR_+3}], s{sT} offen", 'touch')
            a.vmem(f"buffer_load_dword v254, v2, s[{SCI}:{SCI+3}], s{sT} offen", 'touch')
    a("s_setprio 0")
    stamp(a, 5)
    gelu(a, touch2, int(opt.get('t2pos', 1)))
    a.wait_lg_all()
    signal(a, 28)
    a(f"s_setprio {int(opt.get('g3p03', 2))}")
    stamp(a, 6)
    g3_stream = stA

    a.label("K1_G3")
    assert g3_stream.next == 34
    a.vm = [('st', 28 + i // 2) for i in range(12)]
    a.lg = []
    spin(a, 12 if HALF[0] else 28, 4)
    stamp(a, 8)
    def hook_load():
        if opt.get('hookpos', 'pre') == 'pre':
            return
        a.vmem(f"buffer_load_dwordx4 v[44:47], v250, s[{SWS}:{SWS+3}], 0 offen sc1", 'inbox')

    def hook_pass2():
        if opt.get('hookpos', 'pre') == 'pre':
            return
        a.wait_vm('inbox')
        a(f"s_cmp_ge_u32 s{sWV}, 4")
        a("s_cbranch_scc0 K1_HP")
        sv = (list(a.vm), list(a.lg))
        a(f"s_setprio {int(opt.get('p2prio', 0))}")
        pass2("B", True)
        a.vm, a.lg = sv[0], []
        a.label("K1_HP")
    g3(a, g3_stream, 28, D2, hook_load, hook_pass2)
    a.vm = [('ps', 0)] * 8
    reduce_pre(a)
    a.wait_vm(('ps', 0))
    a(f"s_mul_i32 s{sT}, s{sRB}, 7")
    a(f"s_add_u32 s{sT}, s{sT}, s{sWV}")
    a(f"s_lshl_b32 s{sT}, s{sT}, 7")
    a(f"s_lshl_b32 s{sT2}, s{sSL}, 2")
    a(f"s_add_u32 s{sT}, s{sT}, s{sT2}")
    a(f"s_add_u32 s{sT}, s{sT}, {RFLAG}")
    a("v_mov_b32 v2, 1")
    a("v_mov_b32 v3, 0")
    a("s_mov_b64 exec, 1")
    a.vmem(f"buffer_store_dword v2, v3, s[{SWS}:{SWS+3}], s{sT} offen sc1", 'flag')
    a("s_mov_b64 exec, -1")
    signal(a, 32)
    stamp(a, 16)
    a.label("K1_RED")
    a.vm = ['x'] * 10
    a.lg = []
    reduce_main(a, opt)
    if opt.get('span'):
        a("s_memrealtime s[98:99]")
        a("s_waitcnt vmcnt(0)")
        a("s_memrealtime s[96:97]")
        a(f"s_lshl_b32 s{sT}, s2, 3")
        a(f"s_add_u32 s{sT}, s{sT}, s{sWV}")
        a(f"s_lshl_b32 s{sT}, s{sT}, 3")
        a(f"s_add_u32 s{sT}, s{sT}, 0xF84000")
        a("s_waitcnt lgkmcnt(0)")
        a("v_mov_b32 v2, s98")
        a("v_mov_b32 v3, s96")
        a("v_mov_b32 v4, 0")
        a("s_mov_b64 exec, 1")
        a(f"buffer_store_dwordx2 v[2:3], v4, s[{SWS}:{SWS+3}], s{sT} offen")
    stamp(a, 10)
    stamp_out(a)
    a("s_endpgm")

    a.label("K1_G1_PRE")
    a.vm = list(x_state)
    srd(a, SA, 10, 448 * 896)
    srd(a, SBI, 12, 448 * 896)
    a(f"s_sub_u32 s{sTMP}, s{sWV}, 4")
    a(f"s_mul_i32 s{sRING}, s{sTMP}, {RING}")
    a(f"s_add_u32 s{sRING3}, s{sRING}, {Y}")
    a(f"s_add_u32 s{sRING}, s{sRING}, {Q}")
    a(f"s_mul_i32 s{sBASE}, s{sP0}, 896")
    a(f"s_mov_b32 s{sINC0}, 0")
    a(f"s_mov_b32 s{sINC1}, 128")
    a("v_mov_b32 v27, v31")
    a("v_mov_b32 v28, v11")
    if opt.get('tpos', 'ln') == 'pre': touch1("B")
    if opt.get('touch'):
        a(f"s_mul_i32 s{sT}, s{sTMP}, 7")
        a(f"v_add_u32 v2, s{sT}, v1")
        a("v_lshlrev_b32 v8, 6, v2")
        a(f"s_lshl_b32 s{sT}, s{sSL}, 5")
        a(f"s_add_u32 s{sT}, s{sT}, s{sRB}")
        a(f"s_mul_i32 s{sT}, s{sT}, {2*896}")
        a(f"v_add_u32 v8, s{sT}, v8")
        a("v_lshrrev_b32 v9, 1, v2")
        a(f"s_mul_i32 s{sT}, s{sRB}, 14")
        a(f"v_add_u32 v9, s{sT}, v9")
        a("v_mul_u32_u24 v9, 896, v9")
        a("v_and_b32 v6, 1, v2")
        a("v_lshl_add_u32 v9, v6, 6, v9")
        a(f"s_lshl_b32 s{sT}, s{sSL}, 7")
        a(f"v_add_u32 v9, s{sT}, v9")
        a(f"v_mov_b32 v2, {OOB}")
        a("v_cmp_gt_u32 vcc, 7, v1")
        a("v_cndmask_b32 v8, v2, v8, vcc")
        a("v_cndmask_b32 v9, v2, v9, vcc")
        a.vmem(f"buffer_load_dword v252, v8, s[{SA}:{SA+3}], 0 offen", 'touch')
        a.vmem(f"buffer_load_dword v253, v8, s[{SBI}:{SBI+3}], 0 offen", 'touch')
        a.vmem(f"buffer_load_dword v254, v9, s[{SCR_}:{SCR_+3}], 0 offen", 'touch')
        a.vmem(f"buffer_load_dword v255, v9, s[{SCI}:{SCI+3}], 0 offen", 'touch')
    a(f"s_mov_b32 s{sOFF}, s{sBASE}")
    for it in range(NEARLY):
        prefill(it)
    g3_addr(a)
    a("v_and_b32 v2, 15, v1")
    a("v_lshrrev_b32 v3, 4, v1")
    a("v_bfe_u32 v4, v2, 1, 3")
    a("v_xor_b32 v4, v4, v3")
    a("v_lshlrev_b32 v4, 4, v4")
    a("v_lshl_add_u32 v4, v2, 7, v4")
    a(f"v_add_u32 v12, s{sRING}, v4")
    a("v_xor_b32 v13, 64, v12")
    a("v_lshrrev_b32 v4, 2, v2")
    a("v_and_b32 v5, 3, v2")
    a("v_lshl_add_u32 v6, v4, 4, v5")
    a("v_mul_u32_u24 v6, 896, v6")
    a("v_and_b32 v7, 1, v4")
    a("v_mul_u32_u24 v7, 3, v7")
    a("v_lshrrev_b32 v8, 1, v4")
    a("v_xor_b32 v7, v7, v8")
    a("v_lshlrev_b32 v7, 1, v7")
    a("v_lshrrev_b32 v8, 1, v5")
    a("v_xor_b32 v7, v7, v8")
    a("v_xor_b32 v7, v7, v3")
    for k in range(4):
        a(f"v_xor_b32 v8, {2*k}, v7")
        a(f"v_lshl_add_u32 v{14+k}, v8, 4, v6")
    a(f"s_lshl_b32 s{sT}, s{sTMP}, 9")
    a(f"s_add_u32 s{sT}, s{sT}, {SCR}")
    a("v_lshlrev_b32 v6, 5, v2")
    a(f"v_add_u32 v244, s{sT}, v6")
    a("v_lshl_add_u32 v245, v3, 3, v244")
    a("v_lshlrev_b32 v4, 1, v3")
    a("v_bfe_u32 v5, v2, 1, 1")
    a("v_lshlrev_b32 v5, 2, v5")
    a("v_xor_b32 v4, v4, v5")
    a("v_lshlrev_b32 v4, 4, v4")
    a("v_lshl_add_u32 v4, v2, 7, v4")
    a(f"v_add_u32 v246, s{sRING}, v4")
    a("v_lshlrev_b32 v247, 3, v2")
    a(f"s_lshl_b32 s{sT}, s{sSL}, 5")
    a(f"s_add_u32 s{sT}, s{sT}, s{sRB}")
    a(f"s_lshl_b32 s{sT}, s{sT}, 10")
    a(f"s_lshl_b32 s{sT2}, s{sTMP}, 8")
    a(f"s_add_u32 s{sT}, s{sT}, s{sT2}")
    a(f"s_add_u32 s{sT}, s{sT}, {INBOX}")
    a("v_lshlrev_b32 v250, 4, v2")
    a(f"v_add_u32 v250, s{sT}, v250")
    if STOUCH:
        a("s_waitcnt lgkmcnt(0)")
        stouch_w1g(1, 4, 3)
        for m in range(2, (448 // RBG + 7) // 8):
            stouch_w1g(m)
    if opt.get('xbar', '1') == '1': a("s_barrier")
    if not STOUCH: stamp(a, 13)
    a.wait_vm('x')
    saved_vm_B = list(a.vm)

    emit_ln("B")
    if opt.get('g1pre', 'end') != 'mid':
        for it in range(6):
            prefill(it)
    for k in range(4):
        a(f"v_mov_b32 v{44+k}, 0")
    a("s_mov_b64 exec, 0xffff")
    a(f"buffer_store_dwordx4 v[44:47], v250, s[{SWS}:{SWS+3}], 0 offen sc1")
    a("s_mov_b64 exec, -1")
    a("v_lshlrev_b32 v249, 5, v1")
    a(f"s_cmp_eq_u32 s{sWV}, 4")
    a("s_cbranch_scc0 K1_NORDY")
    a("s_mov_b64 exec, 0x7f")
    a(f"buffer_load_dword v251, v249, s[{SDBG}:{SDBG+3}], 0 offen sc1")
    a("s_mov_b64 exec, -1")
    a.label("K1_NORDY")
    if opt.get('lampos', 'pre') == 'pre': lam_block()
    a("s_barrier")
    stamp(a, 3)
    a.vm = [t for t in saved_vm_B if not (isinstance(t, tuple) and t[0] == 'pre')] + [('b', i // 4) for i in range(12)]
    a.lg = []

    def b_parts(ds):
        sl_ = ds % 3
        return [
            lambda: (a(f"s_add_u32 m0, s{sRING}, {sl_*4096}"), a(f"s_add_u32 s{sT}, s{sBASE}, {128*ds}")),
            lambda: a.vmem(f"buffer_load_dwordx4 v31, s[{SA}:{SA+3}], s{sT} offen lds", ('b', ds)),
            lambda: a.vmem(f"buffer_load_dwordx4 v11, s[{SA}:{SA+3}], s{sT} offen offset:1024 lds", ('b', ds)),
            lambda: a(f"s_add_u32 m0, s{sRING}, {sl_*4096+2048}"),
            lambda: a.vmem(f"buffer_load_dwordx4 v31, s[{SBI}:{SBI+3}], s{sT} offen lds", ('b', ds)),
            lambda: a.vmem(f"buffer_load_dwordx4 v11, s[{SBI}:{SBI+3}], s{sT} offen offset:1024 lds", ('b', ds)),
        ]

    def b_issue(ds):
        for f_ in b_parts(ds):
            f_()
    AF = [128, 144, 160]
    BF = [176, 192]

    def g1_breads(ds):
        so = (ds % 3) * 4096
        out = []
        for s1 in range(2):
            out.append(f"ds_read_b128 {vr(BF[ds&1]+8*s1,4)}, v{12+s1} offset:{so}")
            out.append(f"ds_read_b128 {vr(BF[ds&1]+8*s1+4,4)}, v{12+s1} offset:{so+2048}")
        return out

    def g1_areads(s):
        s1 = s & 1
        out = []
        for aa in range(4):
            k = (2 * s1) ^ aa
            out.append(f"ds_read_b128 {vr(AF[s%3]+4*aa,4)}, v{14+k} offset:{aa*4*896+128*(s>>1)}")
        return out

    if opt.get('x_g1sleep'):
        a("s_sleep 127\n s_sleep 127\n s_sleep 127\n s_sleep 127")
    a(f"s_setprio {int(opt.get('g1p', 2))}")
    a.wait_vm(('b', 0))
    for r in g1_breads(0):
        a.lds(r, ('B', 0))
    for s0 in range(2):
        for r in g1_areads(s0):
            a.lds(r, ('f', s0))
    for s in range(14):
        ds = s >> 1
        a.wait_lg(('f', s))
        if s == 0:
            b_issue(3)
        if PROF[0] and opt.get('x_g1') and s % 2 == 0:
            a("s_memtime s[100:101]")
            a("s_waitcnt lgkmcnt(0)")
            a(f"v_writelane_b32 v0, s100, {24 + s}")
        if s % 2 == 0 and ds + 1 < 7:
            a.wait_vm(('b', ds + 1))
        if PROF[0] and opt.get('x_g1') and s % 2 == 0:
            a("s_memtime s[100:101]")
            a("s_waitcnt lgkmcnt(0)")
            a(f"v_writelane_b32 v0, s100, {25 + s}")
            a.lg = []
        bp = []
        if s % 2 == 1 and ds + 1 < 7:
            a.wait_lg(('B', ds + 1))
            if ds + 4 < 7:
                bp = b_parts(ds + 4)
        A_, B_ = AF[s % 3], BF[ds & 1] + 8 * (s & 1)
        ms = []
        for aa in range(4):
            for part in range(2):
                acc = 64 + 16 * part + 4 * aa
                c = "0" if s == 0 else vr(acc, 4)
                ms.append(f"v_mfma_f32_16x16x32_bf16 {vr(acc,4)}, {vr(A_+4*aa,4)}, {vr(B_+4*part,4)}, {c}")
        rd = []
        if s % 2 == 0 and ds + 1 < 7:
            rd += [(r, ('B', ds + 1)) for r in g1_breads(ds + 1)]
        if s + 2 < 14:
            rd += [(r, ('f', s + 2)) for r in g1_areads(s + 2)]
        fill = [lambda r=r, t=t: a.lds(r, t) for (r, t) in rd] + bp
        for k, m in enumerate(ms):
            a(m)
            if k < len(fill):
                fill[k]()
        for f_ in fill[len(ms):]:
            f_()
        if opt.get('x_g1l') and s % 2 == 1:
            lstamp(a)
        if bp and ds + 4 == 6 and opt.get('serial', '1') == '1':
            a(f"v_mov_b32 v2, {CNT+20}")
            a("v_mov_b32 v3, 1")
            a("s_mov_b64 exec, 1")
            a.lds("ds_add_u32 v2, v3", 'sig')
            a("s_mov_b64 exec, -1")
    if opt.get('x_g1l'): lflush(a, 34)
    a("s_setprio 0")
    stamp(a, 4)
    a.wait_lg_all()
    signal(a, 0)
    a(f"s_cmp_eq_u32 s{sWV}, 4")
    a("s_cbranch_scc0 K1_RDY2")
    a.label("K1_RDY1")
    a("s_waitcnt vmcnt(0)")
    a("s_mov_b64 exec, 0x7f")
    a("v_cmp_ne_u32 vcc, 1, v251")
    a("s_mov_b64 exec, -1")
    a("s_cbranch_vccnz K1_RDYS")
    SLOW.append(("K1_RDYS", ["s_sleep 4", "s_mov_b64 exec, 0x7f", f"buffer_load_dword v251, v249, s[{SDBG}:{SDBG+3}], 0 offen sc1", "s_mov_b64 exec, -1", "s_branch K1_RDY1"]))
    signal(a, 4)
    a.label("K1_RDY2")
    if opt.get('lampos', 'pre') == 'post': lam_block()
    a("v_lshrrev_b32 v7, 4, v1")
    a("v_lshlrev_b32 v4, 6, v7")
    a(f"v_add_u32 v4, {S2T}, v4")
    for k in range(4):
        a.lds(f"ds_read_b128 {vr(32+4*k,4)}, v4 offset:{16*k}", 'st')
    a.wait_lg('st')
    for e in range(16):
        R_, I_ = 64 + e, 80 + e
        a(f"v_mul_f32 v8, v{32+e}, v{R_}")
        a(f"v_mul_f32 v9, v{32+e}, v{I_}")
        a(f"v_mul_f32 v{R_}, v{CR}, v8")
        a(f"v_mul_f32 v{I_}, v{CR}, v9")
        a(f"v_fma_f32 v{R_}, -v{CI}, v9, v{R_}")
        a(f"v_fmac_f32 v{I_}, v{CI}, v8")
        nr, ni = PP[e & 1]
        hr, hi = PP[(e & 1) ^ 1]
        if e == 0:
            a(f"v_mov_b32 v{nr}, v{R_}")
            a(f"v_mov_b32 v{ni}, v{I_}")
        else:
            cmac(nr, ni, LR, LI, hr, hi, R_, I_)
    HE = PP[1]
    a.lds(f"ds_write_b64 v245, v[{HE[0]}:{HE[1]}]", 'w')
    a.wait_lg('w')
    a.lds("ds_read_b128 v[32:35], v244", 'r')
    a.lds("ds_read_b128 v[36:39], v244 offset:16", 'r')
    a.wait_lg('r')
    cmac(40, 41, L16R, L16I, 32, 33, 34, 35)
    cmac(42, 43, L16R, L16I, 40, 41, 36, 37)
    cmac(44, 45, L16R, L16I, 42, 43, 38, 39)
    a("v_mov_b32 v46, 1")
    a("v_mov_b32 v47, 0")
    a.wait_lg_all()
    spin(a, 4, 1)
    a(f"s_mov_b32 s{sT}, {EIN - INBOX}")
    a("s_mov_b64 exec, 0xffff")
    a(f"buffer_store_dwordx4 v[44:47], v250, s[{SWS}:{SWS+3}], s{sT} offen sc1")
    a("s_mov_b64 exec, -1")
    a.vm = []
    a(f"v_mov_b32 v{XR}, 0")
    a(f"v_mov_b32 v{XI}, 0")
    for g_, (r_, i_) in ((1, (32, 33)), (2, (40, 41)), (3, (42, 43))):
        a(f"v_cmp_eq_u32 vcc, {g_}, v7")
        a(f"v_cndmask_b32 v{XR}, v{XR}, v{r_}, vcc")
        a(f"v_cndmask_b32 v{XI}, v{XI}, v{i_}, vcc")
    stamp(a, 5)
    a("s_setprio 0")
    spin(a, 8, 4)
    stamp(a, 9)
    a(f"s_cmp_eq_u32 s{sWV}, 7")
    a("s_cbranch_scc1 K1_NOPRE")
    spin(a, 0, 4)
    stB = Stream(a, w2_items + c_items, 28)
    if opt.get('prefirst', '1') == '1':
        stB.issue(6)
    a.label("K1_NOPRE")
    a.vm = []
    if opt.get('hookpos', 'pre') == 'pre':
        a(f"s_setprio {int(opt.get('p2prio', 2))}")
        pass2("A", False)
        a(f"s_setprio {int(opt.get('g3p46', 1))}")
        a(f"s_cmp_eq_u32 s{sWV}, 7")
        a("s_cbranch_scc0 K1_G3")
    else:
        if opt.get('g3prio', '1') == '1':
            a("s_setprio 2")
        a(f"s_cmp_eq_u32 s{sWV}, 7")
        a("s_cbranch_scc0 K1_G3")
        a("s_setprio 0")
        pass2("A", False)
    a.vm = []
    reduce_pre(a)
    a.lg = []
    spin(a, 32, 7)
    a(f"s_mul_i32 s{sT}, s{sRB}, 7")
    a(f"s_add_u32 s{sT}, s{sT}, s{sSL}")
    a(f"s_lshl_b32 s{sT}, s{sT}, 7")
    a(f"s_add_u32 s{sTMP}, s{sT}, {RFLAG}")
    a("v_lshlrev_b32 v2, 2, v1")
    a.label("K1_RPOLL")
    a("s_mov_b64 exec, 0x7f")
    a(f"buffer_load_dword v3, v2, s[{SWS}:{SWS+3}], s{sTMP} offen sc1")
    a("s_waitcnt vmcnt(0)")
    a("v_cmp_ne_u32 vcc, 1, v3")
    a("s_mov_b64 exec, -1")
    a("s_cbranch_vccnz K1_RPOLLS")
    SLOW.append(("K1_RPOLLS", [f"s_sleep {int(opt.get('rsleep', 2))}", "s_branch K1_RPOLL"]))
    signal(a, 36)
    a("s_branch K1_RED")

    a.label("K1_COLL")
    a(f"s_cmp_lg_u32 s{sSL}, 7")
    a("s_cbranch_scc1 K1_END")
    a(f"s_mul_i32 s{sT}, s{sJS}, {R}")
    a(f"s_cmp_lg_u32 s{sT}, s{sRB}")
    a("s_cbranch_scc1 K1_END")
    a(f"s_cmp_ge_u32 s{sJS}, 7")
    a("s_cbranch_scc1 K1_END")
    a("v_lshrrev_b32 v2, 6, v0")
    a("v_and_b32 v1, 63, v0")
    a(f"v_readfirstlane_b32 s{sWV}, v2")
    a(f"s_mov_b32 s{sSL}, s{sJS}")
    a("s_load_dwordx4 s[4:7], s[0:1], 8")
    a("s_load_dwordx2 s[18:19], s[0:1], 56")
    a("s_load_dwordx4 s[32:35], s[0:1], 112")
    a("s_load_dwordx2 s[36:37], s[0:1], 128")
    a(f"s_lshl_b32 s{sT}, s{sSL}, 6")
    a(f"v_add_u32 v2, s{sT}, v1")
    a("v_lshlrev_b32 v2, 1, v2")
    a(f"s_lshl_b32 s{sT}, s{sSL}, 15")
    a(f"s_lshl_b32 s{sT2}, s{sWV}, 12")
    a(f"s_add_u32 s{sT}, s{sT}, s{sT2}")
    a(f"s_add_u32 s{sT}, s{sT}, {EIN}")
    a("v_lshlrev_b32 v3, 4, v1")
    a(f"v_add_u32 v3, s{sT}, v3")
    for k in range(4):
        a(f"v_mov_b32 v{8+k}, 0")
    a("s_waitcnt lgkmcnt(0)")
    srd(a, SWS, 36, WS_SIZE)
    srd(a, SDBG, 34, 256)
    for k in range(4):
        a(f"buffer_store_dwordx4 v[8:11], v3, s[{SWS}:{SWS+3}], 0 offen offset:{1024*k} sc1")
    a("v_lshlrev_b32 v12, 7, v0")
    a(f"s_lshl_b32 s{sT}, s{sSL}, 2")
    a(f"s_add_u32 s{sT}, s{sT}, {RFLAG}")
    a(f"v_mov_b32 v13, {OOB}")
    a("v_cmp_gt_u32 vcc, 224, v0")
    a("v_cndmask_b32 v12, v13, v12, vcc")
    a(f"buffer_store_dword v8, v12, s[{SWS}:{SWS+3}], s{sT} offen sc1")
    a("global_load_ushort v104, v2, s[4:5]")
    a("global_load_ushort v105, v2, s[6:7]")
    a("global_load_ushort v106, v2, s[18:19]")
    a("s_waitcnt vmcnt(0)")
    a("s_barrier")
    a(f"s_cmp_lg_u32 s{sWV}, 0")
    a("s_cbranch_scc1 K1_CNR")
    a(f"s_lshl_b32 s{sT}, s{sSL}, 5")
    a(f"v_mov_b32 v5, s{sT}")
    a("v_mov_b32 v6, 1")
    a("s_mov_b64 exec, 1")
    a(f"buffer_store_dword v6, v5, s[{SDBG}:{SDBG+3}], 0 offen sc1")
    a("s_mov_b64 exec, -1")
    a.label("K1_CNR")
    a("v_lshlrev_b32 v107, 16, v104")
    a("v_lshlrev_b32 v108, 16, v105")
    a("v_lshlrev_b32 v106, 16, v106")
    a(f"v_mul_f32 v106, {fhex(LOG2E)}, v106")
    a("v_exp_f32 v106, v106")
    bf16_round(a, 106, 106)
    a("v_mul_f32 v109, v106, v107")
    a("v_mul_f32 v110, v106, v108")
    a(f"v_mul_f32 v109, {fhex(LOG2E)}, v109")
    a(f"v_mul_f32 v110, {fhex(0.15915494309189535)}, v110")
    a("v_exp_f32 v109, v109")
    a("v_rndne_f32 v111, v110")
    a("v_sub_f32 v110, v110, v111")
    a("v_cos_f32 v111, v110")
    a("v_sin_f32 v112, v110")
    a("v_mul_f32 v104, v109, v111")
    a("v_mul_f32 v105, v109, v112")

    def csq2(d, s_):
        a(f"v_mul_f32 v{d[0]}, v{s_[0]}, v{s_[0]}")
        a(f"v_mul_f32 v{d[1]}, v{s_[0]}, v{s_[1]}")
        a(f"v_fma_f32 v{d[0]}, -v{s_[1]}, v{s_[1]}, v{d[0]}")
        a(f"v_add_f32 v{d[1]}, v{d[1]}, v{d[1]}")
    cur_ = (104, 105)
    for k in range(6):
        nx = (118, 119) if k % 2 == 0 else (120, 121)
        csq2(nx, cur_)
        cur_ = nx
    M1 = cur_
    M2, M3, M4 = (110, 111), (112, 113), (114, 115)
    csq2(M2, M1)
    a(f"v_mul_f32 v{M3[0]}, v{M2[0]}, v{M1[0]}")
    a(f"v_mul_f32 v{M3[1]}, v{M2[0]}, v{M1[1]}")
    a(f"v_fma_f32 v{M3[0]}, -v{M2[1]}, v{M1[1]}, v{M3[0]}")
    a(f"v_fmac_f32 v{M3[1]}, v{M2[1]}, v{M1[0]}")
    csq2(M4, M2)
    a("v_lshlrev_b32 v4, 4, v1")
    a(f"s_lshl_b32 s{sT}, s{sSL}, 15")
    a(f"s_lshl_b32 s{sT2}, s{sWV}, 12")
    a(f"s_add_u32 s{sT}, s{sT}, s{sT2}")
    a(f"s_add_u32 s{sT}, s{sT}, {INBOX}")
    a(f"v_add_u32 v4, s{sT}, v4")
    a("v_lshlrev_b32 v7, 3, v1")
    a(f"s_lshl_b32 s{sT}, s{sWV}, 9")
    a(f"v_add_u32 v6, s{sT}, v7")
    a.label("K1_CPOLL")
    for k in range(4):
        a(f"buffer_load_dwordx4 v[{16+4*k}:{19+4*k}], v3, s[{SWS}:{SWS+3}], 0 offen offset:{1024*k} sc1")
    a("s_waitcnt vmcnt(0)")
    a("v_and_b32 v12, v18, v22")
    a("v_and_b32 v13, v26, v30")
    a("v_and_b32 v12, v12, v13")
    a("v_cmp_ne_u32 vcc, 1, v12")
    a("s_cbranch_vccnz K1_CPOLLS")
    SLOW.append(("K1_CPOLLS", [f"s_sleep {int(opt.get('csleep', 1))}", "s_branch K1_CPOLL"]))
    if PROF[0]: a("s_memrealtime s[8:9]")
    cmac(32, 33, M1[0], M1[1], 16, 17, 20, 21)
    cmac(34, 35, M1[0], M1[1], 32, 33, 24, 25)
    cmac(36, 37, M1[0], M1[1], 34, 35, 28, 29)
    a("ds_write_b64 v6, v[36:37]")
    a("s_waitcnt lgkmcnt(0)")
    a("s_barrier")
    if PROF[0]: a("s_memrealtime s[10:11]")
    for w in range(7):
        a(f"ds_read_b64 v[{40+2*w}:{41+2*w}], v7 offset:{512*w}")
    a("v_mov_b32 v8, 0")
    a("v_mov_b32 v9, 0")
    a("s_waitcnt lgkmcnt(0)")
    for w in range(7):
        a(f"s_cmp_gt_u32 s{sWV}, {w}")
        a(f"s_cbranch_scc0 K1_CH")
        cmac(12, 13, M4[0], M4[1], 8, 9, 40 + 2 * w, 41 + 2 * w)
        a("v_mov_b32 v8, v12")
        a("v_mov_b32 v9, v13")
    a.label("K1_CH")
    for k, q in enumerate(((56, 57), (60, 61), (64, 65), (68, 69))):
        a(f"v_mov_b32 v{q[0]+2}, 1")
        a(f"v_mov_b32 v{q[0]+3}, 0")
        if k == 0:
            a(f"v_mov_b32 v{q[0]}, v8")
            a(f"v_mov_b32 v{q[1]}, v9")
        else:
            Mk = (M1, M2, M3)[k - 1]
            Lk = ((16, 17), (32, 33), (34, 35))[k - 1]
            cmac(q[0], q[1], Mk[0], Mk[1], 8, 9, Lk[0], Lk[1])
        a(f"buffer_store_dwordx4 v[{q[0]}:{q[0]+3}], v4, s[{SWS}:{SWS+3}], 0 offen offset:{1024*k} sc1")
    if PROF[0]:
        a(f"s_cmp_lg_u32 s{sWV}, 7")
        a("s_cbranch_scc1 K1_END")
        a("s_memrealtime s[12:13]")
        a("s_waitcnt vmcnt(0)")
        a("s_memrealtime s[14:15]")
        a("s_waitcnt lgkmcnt(0)")
        a(f"s_lshl_b32 s{sT+8}, s{sSL}, 4")
        a(f"s_add_u32 s{sT+8}, s{sT+8}, 0xF00000")
        a("v_mov_b32 v2, 0")
        for i, r in enumerate((8, 10, 12, 14)):
            a(f"v_mov_b32 v3, s{r}")
            a(f"buffer_store_dword v3, v2, s[{SWS}:{SWS+3}], s{sT+8} offen offset:{4*i}")
    a("s_endpgm")
    for lab, ins in SLOW:
        a.label(lab)
        for t in ins:
            a(t)
    del SLOW[:]
    a.label("K1_END")
    a("s_endpgm")
    return a


def g3_addr(a):
    a("v_lshrrev_b32 v2, 5, v1")
    a("v_bfe_u32 v3, v1, 2, 2")
    a("v_and_b32 v4, 3, v1")
    a("v_bfe_u32 v5, v1, 4, 1")
    a("v_lshlrev_b32 v6, 1, v5")
    a("v_lshrrev_b32 v7, 1, v4")
    a("v_or_b32 v6, v6, v7")
    a("v_lshrrev_b32 v7, 1, v3")
    a("v_lshlrev_b32 v7, 2, v7")
    a("v_xor_b32 v6, v6, v7")
    a("v_lshlrev_b32 v6, 4, v6")
    a("v_and_b32 v7, 1, v4")
    a("v_lshl_add_u32 v6, v7, 3, v6")
    a("v_lshl_add_u32 v7, v2, 3, v3")
    a("v_lshl_add_u32 v8, v7, 7, v6")
    a("v_lshl_add_u32 v7, v2, 2, v3")
    a("v_lshl_add_u32 v9, v7, 7, v6")
    a(f"v_add_u32 v18, s{sRING3}, v9")
    a("v_xor_b32 v19, 64, v18")
    a(f"v_add_u32 v21, {Q + 8192}, v8")
    a("v_xor_b32 v22, 64, v21")
    a("v_lshlrev_b32 v20, 4, v1")
    a(f"v_add_u32 v20, {Q}, v20")
    c_addr(a)


def c_addr(a):
    a("v_and_b32 v3, 31, v1")
    a("v_lshrrev_b32 v2, 5, v1")
    a("v_bfe_u32 v4, v3, 1, 3")
    a("v_xor_b32 v4, v4, v2")
    a("v_lshlrev_b32 v4, 4, v4")
    a("v_lshl_add_u32 v4, v3, 7, v4")
    a(f"v_add_u32 v23, s{sRING3}, v4")
    for cg in range(1, 4):
        a(f"v_xor_b32 v{23+cg}, {32*cg}, v23")


def gelu(a, hook=None, hookpos=1, pk=True):
    c1 = -2.0 * 0.7978845608028654 * LOG2E
    c2 = c1 * 0.044715
    a(f"v_mov_b32 v56, {fhex(c1)}")
    a(f"v_mov_b32 v57, {fhex(c1)}")
    a(f"v_mov_b32 v58, {fhex(c2)}")
    a(f"v_mov_b32 v59, {fhex(c2)}")
    a("v_mov_b32 v62, 1.0")
    a("v_mov_b32 v63, 1.0")
    a(f"s_mul_i32 s{sTMP}, s{sWV}, {RING}")
    a(f"s_add_u32 s{sTMP}, s{sTMP}, {Q}")
    a("v_lshlrev_b32 v61, 4, v1")
    a(f"v_add_u32 v61, s{sTMP}, v61")
    grp = 0
    for ft in range(2):
        for tt in range(2):
            acc = 64 + 32 * ft + 16 * tt
            if hook is not None and grp == hookpos:
                hook()
            grp += 1
            X = [acc + 2 * e for e in range(8)]
            T = [32 + 2 * e for e in range(8)]
            P = lambda r: f"v[{r}:{r+1}]"
            for e in range(8):
                a(f"v_pk_mul_f32 {P(T[e])}, {P(X[e])}, {P(X[e])}")
            for e in range(8):
                a(f"v_pk_fma_f32 {P(T[e])}, {P(T[e])}, v[58:59], v[56:57]")
            for e in range(8):
                a(f"v_pk_mul_f32 {P(T[e])}, {P(T[e])}, {P(X[e])}")
            for e in range(16):
                a(f"v_exp_f32 v{32+e}, v{32+e}")
            for e in range(8):
                a(f"v_pk_add_f32 {P(T[e])}, {P(T[e])}, v[62:63]")
            for e in range(16):
                a(f"v_rcp_f32 v{32+e}, v{32+e}")
            for e in range(8):
                a(f"v_pk_mul_f32 {P(T[e])}, {P(T[e])}, {P(X[e])}")
            for half in range(2):
                for d in range(4):
                    a(f"v_cvt_pk_bf16_f32 v{48+4*half+d}, v{32+8*half+2*d}, v{32+8*half+2*d+1}")
                a.lds(f"ds_write_b128 v61, {vr(48+4*half,4)} offset:{((2*ft+half)*2+tt)*1024}", 'hw')
            if len(a.lg) >= 8:
                a.wait_lg_all()
            if ft == 0 and tt == 1:
                a.wait_lg_all()
                signal(a, 12)


def g3(a, st, base, D2, hook_load=None, hook_pass2=None):
    FA = [192, 208, 224]
    CF = 64
    mlp_base = base
    ssm_base = base + 16
    first = [True]

    def mfmas(Aregs, Bregs):
        ms = []
        for tt in range(2):
            for nt in range(2):
                acc = 128 + 32 * tt + 16 * nt
                c = "0" if first[0] else vr(acc, 16)
                ms.append(f"v_mfma_f32_32x32x16_bf16 {vr(acc,16)}, {vr(Aregs[tt],4)}, {vr(Bregs[nt],4)}, {c}")
        first[0] = False
        return ms

    def mlp_reads(ks):
        b = FA[ks % 3]
        so = st.slot(mlp_base + ks) * 2048
        out = []
        for nt in range(2):
            for q in range(2):
                out.append(f"ds_read_b64_tr_b16 {vr(b+8+4*nt+2*q,2)}, v{18+nt} offset:{so+1024*q}")
        kr = KORDER[ks]
        for tt in range(2):
            out.append(f"ds_read_b128 {vr(b+4*tt,4)}, v20 offset:{12288*(kr>>2)+((kr&3)*2+tt)*1024}")
        return out

    def ssm_areads(k):
        part, cg = k >> 2, k & 3
        b = FA[(16 + k) % 3]
        out = []
        for tt in range(2):
            for q in range(2):
                out.append(f"ds_read_b64_tr_b16 {vr(b+4*tt+2*q,2)}, v{21+tt} offset:{12288*cg+2048*part+512*q}")
        return out

    def c_reads(part):
        out = []
        for nt in range(2):
            i0 = ssm_base + 4 * part + 2 * nt
            so = st.slot(i0) * 2048
            assert st.slot(i0 + 1) == st.slot(i0) + 1
            for cg in range(4):
                out.append(f"ds_read_b128 {vr(CF+32*part+8*cg+4*nt,4)}, v{23+cg} offset:{so}")
        return out

    def step_reads(m):
        return mlp_reads(m) if m < 16 else ssm_areads(m - 16)

    st.wait(mlp_base)
    for r in step_reads(0):
        a.lds(r, ('m', 0))
    st.wait(mlp_base + 1)
    for r in step_reads(1):
        a.lds(r, ('m', 1))
    a.wait_lg(('m', 0))
    for m in range(24):
        b = FA[m % 3]
        if m < 16:
            ms = mfmas([b, b + 4], [b + 8, b + 12])
        else:
            k = m - 16
            cb = CF + 32 * (k >> 2) + 8 * (k & 3)
            ms = mfmas([b, b + 4], [cb, cb + 4])
        if m == 14:
            a.wait_lg_all()
            stamp(a, 14)
            hook_pass2()
            spin(a, 16, 4)
            if P14[0] >= 0:
                a(f"s_setprio {P14[0]}")
            stamp(a, 15)
        if m == 6 and HALF[0]:
            a.wait_lg_all()
            spin(a, 28, 4)
        if PSW[0] is not None and m == PSW[0][0]:
            a(f"s_cmp_ge_u32 s{sWV}, 4")
            a(f"s_cbranch_scc1 K1_PSW{m}")
            a(f"s_setprio {PSW[0][1]}")
            a(f"s_branch K1_PSWB{m}")
            a.label(f"K1_PSW{m}")
            a(f"s_setprio {PSW[0][2]}")
            a.label(f"K1_PSWB{m}")
        if m == 9:
            hook_load()
        rd = [(r, ('m', m + 2)) for r in step_reads(m + 2)] if m + 2 < 24 else []
        cr = []
        if m == 14:
            cr = [(r, ('c', 0)) for r in c_reads(0)[0:4]]
        elif m == 15:
            cr = [(r, ('c', 1)) for r in c_reads(0)[4:8]]
        elif m == 17:
            cr = [(r, ('c', 2)) for r in c_reads(1)[0:4]]
        elif m == 19:
            cr = [(r, ('c', 3)) for r in c_reads(1)[4:8]]
        if m == 16:
            if PRIO16[0] == 9:
                a(f"s_cmp_ge_u32 s{sWV}, 4")
                a("s_cbranch_scc1 K1_P16")
                a("s_setprio 2")
                a("s_branch K1_P16B")
                a.label("K1_P16")
                a("s_setprio 0")
                a.label("K1_P16B")
            elif PRIO16[0] == 8:
                a(f"s_cmp_ge_u32 s{sWV}, 4")
                a("s_cbranch_scc0 K1_P16")
                a("s_setprio 2")
                a("s_branch K1_P16B")
                a.label("K1_P16")
                a("s_setprio 0")
                a.label("K1_P16B")
            elif PRIO16[0] >= 0:
                a(f"s_setprio {PRIO16[0]}")
            a.wait_lg(('c', 1))
        if m == 20:
            a.wait_lg(('c', 3))
        a(ms[0])
        if m + 2 < 16:
            if XNOVM[0]:
                a.vm = [t for t in a.vm if t != ('st', st.first + mlp_base + m + 2 - st.first)]
            else:
                st.wait(mlp_base + m + 2)
        if m == 14:
            st.wait(ssm_base + 1)
        if m == 15:
            a.wait_lg(('m', 16))
            st.wait(ssm_base + 3)
        if m == 17:
            st.wait(ssm_base + 5)
        if m == 19:
            a.wait_lg(('c', 2))
            st.wait(ssm_base + 7)
            if STORESYNC[0]:
                a(f"v_mov_b32 v2, {CNT+24}")
                a("v_mov_b32 v3, 1")
                a("s_mov_b64 exec, 1")
                a.lds("ds_add_u32 v2, v3", 'sig')
                a("s_mov_b64 exec, -1")
        allr = rd + cr
        h1 = (len(allr) + 1) // 2
        for r, t in allr[:h1]:
            a.lds(r, t)
        a(ms[1])
        for r, t in allr[h1:]:
            a.lds(r, t)
        if m == 15:
            a.wait_lg(('c', 0))
            pp = st.parts(ssm_base + 8)
        else:
            pp = st.parts(min(mlp_base + m + 8, ssm_base + 6))
        if pp:
            pp[0][0]()
        a(ms[2])
        if m + 1 < 24:
            a.wait_lg(('m', m + 1))
        if pp:
            pp[0][1]()
        a(ms[3])
        if pp:
            pp[0][2]()
        for extra_ in pp[1:]:
            for fn in extra_:
                fn()
        if XS[0] and m % 3 == 2:
            lstamp(a)
    if XS[0]:
        lflush(a, 26)
    if STORESYNC[0]:
        a.wait_lg_all()
        spin(a, 24, 7)
    a(f"s_mul_i32 s{sT}, s{sRB}, 7")
    a(f"s_add_u32 s{sT}, s{sT}, s{sWV}")
    a(f"s_mul_i32 s{sT}, s{sT}, 56")
    a(f"s_add_u32 s{sT}, s{sT}, s{sSL}")
    a(f"s_lshl_b32 s{sT}, s{sT}, 10")
    a(f"s_add_u32 s{sT}, s{sT}, {PBUF}")
    a("v_lshlrev_b32 v2, 4, v1")
    for tt in range(2):
        for nt in range(2):
            acc = 128 + 32 * tt + 16 * nt
            for hf in range(2):
                v_ = tt * 4 + nt * 2 + hf
                d = 32 + 4 * (v_ & 3)
                for k in range(4):
                    a(f"v_cvt_pk_bf16_f32 v{d+k}, v{acc+8*hf+2*k}, v{acc+8*hf+2*k+1}")
                a(f"s_add_u32 s{sT2}, s{sT}, {v_*7*1024}")
                a(f"buffer_store_dwordx4 {vr(d,4)}, v2, s[{SWS}:{SWS+3}], s{sT2} offen sc1")


def reduce_pre(a):
    a("v_and_b32 v3, 31, v1")
    a("v_lshrrev_b32 v4, 5, v1")
    a(f"s_lshr_b32 s{sT}, s{sWV}, 2")
    a(f"s_lshl_b32 s{sT}, s{sT}, 5")
    a(f"s_and_b32 s{sT2}, s{sWV}, 1")
    a(f"s_lshl_b32 s{sT2}, s{sT2}, 4")
    a(f"s_add_u32 s{sT}, s{sT}, s{sT2}")
    a(f"v_lshl_add_u32 v6, v4, 2, s{sT}")
    a(f"s_bfe_u32 s{sT}, s{sWV}, 0x10001")
    a(f"s_lshl_b32 s{sT}, s{sT}, 5")
    a(f"s_lshl_b32 s{sT2}, s{sSL}, 6")
    a(f"s_add_u32 s{sT}, s{sT}, s{sT2}")
    a(f"v_add_u32 v5, s{sT}, v3")
    a(f"s_lshl_b32 s{sT}, s{sRB}, 6")
    a(f"v_add_u32 v7, s{sT}, v6")
    a("v_mul_u32_u24 v8, 896, v7")
    a("v_lshl_add_u32 v8, v5, 1, v8")
    a(f"v_add_u32 v9, {896*8}, v8")
    a("v_lshlrev_b32 v10, 1, v5")
    a("v_mul_u32_u24 v12, 1792, v7")
    a("v_lshl_add_u32 v12, v5, 2, v12")
    a(f"v_add_u32 v13, {1792*8}, v12")
    a(f"v_add_u32 v14, {1792*2}, v12")
    a(f"v_add_u32 v15, {1792*2}, v13")
    a("v_lshlrev_b32 v6, 2, v6")
    a(f"v_add_u32 v6, {S2T}, v6")
    srd(a, SX, 4, 2048 * 896)
    srd(a, SA, 32, 2048 * 1792)
    for e in range(8):
        a.vmem(f"buffer_load_ushort v{16+e}, v{8 if e < 4 else 9}, s[{SX}:{SX+3}], 0 offen offset:{896*(e&3)}", 'x')
    a.vmem("global_load_ushort v24, v10, s[20:21]", 'x')
    a.vmem("global_load_ushort v25, v10, s[30:31]", 'x')


def reduce_main(a, opt):
    a.lds(f"ds_read_b128 v[64:67], v6 offset:{M2T-S2T}", 't')
    a.lds(f"ds_read_b128 v[68:71], v6 offset:{M2T-S2T+32}", 't')
    a.lds(f"ds_read_b128 v[72:75], v6 offset:{AT-S2T}", 't')
    a.lds(f"ds_read_b128 v[76:79], v6 offset:{AT-S2T+32}", 't')
    a(f"s_mul_i32 s{sT}, s{sRB}, 7")
    a(f"s_add_u32 s{sT}, s{sT}, s{sSL}")
    a(f"s_lshl_b32 s{sT}, s{sT}, 3")
    a(f"s_add_u32 s{sT}, s{sT}, s{sWV}")
    a(f"s_mul_i32 s{sT}, s{sT}, 7168")
    a(f"s_add_u32 s{sT}, s{sT}, {PBUF}")
    a("v_lshlrev_b32 v7, 4, v1")
    a.wait_lg_all()
    spin(a, 36, 1)
    for s_ in range(7):
        a(f"s_add_u32 s{sT2}, s{sTMP}, {1024*s_}") if False else None
    a(f"s_mul_i32 s{sT}, s{sRB}, 7")
    a(f"s_add_u32 s{sT}, s{sT}, s{sSL}")
    a(f"s_lshl_b32 s{sT}, s{sT}, 3")
    a(f"s_add_u32 s{sT}, s{sT}, s{sWV}")
    a(f"s_mul_i32 s{sT}, s{sT}, 7168")
    a(f"s_add_u32 s{sT}, s{sT}, {PBUF}")
    for s_ in range(7):
        a.vmem(f"buffer_load_dwordx4 {vr(32+4*s_,4)}, v7, s[{SWS}:{SWS+3}], s{sT} offen sc1", ('p', s_))
        a(f"s_add_u32 s{sT}, s{sT}, 1024")
    a.wait_vm('x')
    a("v_lshlrev_b32 v24, 16, v24")
    a("v_lshlrev_b32 v25, 16, v25")
    for e in range(8):
        mu = 64 + 4 * (e >> 2) + (e & 3)
        r1 = 72 + 4 * (e >> 2) + (e & 3)
        a(f"v_lshlrev_b32 v26, 16, v{16+e}")
        a(f"v_sub_f32 v27, v26, v{mu}")
        a(f"v_add_f32 v{80+e}, v25, v26")
        a(f"v_mul_f32 v27, v27, v{r1}")
        a(f"v_fmac_f32 v{80+e}, v27, v24")
    for s_ in range(7):
        a.wait_vm(('p', s_))
        for d in range(4):
            r = 32 + 4 * s_ + d
            a(f"v_lshlrev_b32 v28, 16, v{r}")
            a(f"v_and_b32 v29, 0xffff0000, v{r}")
            a(f"v_add_f32 v{80+2*d}, v{80+2*d}, v28")
            a(f"v_add_f32 v{81+2*d}, v{81+2*d}, v29")
            if s_ == 6:
                sc = "sc1" if opt.get('osc', '0') == '1' else ""
                for e in (2 * d, 2 * d + 1):
                    if (e & 3) < 3:
                        a(f"buffer_store_dword v{80+e}, v{12 if e < 4 else 13}, s[{SA}:{SA+3}], 0 offen offset:{1792*(e&3)} {sc}")
                    else:
                        a(f"buffer_store_dword v{80+e}, v{14 if e < 4 else 15}, s[{SA}:{SA+3}], 0 offen offset:1792 {sc}")


def dump_lds(a, base, nbytes):
    a("s_lshl_b32 s90, s2, 16")
    a("s_add_u32 s90, s90, 0x800000")
    a("v_lshlrev_b32 v2, 4, v0")
    n = (nbytes + 8191) // 8192
    for i in range(n):
        a(f"v_add_u32 v3, {base + 8192*i}, v2")
        a("ds_read_b128 v[4:7], v3")
        a("s_waitcnt lgkmcnt(0)")
        a(f"v_add_u32 v3, {8192*i}, v2")
        a(f"buffer_store_dwordx4 v[4:7], v3, s[{SWS}:{SWS+3}], s90 offen")
        a("s_waitcnt vmcnt(0)")


def dump_regs(a, base, n):
    a("s_lshl_b32 s90, s2, 3")
    a(f"s_add_u32 s90, s90, s{sWV}")
    a("s_lshl_b32 s90, s90, 14")
    a("s_add_u32 s90, s90, 0x800000")
    a("v_lshlrev_b32 v2, 2, v1")
    a("s_nop 15")
    for i in range(n):
        a(f"buffer_store_dword v{base+i}, v2, s[{SWS}:{SWS+3}], s90 offen")
        a("s_add_u32 s90, s90, 256")
    a("s_waitcnt vmcnt(0)")


def gen_k2(opt):
    a = Asm()
    a("s_cmp_ge_u32 s2, 256")
    a("s_cbranch_scc1 K2_END")
    if opt.get('span'):
        a("s_memrealtime s[64:65]")
    if opt.get('k2prof'): a("s_memtime s[78:79]")
    a("s_load_dwordx2 s[4:5], s[0:1], 0")
    a("s_load_dwordx2 s[6:7], s[0:1], 64")
    a("s_load_dwordx4 s[8:11], s[0:1], 104")
    a("s_load_dwordx2 s[12:13], s[0:1], 128")
    a("v_lshrrev_b32 v2, 6, v0")
    a("v_and_b32 v1, 63, v0")
    a("v_readfirstlane_b32 s40, v2")
    a("v_and_b32 v3, 31, v1")
    a("v_lshrrev_b32 v4, 5, v1")
    a("v_lshlrev_b32 v7, 4, v1")
    a("s_mul_i32 s41, s2, 7")
    a("s_add_u32 s41, s41, s40")
    a("s_mul_hi_u32 s39, s41, 0x4924925")
    a("s_mul_i32 s42, s39, 56")
    a("s_sub_u32 s42, s41, s42")
    a("s_lshr_b32 s38, s42, 3")
    a("s_and_b32 s40, s42, 7")
    a("s_mul_i32 s46, s41, 7168")
    a(f"s_add_u32 s46, s46, {PBUF}")
    a("s_lshr_b32 s41, s40, 2")
    a("s_bfe_u32 s42, s40, 0x10001")
    a("s_and_b32 s43, s40, 1")
    a("s_lshl_b32 s44, s38, 6")
    a("s_lshl_b32 s45, s42, 5")
    a("s_add_u32 s44, s44, s45")
    a("v_add_u32 v5, s44, v3")
    a("s_lshl_b32 s45, s39, 6")
    a("s_lshl_b32 s46, s46, 0") if False else None
    a("s_lshl_b32 s47, s41, 5")
    a("s_add_u32 s45, s45, s47")
    a("s_lshl_b32 s47, s43, 4")
    a("s_add_u32 s45, s45, s47")
    a("v_lshl_add_u32 v6, v4, 2, s45")
    a("v_mul_u32_u24 v8, 896, v6")
    a("v_lshl_add_u32 v8, v5, 1, v8")
    a(f"v_add_u32 v9, {896*8}, v8")
    a("v_lshlrev_b32 v10, 3, v6")
    a("v_lshlrev_b32 v11, 1, v5")
    a("v_mul_u32_u24 v12, 1792, v6")
    a("v_lshl_add_u32 v12, v5, 2, v12")
    a(f"v_add_u32 v13, {1792*8}, v12")
    a(f"v_add_u32 v28, {1792*2}, v12")
    a(f"v_add_u32 v29, {1792*2}, v13")
    a(f"s_mov_b32 s47, {STATS}")
    a("s_waitcnt lgkmcnt(0)")
    if opt.get('k2prof'): a("s_memtime s[66:67]")
    srd(a, 56, 12, WS_SIZE)
    srd(a, 48, 4, 2048 * 896)
    a.vmem("global_load_ushort v24, v11, s[6:7]", 'x')
    a.vmem("global_load_ushort v25, v11, s[8:9]", 'x')
    a.vmem("buffer_load_dwordx4 v[64:67], v10, s[56:59], s47 offen", 'x')
    a.vmem("buffer_load_dwordx4 v[68:71], v10, s[56:59], s47 offen offset:16", 'x')
    a.vmem("buffer_load_dwordx4 v[72:75], v10, s[56:59], s47 offen offset:64", 'x')
    a.vmem("buffer_load_dwordx4 v[76:79], v10, s[56:59], s47 offen offset:80", 'x')
    for e in range(8):
        a.vmem(f"buffer_load_ushort v{16+e}, v{8 if e < 4 else 9}, s[48:51], 0 offen offset:{896*(e&3)}", 'x')
    for s_ in range(7):
        a.vmem(f"buffer_load_dwordx4 {vr(32+4*s_,4)}, v7, s[56:59], s46 offen", ('p', s_))
        a("s_add_u32 s46, s46, 1024")
    srd(a, 52, 10, 2048 * 1792)
    a.wait_vm('x')
    if opt.get('k2prof'): a("s_memtime s[72:73]")
    a("v_lshlrev_b32 v24, 16, v24")
    a("v_lshlrev_b32 v25, 16, v25")
    for e in range(8):
        m1 = 64 + 8 * (e >> 2) + 2 * (e & 3)
        a(f"v_lshlrev_b32 v26, 16, v{16+e}")
        a(f"v_sub_f32 v27, v26, v{m1}")
        a(f"v_add_f32 v{80+e}, v25, v26")
        a(f"v_mul_f32 v27, v27, v{m1+1}")
        a(f"v_fmac_f32 v{80+e}, v27, v24")
    for s_ in range(7):
        a.wait_vm(('p', s_))
        if opt.get('k2prof') and s_ in (0, 6): a(f"s_memtime s[{68 if s_ == 0 else 70}:{69 if s_ == 0 else 71}]")
        for d in range(4):
            r = 32 + 4 * s_ + d
            a(f"v_lshlrev_b32 v14, 16, v{r}")
            a(f"v_and_b32 v15, 0xffff0000, v{r}")
            a(f"v_add_f32 v{80+2*d}, v{80+2*d}, v14")
            a(f"v_add_f32 v{81+2*d}, v{81+2*d}, v15")
            if s_ == 6:
                sc = "sc1" if opt.get('k2sc', '0') == '1' else ""
                for e in (2 * d, 2 * d + 1):
                    if (e & 3) < 3:
                        a(f"buffer_store_dword v{80+e}, v{12 if e < 4 else 13}, s[52:55], 0 offen offset:{1792*(e&3)} {sc}")
                    else:
                        a(f"buffer_store_dword v{80+e}, v{28 if e < 4 else 29}, s[52:55], 0 offen offset:1792 {sc}")
    if opt.get('k2prof'):
        a("s_memtime s[74:75]")
        a("s_waitcnt vmcnt(0)")
        a("s_memtime s[76:77]")
        a("v_readfirstlane_b32 s40, v2")
        a("s_lshl_b32 s62, s2, 3")
        a("s_add_u32 s62, s62, s40")
        a("s_lshl_b32 s62, s62, 5")
        a("s_add_u32 s62, s62, 0xF90000")
        a("s_waitcnt lgkmcnt(0)")
        a("v_mov_b32 v3, 0")
        for i_, r_ in enumerate((78, 66, 68, 70, 72, 74, 76)):
            a(f"v_mov_b32 v30, s{r_}")
            a(f"buffer_store_dword v30, v3, s[56:59], s62 offen offset:{4*i_}")
    if opt.get('span'):
        a("s_waitcnt vmcnt(0)")
        a("s_memrealtime s[60:61]")
        a("v_readfirstlane_b32 s40, v2")
        a("s_lshl_b32 s62, s2, 3")
        a("s_add_u32 s62, s62, s40")
        a("s_lshl_b32 s62, s62, 2")
        a("s_add_u32 s62, s62, 0xF81000")
        a("s_waitcnt lgkmcnt(0)")
        a("v_mov_b32 v2, s60")
        a("v_mov_b32 v3, 0")
        a("s_mov_b64 exec, 1")
        a("buffer_store_dword v2, v3, s[56:59], s62 offen")
        a("v_mov_b32 v2, s64")
        a("s_add_u32 s62, s62, 0x8000")
        a("buffer_store_dword v2, v3, s[56:59], s62 offen")
    a.label("K2_END")
    a("s_endpgm")
    return a


def desc(name, vgpr, sgpr=102):
    return f""".p2align 6
.amdhsa_kernel {name}
  .amdhsa_next_free_vgpr {vgpr}
  .amdhsa_next_free_sgpr {sgpr}
  .amdhsa_accum_offset {vgpr}
  .amdhsa_group_segment_fixed_size 0
  .amdhsa_kernarg_size 136
  .amdhsa_user_sgpr_count 2
  .amdhsa_user_sgpr_kernarg_segment_ptr 1
  .amdhsa_system_sgpr_workgroup_id_x 1
.end_amdhsa_kernel
"""


def build(opt):
    ref = open("parallel_sum__ssm_conv_s5__mixer_channel_mlp__prompt.s.ref").read() if opt.get('hdr', True) else ""
    hdr = [l for l in ref.split("\n") if l.startswith(";") and "@launch" not in l and "Override launch" not in l and "grid=ceil" not in l]
    out = "\n".join(hdr) + "\n"
    out += f"; @launch grid=(256,1,1) block=(512,1,1) lds={LDS_BYTES}\n"
    out += '.amdgcn_target "amdgcn-amd-amdhsa--gfx950"\n.text\n'
    k1 = gen_k1(opt)
    kn = KNAME + "_kernel"
    out += f".globl {kn}\n.p2align 8\n.type {kn},@function\n{kn}:\n" + k1.text().replace("k1_kernel", kn)
    out += '.section .rodata,"a"\n' + desc(kn, 256)
    return out


if __name__ == "__main__":
    opt = {}
    outp = sys.argv[1]
    for kv in sys.argv[2:]:
        k, v = kv.split("=")
        opt[k] = v
    open(outp, "w").write(build(opt))
```

```python
import sys
from asmlib import Asm

KNAME = "parallel_sum__ssm_conv_s5__mixer_channel_mlp__prompt"

Y = 0
Q = 57344
P = 106496
RING = 12288
MISC = 155648
S2T = MISC
M2T = MISC + 256
AT = MISC + 2816
SCR = MISC + 512
CNT = MISC + 2560
LDS_BYTES = 163840
EBUF = 0
STATS = 0x20000
EIN = 0x80000
RFLAG = 0xC0000
INBOX = 0x40000
PBUF = 0x100000
WS_SIZE = 0x1000000
OOB = 0x7ff00000

sSL, sRB, sWV = 38, 39, 40
sRING, sT, sT2, sBASE, sBASE2 = 41, 42, 43, 76, 77
SX, SA, SW2, SCR_, SCI, SBI, SWS, SDBG = 44, 48, 52, 56, 60, 64, 68, 72
sRING3 = 78
sCB = 79
sW2B = 80
sTMP = 82
sP0, sINC0, sINC1, sOFF, sJS = 88, 89, 90, 91, 92
sPA = 94
sDUM = 97

LOG2E = 1.4426950408889634


def fhex(x):
    import struct
    return "0x%08x" % struct.unpack("<I", struct.pack("<f", x))[0]


def srd(a, dst, ptr, size):
    a(f"s_mov_b32 s{dst}, s{ptr}")
    a(f"s_mov_b32 s{dst+1}, s{ptr+1}")
    a(f"s_mov_b32 s{dst+2}, {size}")
    a(f"s_mov_b32 s{dst+3}, 0x20000")


def vr(b, n):
    return f"v[{b}:{b+n-1}]" if n > 1 else f"v{b}"


class Stream:
    def __init__(self, a, items, first_index=0):
        self.a = a
        self.items = items
        self.first = first_index
        self.next = 0

    def slot(self, i):
        return (self.first + i) % 6

    def issue(self, upto):
        a = self.a
        while self.next < min(upto, len(self.items)):
            it = self.items[self.next]
            sl = self.slot(self.next)
            a(f"s_add_u32 m0, s{it['ring']}, {sl*2048}")
            a(f"s_add_u32 s{sT}, s{it['sbase']}, {it['off']}")
            a.vmem(f"buffer_load_dwordx4 v{it['va']}, s[{it['srd']}:{it['srd']+3}], s{sT} offen lds", ('st', self.first + self.next))
            a.vmem(f"buffer_load_dwordx4 v{it['vb']}, s[{it['srd']}:{it['srd']+3}], s{sT} offen offset:1024 lds", ('st', self.first + self.next))
            self.next += 1

    def wait(self, i):
        self.a.wait_vm(('st', self.first + i))

    def parts(self, upto):
        a = self.a
        out = []
        while self.next < min(upto, len(self.items)):
            it = self.items[self.next]
            sl = self.slot(self.next)
            idx = self.first + self.next

            def setup(it=it, sl=sl):
                a(f"s_add_u32 m0, s{it['ring']}, {sl*2048}")
                a(f"s_add_u32 s{sT}, s{it['sbase']}, {it['off']}")

            def da(it=it, idx=idx):
                a.vmem(f"buffer_load_dwordx4 v{it['va']}, s[{it['srd']}:{it['srd']+3}], s{sT} offen lds", ('st', idx))

            def db(it=it, idx=idx):
                a.vmem(f"buffer_load_dwordx4 v{it['vb']}, s[{it['srd']}:{it['srd']+3}], s{sT} offen offset:1024 lds", ('st', idx))
            out.append((setup, da, db))
            self.next += 1
        return out


def signal(a, off):
    a(f"v_mov_b32 v2, {CNT+off}")
    a("v_mov_b32 v3, 1")
    a("s_mov_b64 exec, 1")
    a("ds_add_u32 v2, v3")
    a("s_mov_b64 exec, -1")


_spin = [0]
SLOW = []
def spin(a, off, n):
    _spin[0] += 1
    L = f"K1_SPIN{_spin[0]}"
    a(f"v_mov_b32 v2, {CNT+off}")
    a.label(L)
    a("ds_read_b32 v3, v2")
    a("s_waitcnt lgkmcnt(0)")
    a(f"v_readfirstlane_b32 s{sT}, v3")
    a(f"s_cmp_ge_u32 s{sT}, {n}")
    a(f"s_cbranch_scc0 {L}_S")
    SLOW.append((L + "_S", ["s_sleep 1", f"s_branch {L}"]))
    a.lg = []


def bf16_round(a, dst, src):
    a(f"v_cvt_pk_bf16_f32 v{dst}, v{src}, v{src}")
    a(f"v_lshlrev_b32 v{dst}, 16, v{dst}")


PROF = [False]
XS = [False]
STORESYNC = [True]
KORDER = [0, 1, 4, 5, 8, 9, 12, 13, 2, 3, 6, 7, 10, 11, 14, 15]
HALF = [True]
PRIOSW = [True]
PRIO16 = [1]
OWNP = [True]
OWNBLK = []
PSW = [None]
P14 = [3]
XNOVM = [False]
def stamp(a, i):
    if not PROF[0]: return
    a("s_waitcnt lgkmcnt(0)")
    a("s_memtime s[100:101]")
    a("s_waitcnt lgkmcnt(0)")
    a(f"v_writelane_b32 v0, s100, {i}")
    a.lg = []

LS = [0]
def lstamp(a):
    if not PROF[0]: return
    a(f"s_memtime s[{4+2*LS[0]}:{5+2*LS[0]}]")
    LS[0] += 1

def lflush(a, lane0):
    if not PROF[0]: return
    a("s_waitcnt lgkmcnt(0)")
    a.lg = []
    for i in range(LS[0]):
        a(f"v_writelane_b32 v0, s{4+2*i}, {lane0+i}")
    LS[0] = 0

def stamp_out(a):
    if not PROF[0]: return
    a("s_memrealtime s[100:101]")
    a("s_lshl_b32 s87, s2, 3")
    a(f"s_add_u32 s87, s87, s{sWV}")
    a("s_lshl_b32 s87, s87, 8")
    a("s_add_u32 s87, s87, 0xE00000")
    a("s_waitcnt lgkmcnt(0)")
    a("v_writelane_b32 v0, s100, 62")
    a("v_writelane_b32 v0, s99, 63")
    a("v_lshlrev_b32 v2, 2, v1")
    a(f"buffer_store_dword v0, v2, s[{SWS}:{SWS+3}], s87 offen")

def gen_k1(opt):
    a = Asm()
    PROF[0] = bool(opt.get('prof'))
    XS[0] = bool(opt.get('x_g3'))
    STORESYNC[0] = opt.get('ssync', '0') == '1'
    HALF[0] = opt.get('half', '0') == '1'
    PRIOSW[0] = opt.get('priosw', '1') == '1'
    PRIO16[0] = int(opt.get('prio16', 1))
    OWNP[0] = opt.get('own', '1') == '1'
    del OWNBLK[:]
    PSW[0] = tuple(int(x) for x in opt.get('psw', '8_1_1').split('_')) if opt.get('psw', '8_1_1') != 'none' else None
    P14[0] = int(opt.get('p14', 3))
    XNOVM[0] = bool(opt.get('x_novm3'))
    D2 = int(opt.get('d2', 4))
    NPRE = 4
    a(f"s_cmp_ge_u32 s2, 256")
    a("s_cbranch_scc1 K1_END")
    R = int(opt.get('R', 2))
    S_ = 8 // R
    RBG = 32 // R
    lg = lambda x: x.bit_length() - 1
    a(f"s_and_b32 s{sT}, s2, 7")
    a(f"s_lshr_b32 s{sT2}, s2, 3")
    a(f"s_and_b32 s{sJS}, s{sT2}, {RBG-1}")
    a(f"s_lshr_b32 s{sRB}, s{sT}, {lg(S_)}")
    a(f"s_mul_i32 s{sSL}, s{sJS}, {R}")
    a(f"s_add_u32 s{sRB}, s{sRB}, s{sSL}")
    a(f"s_and_b32 s{sSL}, s{sT}, {S_-1}")
    a(f"s_mul_i32 s{sSL}, s{sSL}, {R}")
    a(f"s_lshr_b32 s{sT2}, s{sT2}, {lg(RBG)}")
    a(f"s_add_u32 s{sSL}, s{sSL}, s{sT2}")
    a(f"s_cmp_ge_u32 s{sSL}, 7")
    a("s_cbranch_scc1 K1_COLL")
    if PROF[0]:
        a("s_memrealtime s[100:101]\n s_waitcnt lgkmcnt(0)\n s_mov_b32 s99, s100")
        a("s_memtime s[100:101]\n s_waitcnt lgkmcnt(0)\n s_mov_b32 s98, s100")
    if opt.get('span'):
        a("s_memrealtime s[98:99]")
    a("s_load_dwordx16 s[4:19], s[0:1], 0")
    a("s_load_dwordx16 s[20:35], s[0:1], 64")
    a("s_load_dwordx2 s[36:37], s[0:1], 128")
    a("v_lshrrev_b32 v2, 6, v0")
    a("v_and_b32 v1, 63, v0")
    if opt.get('ctouch', '1') == '1':
        NL = int(opt.get('cnl', 6))
        a("s_getpc_b64 s[94:95]")
        a.label("K1_PC")
        a("s_sub_u32 s94, s94, K1_PC-k1_kernel")
        a("s_subb_u32 s95, s95, 0")
        a("s_lshr_b32 s96, s2, 3")
        a(f"s_mul_i32 s96, s96, {NL*128}")
        a("v_lshlrev_b32 v3, 7, v0")
        a("v_add_u32 v3, s96, v3")
        a(f"v_cmp_gt_u32 s[84:85], {NL}, v0")
        a("v_cmp_gt_u32 vcc, K1_END-k1_kernel, v3")
        a("s_and_b64 vcc, vcc, s[84:85]")
        a("s_and_saveexec_b64 s[96:97], vcc")
        a("s_cbranch_execz K1_NOCT")
        a("global_load_dword v251, v3, s[94:95]")
        a.label("K1_NOCT")
        a("s_mov_b64 exec, s[96:97]")
    a(f"v_readfirstlane_b32 s{sWV}, v2")
    if opt.get('swap', '1') == '1':
        a(f"s_xor_b32 s{sWV}, s{sWV}, 4")
    if PROF[0]:
        a("v_writelane_b32 v0, s98, 0")
    a("v_lshrrev_b32 v3, 3, v1")
    a("v_and_b32 v4, 7, v1")
    a("v_mul_u32_u24 v5, 896, v3")
    a("v_lshl_add_u32 v10, v4, 4, v5")
    a("v_and_b32 v2, 15, v1")
    a(f"s_lshl_b32 s{sT}, s{sRB}, 3")
    a(f"s_add_u32 s{sT}, s{sT}, s{sWV}")
    a(f"s_mul_i32 s{sBASE2}, s{sT}, {8*896}")
    a(f"s_and_b32 s{sT}, s{sWV}, 3")
    a(f"s_lshl_b32 s{sT}, s{sT}, 4")
    a(f"s_lshl_b32 s{sT2}, s{sSL}, 6")
    a(f"s_add_u32 s{sP0}, s{sT}, s{sT2}")
    a(f"v_add_u32 v2, s{sP0}, v2")
    a("v_lshlrev_b32 v2, 1, v2")
    a("s_waitcnt lgkmcnt(0)")
    stamp(a, 11)
    def stouch_w1(m, nl=4, l0=0):
        NS = RBG
        nrow = 448 // NS
        a(f"s_add_u32 s{sT}, s{sWV}, {8*m}")
        skip = None
        if 8 * m + 7 >= nrow:
            _spin[0] += 1
            skip = f"K1_ST{m}_{_spin[0]}"
            a(f"s_cmp_ge_u32 s{sT}, {nrow}")
            a(f"s_cbranch_scc1 {skip}")
        a(f"s_mul_i32 s{sT}, s{sT}, {NS}")
        a(f"s_add_u32 s{sT}, s{sT}, s{sJS}")
        a(f"s_mul_i32 s{sT}, s{sT}, 3584")
        a(f"s_lshl_b32 s{sT2}, s{sSL}, 9")
        a(f"s_add_u32 s{sT}, s{sT}, s{sT2}")
        a(f"s_add_u32 s{sPA}, s24, s{sT}")
        a(f"s_addc_u32 s{sPA+1}, s25, 0")
        for k in range(l0, nl):
            a(f"s_load_dword s{sDUM}, s[{sPA}:{sPA+1}], {128*k}")
        if skip:
            a.label(skip)

    def stouch_b():
        NS = RBG
        per = 128 // NS
        if per < 8:
            a(f"s_cmp_ge_u32 s{sWV}, {per}")
            a("s_cbranch_scc1 K1_STB")
        reps = max(1, per // 8)
        for rep in range(reps):
            a(f"s_mul_i32 s{sT}, s{sJS}, {per}")
            a(f"s_add_u32 s{sT}, s{sT}, s{sWV}")
            if rep:
                a(f"s_add_u32 s{sT}, s{sT}, {8*rep}")
            a(f"s_and_b32 s{sT2}, s{sT}, 63")
            a(f"s_lshl_b32 s{sPA}, s{sSL}, 6")
            a(f"s_add_u32 s{sT2}, s{sT2}, s{sPA}")
            a(f"s_mul_i32 s{sT2}, s{sT2}, 896")
            a(f"s_cmp_ge_u32 s{sT}, 64")
            a(f"s_cselect_b32 s{sPA}, s12, s10")
            a(f"s_cselect_b32 s{sPA+1}, s13, s11")
            a(f"s_add_u32 s{sPA}, s{sPA}, s{sT2}")
            a(f"s_addc_u32 s{sPA+1}, s{sPA+1}, 0")
            for k in range(7):
                a(f"s_load_dword s{sDUM}, s[{sPA}:{sPA+1}], {128*k}")
        if per < 8:
            a.label("K1_STB")
    def stouch_w1g(m, nl=4, l0=0):
        n0 = len(a.items)
        stouch_w1(m, nl, l0)
        for i in range(n0, len(a.items)):
            k_, it = a.items[i]
            if k_ == 'label':
                a.items[i] = (k_, it + "G")
            elif k_ == 'ins' and 'K1_ST' in it.text:
                from asmlib import Ins
                a.items[i] = (k_, Ins(it.text + "G"))
    STOUCH = opt.get('stouch', '0') == '1'
    if STOUCH:
        stouch_b()
        stouch_w1(0)
        stouch_w1(1, 3)
    srd(a, SX, 4, 2048 * 896)
    if opt.get('warm'):
        srd(a, 48, 24, 448 * 3584); srd(a, 52, 28, 1792 * 896); srd(a, 56, 14, 448 * 896); srd(a, 60, 16, 448 * 896)
        srd(a, 64, 10, 448 * 896); srd(a, 68, 12, 448 * 896)
        a("v_lshlrev_b32 v6, 6, v0") if False else None
        a("v_and_b32 v7, 63, v1")
        a(f"s_lshl_b32 s{sT}, s{sWV}, 6")
        a(f"v_add_u32 v7, s{sT}, v1")
        for k in range(7):
            a(f"v_add_u32 v8, {512*k}, v7")
            a("v_lshrrev_b32 v9, 3, v8")
            a("v_mul_u32_u24 v9, 3584, v9")
            a("v_and_b32 v8, 7, v8")
            a("v_lshl_add_u32 v9, v8, 6, v9")
            a(f"s_lshl_b32 s{sT}, s{sSL}, 9")
            a(f"buffer_load_dword v250, v9, s[48:51], s{sT} offen")
        a(f"s_mul_i32 s{sT}, s{sSL}, {256*896}")
        for k in range(7):
            a(f"v_add_u32 v8, {512*k}, v7")
            a("v_lshlrev_b32 v9, 6, v8")
            a(f"buffer_load_dword v250, v9, s[52:55], s{sT} offen")
        a(f"s_mul_i32 s{sT}, s{sSL}, {64*896}")
        for k in range(2):
            a(f"v_add_u32 v8, {512*k}, v7")
            a("v_lshlrev_b32 v9, 6, v8")
            a(f"buffer_load_dword v250, v9, s[64:67], s{sT} offen")
            a(f"buffer_load_dword v250, v9, s[68:71], s{sT} offen")
        for k in range(2):
            a(f"v_add_u32 v8, {512*k}, v7")
            a("v_lshrrev_b32 v9, 1, v8")
            a("v_mul_u32_u24 v9, 896, v9")
            a("v_and_b32 v8, 1, v8")
            a("v_lshl_add_u32 v9, v8, 6, v9")
            a(f"s_lshl_b32 s{sT}, s{sSL}, 7")
            a(f"buffer_load_dword v250, v9, s[56:59], s{sT} offen")
            a(f"buffer_load_dword v250, v9, s[60:63], s{sT} offen")
        a(f"s_mul_i32 s{sT}, s{sRB}, {64*896}")
        for k in range(2):
            a(f"v_add_u32 v8, {512*k}, v7")
            a("v_lshlrev_b32 v9, 6, v8")
            a(f"buffer_load_dword v250, v9, s[{SX}:{SX+3}], s{sT} offen")
        a("s_waitcnt vmcnt(0)")
        a("s_barrier")
        a("s_sleep 64")
        a("s_barrier")
        if PROF[0]:
            a("s_memtime s[100:101]\n s_waitcnt lgkmcnt(0)\n v_writelane_b32 v0, s100, 0")
    a.vmem("global_load_ushort v104, v2, s[6:7]", 'par')
    a.vmem("global_load_ushort v105, v2, s[8:9]", 'par')
    a.vmem("global_load_ushort v106, v2, s[18:19]", 'par')
    for i in range(7):
        a.vmem(f"buffer_load_dwordx4 {vr(32+4*i,4)}, v10, s[{SX}:{SX+3}], s{sBASE2} offen offset:{128*i}", 'x')
    if opt.get('tlbw', '0') == '1':
        a("v_mov_b32 v2, 0")
        a("s_mov_b64 exec, 1")
        a.vmem("global_load_dword v250, v2, s[28:29]", 'tlb')
        a.vmem("global_load_dword v250, v2, s[14:15]", 'tlb')
        a.vmem("global_load_dword v250, v2, s[16:17]", 'tlb')
        a.vmem("global_load_dword v250, v2, s[36:37]", 'tlb')
        a("s_mov_b64 exec, -1")
    x_state = list(a.vm)

    srd(a, SW2, 28, 1792 * 896)
    srd(a, SCR_, 14, 448 * 896)
    srd(a, SCI, 16, 448 * 896)
    srd(a, SWS, 36, WS_SIZE)
    srd(a, SDBG, 34, 256)
    if opt.get('span'):
        a(f"s_lshl_b32 s{sT}, s2, 2")
        a(f"s_add_u32 s{sT}, s{sT}, 0xF80000")
        a("v_mov_b32 v250, s98")
        a("v_mov_b32 v251, 0")
        a("s_mov_b64 exec, 1")
        a(f"buffer_store_dword v250, v251, s[{SWS}:{SWS+3}], s{sT} offen")
        a("s_mov_b64 exec, -1")
    a("v_lshrrev_b32 v6, 4, v1")
    a("v_and_b32 v7, 1, v6")
    a("v_lshlrev_b32 v7, 2, v7")
    a("v_xor_b32 v7, v4, v7")
    a("v_xor_b32 v8, v4, v6")
    a("v_lshl_add_u32 v31, v8, 4, v5")
    a("v_xor_b32 v11, 64, v31")
    a(f"v_add_u32 v11, {8*896-1024}, v11")
    a("v_lshl_add_u32 v29, v7, 4, v5")
    a(f"v_add_u32 v30, {8*896-1024}, v29")
    NS = RBG
    nW = 448 * 4 // NS // 4
    a(f"s_mul_i32 s{sT}, s{sWV}, {nW}")
    a(f"v_add_u32 v6, s{sT}, v1")
    a("v_lshrrev_b32 v9, 2, v6")
    a(f"v_mul_u32_u24 v9, {NS}, v9")
    a(f"v_add_u32 v9, s{sJS}, v9")
    a("v_mul_u32_u24 v9, 3584, v9")
    a("v_and_b32 v6, 3, v6")
    a("v_lshl_add_u32 v248, v6, 7, v9")
    a(f"s_lshl_b32 s{sT}, s{sSL}, 9")
    a(f"v_add_u32 v248, s{sT}, v248")
    a("v_lshlrev_b32 v249, 7, v1")
    a("v_lshrrev_b32 v6, 4, v1")
    a(f"s_mul_i32 s{sW2B}, s{sSL}, {256*896}")
    a(f"s_lshl_b32 s{sT}, s{sWV}, 7")
    a(f"s_add_u32 s{sW2B}, s{sW2B}, s{sT}")
    a(f"s_mul_i32 s{sCB}, s{sWV}, {64*896}")
    a(f"s_lshl_b32 s{sT}, s{sSL}, 7")
    a(f"s_add_u32 s{sCB}, s{sCB}, s{sT}")
    a(f"s_lshl_b32 s{sT}, s{sWV}, 3")
    a(f"v_add_u32 v62, s{sT}, v3")
    a("v_bfe_u32 v63, v62, 1, 3")
    a(f"s_lshr_b32 s{sT}, s{sWV}, 1")
    a(f"s_and_b32 s{sT2}, s{sT}, 1")
    a(f"s_mul_i32 s{sT2}, s{sT2}, 3")
    a(f"s_lshr_b32 s{sT}, s{sT}, 1")
    a(f"s_xor_b32 s{sT}, s{sT}, s{sT2}")
    a(f"s_lshl_b32 s{sT}, s{sT}, 1")
    a(f"v_xor_b32 v63, s{sT}, v63")
    a("v_xor_b32 v63, v63, v4")
    a("v_mul_u32_u24 v61, 896, v62")
    a("v_lshl_add_u32 v10, v63, 4, v61")
    a("v_lshlrev_b32 v62, 2, v62")
    a("v_mov_b32 v60, 0")
    a(f"v_mov_b32 v63, {CNT}")
    for k in range(10):
        a(f"ds_write_b32 v63, v60 offset:{4*k}")
    a(f"s_cmp_ge_u32 s{sWV}, 4")
    a("s_cbranch_scc1 K1_G1_PRE")

    def touch1(sfx):
        if opt.get('touch1', '1') != '1':
            return
        if sfx.endswith("A"):
            nl = 448 * 4 // NS // 4
            assert nl <= 64
            a(f"s_mov_b64 exec, {hex((1 << nl) - 1)}")
            a("global_load_dword v252, v248, s[24:25]")
        else:
            perB = 128 // NS
            perW = perB // 4
            assert perW >= 1 and 7 * perW <= 64
            a(f"s_mul_i32 s{sT}, s{sJS}, {perB}")
            a(f"s_sub_u32 s{sT2}, s{sWV}, 4")
            a(f"s_mul_i32 s{sT2}, s{sT2}, {perW}")
            a(f"s_add_u32 s{sT}, s{sT}, s{sT2}")
            a(f"s_and_b32 s{sT2}, s{sT}, 63")
            a(f"s_lshl_b32 s{sPA}, s{sSL}, 6")
            a(f"s_add_u32 s{sT2}, s{sT2}, s{sPA}")
            a(f"s_mul_i32 s{sT2}, s{sT2}, 896")
            a(f"s_cmp_ge_u32 s{sT}, 64")
            a(f"s_cselect_b32 s{sPA}, s12, s10")
            a(f"s_cselect_b32 s{sPA+1}, s13, s11")
            a(f"s_add_u32 s{sPA}, s{sPA}, s{sT2}")
            a(f"s_addc_u32 s{sPA+1}, s{sPA+1}, 0")
            a(f"s_mov_b64 exec, {hex((1 << (7 * perW)) - 1)}")
            a(f"global_load_dword v253, v249, s[{sPA}:{sPA+1}]")
        a("s_mov_b64 exec, -1")

    LR, LI = 104, 105
    CR, CI = 116, 117
    L16R, L16I, PGR, PGI, MUR, MUI, M8R, M8I = 106, 107, 108, 109, 110, 111, 112, 113

    def cmac(dr, di, xr, xi, yr, yi, ar, ai):
        a(f"v_fma_f32 v{dr}, v{xr}, v{yr}, v{ar}")
        a(f"v_fma_f32 v{di}, v{xr}, v{yi}, v{ai}")
        a(f"v_fma_f32 v{dr}, -v{xi}, v{yi}, v{dr}")
        a(f"v_fmac_f32 v{di}, v{xi}, v{yr}")

    def lam_block():
        a.wait_vm('par')
        if not STOUCH: stamp(a, 12)
        LR, LI = 104, 105
        a("v_lshlrev_b32 v107, 16, v104")
        a("v_lshlrev_b32 v108, 16, v105")
        a("v_lshlrev_b32 v106, 16, v106")
        a(f"v_mul_f32 v106, {fhex(LOG2E)}, v106")
        a("v_exp_f32 v106, v106")
        bf16_round(a, 106, 106)
        a("v_mul_f32 v109, v106, v107")
        a("v_mul_f32 v110, v106, v108")
        a(f"v_mul_f32 v109, {fhex(LOG2E)}, v109")
        a(f"v_mul_f32 v110, {fhex(0.15915494309189535)}, v110")
        a("v_exp_f32 v109, v109")
        a("v_rndne_f32 v111, v110")
        a("v_sub_f32 v110, v110, v111")
        a("v_cos_f32 v111, v110")
        a("v_sin_f32 v112, v110")
        a("v_mul_f32 v113, v107, v107")
        a("v_fmac_f32 v113, v108, v108")
        a("v_mul_f32 v104, v109, v111")
        a("v_mul_f32 v105, v109, v112")
        a("v_rcp_f32 v110, v113")
        a("v_add_f32 v109, -1.0, v104")
        a("v_mul_f32 v111, v109, v107")
        a("v_mul_f32 v112, v105, v107")
        a("v_fmac_f32 v111, v105, v108")
        a("v_fma_f32 v112, -v109, v108, v112")
        a("v_add_f32 v110, v110, v110")
        CR, CI = 116, 117
        a(f"v_mul_f32 v{CR}, v111, v110")
        a(f"v_mul_f32 v{CI}, v112, v110")

        def csq(dr, di, sr, si):
            a(f"v_mul_f32 v{dr}, v{sr}, v{sr}")
            a(f"v_mul_f32 v{di}, v{sr}, v{si}")
            a(f"v_fma_f32 v{dr}, -v{si}, v{si}, v{dr}")
            a(f"v_add_f32 v{di}, v{di}, v{di}")

        def cmul(dr, di, xr, xi, yr, yi):
            a(f"v_mul_f32 v{dr}, v{xr}, v{yr}")
            a(f"v_mul_f32 v{di}, v{xr}, v{yi}")
            a(f"v_fma_f32 v{dr}, -v{xi}, v{yi}, v{dr}")
            a(f"v_fmac_f32 v{di}, v{xi}, v{yr}")

        def cmac(dr, di, xr, xi, yr, yi, ar, ai):
            a(f"v_fma_f32 v{dr}, v{xr}, v{yr}, v{ar}")
            a(f"v_fma_f32 v{di}, v{xr}, v{yi}, v{ai}")
            a(f"v_fma_f32 v{dr}, -v{xi}, v{yi}, v{dr}")
            a(f"v_fmac_f32 v{di}, v{xi}, v{yr}")
        L16R, L16I, PGR, PGI, MUR, MUI, M8R, M8I = 106, 107, 108, 109, 110, 111, 112, 113
        csq(118, 119, LR, LI)
        csq(120, 121, 118, 119)
        csq(118, 119, 120, 121)
        csq(L16R, L16I, 118, 119)
        csq(118, 119, L16R, L16I)
        cmul(120, 121, 118, 119, L16R, L16I)
        a("v_lshrrev_b32 v2, 4, v1")
        a(f"v_mov_b32 v{PGR}, 1.0")
        a(f"v_mov_b32 v{PGI}, 0")
        a("v_cmp_eq_u32 vcc, 1, v2")
        a(f"v_cndmask_b32 v{PGR}, v{PGR}, v{L16R}, vcc")
        a(f"v_cndmask_b32 v{PGI}, v{PGI}, v{L16I}, vcc")
        a("v_cmp_eq_u32 vcc, 2, v2")
        a(f"v_cndmask_b32 v{PGR}, v{PGR}, v118, vcc")
        a(f"v_cndmask_b32 v{PGI}, v{PGI}, v119, vcc")
        a("v_cmp_eq_u32 vcc, 3, v2")
        a(f"v_cndmask_b32 v{PGR}, v{PGR}, v120, vcc")
        a(f"v_cndmask_b32 v{PGI}, v{PGI}, v121, vcc")

    def prefill(it):
        s_ = SA if it % 2 == 0 else SBI
        a(f"s_add_u32 m0, s{sRING}, {2048*it}")
        a("s_nop 0")
        a.vmem(f"buffer_load_dwordx4 v27, s[{s_}:{s_+3}], s{sOFF} offen lds", ('pre', it))
        a.vmem(f"buffer_load_dwordx4 v28, s[{s_}:{s_+3}], s{sOFF} offen offset:1024 lds", ('pre', it))
        a(f"s_add_u32 s{sOFF}, s{sOFF}, s{sINC0 if it % 2 == 0 else sINC1}")
    NEARLY = int(opt.get('nearly', 0))

    srd(a, SA, 24, 448 * 3584)
    srd(a, SBI, 24, 448 * 3584)
    a(f"s_mul_i32 s{sRING}, s{sWV}, {RING}")
    a(f"s_add_u32 s{sRING}, s{sRING}, {P}")
    a(f"s_mov_b32 s{sRING3}, s{sRING}")
    a(f"s_lshl_b32 s{sBASE}, s{sSL}, 9")
    a(f"s_lshl_b32 s{sT}, s{sWV}, 7")
    a(f"s_add_u32 s{sBASE}, s{sBASE}, s{sT}")
    a(f"s_mov_b32 s{sINC0}, {16*3584}")
    a(f"s_mov_b32 s{sINC1}, {16*3584}")
    a("v_mul_u32_u24 v27, 3584, v3")
    a("v_lshl_add_u32 v27, v7, 4, v27")
    a(f"v_add_u32 v28, {8*3584-1024}, v27")
    if opt.get('tpos', 'ln') == 'pre': touch1("A")
    if opt.get('touch'):
        a(f"s_mul_i32 s{sT}, s{sWV}, 28")
        a(f"v_add_u32 v2, s{sT}, v1")
        a("v_lshrrev_b32 v8, 3, v2")
        a("v_and_b32 v9, 7, v2")
        a(f"s_mul_i32 s{sT}, s{sRB}, 14")
        a(f"v_add_u32 v8, s{sT}, v8")
        a("v_mul_u32_u24 v8, 3584, v8")
        a("v_lshl_add_u32 v8, v9, 6, v8")
        a(f"s_lshl_b32 s{sT}, s{sSL}, 9")
        a(f"v_add_u32 v8, s{sT}, v8")
        a("v_lshlrev_b32 v9, 6, v2")
        a(f"s_lshl_b32 s{sT}, s{sSL}, 5")
        a(f"s_add_u32 s{sT}, s{sT}, s{sRB}")
        a(f"s_mul_i32 s{sT}, s{sT}, {8*896}")
        a(f"v_add_u32 v9, s{sT}, v9")
        a(f"v_mov_b32 v2, {OOB}")
        a("v_cmp_gt_u32 vcc, 28, v1")
        a("v_cndmask_b32 v8, v2, v8, vcc")
        a("v_cndmask_b32 v9, v2, v9, vcc")
        a.vmem(f"buffer_load_dword v252, v8, s[{SA}:{SA+3}], 0 offen", 'touch')
        a.vmem(f"buffer_load_dword v253, v9, s[{SW2}:{SW2+3}], 0 offen", 'touch')
    a(f"s_mov_b32 s{sOFF}, s{sBASE}")
    for it in range(NEARLY):
        prefill(it)
    a("v_mov_b32 v247, 0")
    a("v_mov_b32 v250, 0")
    g3_addr(a)
    a(f"v_add_u32 v12, s{sRING}, v8")
    a("v_xor_b32 v13, 64, v12")
    a("v_lshrrev_b32 v2, 5, v1")
    a("v_and_b32 v3, 31, v1")
    a("v_bfe_u32 v4, v3, 1, 3")
    a("v_lshrrev_b32 v5, 4, v3")
    a("v_mul_u32_u24 v5, 6, v5")
    a("v_xor_b32 v4, v4, v5")
    a("v_xor_b32 v4, v4, v2")
    a("v_mul_u32_u24 v5, 896, v3")
    for j in range(4):
        a(f"v_xor_b32 v6, {2*j}, v4")
        a(f"v_lshl_add_u32 v{14+j}, v6, 4, v5")
    if STOUCH:
        a("s_waitcnt lgkmcnt(0)")
        stouch_w1(1, 4, 3)
        for m in range(2, (448 // RBG + 7) // 8):
            stouch_w1(m)
    if opt.get('xbar', '1') == '1': a("s_barrier")
    if not STOUCH: stamp(a, 13)
    a.wait_vm('x')
    a("v_lshrrev_b32 v2, 5, v1")
    a("v_lshlrev_b32 v2, 3, v2")
    a(f"v_add_u32 v2, s{sBASE}, v2")
    for ft in range(2):
        for aa in range(4):
            a.vmem(f"global_load_dwordx2 {vr(224 + 2*(4*ft+aa), 2)}, v2, s[26:27] offset:{(32*ft+8*aa)*2}", 'bias')
    saved_vm_A = list(a.vm)

    def emit_ln(role):
        if not STOUCH: stamp(a, 1)
        NLN0 = int(opt.get('nln0', 0))
        for it in range(NEARLY, max(NEARLY, NLN0)):
            prefill(it)
        if opt.get('tpos', 'ln') == 'ln' and (role == "B" or opt.get('w1pos', 'ln') == 'ln'): touch1("C" + role)
        if opt.get('x_ln'): stamp(a, 40)
        U = 128
        a("v_mov_b32 v2, 0")
        a("v_mov_b32 v3, 0")
        a("v_mov_b32 v4, 0")
        a("v_mov_b32 v5, 0")
        a(f"v_mov_b32 v60, 0x3f803f80")
        for i in range(28):
            x = 32 + i
            a(f"v_dot2c_f32_bf16 v{2 + (i & 1)}, v60, v{x}")
            a(f"v_dot2c_f32_bf16 v{4 + (i & 1)}, v{x}, v{x}")
        if opt.get('x_ln'): stamp(a, 41)
        fill = []
        for i in range(28):
            fill.append(f"v_lshlrev_b32 v{U+2*i}, 16, v{32+i}")
            fill.append(f"v_and_b32 v{U+2*i+1}, 0xffff0000, v{32+i}")
        inv = fhex(1.0 / 448.0)
        eps = fhex(1e-5)
        chain = []
        chain += ["v_add_f32 v2, v2, v3", "v_add_f32 v4, v4, v5"]
        for m in ("quad_perm:[1,0,3,2]", "quad_perm:[2,3,0,1]", "row_half_mirror"):
            chain.append(f"v_add_f32_dpp v2, v2, v2 {m} row_mask:0xf bank_mask:0xf")
            chain.append(f"v_add_f32_dpp v4, v4, v4 {m} row_mask:0xf bank_mask:0xf")
        chain += [f"v_mul_f32 v5, {inv}, v2", f"v_mul_f32 v4, {inv}, v4", "v_fma_f32 v4, -v5, v5, v4", "v_max_f32 v4, 0, v4",
                  f"v_add_f32 v6, {eps}, v4", "v_rsq_f32 v6, v6",
                  "v_mul_f32 v7, v6, v6", "v_mul_f32 v7, v7, v4", f"v_add_f32 v7, {eps}, v7", "v_rsq_f32 v9, v7",
                  "v_mul_f32 v3, v6, v9", "v_mul_f32 v8, v7, v9", "v_mul_f32 v2, v5, v3", "v_sub_f32 v2, 0, v2"]
        for k, ins in enumerate(chain):
            a(ins)
            if fill:
                a(fill.pop(0))
        for f_ in fill:
            a(f_)
        if opt.get('x_ln'): stamp(a, 42)
        a("v_mov_b32 v60, v3")
        a("v_mov_b32 v61, v3")
        a("v_mov_b32 v4, v2")
        a("v_mov_b32 v63, v5")
        a("v_mov_b32 v5, v2")
        a("v_and_b32 v2, 7, v1")
        a("v_cmp_eq_u32 vcc, 0, v2")
        a(f"s_and_saveexec_b64 s[{sTMP}:{sTMP+1}], vcc")
        a(f"v_add_u32 v2, {S2T}, v62")
        a(f"ds_write_b32 v2, v8")
        a(f"ds_write_b32 v2, v63 offset:{M2T-S2T}")
        a(f"ds_write_b32 v2, v6 offset:{AT-S2T}")
        a(f"s_mov_b64 exec, s[{sTMP}:{sTMP+1}]")
        if opt.get('x_ln'): stamp(a, 43)
        if role == "B" and opt.get('g1pre', 'end') == 'mid':
            for it in range(6):
                prefill(it)
        for i in range(7):
            for d in range(4):
                u = U + 2 * (4 * i + d)
                a(f"v_pk_fma_f32 v[{u}:{u+1}], v[{u}:{u+1}], v[60:61], v[4:5]")
            for d in range(4):
                u = U + 2 * (4 * i + d)
                a(f"v_cvt_pk_bf16_f32 v{32+4*i+d}, v{u}, v{u+1}")
            a(f"ds_write_b128 v10, {vr(32+4*i,4)} offset:{128*i}")
        a("s_waitcnt lgkmcnt(0)")
        stamp(a, 2)
    emit_ln("A")
    a(f"s_mov_b32 s{sOFF}, s{sBASE}")
    a("s_barrier")
    stamp(a, 3)
    NG2 = int(opt.get('ng2', 2))
    for it in range(NG2):
        prefill(it)
    pre_tags = [('st', i // 2) for i in range(2 * NG2)]

    PP = [(2, 3), (4, 5)]
    XR, XI = 122, 123
    def pass2(sfx, preloaded):
        if preloaded:
            a("s_branch K1_POLLW" + sfx)
        a.label("K1_POLL" + sfx)
        a(f"buffer_load_dwordx4 v[44:47], v250, s[{SWS}:{SWS+3}], 0 offen sc1")
        a("s_waitcnt vmcnt(0)")
        a.label("K1_POLLW" + sfx)
        a("v_cmp_ne_u32 vcc, 1, v46")
        a("s_cbranch_vccz K1_POLLED" + sfx)
        a(f"s_sleep {int(opt.get('psleep', 4))}")
        a("s_branch K1_POLL" + sfx)
        a.label("K1_POLLED" + sfx)
        stamp(a, 6)
        cmac(PP[1][0], PP[1][1], PGR, PGI, 44, 45, XR, XI)
        for e in range(16):
            nr, ni = PP[e & 1]
            hr, hi = PP[(e & 1) ^ 1]
            cmac(nr, ni, LR, LI, hr, hi, 64 + e, 80 + e)
            if e & 1:
                a(f"v_cvt_pk_bf16_f32 v{32 + e//2}, v{hr}, v{nr}")
                a(f"v_cvt_pk_bf16_f32 v{40 + e//2}, -v{hi}, -v{ni}")
        a.lds("ds_write_b128 v246, v[32:35] offset:8192", 'w')
        a.lds("ds_write_b128 v246, v[36:39] offset:8208", 'w')
        a.lds("ds_write_b128 v246, v[40:43] offset:10240", 'w')
        a.lds("ds_write_b128 v246, v[44:47] offset:10256", 'w')
        a.wait_lg_all()
        signal(a, 16)
        stamp(a, 7)
    a.vm = [t for t in saved_vm_A if not (isinstance(t, tuple) and t[0] == 'pre')] + pre_tags
    a.lg = []
    w1_items = [dict(srd=SA, va=27, vb=28, sbase=sBASE, off=16 * s * 3584, ring=sRING) for s in range(28)]
    w2_items = [dict(srd=SW2, va=29, vb=30, sbase=sW2B, off=16 * ks * 896, ring=sRING3) for ks in KORDER]
    c_items = []
    for part in range(2):
        for nt in range(2):
            for pr in range(2):
                c_items.append(dict(srd=(SCR_, SCI)[part], va=31, vb=11, sbase=sCB, off=(32 * nt + 16 * pr) * 896, ring=sRING3))
    stA = Stream(a, w1_items + w2_items + c_items, 0)
    stA.next = NG2
    a.wait_vm('bias')
    for ft in range(2):
        for aa in range(4):
            s_ = 224 + 2 * (4 * ft + aa)
            d_ = 128 + 16 * ft + 4 * aa
            a(f"v_lshlrev_b32 v{d_}, 16, v{s_}")
            a(f"v_and_b32 v{d_+1}, 0xffff0000, v{s_}")
            a(f"v_lshlrev_b32 v{d_+2}, 16, v{s_+1}")
            a(f"v_and_b32 v{d_+3}, 0xffff0000, v{s_+1}")

    FA = [192, 208, 224]

    def g2_reads(s):
        b = FA[s % 3]
        so = (s % 6) * 2048
        out = []
        for ft in range(2):
            for q in range(2):
                out.append(f"ds_read_b64_tr_b16 {vr(b+4*ft+2*q,2)}, v{12+ft} offset:{so+512*q}")
        j = s & 3
        out.append(f"ds_read_b128 {vr(b+8,4)}, v{14+j} offset:{128*(s>>2)}")
        out.append(f"ds_read_b128 {vr(b+12,4)}, v{14+(j^1)} offset:{128*(s>>2)+28672}")
        return out

    a(f"s_setprio {int(opt.get('g2p', 1))}")
    if opt.get('x_g2sleep'):
        a("s_sleep 127\n s_sleep 127")
    if opt.get('serial', '1') == '1':
        spin(a, 20, 4)
    if opt.get('w1pos', 'ln') == 'sig':
        touch1("DA")
    if opt.get('x_rep2'):
        a("s_mov_b32 s87, 0")
        a("s_waitcnt vmcnt(0)")
        a.vm = []
        a.label("K1_REP")
        stA.next = 0
        stamp(a, 44)
    stA.issue(6)
    stA.wait(0)
    for r in g2_reads(0):
        a.lds(r, ('f', 0))
    stA.wait(1)
    for r in g2_reads(1):
        a.lds(r, ('f', 1))
    a.wait_lg(('f', 0))
    stA.issue(7)
    for s in range(28):
        b = FA[s % 3]
        ms = []
        for ft in range(2):
            for tt in range(2):
                acc = 64 + 32 * ft + 16 * tt
                c = vr(128 + 16 * ft, 16) if s == 0 else vr(acc, 16)
                ms.append(f"v_mfma_f32_32x32x16_bf16 {vr(acc,16)}, {vr(b+4*ft,4)}, {vr(b+8+4*tt,4)}, {c}")
        rd = g2_reads(s + 2) if s + 2 < 28 else []
        a(ms[0])
        if s + 2 < 28:
            stA.wait(s + 2)
        for r in rd[0:3]:
            a.lds(r, ('f', s + 2))
        a(ms[1])
        for r in rd[3:6]:
            a.lds(r, ('f', s + 2))
        pp = stA.parts(min(s + 8, int(opt.get('g2cap', 34))))
        if pp:
            pp[0][0]()
        a(ms[2])
        if s + 1 < 28:
            a.wait_lg(('f', s + 1))
        if pp:
            pp[0][1]()
        a(ms[3])
        if pp:
            pp[0][2]()
        for extra_ in pp[1:]:
            for fn in extra_:
                fn()
        if opt.get('x_steps') and s % 3 == 2:
            lstamp(a)
    if opt.get('x_steps') and opt.get('x_rep2'):
        a("s_waitcnt lgkmcnt(0)")
        a.lg = []
        for i in range(LS[0]):
            a(f"s_mul_i32 s86, s87, 10")
            a(f"s_add_u32 m0, s86, {16+i}")
            a("s_nop 4")
            a(f"v_writelane_b32 v0, s{4+2*i}, m0")
        LS[0] = 0
    elif opt.get('x_steps'):
        lflush(a, 16)
    if opt.get('x_rep2'):
        a.wait_lg_all()
        a("s_waitcnt vmcnt(0)")
        a("s_cmp_eq_u32 s87, 1")
        a("s_cbranch_scc1 K1_REPD")
        stamp(a, 45)
        a("s_memtime s[100:101]\n s_waitcnt lgkmcnt(0)\n v_writelane_b32 v0, s100, 46")
        a("v_readlane_b32 s100, v0, 44")
        a("s_nop 4")
        a("v_writelane_b32 v0, s100, 47")
        a("s_mov_b32 s87, 1")
        a("s_branch K1_REP")
        a.label("K1_REPD")
        a.vm = []
    stamp(a, 4)
    a.wait_lg_all()
    signal(a, 8)
    spin(a, 0, 4)
    stA.issue(34)
    def touch2():
        if opt.get('touch2', '1') == '1':
            NS = RBG
            n2 = 1792 // NS // 4
            nc = 448 // NS // 4
            for rep in range((n2 + 63) // 64):
                a(f"s_mul_i32 s{sT}, s{sWV}, {n2}")
                a(f"v_add_u32 v2, s{sT}, v1")
                if rep:
                    a(f"v_add_u32 v2, {64*rep}, v2")
                a(f"v_mul_u32_u24 v2, {NS}, v2")
                a(f"v_add_u32 v2, s{sJS}, v2")
                a("v_lshlrev_b32 v2, 7, v2")
                a(f"v_mov_b32 v3, {OOB}")
                a(f"v_cmp_gt_u32 vcc, {n2 - 64*rep}, v1")
                a("v_cndmask_b32 v2, v3, v2, vcc")
                a(f"s_mul_i32 s{sT}, s{sSL}, {256*896}")
                a.vmem(f"buffer_load_dword v252, v2, s[{SW2}:{SW2+3}], s{sT} offen", 'touch')
            a(f"s_mul_i32 s{sT}, s{sWV}, {nc}")
            a(f"v_add_u32 v2, s{sT}, v1")
            a(f"v_mul_u32_u24 v2, {NS}, v2")
            a(f"v_add_u32 v2, s{sJS}, v2")
            a("v_mul_u32_u24 v2, 896, v2")
            a(f"v_mov_b32 v3, {OOB}")
            a(f"v_cmp_gt_u32 vcc, {nc}, v1")
            a("v_cndmask_b32 v2, v3, v2, vcc")
            a(f"s_lshl_b32 s{sT}, s{sSL}, 7")
            a.vmem(f"buffer_load_dword v253, v2, s[{SCR_}:{SCR_+3}], s{sT} offen", 'touch')
            a.vmem(f"buffer_load_dword v254, v2, s[{SCI}:{SCI+3}], s{sT} offen", 'touch')
    a("s_setprio 0")
    stamp(a, 5)
    gelu(a, touch2, int(opt.get('t2pos', 1)))
    a.wait_lg_all()
    signal(a, 28)
    a(f"s_setprio {int(opt.get('g3p03', 2))}")
    stamp(a, 6)
    g3_stream = stA

    a.label("K1_G3")
    assert g3_stream.next == 34
    a.vm = [('st', 28 + i // 2) for i in range(12)]
    a.lg = []
    spin(a, 12 if HALF[0] else 28, 4)
    stamp(a, 8)
    def hook_load():
        if opt.get('hookpos', 'pre') == 'pre':
            return
        a.vmem(f"buffer_load_dwordx4 v[44:47], v250, s[{SWS}:{SWS+3}], 0 offen sc1", 'inbox')

    def hook_pass2():
        if opt.get('hookpos', 'pre') == 'pre':
            return
        a.wait_vm('inbox')
        a(f"s_cmp_ge_u32 s{sWV}, 4")
        a("s_cbranch_scc0 K1_HP")
        sv = (list(a.vm), list(a.lg))
        a(f"s_setprio {int(opt.get('p2prio', 0))}")
        pass2("B", True)
        a.vm, a.lg = sv[0], []
        a.label("K1_HP")
    g3(a, g3_stream, 28, D2, hook_load, hook_pass2)
    stamp(a, 19)
    a.vm = [('ps', 0)] * 8
    reduce_pre(a)
    a.wait_vm(('ps', 0))
    a(f"s_mul_i32 s{sT}, s{sRB}, 7")
    a(f"s_add_u32 s{sT}, s{sT}, s{sWV}")
    a(f"s_lshl_b32 s{sT}, s{sT}, 7")
    a(f"s_lshl_b32 s{sT2}, s{sSL}, 2")
    a(f"s_add_u32 s{sT}, s{sT}, s{sT2}")
    a(f"s_add_u32 s{sT}, s{sT}, {RFLAG}")
    a("v_mov_b32 v2, 1")
    a("v_mov_b32 v3, 0")
    a("s_mov_b64 exec, 1")
    a.vmem(f"buffer_store_dword v2, v3, s[{SWS}:{SWS+3}], s{sT} offen sc1", 'flag')
    a("s_mov_b64 exec, -1")
    a.label("K1_SIGD")
    signal(a, 32)
    stamp(a, 16)
    a.label("K1_RED")
    a.vm = ['x'] * 10
    a.lg = []
    reduce_main(a, opt)
    if opt.get('span'):
        a("s_memrealtime s[98:99]")
        a("s_waitcnt vmcnt(0)")
        a("s_memrealtime s[96:97]")
        a(f"s_lshl_b32 s{sT}, s2, 3")
        a(f"s_add_u32 s{sT}, s{sT}, s{sWV}")
        a(f"s_lshl_b32 s{sT}, s{sT}, 3")
        a(f"s_add_u32 s{sT}, s{sT}, 0xF84000")
        a("s_waitcnt lgkmcnt(0)")
        a("v_mov_b32 v2, s98")
        a("v_mov_b32 v3, s96")
        a("v_mov_b32 v4, 0")
        a("s_mov_b64 exec, 1")
        a(f"buffer_store_dwordx2 v[2:3], v4, s[{SWS}:{SWS+3}], s{sT} offen")
    stamp(a, 10)
    stamp_out(a)
    a("s_endpgm")

    a.label("K1_G1_PRE")
    a.vm = list(x_state)
    srd(a, SA, 10, 448 * 896)
    srd(a, SBI, 12, 448 * 896)
    a(f"s_sub_u32 s{sTMP}, s{sWV}, 4")
    a(f"s_mul_i32 s{sRING}, s{sTMP}, {RING}")
    a(f"s_add_u32 s{sRING3}, s{sRING}, {Y}")
    a(f"s_add_u32 s{sRING}, s{sRING}, {Q}")
    a(f"s_mul_i32 s{sBASE}, s{sP0}, 896")
    a(f"s_mov_b32 s{sINC0}, 0")
    a(f"s_mov_b32 s{sINC1}, 128")
    a("v_mov_b32 v27, v31")
    a("v_mov_b32 v28, v11")
    if opt.get('tpos', 'ln') == 'pre': touch1("B")
    if opt.get('touch'):
        a(f"s_mul_i32 s{sT}, s{sTMP}, 7")
        a(f"v_add_u32 v2, s{sT}, v1")
        a("v_lshlrev_b32 v8, 6, v2")
        a(f"s_lshl_b32 s{sT}, s{sSL}, 5")
        a(f"s_add_u32 s{sT}, s{sT}, s{sRB}")
        a(f"s_mul_i32 s{sT}, s{sT}, {2*896}")
        a(f"v_add_u32 v8, s{sT}, v8")
        a("v_lshrrev_b32 v9, 1, v2")
        a(f"s_mul_i32 s{sT}, s{sRB}, 14")
        a(f"v_add_u32 v9, s{sT}, v9")
        a("v_mul_u32_u24 v9, 896, v9")
        a("v_and_b32 v6, 1, v2")
        a("v_lshl_add_u32 v9, v6, 6, v9")
        a(f"s_lshl_b32 s{sT}, s{sSL}, 7")
        a(f"v_add_u32 v9, s{sT}, v9")
        a(f"v_mov_b32 v2, {OOB}")
        a("v_cmp_gt_u32 vcc, 7, v1")
        a("v_cndmask_b32 v8, v2, v8, vcc")
        a("v_cndmask_b32 v9, v2, v9, vcc")
        a.vmem(f"buffer_load_dword v252, v8, s[{SA}:{SA+3}], 0 offen", 'touch')
        a.vmem(f"buffer_load_dword v253, v8, s[{SBI}:{SBI+3}], 0 offen", 'touch')
        a.vmem(f"buffer_load_dword v254, v9, s[{SCR_}:{SCR_+3}], 0 offen", 'touch')
        a.vmem(f"buffer_load_dword v255, v9, s[{SCI}:{SCI+3}], 0 offen", 'touch')
    a(f"s_mov_b32 s{sOFF}, s{sBASE}")
    for it in range(NEARLY):
        prefill(it)
    g3_addr(a)
    a("v_and_b32 v2, 15, v1")
    a("v_lshrrev_b32 v3, 4, v1")
    a("v_bfe_u32 v4, v2, 1, 3")
    a("v_xor_b32 v4, v4, v3")
    a("v_lshlrev_b32 v4, 4, v4")
    a("v_lshl_add_u32 v4, v2, 7, v4")
    a(f"v_add_u32 v12, s{sRING}, v4")
    a("v_xor_b32 v13, 64, v12")
    a("v_lshrrev_b32 v4, 2, v2")
    a("v_and_b32 v5, 3, v2")
    a("v_lshl_add_u32 v6, v4, 4, v5")
    a("v_mul_u32_u24 v6, 896, v6")
    a("v_and_b32 v7, 1, v4")
    a("v_mul_u32_u24 v7, 3, v7")
    a("v_lshrrev_b32 v8, 1, v4")
    a("v_xor_b32 v7, v7, v8")
    a("v_lshlrev_b32 v7, 1, v7")
    a("v_lshrrev_b32 v8, 1, v5")
    a("v_xor_b32 v7, v7, v8")
    a("v_xor_b32 v7, v7, v3")
    for k in range(4):
        a(f"v_xor_b32 v8, {2*k}, v7")
        a(f"v_lshl_add_u32 v{14+k}, v8, 4, v6")
    a(f"s_lshl_b32 s{sT}, s{sTMP}, 9")
    a(f"s_add_u32 s{sT}, s{sT}, {SCR}")
    a("v_lshlrev_b32 v6, 5, v2")
    a(f"v_add_u32 v244, s{sT}, v6")
    a("v_lshl_add_u32 v245, v3, 3, v244")
    a("v_lshlrev_b32 v4, 1, v3")
    a("v_bfe_u32 v5, v2, 1, 1")
    a("v_lshlrev_b32 v5, 2, v5")
    a("v_xor_b32 v4, v4, v5")
    a("v_lshlrev_b32 v4, 4, v4")
    a("v_lshl_add_u32 v4, v2, 7, v4")
    a(f"v_add_u32 v246, s{sRING}, v4")
    a("v_lshlrev_b32 v247, 3, v2")
    a(f"s_lshl_b32 s{sT}, s{sSL}, 5")
    a(f"s_add_u32 s{sT}, s{sT}, s{sRB}")
    a(f"s_lshl_b32 s{sT}, s{sT}, 10")
    a(f"s_lshl_b32 s{sT2}, s{sTMP}, 8")
    a(f"s_add_u32 s{sT}, s{sT}, s{sT2}")
    a(f"s_add_u32 s{sT}, s{sT}, {INBOX}")
    a("v_lshlrev_b32 v250, 4, v2")
    a(f"v_add_u32 v250, s{sT}, v250")
    if STOUCH:
        a("s_waitcnt lgkmcnt(0)")
        stouch_w1g(1, 4, 3)
        for m in range(2, (448 // RBG + 7) // 8):
            stouch_w1g(m)
    if opt.get('xbar', '1') == '1': a("s_barrier")
    if not STOUCH: stamp(a, 13)
    a.wait_vm('x')
    saved_vm_B = list(a.vm)

    emit_ln("B")
    if opt.get('g1pre', 'end') != 'mid':
        for it in range(6):
            prefill(it)
    for k in range(4):
        a(f"v_mov_b32 v{44+k}, 0")
    a("s_mov_b64 exec, 0xffff")
    a(f"buffer_store_dwordx4 v[44:47], v250, s[{SWS}:{SWS+3}], 0 offen sc1")
    a("s_mov_b64 exec, -1")
    a("v_lshlrev_b32 v249, 5, v1")
    a(f"s_cmp_eq_u32 s{sWV}, 4")
    a("s_cbranch_scc0 K1_NORDY")
    a("s_mov_b64 exec, 0x7f")
    a(f"buffer_load_dword v251, v249, s[{SDBG}:{SDBG+3}], 0 offen sc1")
    a("s_mov_b64 exec, -1")
    a.label("K1_NORDY")
    if opt.get('lampos', 'pre') == 'pre': lam_block()
    a("s_barrier")
    stamp(a, 3)
    a.vm = [t for t in saved_vm_B if not (isinstance(t, tuple) and t[0] == 'pre')] + [('b', i // 4) for i in range(12)]
    a.lg = []

    def b_parts(ds):
        sl_ = ds % 3
        return [
            lambda: (a(f"s_add_u32 m0, s{sRING}, {sl_*4096}"), a(f"s_add_u32 s{sT}, s{sBASE}, {128*ds}")),
            lambda: a.vmem(f"buffer_load_dwordx4 v31, s[{SA}:{SA+3}], s{sT} offen lds", ('b', ds)),
            lambda: a.vmem(f"buffer_load_dwordx4 v11, s[{SA}:{SA+3}], s{sT} offen offset:1024 lds", ('b', ds)),
            lambda: a(f"s_add_u32 m0, s{sRING}, {sl_*4096+2048}"),
            lambda: a.vmem(f"buffer_load_dwordx4 v31, s[{SBI}:{SBI+3}], s{sT} offen lds", ('b', ds)),
            lambda: a.vmem(f"buffer_load_dwordx4 v11, s[{SBI}:{SBI+3}], s{sT} offen offset:1024 lds", ('b', ds)),
        ]

    def b_issue(ds):
        for f_ in b_parts(ds):
            f_()
    AF = [128, 144, 160]
    BF = [176, 192]

    def g1_breads(ds):
        so = (ds % 3) * 4096
        out = []
        for s1 in range(2):
            out.append(f"ds_read_b128 {vr(BF[ds&1]+8*s1,4)}, v{12+s1} offset:{so}")
            out.append(f"ds_read_b128 {vr(BF[ds&1]+8*s1+4,4)}, v{12+s1} offset:{so+2048}")
        return out

    def g1_areads(s):
        s1 = s & 1
        out = []
        for aa in range(4):
            k = (2 * s1) ^ aa
            out.append(f"ds_read_b128 {vr(AF[s%3]+4*aa,4)}, v{14+k} offset:{aa*4*896+128*(s>>1)}")
        return out

    if opt.get('x_g1sleep'):
        a("s_sleep 127\n s_sleep 127\n s_sleep 127\n s_sleep 127")
    a(f"s_setprio {int(opt.get('g1p', 2))}")
    a.wait_vm(('b', 0))
    for r in g1_breads(0):
        a.lds(r, ('B', 0))
    for s0 in range(2):
        for r in g1_areads(s0):
            a.lds(r, ('f', s0))
    for s in range(14):
        ds = s >> 1
        a.wait_lg(('f', s))
        if s == 0:
            b_issue(3)
        if PROF[0] and opt.get('x_g1') and s % 2 == 0:
            a("s_memtime s[100:101]")
            a("s_waitcnt lgkmcnt(0)")
            a(f"v_writelane_b32 v0, s100, {24 + s}")
        if s % 2 == 0 and ds + 1 < 7:
            a.wait_vm(('b', ds + 1))
        if PROF[0] and opt.get('x_g1') and s % 2 == 0:
            a("s_memtime s[100:101]")
            a("s_waitcnt lgkmcnt(0)")
            a(f"v_writelane_b32 v0, s100, {25 + s}")
            a.lg = []
        bp = []
        if s % 2 == 1 and ds + 1 < 7:
            a.wait_lg(('B', ds + 1))
            if ds + 4 < 7:
                bp = b_parts(ds + 4)
        A_, B_ = AF[s % 3], BF[ds & 1] + 8 * (s & 1)
        ms = []
        for aa in range(4):
            for part in range(2):
                acc = 64 + 16 * part + 4 * aa
                c = "0" if s == 0 else vr(acc, 4)
                ms.append(f"v_mfma_f32_16x16x32_bf16 {vr(acc,4)}, {vr(A_+4*aa,4)}, {vr(B_+4*part,4)}, {c}")
        rd = []
        if s % 2 == 0 and ds + 1 < 7:
            rd += [(r, ('B', ds + 1)) for r in g1_breads(ds + 1)]
        if s + 2 < 14:
            rd += [(r, ('f', s + 2)) for r in g1_areads(s + 2)]
        fill = [lambda r=r, t=t: a.lds(r, t) for (r, t) in rd] + bp
        for k, m in enumerate(ms):
            a(m)
            if k < len(fill):
                fill[k]()
        for f_ in fill[len(ms):]:
            f_()
        if opt.get('x_g1l') and s % 2 == 1:
            lstamp(a)
        if bp and ds + 4 == 6 and opt.get('serial', '1') == '1':
            a(f"v_mov_b32 v2, {CNT+20}")
            a("v_mov_b32 v3, 1")
            a("s_mov_b64 exec, 1")
            a.lds("ds_add_u32 v2, v3", 'sig')
            a("s_mov_b64 exec, -1")
    if opt.get('x_g1l'): lflush(a, 34)
    a("s_setprio 0")
    stamp(a, 4)
    a.wait_lg_all()
    signal(a, 0)
    a(f"s_cmp_eq_u32 s{sWV}, 4")
    a("s_cbranch_scc0 K1_RDY2")
    a.label("K1_RDY1")
    a("s_waitcnt vmcnt(0)")
    a("s_mov_b64 exec, 0x7f")
    a("v_cmp_ne_u32 vcc, 1, v251")
    a("s_mov_b64 exec, -1")
    a("s_cbranch_vccnz K1_RDYS")
    SLOW.append(("K1_RDYS", ["s_sleep 4", "s_mov_b64 exec, 0x7f", f"buffer_load_dword v251, v249, s[{SDBG}:{SDBG+3}], 0 offen sc1", "s_mov_b64 exec, -1", "s_branch K1_RDY1"]))
    signal(a, 4)
    a.label("K1_RDY2")
    if opt.get('lampos', 'pre') == 'post': lam_block()
    a("v_lshrrev_b32 v7, 4, v1")
    a("v_lshlrev_b32 v4, 6, v7")
    a(f"v_add_u32 v4, {S2T}, v4")
    for k in range(4):
        a.lds(f"ds_read_b128 {vr(32+4*k,4)}, v4 offset:{16*k}", 'st')
    a.wait_lg('st')
    for e in range(16):
        R_, I_ = 64 + e, 80 + e
        a(f"v_mul_f32 v8, v{32+e}, v{R_}")
        a(f"v_mul_f32 v9, v{32+e}, v{I_}")
        a(f"v_mul_f32 v{R_}, v{CR}, v8")
        a(f"v_mul_f32 v{I_}, v{CR}, v9")
        a(f"v_fma_f32 v{R_}, -v{CI}, v9, v{R_}")
        a(f"v_fmac_f32 v{I_}, v{CI}, v8")
        nr, ni = PP[e & 1]
        hr, hi = PP[(e & 1) ^ 1]
        if e == 0:
            a(f"v_mov_b32 v{nr}, v{R_}")
            a(f"v_mov_b32 v{ni}, v{I_}")
        else:
            cmac(nr, ni, LR, LI, hr, hi, R_, I_)
    HE = PP[1]
    a.lds(f"ds_write_b64 v245, v[{HE[0]}:{HE[1]}]", 'w')
    a.wait_lg('w')
    a.lds("ds_read_b128 v[32:35], v244", 'r')
    a.lds("ds_read_b128 v[36:39], v244 offset:16", 'r')
    a.wait_lg('r')
    cmac(40, 41, L16R, L16I, 32, 33, 34, 35)
    cmac(42, 43, L16R, L16I, 40, 41, 36, 37)
    cmac(44, 45, L16R, L16I, 42, 43, 38, 39)
    a("v_mov_b32 v46, 1")
    a("v_mov_b32 v47, 0")
    a.wait_lg_all()
    spin(a, 4, 1)
    a(f"s_mov_b32 s{sT}, {EIN - INBOX}")
    a("s_mov_b64 exec, 0xffff")
    a(f"buffer_store_dwordx4 v[44:47], v250, s[{SWS}:{SWS+3}], s{sT} offen sc1")
    a("s_mov_b64 exec, -1")
    a.vm = []
    a(f"v_mov_b32 v{XR}, 0")
    a(f"v_mov_b32 v{XI}, 0")
    for g_, (r_, i_) in ((1, (32, 33)), (2, (40, 41)), (3, (42, 43))):
        a(f"v_cmp_eq_u32 vcc, {g_}, v7")
        a(f"v_cndmask_b32 v{XR}, v{XR}, v{r_}, vcc")
        a(f"v_cndmask_b32 v{XI}, v{XI}, v{i_}, vcc")
    stamp(a, 5)
    a("s_setprio 0")
    spin(a, 8, 4)
    stamp(a, 9)
    a(f"s_cmp_eq_u32 s{sWV}, 7")
    a("s_cbranch_scc1 K1_NOPRE")
    spin(a, 0, 4)
    stB = Stream(a, w2_items + c_items, 28)
    if opt.get('prefirst', '1') == '1':
        stB.issue(6)
    a.label("K1_NOPRE")
    a.vm = []
    if opt.get('hookpos', 'pre') == 'pre':
        a(f"s_setprio {int(opt.get('p2prio', 2))}")
        pass2("A", False)
        a(f"s_setprio {int(opt.get('g3p46', 1))}")
        a(f"s_cmp_eq_u32 s{sWV}, 7")
        a("s_cbranch_scc0 K1_G3")
    else:
        if opt.get('g3prio', '1') == '1':
            a("s_setprio 2")
        a(f"s_cmp_eq_u32 s{sWV}, 7")
        a("s_cbranch_scc0 K1_G3")
        a("s_setprio 0")
        pass2("A", False)
    a.vm = []
    reduce_pre(a)
    a.lg = []
    spin(a, 32, 7)
    a(f"s_mul_i32 s{sT}, s{sRB}, 7")
    a(f"s_add_u32 s{sT}, s{sT}, s{sSL}")
    a(f"s_lshl_b32 s{sT}, s{sT}, 7")
    a(f"s_add_u32 s{sTMP}, s{sT}, {RFLAG}")
    a("v_lshlrev_b32 v2, 2, v1")
    if OWNP[0]:
        a(f"s_lshl_b32 s{sT}, 1, s{sSL}")
        a(f"s_andn2_b32 s{sTMP+4}, 0x7f, s{sT}")
    else:
        a(f"s_mov_b32 s{sTMP+4}, 0x7f")
    a.label("K1_RPOLL")
    a(f"s_mov_b32 exec_lo, s{sTMP+4}")
    a("s_mov_b32 exec_hi, 0")
    a(f"buffer_load_dword v3, v2, s[{SWS}:{SWS+3}], s{sTMP} offen sc1")
    a("s_waitcnt vmcnt(0)")
    a("v_cmp_ne_u32 vcc, 1, v3")
    a("s_mov_b64 exec, -1")
    a("s_cbranch_vccnz K1_RPOLLS")
    SLOW.append(("K1_RPOLLS", [f"s_sleep {int(opt.get('rsleep', 1))}", "s_branch K1_RPOLL"]))
    signal(a, 36)
    a("s_branch K1_RED")

    for blk in OWNBLK:
        blk()
        a.vm = []
        reduce_pre(a)
        a("s_waitcnt lgkmcnt(0)")
        a("s_branch K1_SIGD")

    a.label("K1_COLL")
    a(f"s_cmp_lg_u32 s{sSL}, 7")
    a("s_cbranch_scc1 K1_END")
    a(f"s_mul_i32 s{sT}, s{sJS}, {R}")
    a(f"s_cmp_lg_u32 s{sT}, s{sRB}")
    a("s_cbranch_scc1 K1_END")
    a(f"s_cmp_ge_u32 s{sJS}, 7")
    a("s_cbranch_scc1 K1_END")
    a("v_lshrrev_b32 v2, 6, v0")
    a("v_and_b32 v1, 63, v0")
    a(f"v_readfirstlane_b32 s{sWV}, v2")
    a(f"s_mov_b32 s{sSL}, s{sJS}")
    a("s_load_dwordx4 s[4:7], s[0:1], 8")
    a("s_load_dwordx2 s[18:19], s[0:1], 56")
    a("s_load_dwordx4 s[32:35], s[0:1], 112")
    a("s_load_dwordx2 s[36:37], s[0:1], 128")
    a(f"s_lshl_b32 s{sT}, s{sSL}, 6")
    a(f"v_add_u32 v2, s{sT}, v1")
    a("v_lshlrev_b32 v2, 1, v2")
    a(f"s_lshl_b32 s{sT}, s{sSL}, 15")
    a(f"s_lshl_b32 s{sT2}, s{sWV}, 12")
    a(f"s_add_u32 s{sT}, s{sT}, s{sT2}")
    a(f"s_add_u32 s{sT}, s{sT}, {EIN}")
    a("v_lshlrev_b32 v3, 4, v1")
    a(f"v_add_u32 v3, s{sT}, v3")
    for k in range(4):
        a(f"v_mov_b32 v{8+k}, 0")
    a("s_waitcnt lgkmcnt(0)")
    srd(a, SWS, 36, WS_SIZE)
    srd(a, SDBG, 34, 256)
    for k in range(4):
        a(f"buffer_store_dwordx4 v[8:11], v3, s[{SWS}:{SWS+3}], 0 offen offset:{1024*k} sc1")
    a("v_lshlrev_b32 v12, 7, v0")
    a(f"s_lshl_b32 s{sT}, s{sSL}, 2")
    a(f"s_add_u32 s{sT}, s{sT}, {RFLAG}")
    a(f"v_mov_b32 v13, {OOB}")
    a("v_cmp_gt_u32 vcc, 224, v0")
    a("v_cndmask_b32 v12, v13, v12, vcc")
    a(f"buffer_store_dword v8, v12, s[{SWS}:{SWS+3}], s{sT} offen sc1")
    a("global_load_ushort v104, v2, s[4:5]")
    a("global_load_ushort v105, v2, s[6:7]")
    a("global_load_ushort v106, v2, s[18:19]")
    a("s_waitcnt vmcnt(0)")
    a("s_barrier")
    a(f"s_cmp_lg_u32 s{sWV}, 0")
    a("s_cbranch_scc1 K1_CNR")
    a(f"s_lshl_b32 s{sT}, s{sSL}, 5")
    a(f"v_mov_b32 v5, s{sT}")
    a("v_mov_b32 v6, 1")
    a("s_mov_b64 exec, 1")
    a(f"buffer_store_dword v6, v5, s[{SDBG}:{SDBG+3}], 0 offen sc1")
    a("s_mov_b64 exec, -1")
    a.label("K1_CNR")
    a("v_lshlrev_b32 v107, 16, v104")
    a("v_lshlrev_b32 v108, 16, v105")
    a("v_lshlrev_b32 v106, 16, v106")
    a(f"v_mul_f32 v106, {fhex(LOG2E)}, v106")
    a("v_exp_f32 v106, v106")
    bf16_round(a, 106, 106)
    a("v_mul_f32 v109, v106, v107")
    a("v_mul_f32 v110, v106, v108")
    a(f"v_mul_f32 v109, {fhex(LOG2E)}, v109")
    a(f"v_mul_f32 v110, {fhex(0.15915494309189535)}, v110")
    a("v_exp_f32 v109, v109")
    a("v_rndne_f32 v111, v110")
    a("v_sub_f32 v110, v110, v111")
    a("v_cos_f32 v111, v110")
    a("v_sin_f32 v112, v110")
    a("v_mul_f32 v104, v109, v111")
    a("v_mul_f32 v105, v109, v112")

    def csq2(d, s_):
        a(f"v_mul_f32 v{d[0]}, v{s_[0]}, v{s_[0]}")
        a(f"v_mul_f32 v{d[1]}, v{s_[0]}, v{s_[1]}")
        a(f"v_fma_f32 v{d[0]}, -v{s_[1]}, v{s_[1]}, v{d[0]}")
        a(f"v_add_f32 v{d[1]}, v{d[1]}, v{d[1]}")
    cur_ = (104, 105)
    for k in range(6):
        nx = (118, 119) if k % 2 == 0 else (120, 121)
        csq2(nx, cur_)
        cur_ = nx
    M1 = cur_
    M2, M3, M4 = (110, 111), (112, 113), (114, 115)
    csq2(M2, M1)
    a(f"v_mul_f32 v{M3[0]}, v{M2[0]}, v{M1[0]}")
    a(f"v_mul_f32 v{M3[1]}, v{M2[0]}, v{M1[1]}")
    a(f"v_fma_f32 v{M3[0]}, -v{M2[1]}, v{M1[1]}, v{M3[0]}")
    a(f"v_fmac_f32 v{M3[1]}, v{M2[1]}, v{M1[0]}")
    csq2(M4, M2)
    a("v_lshlrev_b32 v4, 4, v1")
    a(f"s_lshl_b32 s{sT}, s{sSL}, 15")
    a(f"s_lshl_b32 s{sT2}, s{sWV}, 12")
    a(f"s_add_u32 s{sT}, s{sT}, s{sT2}")
    a(f"s_add_u32 s{sT}, s{sT}, {INBOX}")
    a(f"v_add_u32 v4, s{sT}, v4")
    a("v_lshlrev_b32 v7, 3, v1")
    a(f"s_lshl_b32 s{sT}, s{sWV}, 9")
    a(f"v_add_u32 v6, s{sT}, v7")
    a.label("K1_CPOLL")
    for k in range(4):
        a(f"buffer_load_dwordx4 v[{16+4*k}:{19+4*k}], v3, s[{SWS}:{SWS+3}], 0 offen offset:{1024*k} sc1")
    a("s_waitcnt vmcnt(0)")
    a("v_and_b32 v12, v18, v22")
    a("v_and_b32 v13, v26, v30")
    a("v_and_b32 v12, v12, v13")
    a("v_cmp_ne_u32 vcc, 1, v12")
    a("s_cbranch_vccnz K1_CPOLLS")
    SLOW.append(("K1_CPOLLS", [f"s_sleep {int(opt.get('csleep', 1))}", "s_branch K1_CPOLL"]))
    if PROF[0]: a("s_memrealtime s[8:9]")
    cmac(32, 33, M1[0], M1[1], 16, 17, 20, 21)
    cmac(34, 35, M1[0], M1[1], 32, 33, 24, 25)
    cmac(36, 37, M1[0], M1[1], 34, 35, 28, 29)
    a("ds_write_b64 v6, v[36:37]")
    a("s_waitcnt lgkmcnt(0)")
    a("s_barrier")
    if PROF[0]: a("s_memrealtime s[10:11]")
    for w in range(7):
        a(f"ds_read_b64 v[{40+2*w}:{41+2*w}], v7 offset:{512*w}")
    a("v_mov_b32 v8, 0")
    a("v_mov_b32 v9, 0")
    a("s_waitcnt lgkmcnt(0)")
    for w in range(7):
        a(f"s_cmp_gt_u32 s{sWV}, {w}")
        a(f"s_cbranch_scc0 K1_CH")
        cmac(12, 13, M4[0], M4[1], 8, 9, 40 + 2 * w, 41 + 2 * w)
        a("v_mov_b32 v8, v12")
        a("v_mov_b32 v9, v13")
    a.label("K1_CH")
    for k, q in enumerate(((56, 57), (60, 61), (64, 65), (68, 69))):
        a(f"v_mov_b32 v{q[0]+2}, 1")
        a(f"v_mov_b32 v{q[0]+3}, 0")
        if k == 0:
            a(f"v_mov_b32 v{q[0]}, v8")
            a(f"v_mov_b32 v{q[1]}, v9")
        else:
            Mk = (M1, M2, M3)[k - 1]
            Lk = ((16, 17), (32, 33), (34, 35))[k - 1]
            cmac(q[0], q[1], Mk[0], Mk[1], 8, 9, Lk[0], Lk[1])
        a(f"buffer_store_dwordx4 v[{q[0]}:{q[0]+3}], v4, s[{SWS}:{SWS+3}], 0 offen offset:{1024*k} sc1")
    if PROF[0]:
        a(f"s_cmp_lg_u32 s{sWV}, 7")
        a("s_cbranch_scc1 K1_END")
        a("s_memrealtime s[12:13]")
        a("s_waitcnt vmcnt(0)")
        a("s_memrealtime s[14:15]")
        a("s_waitcnt lgkmcnt(0)")
        a(f"s_lshl_b32 s{sT+8}, s{sSL}, 4")
        a(f"s_add_u32 s{sT+8}, s{sT+8}, 0xF00000")
        a("v_mov_b32 v2, 0")
        for i, r in enumerate((8, 10, 12, 14)):
            a(f"v_mov_b32 v3, s{r}")
            a(f"buffer_store_dword v3, v2, s[{SWS}:{SWS+3}], s{sT+8} offen offset:{4*i}")
    a("s_endpgm")
    for lab, ins in SLOW:
        a.label(lab)
        for t in ins:
            a(t)
    del SLOW[:]
    a.label("K1_END")
    a("s_endpgm")
    return a


def g3_addr(a):
    a("v_lshrrev_b32 v2, 5, v1")
    a("v_bfe_u32 v3, v1, 2, 2")
    a("v_and_b32 v4, 3, v1")
    a("v_bfe_u32 v5, v1, 4, 1")
    a("v_lshlrev_b32 v6, 1, v5")
    a("v_lshrrev_b32 v7, 1, v4")
    a("v_or_b32 v6, v6, v7")
    a("v_lshrrev_b32 v7, 1, v3")
    a("v_lshlrev_b32 v7, 2, v7")
    a("v_xor_b32 v6, v6, v7")
    a("v_lshlrev_b32 v6, 4, v6")
    a("v_and_b32 v7, 1, v4")
    a("v_lshl_add_u32 v6, v7, 3, v6")
    a("v_lshl_add_u32 v7, v2, 3, v3")
    a("v_lshl_add_u32 v8, v7, 7, v6")
    a("v_lshl_add_u32 v7, v2, 2, v3")
    a("v_lshl_add_u32 v9, v7, 7, v6")
    a(f"v_add_u32 v18, s{sRING3}, v9")
    a("v_xor_b32 v19, 64, v18")
    a(f"v_add_u32 v21, {Q + 8192}, v8")
    a("v_xor_b32 v22, 64, v21")
    a("v_lshlrev_b32 v20, 4, v1")
    a(f"v_add_u32 v20, {Q}, v20")
    c_addr(a)


def c_addr(a):
    a("v_and_b32 v3, 31, v1")
    a("v_lshrrev_b32 v2, 5, v1")
    a("v_bfe_u32 v4, v3, 1, 3")
    a("v_xor_b32 v4, v4, v2")
    a("v_lshlrev_b32 v4, 4, v4")
    a("v_lshl_add_u32 v4, v3, 7, v4")
    a(f"v_add_u32 v23, s{sRING3}, v4")
    for cg in range(1, 4):
        a(f"v_xor_b32 v{23+cg}, {32*cg}, v23")


def gelu(a, hook=None, hookpos=1, pk=True):
    c1 = -2.0 * 0.7978845608028654 * LOG2E
    c2 = c1 * 0.044715
    a(f"v_mov_b32 v56, {fhex(c1)}")
    a(f"v_mov_b32 v57, {fhex(c1)}")
    a(f"v_mov_b32 v58, {fhex(c2)}")
    a(f"v_mov_b32 v59, {fhex(c2)}")
    a("v_mov_b32 v62, 1.0")
    a("v_mov_b32 v63, 1.0")
    a(f"s_mul_i32 s{sTMP}, s{sWV}, {RING}")
    a(f"s_add_u32 s{sTMP}, s{sTMP}, {Q}")
    a("v_lshlrev_b32 v61, 4, v1")
    a(f"v_add_u32 v61, s{sTMP}, v61")
    grp = 0
    for ft in range(2):
        for tt in range(2):
            acc = 64 + 32 * ft + 16 * tt
            if hook is not None and grp == hookpos:
                hook()
            grp += 1
            X = [acc + 2 * e for e in range(8)]
            T = [32 + 2 * e for e in range(8)]
            P = lambda r: f"v[{r}:{r+1}]"
            for e in range(8):
                a(f"v_pk_mul_f32 {P(T[e])}, {P(X[e])}, {P(X[e])}")
            for e in range(8):
                a(f"v_pk_fma_f32 {P(T[e])}, {P(T[e])}, v[58:59], v[56:57]")
            for e in range(8):
                a(f"v_pk_mul_f32 {P(T[e])}, {P(T[e])}, {P(X[e])}")
            for e in range(16):
                a(f"v_exp_f32 v{32+e}, v{32+e}")
            for e in range(8):
                a(f"v_pk_add_f32 {P(T[e])}, {P(T[e])}, v[62:63]")
            for e in range(16):
                a(f"v_rcp_f32 v{32+e}, v{32+e}")
            for e in range(8):
                a(f"v_pk_mul_f32 {P(T[e])}, {P(T[e])}, {P(X[e])}")
            for half in range(2):
                for d in range(4):
                    a(f"v_cvt_pk_bf16_f32 v{48+4*half+d}, v{32+8*half+2*d}, v{32+8*half+2*d+1}")
                a.lds(f"ds_write_b128 v61, {vr(48+4*half,4)} offset:{((2*ft+half)*2+tt)*1024}", 'hw')
            if len(a.lg) >= 8:
                a.wait_lg_all()
            if ft == 0 and tt == 1:
                a.wait_lg_all()
                signal(a, 12)


def g3(a, st, base, D2, hook_load=None, hook_pass2=None):
    FA = [192, 208, 224]
    CF = 64
    mlp_base = base
    ssm_base = base + 16
    first = [True]

    def mfmas(Aregs, Bregs):
        ms = []
        for tt in range(2):
            for nt in range(2):
                acc = 128 + 32 * tt + 16 * nt
                c = "0" if first[0] else vr(acc, 16)
                ms.append(f"v_mfma_f32_32x32x16_bf16 {vr(acc,16)}, {vr(Aregs[tt],4)}, {vr(Bregs[nt],4)}, {c}")
        first[0] = False
        return ms

    def mlp_reads(ks):
        b = FA[ks % 3]
        so = st.slot(mlp_base + ks) * 2048
        out = []
        for nt in range(2):
            for q in range(2):
                out.append(f"ds_read_b64_tr_b16 {vr(b+8+4*nt+2*q,2)}, v{18+nt} offset:{so+1024*q}")
        kr = KORDER[ks]
        for tt in range(2):
            out.append(f"ds_read_b128 {vr(b+4*tt,4)}, v20 offset:{12288*(kr>>2)+((kr&3)*2+tt)*1024}")
        return out

    def ssm_areads(k):
        part, cg = k >> 2, k & 3
        b = FA[(16 + k) % 3]
        out = []
        for tt in range(2):
            for q in range(2):
                out.append(f"ds_read_b64_tr_b16 {vr(b+4*tt+2*q,2)}, v{21+tt} offset:{12288*cg+2048*part+512*q}")
        return out

    def c_reads(part):
        out = []
        for nt in range(2):
            i0 = ssm_base + 4 * part + 2 * nt
            so = st.slot(i0) * 2048
            assert st.slot(i0 + 1) == st.slot(i0) + 1
            for cg in range(4):
                out.append(f"ds_read_b128 {vr(CF+32*part+8*cg+4*nt,4)}, v{23+cg} offset:{so}")
        return out

    def step_reads(m):
        return mlp_reads(m) if m < 16 else ssm_areads(m - 16)

    st.wait(mlp_base)
    for r in step_reads(0):
        a.lds(r, ('m', 0))
    st.wait(mlp_base + 1)
    for r in step_reads(1):
        a.lds(r, ('m', 1))
    a.wait_lg(('m', 0))
    for m in range(24):
        b = FA[m % 3]
        if m < 16:
            ms = mfmas([b, b + 4], [b + 8, b + 12])
        else:
            k = m - 16
            cb = CF + 32 * (k >> 2) + 8 * (k & 3)
            ms = mfmas([b, b + 4], [cb, cb + 4])
        if m == 14:
            a.wait_lg_all()
            stamp(a, 14)
            hook_pass2()
            spin(a, 16, 4)
            if P14[0] >= 0:
                a(f"s_setprio {P14[0]}")
            stamp(a, 15)
        if m == 6 and HALF[0]:
            a.wait_lg_all()
            spin(a, 28, 4)
        if PSW[0] is not None and m == PSW[0][0]:
            a(f"s_cmp_ge_u32 s{sWV}, 4")
            a(f"s_cbranch_scc1 K1_PSW{m}")
            a(f"s_setprio {PSW[0][1]}")
            a(f"s_branch K1_PSWB{m}")
            a.label(f"K1_PSW{m}")
            a(f"s_setprio {PSW[0][2]}")
            a.label(f"K1_PSWB{m}")
        if m == 9:
            hook_load()
        rd = [(r, ('m', m + 2)) for r in step_reads(m + 2)] if m + 2 < 24 else []
        cr = []
        if m == 14:
            cr = [(r, ('c', 0)) for r in c_reads(0)[0:4]]
        elif m == 15:
            cr = [(r, ('c', 1)) for r in c_reads(0)[4:8]]
        elif m == 17:
            cr = [(r, ('c', 2)) for r in c_reads(1)[0:4]]
        elif m == 19:
            cr = [(r, ('c', 3)) for r in c_reads(1)[4:8]]
        if m == 16:
            if PRIO16[0] == 9:
                a(f"s_cmp_ge_u32 s{sWV}, 4")
                a("s_cbranch_scc1 K1_P16")
                a("s_setprio 2")
                a("s_branch K1_P16B")
                a.label("K1_P16")
                a("s_setprio 0")
                a.label("K1_P16B")
            elif PRIO16[0] == 8:
                a(f"s_cmp_ge_u32 s{sWV}, 4")
                a("s_cbranch_scc0 K1_P16")
                a("s_setprio 2")
                a("s_branch K1_P16B")
                a.label("K1_P16")
                a("s_setprio 0")
                a.label("K1_P16B")
            elif PRIO16[0] >= 0:
                a(f"s_setprio {PRIO16[0]}")
            a.wait_lg(('c', 1))
        if m == 20:
            a.wait_lg(('c', 3))
        a(ms[0])
        if m + 2 < 16:
            if XNOVM[0]:
                a.vm = [t for t in a.vm if t != ('st', st.first + mlp_base + m + 2 - st.first)]
            else:
                st.wait(mlp_base + m + 2)
        if m == 14:
            st.wait(ssm_base + 1)
        if m == 15:
            a.wait_lg(('m', 16))
            st.wait(ssm_base + 3)
        if m == 17:
            st.wait(ssm_base + 5)
        if m == 19:
            a.wait_lg(('c', 2))
            st.wait(ssm_base + 7)
            if STORESYNC[0]:
                a(f"v_mov_b32 v2, {CNT+24}")
                a("v_mov_b32 v3, 1")
                a("s_mov_b64 exec, 1")
                a.lds("ds_add_u32 v2, v3", 'sig')
                a("s_mov_b64 exec, -1")
        allr = rd + cr
        h1 = (len(allr) + 1) // 2
        for r, t in allr[:h1]:
            a.lds(r, t)
        a(ms[1])
        for r, t in allr[h1:]:
            a.lds(r, t)
        if m == 15:
            a.wait_lg(('c', 0))
            pp = st.parts(ssm_base + 8)
        else:
            pp = st.parts(min(mlp_base + m + 8, ssm_base + 6))
        if pp:
            pp[0][0]()
        a(ms[2])
        if m + 1 < 24:
            a.wait_lg(('m', m + 1))
        if pp:
            pp[0][1]()
        a(ms[3])
        if pp:
            pp[0][2]()
        for extra_ in pp[1:]:
            for fn in extra_:
                fn()
        if XS[0] and m % 3 == 2:
            lstamp(a)
    if XS[0]:
        lflush(a, 26)
    if STORESYNC[0]:
        a.wait_lg_all()
        spin(a, 24, 7)
    a(f"s_mul_i32 s{sT}, s{sRB}, 7")
    a(f"s_add_u32 s{sT}, s{sT}, s{sWV}")
    a(f"s_mul_i32 s{sT}, s{sT}, 56")
    a(f"s_add_u32 s{sT}, s{sT}, s{sSL}")
    a(f"s_lshl_b32 s{sT}, s{sT}, 10")
    a(f"s_add_u32 s{sT}, s{sT}, {PBUF}")
    a("v_lshlrev_b32 v2, 4, v1")
    def pieces(store):
        for tt in range(2):
            for nt in range(2):
                acc = 128 + 32 * tt + 16 * nt
                for hf in range(2):
                    v_ = tt * 4 + nt * 2 + hf
                    d = 32 + 4 * (v_ & 3)
                    for k in range(4):
                        a(f"v_cvt_pk_bf16_f32 v{d+k}, v{acc+8*hf+2*k}, v{acc+8*hf+2*k+1}")
                    store(v_, d)
    if OWNP[0]:
        a(f"s_cmp_eq_u32 s{sWV}, s{sSL}")
        a("s_cbranch_scc1 K1_OWN")

    def st_glob(v_, d):
        a(f"s_add_u32 s{sT2}, s{sT}, {v_*7*1024}")
        a(f"buffer_store_dwordx4 {vr(d,4)}, v2, s[{SWS}:{SWS+3}], s{sT2} offen sc1")
    pieces(st_glob)
    if OWNP[0]:
        def own_block():
            a.label("K1_OWN")
            a(f"v_add_u32 v3, s{sRING3}, v2")
            pieces(lambda v_, d: a(f"ds_write_b128 v3, {vr(d,4)} offset:{1024*v_}"))
        OWNBLK.append(own_block)


def reduce_pre(a):
    a("v_and_b32 v3, 31, v1")
    a("v_lshrrev_b32 v4, 5, v1")
    a(f"s_lshr_b32 s{sT}, s{sWV}, 2")
    a(f"s_lshl_b32 s{sT}, s{sT}, 5")
    a(f"s_and_b32 s{sT2}, s{sWV}, 1")
    a(f"s_lshl_b32 s{sT2}, s{sT2}, 4")
    a(f"s_add_u32 s{sT}, s{sT}, s{sT2}")
    a(f"v_lshl_add_u32 v6, v4, 2, s{sT}")
    a(f"s_bfe_u32 s{sT}, s{sWV}, 0x10001")
    a(f"s_lshl_b32 s{sT}, s{sT}, 5")
    a(f"s_lshl_b32 s{sT2}, s{sSL}, 6")
    a(f"s_add_u32 s{sT}, s{sT}, s{sT2}")
    a(f"v_add_u32 v5, s{sT}, v3")
    a(f"s_lshl_b32 s{sT}, s{sRB}, 6")
    a(f"v_add_u32 v7, s{sT}, v6")
    a("v_mul_u32_u24 v8, 896, v7")
    a("v_lshl_add_u32 v8, v5, 1, v8")
    a(f"v_add_u32 v9, {896*8}, v8")
    a("v_lshlrev_b32 v10, 1, v5")
    a("v_mul_u32_u24 v12, 1792, v7")
    a("v_lshl_add_u32 v12, v5, 2, v12")
    a(f"v_add_u32 v13, {1792*8}, v12")
    a(f"v_add_u32 v14, {1792*2}, v12")
    a(f"v_add_u32 v15, {1792*2}, v13")
    a("v_lshlrev_b32 v6, 2, v6")
    a(f"v_add_u32 v6, {S2T}, v6")
    srd(a, SX, 4, 2048 * 896)
    srd(a, SA, 32, 2048 * 1792)
    for e in range(8):
        a.vmem(f"buffer_load_ushort v{16+e}, v{8 if e < 4 else 9}, s[{SX}:{SX+3}], 0 offen offset:{896*(e&3)}", 'x')
    a.vmem("global_load_ushort v24, v10, s[20:21]", 'x')
    a.vmem("global_load_ushort v25, v10, s[30:31]", 'x')


def reduce_main(a, opt):
    a.lds(f"ds_read_b128 v[64:67], v6 offset:{M2T-S2T}", 't')
    a.lds(f"ds_read_b128 v[68:71], v6 offset:{M2T-S2T+32}", 't')
    a.lds(f"ds_read_b128 v[72:75], v6 offset:{AT-S2T}", 't')
    a.lds(f"ds_read_b128 v[76:79], v6 offset:{AT-S2T+32}", 't')
    a(f"s_mul_i32 s{sT}, s{sRB}, 7")
    a(f"s_add_u32 s{sT}, s{sT}, s{sSL}")
    a(f"s_lshl_b32 s{sT}, s{sT}, 3")
    a(f"s_add_u32 s{sT}, s{sT}, s{sWV}")
    a(f"s_mul_i32 s{sT}, s{sT}, 7168")
    a(f"s_add_u32 s{sT}, s{sT}, {PBUF}")
    a("v_lshlrev_b32 v7, 4, v1")
    a.wait_lg_all()
    OWN = opt.get('own', '1') == '1'
    a(f"s_mul_i32 s{sT}, s{sRB}, 7")
    a(f"s_add_u32 s{sT}, s{sT}, s{sSL}")
    a(f"s_lshl_b32 s{sT}, s{sT}, 3")
    a(f"s_add_u32 s{sT}, s{sT}, s{sWV}")
    a(f"s_mul_i32 s{sT}, s{sT}, 7168")
    a(f"s_add_u32 s{sTMP}, s{sT}, {PBUF}")
    if OWN:
        a(f"s_mul_i32 s{sT}, s{sSL}, {RING}")
        a(f"s_add_u32 s{sT2}, s{sT}, {P}")
        a(f"s_sub_u32 s{sT}, s{sT}, {4*RING - Y}")
        a(f"s_cmp_lt_u32 s{sSL}, 4")
        a(f"s_cselect_b32 s{sT}, s{sT2}, s{sT}")
        a(f"s_lshl_b32 s{sT2}, s{sWV}, 10")
        a(f"s_add_u32 s{sT}, s{sT}, s{sT2}")
        a(f"v_add_u32 v30, s{sT}, v7")
    spin(a, 36, 1)
    stamp(a, 17)
    a.vm = ['x'] * 10
    nglob = 6 if OWN else 7
    for i in range(nglob):
        if OWN:
            a(f"s_cmp_ge_u32 {i}, s{sSL}")
            a(f"s_cselect_b32 s{sT}, {i+1}, {i}")
            a(f"s_lshl_b32 s{sT}, s{sT}, 10")
            a(f"s_add_u32 s{sT}, s{sT}, s{sTMP}")
        else:
            a(f"s_add_u32 s{sT}, s{sTMP}, {1024*i}")
        a.vmem(f"buffer_load_dwordx4 {vr(32+4*i,4)}, v7, s[{SWS}:{SWS+3}], s{sT} offen sc1", ('p', i))
    if OWN:
        a.lds("ds_read_b128 v[56:59], v30", 'own')
    a.wait_vm('x')
    a("v_lshlrev_b32 v24, 16, v24")
    a("v_lshlrev_b32 v25, 16, v25")
    for e in range(8):
        mu = 64 + 4 * (e >> 2) + (e & 3)
        r1 = 72 + 4 * (e >> 2) + (e & 3)
        a(f"v_lshlrev_b32 v26, 16, v{16+e}")
        a(f"v_sub_f32 v27, v26, v{mu}")
        a(f"v_add_f32 v{80+e}, v25, v26")
        a(f"v_mul_f32 v27, v27, v{r1}")
        a(f"v_fmac_f32 v{80+e}, v27, v24")
    order = ([6] + list(range(6))) if OWN else list(range(7))
    for n_, s_ in enumerate(order):
        if OWN and s_ == 6:
            a.wait_lg('own')
        else:
            a.wait_vm(('p', s_))
        last = n_ == 6
        if last: stamp(a, 18)
        for d in range(4):
            r = 32 + 4 * s_ + d
            a(f"v_lshlrev_b32 v28, 16, v{r}")
            a(f"v_and_b32 v29, 0xffff0000, v{r}")
            a(f"v_add_f32 v{80+2*d}, v{80+2*d}, v28")
            a(f"v_add_f32 v{81+2*d}, v{81+2*d}, v29")
            if last:
                sc = "sc1" if opt.get('osc', '0') == '1' else ""
                for e in (2 * d, 2 * d + 1):
                    if (e & 3) < 3:
                        a(f"buffer_store_dword v{80+e}, v{12 if e < 4 else 13}, s[{SA}:{SA+3}], 0 offen offset:{1792*(e&3)} {sc}")
                    else:
                        a(f"buffer_store_dword v{80+e}, v{14 if e < 4 else 15}, s[{SA}:{SA+3}], 0 offen offset:1792 {sc}")


def dump_lds(a, base, nbytes):
    a("s_lshl_b32 s90, s2, 16")
    a("s_add_u32 s90, s90, 0x800000")
    a("v_lshlrev_b32 v2, 4, v0")
    n = (nbytes + 8191) // 8192
    for i in range(n):
        a(f"v_add_u32 v3, {base + 8192*i}, v2")
        a("ds_read_b128 v[4:7], v3")
        a("s_waitcnt lgkmcnt(0)")
        a(f"v_add_u32 v3, {8192*i}, v2")
        a(f"buffer_store_dwordx4 v[4:7], v3, s[{SWS}:{SWS+3}], s90 offen")
        a("s_waitcnt vmcnt(0)")


def dump_regs(a, base, n):
    a("s_lshl_b32 s90, s2, 3")
    a(f"s_add_u32 s90, s90, s{sWV}")
    a("s_lshl_b32 s90, s90, 14")
    a("s_add_u32 s90, s90, 0x800000")
    a("v_lshlrev_b32 v2, 2, v1")
    a("s_nop 15")
    for i in range(n):
        a(f"buffer_store_dword v{base+i}, v2, s[{SWS}:{SWS+3}], s90 offen")
        a("s_add_u32 s90, s90, 256")
    a("s_waitcnt vmcnt(0)")


def gen_k2(opt):
    a = Asm()
    a("s_cmp_ge_u32 s2, 256")
    a("s_cbranch_scc1 K2_END")
    if opt.get('span'):
        a("s_memrealtime s[64:65]")
    if opt.get('k2prof'): a("s_memtime s[78:79]")
    a("s_load_dwordx2 s[4:5], s[0:1], 0")
    a("s_load_dwordx2 s[6:7], s[0:1], 64")
    a("s_load_dwordx4 s[8:11], s[0:1], 104")
    a("s_load_dwordx2 s[12:13], s[0:1], 128")
    a("v_lshrrev_b32 v2, 6, v0")
    a("v_and_b32 v1, 63, v0")
    a("v_readfirstlane_b32 s40, v2")
    a("v_and_b32 v3, 31, v1")
    a("v_lshrrev_b32 v4, 5, v1")
    a("v_lshlrev_b32 v7, 4, v1")
    a("s_mul_i32 s41, s2, 7")
    a("s_add_u32 s41, s41, s40")
    a("s_mul_hi_u32 s39, s41, 0x4924925")
    a("s_mul_i32 s42, s39, 56")
    a("s_sub_u32 s42, s41, s42")
    a("s_lshr_b32 s38, s42, 3")
    a("s_and_b32 s40, s42, 7")
    a("s_mul_i32 s46, s41, 7168")
    a(f"s_add_u32 s46, s46, {PBUF}")
    a("s_lshr_b32 s41, s40, 2")
    a("s_bfe_u32 s42, s40, 0x10001")
    a("s_and_b32 s43, s40, 1")
    a("s_lshl_b32 s44, s38, 6")
    a("s_lshl_b32 s45, s42, 5")
    a("s_add_u32 s44, s44, s45")
    a("v_add_u32 v5, s44, v3")
    a("s_lshl_b32 s45, s39, 6")
    a("s_lshl_b32 s46, s46, 0") if False else None
    a("s_lshl_b32 s47, s41, 5")
    a("s_add_u32 s45, s45, s47")
    a("s_lshl_b32 s47, s43, 4")
    a("s_add_u32 s45, s45, s47")
    a("v_lshl_add_u32 v6, v4, 2, s45")
    a("v_mul_u32_u24 v8, 896, v6")
    a("v_lshl_add_u32 v8, v5, 1, v8")
    a(f"v_add_u32 v9, {896*8}, v8")
    a("v_lshlrev_b32 v10, 3, v6")
    a("v_lshlrev_b32 v11, 1, v5")
    a("v_mul_u32_u24 v12, 1792, v6")
    a("v_lshl_add_u32 v12, v5, 2, v12")
    a(f"v_add_u32 v13, {1792*8}, v12")
    a(f"v_add_u32 v28, {1792*2}, v12")
    a(f"v_add_u32 v29, {1792*2}, v13")
    a(f"s_mov_b32 s47, {STATS}")
    a("s_waitcnt lgkmcnt(0)")
    if opt.get('k2prof'): a("s_memtime s[66:67]")
    srd(a, 56, 12, WS_SIZE)
    srd(a, 48, 4, 2048 * 896)
    a.vmem("global_load_ushort v24, v11, s[6:7]", 'x')
    a.vmem("global_load_ushort v25, v11, s[8:9]", 'x')
    a.vmem("buffer_load_dwordx4 v[64:67], v10, s[56:59], s47 offen", 'x')
    a.vmem("buffer_load_dwordx4 v[68:71], v10, s[56:59], s47 offen offset:16", 'x')
    a.vmem("buffer_load_dwordx4 v[72:75], v10, s[56:59], s47 offen offset:64", 'x')
    a.vmem("buffer_load_dwordx4 v[76:79], v10, s[56:59], s47 offen offset:80", 'x')
    for e in range(8):
        a.vmem(f"buffer_load_ushort v{16+e}, v{8 if e < 4 else 9}, s[48:51], 0 offen offset:{896*(e&3)}", 'x')
    for s_ in range(7):
        a.vmem(f"buffer_load_dwordx4 {vr(32+4*s_,4)}, v7, s[56:59], s46 offen", ('p', s_))
        a("s_add_u32 s46, s46, 1024")
    srd(a, 52, 10, 2048 * 1792)
    a.wait_vm('x')
    if opt.get('k2prof'): a("s_memtime s[72:73]")
    a("v_lshlrev_b32 v24, 16, v24")
    a("v_lshlrev_b32 v25, 16, v25")
    for e in range(8):
        m1 = 64 + 8 * (e >> 2) + 2 * (e & 3)
        a(f"v_lshlrev_b32 v26, 16, v{16+e}")
        a(f"v_sub_f32 v27, v26, v{m1}")
        a(f"v_add_f32 v{80+e}, v25, v26")
        a(f"v_mul_f32 v27, v27, v{m1+1}")
        a(f"v_fmac_f32 v{80+e}, v27, v24")
    for s_ in range(7):
        a.wait_vm(('p', s_))
        if opt.get('k2prof') and s_ in (0, 6): a(f"s_memtime s[{68 if s_ == 0 else 70}:{69 if s_ == 0 else 71}]")
        for d in range(4):
            r = 32 + 4 * s_ + d
            a(f"v_lshlrev_b32 v14, 16, v{r}")
            a(f"v_and_b32 v15, 0xffff0000, v{r}")
            a(f"v_add_f32 v{80+2*d}, v{80+2*d}, v14")
            a(f"v_add_f32 v{81+2*d}, v{81+2*d}, v15")
            if s_ == 6:
                sc = "sc1" if opt.get('k2sc', '0') == '1' else ""
                for e in (2 * d, 2 * d + 1):
                    if (e & 3) < 3:
                        a(f"buffer_store_dword v{80+e}, v{12 if e < 4 else 13}, s[52:55], 0 offen offset:{1792*(e&3)} {sc}")
                    else:
                        a(f"buffer_store_dword v{80+e}, v{28 if e < 4 else 29}, s[52:55], 0 offen offset:1792 {sc}")
    if opt.get('k2prof'):
        a("s_memtime s[74:75]")
        a("s_waitcnt vmcnt(0)")
        a("s_memtime s[76:77]")
        a("v_readfirstlane_b32 s40, v2")
        a("s_lshl_b32 s62, s2, 3")
        a("s_add_u32 s62, s62, s40")
        a("s_lshl_b32 s62, s62, 5")
        a("s_add_u32 s62, s62, 0xF90000")
        a("s_waitcnt lgkmcnt(0)")
        a("v_mov_b32 v3, 0")
        for i_, r_ in enumerate((78, 66, 68, 70, 72, 74, 76)):
            a(f"v_mov_b32 v30, s{r_}")
            a(f"buffer_store_dword v30, v3, s[56:59], s62 offen offset:{4*i_}")
    if opt.get('span'):
        a("s_waitcnt vmcnt(0)")
        a("s_memrealtime s[60:61]")
        a("v_readfirstlane_b32 s40, v2")
        a("s_lshl_b32 s62, s2, 3")
        a("s_add_u32 s62, s62, s40")
        a("s_lshl_b32 s62, s62, 2")
        a("s_add_u32 s62, s62, 0xF81000")
        a("s_waitcnt lgkmcnt(0)")
        a("v_mov_b32 v2, s60")
        a("v_mov_b32 v3, 0")
        a("s_mov_b64 exec, 1")
        a("buffer_store_dword v2, v3, s[56:59], s62 offen")
        a("v_mov_b32 v2, s64")
        a("s_add_u32 s62, s62, 0x8000")
        a("buffer_store_dword v2, v3, s[56:59], s62 offen")
    a.label("K2_END")
    a("s_endpgm")
    return a


def desc(name, vgpr, sgpr=102):
    return f""".p2align 6
.amdhsa_kernel {name}
  .amdhsa_next_free_vgpr {vgpr}
  .amdhsa_next_free_sgpr {sgpr}
  .amdhsa_accum_offset {vgpr}
  .amdhsa_group_segment_fixed_size 0
  .amdhsa_kernarg_size 136
  .amdhsa_user_sgpr_count 2
  .amdhsa_user_sgpr_kernarg_segment_ptr 1
  .amdhsa_system_sgpr_workgroup_id_x 1
.end_amdhsa_kernel
"""


def build(opt):
    ref = open("parallel_sum__ssm_conv_s5__mixer_channel_mlp__prompt.s.ref").read() if opt.get('hdr', True) else ""
    hdr = [l for l in ref.split("\n") if l.startswith(";") and "@launch" not in l and "Override launch" not in l and "grid=ceil" not in l]
    out = "\n".join(hdr) + "\n"
    out += f"; @launch grid=(256,1,1) block=(512,1,1) lds={LDS_BYTES}\n"
    out += '.amdgcn_target "amdgcn-amd-amdhsa--gfx950"\n.text\n'
    k1 = gen_k1(opt)
    kn = KNAME + "_kernel"
    out += f".globl {kn}\n.p2align 8\n.type {kn},@function\n{kn}:\n" + k1.text().replace("k1_kernel", kn)
    out += '.section .rodata,"a"\n' + desc(kn, 256)
    return out


if __name__ == "__main__":
    opt = {}
    outp = sys.argv[1]
    for kv in sys.argv[2:]:
        k, v = kv.split("=")
        opt[k] = v
    open(outp, "w").write(build(opt))
```

```python
import sys
from asmlib import Asm

KNAME = "parallel_sum__ssm_conv_s5__mixer_channel_mlp__prompt"

Y = 0
Q = 57344
P = 106496
RING = 12288
MISC = 155648
S2T = MISC
M2T = MISC + 256
AT = MISC + 2816
SCR = MISC + 512
CNT = MISC + 2560
LDS_BYTES = 163840
EBUF = 0
STATS = 0x20000
EIN = 0x80000
RFLAG = 0xC0000
INBOX = 0x40000
PBUF = 0x100000
WS_SIZE = 0x1000000
OOB = 0x7ff00000

sSL, sRB, sWV = 38, 39, 40
sRING, sT, sT2, sBASE, sBASE2 = 41, 42, 43, 76, 77
SX, SA, SW2, SCR_, SCI, SBI, SWS, SDBG = 44, 48, 52, 56, 60, 64, 68, 72
sRING3 = 78
sCB = 79
sW2B = 80
sTMP = 82
sP0, sINC0, sINC1, sOFF, sJS = 88, 89, 90, 91, 92
sSLOT1, sSLOT3 = 6, 12
sPA = 94
sDUM = 97

LOG2E = 1.4426950408889634


def fhex(x):
    import struct
    return "0x%08x" % struct.unpack("<I", struct.pack("<f", x))[0]


def srd(a, dst, ptr, size):
    a(f"s_mov_b32 s{dst}, s{ptr}")
    a(f"s_mov_b32 s{dst+1}, s{ptr+1}")
    a(f"s_mov_b32 s{dst+2}, {size}")
    a(f"s_mov_b32 s{dst+3}, 0x20000")


def vr(b, n):
    return f"v[{b}:{b+n-1}]" if n > 1 else f"v{b}"


class Stream:
    def __init__(self, a, items, first_index=0):
        self.a = a
        self.items = items
        self.first = first_index
        self.next = 0

    def slot(self, i):
        return (self.first + i) % 6

    def issue(self, upto):
        a = self.a
        while self.next < min(upto, len(self.items)):
            it = self.items[self.next]
            sl = self.slot(self.next)
            a(f"s_add_u32 m0, s{it['ring']}, {sl*2048}")
            a(f"s_add_u32 s{sT}, s{it['sbase']}, {it['off']}")
            a.vmem(f"buffer_load_dwordx4 v{it['va']}, s[{it['srd']}:{it['srd']+3}], s{sT} offen lds", ('st', self.first + self.next))
            a.vmem(f"buffer_load_dwordx4 v{it['vb']}, s[{it['srd']}:{it['srd']+3}], s{sT} offen offset:1024 lds", ('st', self.first + self.next))
            self.next += 1

    def wait(self, i):
        self.a.wait_vm(('st', self.first + i))

    def parts(self, upto):
        a = self.a
        out = []
        while self.next < min(upto, len(self.items)):
            it = self.items[self.next]
            sl = self.slot(self.next)
            idx = self.first + self.next

            def setup(it=it, sl=sl):
                a(f"s_add_u32 s{sT}, s{it['sbase']}, {it['off']}")

            def setm0(it=it, sl=sl):
                base = sSLOT1 if it['ring'] == sRING else sSLOT3
                a(f"s_mov_b32 m0, s{base + sl}")

            def da(it=it, idx=idx):
                a.vmem(f"buffer_load_dwordx4 v{it['va']}, s[{it['srd']}:{it['srd']+3}], s{sT} offen lds", ('st', idx))

            def db(it=it, idx=idx):
                a.vmem(f"buffer_load_dwordx4 v{it['vb']}, s[{it['srd']}:{it['srd']+3}], s{sT} offen offset:1024 lds", ('st', idx))
            out.append((setup, da, db, setm0))
            self.next += 1
        return out


def signal(a, off):
    a(f"v_mov_b32 v2, {CNT+off}")
    a("v_mov_b32 v3, 1")
    a("s_mov_b64 exec, 1")
    a("ds_add_u32 v2, v3")
    a("s_mov_b64 exec, -1")


_spin = [0]
SLOW = []
def spin(a, off, n):
    _spin[0] += 1
    L = f"K1_SPIN{_spin[0]}"
    a(f"v_mov_b32 v2, {CNT+off}")
    a.label(L)
    a("ds_read_b32 v3, v2")
    a("s_waitcnt lgkmcnt(0)")
    a(f"v_readfirstlane_b32 s{sT}, v3")
    a(f"s_cmp_ge_u32 s{sT}, {n}")
    a(f"s_cbranch_scc0 {L}_S")
    SLOW.append((L + "_S", ["s_sleep 1", f"s_branch {L}"]))
    a.lg = []


def both_wait(a, vtag, ltag):
    parts = []
    if vtag is not None:
        idx = max((i for i, t in enumerate(a.vm) if t == vtag), default=None)
        if idx is not None:
            parts.append(f"vmcnt({len(a.vm) - 1 - idx})")
            a.vm = a.vm[idx + 1:]
    if ltag is not None:
        idx = max((i for i, t in enumerate(a.lg) if t == ltag), default=None)
        if idx is not None:
            parts.append(f"lgkmcnt({len(a.lg) - 1 - idx})")
            a.lg = a.lg[idx + 1:]
    a("s_waitcnt " + " ".join(parts) if parts else "s_nop 0")


def bf16_round(a, dst, src):
    a(f"v_cvt_pk_bf16_f32 v{dst}, v{src}, v{src}")
    a(f"v_lshlrev_b32 v{dst}, 16, v{dst}")


PROF = [False]
XS = [False]
STORESYNC = [True]
KORDER = list(range(16))
HALF = [True]
PRIOSW = [True]
PRIO16 = [1]
PSC = ['sc1']
GSH = [True]
OWNP = [True]
OWNBLK = []
PSW = [None]
P14 = [3]
XNOVM = [False]
def stamp(a, i):
    if not PROF[0]: return
    a("s_waitcnt lgkmcnt(0)")
    a("s_memtime s[100:101]")
    a("s_waitcnt lgkmcnt(0)")
    a(f"v_writelane_b32 v0, s100, {i}")
    a.lg = []

LS = [0]
def lstamp(a):
    if not PROF[0]: return
    a(f"s_memtime s[{4+2*LS[0]}:{5+2*LS[0]}]")
    LS[0] += 1

def lflush(a, lane0):
    if not PROF[0]: return
    a("s_waitcnt lgkmcnt(0)")
    a.lg = []
    for i in range(LS[0]):
        a(f"v_writelane_b32 v0, s{4+2*i}, {lane0+i}")
    LS[0] = 0

def stamp_out(a):
    if not PROF[0]: return
    a("s_memrealtime s[100:101]")
    a("s_lshl_b32 s87, s2, 3")
    a(f"s_add_u32 s87, s87, s{sWV}")
    a("s_lshl_b32 s87, s87, 8")
    a("s_add_u32 s87, s87, 0xE00000")
    a("s_waitcnt lgkmcnt(0)")
    a("v_writelane_b32 v0, s100, 62")
    a("v_writelane_b32 v0, s99, 63")
    a("v_lshlrev_b32 v2, 2, v1")
    a(f"buffer_store_dword v0, v2, s[{SWS}:{SWS+3}], s87 offen")

def gen_k1(opt):
    a = Asm()
    PROF[0] = bool(opt.get('prof'))
    XS[0] = bool(opt.get('x_g3'))
    STORESYNC[0] = opt.get('ssync', '0') == '1'
    HALF[0] = opt.get('half', '0') == '1'
    PRIOSW[0] = opt.get('priosw', '1') == '1'
    PRIO16[0] = int(opt.get('prio16', 1))
    PSC[0] = opt.get('psc', 'sc1').replace('_', ' ')
    GSH[0] = opt.get('gsh', '0') == '1'
    OWNP[0] = opt.get('own', '1') == '1'
    del OWNBLK[:]
    PSW[0] = tuple(int(x) for x in opt.get('psw', '8_1_1').split('_')) if opt.get('psw', '8_1_1') != 'none' else None
    P14[0] = int(opt.get('p14', 3))
    XNOVM[0] = bool(opt.get('x_novm3'))
    D2 = int(opt.get('d2', 4))
    NPRE = 4
    a(f"s_cmp_ge_u32 s2, 256")
    a("s_cbranch_scc1 K1_END")
    R = int(opt.get('R', 2))
    S_ = 8 // R
    RBG = 32 // R
    lg = lambda x: x.bit_length() - 1
    a(f"s_and_b32 s{sT}, s2, 7")
    a(f"s_lshr_b32 s{sT2}, s2, 3")
    a(f"s_and_b32 s{sJS}, s{sT2}, {RBG-1}")
    a(f"s_lshr_b32 s{sRB}, s{sT}, {lg(S_)}")
    a(f"s_mul_i32 s{sSL}, s{sJS}, {R}")
    a(f"s_add_u32 s{sRB}, s{sRB}, s{sSL}")
    a(f"s_and_b32 s{sSL}, s{sT}, {S_-1}")
    a(f"s_mul_i32 s{sSL}, s{sSL}, {R}")
    a(f"s_lshr_b32 s{sT2}, s{sT2}, {lg(RBG)}")
    a(f"s_add_u32 s{sSL}, s{sSL}, s{sT2}")
    a(f"s_cmp_ge_u32 s{sSL}, 7")
    a("s_cbranch_scc1 K1_COLL")
    if PROF[0]:
        a("s_memrealtime s[100:101]\n s_waitcnt lgkmcnt(0)\n s_mov_b32 s99, s100")
        a("s_memtime s[100:101]\n s_waitcnt lgkmcnt(0)\n s_mov_b32 s98, s100")
    if opt.get('span'):
        a("s_memrealtime s[98:99]")
    a("s_load_dwordx16 s[4:19], s[0:1], 0")
    a("s_load_dwordx16 s[20:35], s[0:1], 64")
    a("s_load_dwordx2 s[36:37], s[0:1], 128")
    a("v_lshrrev_b32 v2, 6, v0")
    a("v_and_b32 v1, 63, v0")
    if opt.get('ctouch', '1') == '1':
        NL = int(opt.get('cnl', 6))
        a("s_getpc_b64 s[94:95]")
        a.label("K1_PC")
        a("s_sub_u32 s94, s94, K1_PC-k1_kernel")
        a("s_subb_u32 s95, s95, 0")
        a("s_lshr_b32 s96, s2, 3")
        a(f"s_mul_i32 s96, s96, {NL*128}")
        a("v_lshlrev_b32 v3, 7, v0")
        a("v_add_u32 v3, s96, v3")
        a(f"v_cmp_gt_u32 s[84:85], {NL}, v0")
        a("v_cmp_gt_u32 vcc, K1_END-k1_kernel, v3")
        a("s_and_b64 vcc, vcc, s[84:85]")
        a("s_and_saveexec_b64 s[96:97], vcc")
        a("s_cbranch_execz K1_NOCT")
        a("global_load_dword v251, v3, s[94:95]")
        a.label("K1_NOCT")
        a("s_mov_b64 exec, s[96:97]")
    a(f"v_readfirstlane_b32 s{sWV}, v2")
    if opt.get('swap', '1') == '1':
        a(f"s_xor_b32 s{sWV}, s{sWV}, 4")
    if PROF[0]:
        a("v_writelane_b32 v0, s98, 0")
    a("v_lshrrev_b32 v3, 3, v1")
    a("v_and_b32 v4, 7, v1")
    a("v_mul_u32_u24 v5, 896, v3")
    a("v_lshl_add_u32 v10, v4, 4, v5")
    a("v_and_b32 v2, 15, v1")
    a(f"s_lshl_b32 s{sT}, s{sRB}, 3")
    a(f"s_add_u32 s{sT}, s{sT}, s{sWV}")
    a(f"s_mul_i32 s{sBASE2}, s{sT}, {8*896}")
    a(f"s_and_b32 s{sT}, s{sWV}, 3")
    a(f"s_lshl_b32 s{sT}, s{sT}, 4")
    a(f"s_lshl_b32 s{sT2}, s{sSL}, 6")
    a(f"s_add_u32 s{sP0}, s{sT}, s{sT2}")
    a(f"v_add_u32 v2, s{sP0}, v2")
    a("v_lshlrev_b32 v2, 1, v2")
    a("s_waitcnt lgkmcnt(0)")
    stamp(a, 11)
    def stouch_w1(m, nl=4, l0=0):
        NS = RBG
        nrow = 448 // NS
        a(f"s_add_u32 s{sT}, s{sWV}, {8*m}")
        skip = None
        if 8 * m + 7 >= nrow:
            _spin[0] += 1
            skip = f"K1_ST{m}_{_spin[0]}"
            a(f"s_cmp_ge_u32 s{sT}, {nrow}")
            a(f"s_cbranch_scc1 {skip}")
        a(f"s_mul_i32 s{sT}, s{sT}, {NS}")
        a(f"s_add_u32 s{sT}, s{sT}, s{sJS}")
        a(f"s_mul_i32 s{sT}, s{sT}, 3584")
        a(f"s_lshl_b32 s{sT2}, s{sSL}, 9")
        a(f"s_add_u32 s{sT}, s{sT}, s{sT2}")
        a(f"s_add_u32 s{sPA}, s24, s{sT}")
        a(f"s_addc_u32 s{sPA+1}, s25, 0")
        for k in range(l0, nl):
            a(f"s_load_dword s{sDUM}, s[{sPA}:{sPA+1}], {128*k}")
        if skip:
            a.label(skip)

    def stouch_b():
        NS = RBG
        per = 128 // NS
        if per < 8:
            a(f"s_cmp_ge_u32 s{sWV}, {per}")
            a("s_cbranch_scc1 K1_STB")
        reps = max(1, per // 8)
        for rep in range(reps):
            a(f"s_mul_i32 s{sT}, s{sJS}, {per}")
            a(f"s_add_u32 s{sT}, s{sT}, s{sWV}")
            if rep:
                a(f"s_add_u32 s{sT}, s{sT}, {8*rep}")
            a(f"s_and_b32 s{sT2}, s{sT}, 63")
            a(f"s_lshl_b32 s{sPA}, s{sSL}, 6")
            a(f"s_add_u32 s{sT2}, s{sT2}, s{sPA}")
            a(f"s_mul_i32 s{sT2}, s{sT2}, 896")
            a(f"s_cmp_ge_u32 s{sT}, 64")
            a(f"s_cselect_b32 s{sPA}, s12, s10")
            a(f"s_cselect_b32 s{sPA+1}, s13, s11")
            a(f"s_add_u32 s{sPA}, s{sPA}, s{sT2}")
            a(f"s_addc_u32 s{sPA+1}, s{sPA+1}, 0")
            for k in range(7):
                a(f"s_load_dword s{sDUM}, s[{sPA}:{sPA+1}], {128*k}")
        if per < 8:
            a.label("K1_STB")
    def stouch_w1g(m, nl=4, l0=0):
        n0 = len(a.items)
        stouch_w1(m, nl, l0)
        for i in range(n0, len(a.items)):
            k_, it = a.items[i]
            if k_ == 'label':
                a.items[i] = (k_, it + "G")
            elif k_ == 'ins' and 'K1_ST' in it.text:
                from asmlib import Ins
                a.items[i] = (k_, Ins(it.text + "G"))
    STOUCH = opt.get('stouch', '0') == '1'
    if STOUCH:
        stouch_b()
        stouch_w1(0)
        stouch_w1(1, 3)
    srd(a, SX, 4, 2048 * 896)
    if opt.get('warm'):
        srd(a, 48, 24, 448 * 3584); srd(a, 52, 28, 1792 * 896); srd(a, 56, 14, 448 * 896); srd(a, 60, 16, 448 * 896)
        srd(a, 64, 10, 448 * 896); srd(a, 68, 12, 448 * 896)
        a("v_lshlrev_b32 v6, 6, v0") if False else None
        a("v_and_b32 v7, 63, v1")
        a(f"s_lshl_b32 s{sT}, s{sWV}, 6")
        a(f"v_add_u32 v7, s{sT}, v1")
        for k in range(7):
            a(f"v_add_u32 v8, {512*k}, v7")
            a("v_lshrrev_b32 v9, 3, v8")
            a("v_mul_u32_u24 v9, 3584, v9")
            a("v_and_b32 v8, 7, v8")
            a("v_lshl_add_u32 v9, v8, 6, v9")
            a(f"s_lshl_b32 s{sT}, s{sSL}, 9")
            a(f"buffer_load_dword v250, v9, s[48:51], s{sT} offen")
        a(f"s_mul_i32 s{sT}, s{sSL}, {256*896}")
        for k in range(7):
            a(f"v_add_u32 v8, {512*k}, v7")
            a("v_lshlrev_b32 v9, 6, v8")
            a(f"buffer_load_dword v250, v9, s[52:55], s{sT} offen")
        a(f"s_mul_i32 s{sT}, s{sSL}, {64*896}")
        for k in range(2):
            a(f"v_add_u32 v8, {512*k}, v7")
            a("v_lshlrev_b32 v9, 6, v8")
            a(f"buffer_load_dword v250, v9, s[64:67], s{sT} offen")
            a(f"buffer_load_dword v250, v9, s[68:71], s{sT} offen")
        for k in range(2):
            a(f"v_add_u32 v8, {512*k}, v7")
            a("v_lshrrev_b32 v9, 1, v8")
            a("v_mul_u32_u24 v9, 896, v9")
            a("v_and_b32 v8, 1, v8")
            a("v_lshl_add_u32 v9, v8, 6, v9")
            a(f"s_lshl_b32 s{sT}, s{sSL}, 7")
            a(f"buffer_load_dword v250, v9, s[56:59], s{sT} offen")
            a(f"buffer_load_dword v250, v9, s[60:63], s{sT} offen")
        a(f"s_mul_i32 s{sT}, s{sRB}, {64*896}")
        for k in range(2):
            a(f"v_add_u32 v8, {512*k}, v7")
            a("v_lshlrev_b32 v9, 6, v8")
            a(f"buffer_load_dword v250, v9, s[{SX}:{SX+3}], s{sT} offen")
        a("s_waitcnt vmcnt(0)")
        a("s_barrier")
        a("s_sleep 64")
        a("s_barrier")
        if PROF[0]:
            a("s_memtime s[100:101]\n s_waitcnt lgkmcnt(0)\n v_writelane_b32 v0, s100, 0")
    a.vmem("global_load_ushort v104, v2, s[6:7]", 'par')
    a.vmem("global_load_ushort v105, v2, s[8:9]", 'par')
    a.vmem("global_load_ushort v106, v2, s[18:19]", 'par')
    for i in range(7):
        a.vmem(f"buffer_load_dwordx4 {vr(32+4*i,4)}, v10, s[{SX}:{SX+3}], s{sBASE2} offen offset:{128*i}", 'x')
    if opt.get('tlbw', '0') == '1':
        a("v_mov_b32 v2, 0")
        a("s_mov_b64 exec, 1")
        a.vmem("global_load_dword v250, v2, s[28:29]", 'tlb')
        a.vmem("global_load_dword v250, v2, s[14:15]", 'tlb')
        a.vmem("global_load_dword v250, v2, s[16:17]", 'tlb')
        a.vmem("global_load_dword v250, v2, s[36:37]", 'tlb')
        a("s_mov_b64 exec, -1")
    x_state = list(a.vm)

    srd(a, SW2, 28, 1792 * 896)
    srd(a, SCR_, 14, 448 * 896)
    srd(a, SCI, 16, 448 * 896)
    srd(a, SWS, 36, WS_SIZE)
    srd(a, SDBG, 34, 256)
    if opt.get('span'):
        a(f"s_lshl_b32 s{sT}, s2, 2")
        a(f"s_add_u32 s{sT}, s{sT}, 0xF80000")
        a("v_mov_b32 v240, s98")
        a("v_mov_b32 v241, 0")
        a("s_mov_b64 exec, 1")
        a(f"buffer_store_dword v240, v241, s[{SWS}:{SWS+3}], s{sT} offen")
        a("s_mov_b64 exec, -1")
    a("v_lshrrev_b32 v6, 4, v1")
    a("v_and_b32 v7, 1, v6")
    a("v_lshlrev_b32 v7, 2, v7")
    a("v_xor_b32 v7, v4, v7")
    a("v_xor_b32 v8, v4, v6")
    a("v_lshl_add_u32 v31, v8, 4, v5")
    a("v_xor_b32 v11, 64, v31")
    a(f"v_add_u32 v11, {8*896-1024}, v11")
    a("v_lshl_add_u32 v29, v7, 4, v5")
    a(f"v_add_u32 v30, {8*896-1024}, v29")
    NS = RBG
    nW = 448 * 4 // NS // 4
    a(f"s_and_b32 s{sT}, s{sWV}, 3")
    a(f"s_mul_i32 s{sT}, s{sT}, {nW}")
    a(f"v_add_u32 v6, s{sT}, v1")
    a("v_lshrrev_b32 v9, 2, v6")
    a(f"v_mul_u32_u24 v9, {NS}, v9")
    a(f"v_add_u32 v9, s{sJS}, v9")
    a("v_mul_u32_u24 v9, 3584, v9")
    a("v_and_b32 v6, 3, v6")
    a("v_lshl_add_u32 v248, v6, 7, v9")
    a(f"s_lshl_b32 s{sT}, s{sSL}, 9")
    a(f"v_add_u32 v248, s{sT}, v248")
    a("v_lshlrev_b32 v249, 7, v1")
    a("v_lshrrev_b32 v6, 4, v1")
    a(f"s_mul_i32 s{sW2B}, s{sSL}, {256*896}")
    a(f"s_lshl_b32 s{sT}, s{sWV}, 7")
    a(f"s_add_u32 s{sW2B}, s{sW2B}, s{sT}")
    a(f"s_mul_i32 s{sCB}, s{sWV}, {64*896}")
    a(f"s_lshl_b32 s{sT}, s{sSL}, 7")
    a(f"s_add_u32 s{sCB}, s{sCB}, s{sT}")
    a(f"s_lshl_b32 s{sT}, s{sWV}, 3")
    a(f"v_add_u32 v62, s{sT}, v3")
    a("v_bfe_u32 v63, v62, 1, 3")
    a(f"s_lshr_b32 s{sT}, s{sWV}, 1")
    a(f"s_and_b32 s{sT2}, s{sT}, 1")
    a(f"s_mul_i32 s{sT2}, s{sT2}, 3")
    a(f"s_lshr_b32 s{sT}, s{sT}, 1")
    a(f"s_xor_b32 s{sT}, s{sT}, s{sT2}")
    a(f"s_lshl_b32 s{sT}, s{sT}, 1")
    a(f"v_xor_b32 v63, s{sT}, v63")
    a("v_xor_b32 v63, v63, v4")
    a("v_mul_u32_u24 v61, 896, v62")
    a("v_lshl_add_u32 v10, v63, 4, v61")
    a("v_lshlrev_b32 v62, 2, v62")
    a("v_mov_b32 v60, 0")
    a(f"v_mov_b32 v63, {CNT}")
    for k in range(12):
        a(f"ds_write_b32 v63, v60 offset:{4*k}")
    a(f"s_cmp_ge_u32 s{sWV}, 4")
    a("s_cbranch_scc1 K1_G1_PRE")

    def touch1(sfx):
        if opt.get('touch1', '1') != '1':
            return
        if sfx.endswith("A"):
            nl = 448 * 4 // NS // 4
            assert nl <= 64
            a(f"s_mov_b64 exec, {hex((1 << nl) - 1)}")
            a("global_load_dword v252, v248, s[24:25]")
        else:
            perB = 128 // NS
            perW = perB // 4
            assert perW >= 1 and 7 * perW <= 64
            a(f"s_mul_i32 s{sT}, s{sJS}, {perB}")
            a(f"s_sub_u32 s{sT2}, s{sWV}, 4")
            a(f"s_mul_i32 s{sT2}, s{sT2}, {perW}")
            a(f"s_add_u32 s{sT}, s{sT}, s{sT2}")
            a(f"s_and_b32 s{sT2}, s{sT}, 63")
            a(f"s_lshl_b32 s{sPA}, s{sSL}, 6")
            a(f"s_add_u32 s{sT2}, s{sT2}, s{sPA}")
            a(f"s_mul_i32 s{sT2}, s{sT2}, 896")
            a(f"s_cmp_ge_u32 s{sT}, 64")
            a(f"s_cselect_b32 s{sPA}, s12, s10")
            a(f"s_cselect_b32 s{sPA+1}, s13, s11")
            a(f"s_add_u32 s{sPA}, s{sPA}, s{sT2}")
            a(f"s_addc_u32 s{sPA+1}, s{sPA+1}, 0")
            a(f"s_mov_b64 exec, {hex((1 << (7 * perW)) - 1)}")
            a(f"global_load_dword v253, v249, s[{sPA}:{sPA+1}]")
        a("s_mov_b64 exec, -1")

    LR, LI = 104, 105
    CR, CI = 116, 117
    L16R, L16I, PGR, PGI, MUR, MUI, M8R, M8I = 106, 107, 108, 109, 110, 111, 112, 113

    def cmac(dr, di, xr, xi, yr, yi, ar, ai):
        a(f"v_fma_f32 v{dr}, v{xr}, v{yr}, v{ar}")
        a(f"v_fma_f32 v{di}, v{xr}, v{yi}, v{ai}")
        a(f"v_fma_f32 v{dr}, -v{xi}, v{yi}, v{dr}")
        a(f"v_fmac_f32 v{di}, v{xi}, v{yr}")

    def lam_block():
        a.wait_vm('par')
        if not STOUCH: stamp(a, 12)
        LR, LI = 104, 105
        a("v_lshlrev_b32 v107, 16, v104")
        a("v_lshlrev_b32 v108, 16, v105")
        a("v_lshlrev_b32 v106, 16, v106")
        a(f"v_mul_f32 v106, {fhex(LOG2E)}, v106")
        a("v_exp_f32 v106, v106")
        bf16_round(a, 106, 106)
        a("v_mul_f32 v109, v106, v107")
        a("v_mul_f32 v110, v106, v108")
        a(f"v_mul_f32 v109, {fhex(LOG2E)}, v109")
        a(f"v_mul_f32 v110, {fhex(0.15915494309189535)}, v110")
        a("v_exp_f32 v109, v109")
        a("v_rndne_f32 v111, v110")
        a("v_sub_f32 v110, v110, v111")
        a("v_cos_f32 v111, v110")
        a("v_sin_f32 v112, v110")
        a("v_mul_f32 v113, v107, v107")
        a("v_fmac_f32 v113, v108, v108")
        a("v_mul_f32 v104, v109, v111")
        a("v_mul_f32 v105, v109, v112")
        a("v_rcp_f32 v110, v113")
        a("v_add_f32 v109, -1.0, v104")
        a("v_mul_f32 v111, v109, v107")
        a("v_mul_f32 v112, v105, v107")
        a("v_fmac_f32 v111, v105, v108")
        a("v_fma_f32 v112, -v109, v108, v112")
        a("v_add_f32 v110, v110, v110")
        CR, CI = 116, 117
        a(f"v_mul_f32 v{CR}, v111, v110")
        a(f"v_mul_f32 v{CI}, v112, v110")

        def csq(dr, di, sr, si):
            a(f"v_mul_f32 v{dr}, v{sr}, v{sr}")
            a(f"v_mul_f32 v{di}, v{sr}, v{si}")
            a(f"v_fma_f32 v{dr}, -v{si}, v{si}, v{dr}")
            a(f"v_add_f32 v{di}, v{di}, v{di}")

        def cmul(dr, di, xr, xi, yr, yi):
            a(f"v_mul_f32 v{dr}, v{xr}, v{yr}")
            a(f"v_mul_f32 v{di}, v{xr}, v{yi}")
            a(f"v_fma_f32 v{dr}, -v{xi}, v{yi}, v{dr}")
            a(f"v_fmac_f32 v{di}, v{xi}, v{yr}")

        def cmac(dr, di, xr, xi, yr, yi, ar, ai):
            a(f"v_fma_f32 v{dr}, v{xr}, v{yr}, v{ar}")
            a(f"v_fma_f32 v{di}, v{xr}, v{yi}, v{ai}")
            a(f"v_fma_f32 v{dr}, -v{xi}, v{yi}, v{dr}")
            a(f"v_fmac_f32 v{di}, v{xi}, v{yr}")
        L16R, L16I, PGR, PGI, MUR, MUI, M8R, M8I = 106, 107, 108, 109, 110, 111, 112, 113
        csq(118, 119, LR, LI)
        csq(120, 121, 118, 119)
        csq(118, 119, 120, 121)
        csq(L16R, L16I, 118, 119)
        csq(118, 119, L16R, L16I)
        cmul(120, 121, 118, 119, L16R, L16I)
        a("v_lshrrev_b32 v2, 4, v1")
        a(f"v_mov_b32 v{PGR}, 1.0")
        a(f"v_mov_b32 v{PGI}, 0")
        a("v_cmp_eq_u32 vcc, 1, v2")
        a(f"v_cndmask_b32 v{PGR}, v{PGR}, v{L16R}, vcc")
        a(f"v_cndmask_b32 v{PGI}, v{PGI}, v{L16I}, vcc")
        a("v_cmp_eq_u32 vcc, 2, v2")
        a(f"v_cndmask_b32 v{PGR}, v{PGR}, v118, vcc")
        a(f"v_cndmask_b32 v{PGI}, v{PGI}, v119, vcc")
        a("v_cmp_eq_u32 vcc, 3, v2")
        a(f"v_cndmask_b32 v{PGR}, v{PGR}, v120, vcc")
        a(f"v_cndmask_b32 v{PGI}, v{PGI}, v121, vcc")

    def prefill(it):
        s_ = SA if it % 2 == 0 else SBI
        a(f"s_add_u32 m0, s{sRING}, {2048*it}")
        a("s_nop 0")
        a.vmem(f"buffer_load_dwordx4 v27, s[{s_}:{s_+3}], s{sOFF} offen lds", ('pre', it))
        a.vmem(f"buffer_load_dwordx4 v28, s[{s_}:{s_+3}], s{sOFF} offen offset:1024 lds", ('pre', it))
        a(f"s_add_u32 s{sOFF}, s{sOFF}, s{sINC0 if it % 2 == 0 else sINC1}")
    NEARLY = int(opt.get('nearly', 0))

    srd(a, SA, 24, 448 * 3584)
    srd(a, SBI, 24, 448 * 3584)
    a(f"s_mul_i32 s{sRING}, s{sWV}, {RING}")
    a(f"s_add_u32 s{sRING}, s{sRING}, {P}")
    a(f"s_mov_b32 s{sRING3}, s{sRING}")
    a(f"s_lshl_b32 s{sBASE}, s{sSL}, 9")
    a(f"s_lshl_b32 s{sT}, s{sWV}, 7")
    a(f"s_add_u32 s{sBASE}, s{sBASE}, s{sT}")
    a(f"s_mov_b32 s{sINC0}, {16*3584}")
    a(f"s_mov_b32 s{sINC1}, {16*3584}")
    a("v_mul_u32_u24 v27, 3584, v3")
    a("v_lshl_add_u32 v27, v7, 4, v27")
    a(f"v_add_u32 v28, {8*3584-1024}, v27")
    if opt.get('tpos', 'ln') == 'pre': touch1("A")
    if opt.get('touch'):
        a(f"s_mul_i32 s{sT}, s{sWV}, 28")
        a(f"v_add_u32 v2, s{sT}, v1")
        a("v_lshrrev_b32 v8, 3, v2")
        a("v_and_b32 v9, 7, v2")
        a(f"s_mul_i32 s{sT}, s{sRB}, 14")
        a(f"v_add_u32 v8, s{sT}, v8")
        a("v_mul_u32_u24 v8, 3584, v8")
        a("v_lshl_add_u32 v8, v9, 6, v8")
        a(f"s_lshl_b32 s{sT}, s{sSL}, 9")
        a(f"v_add_u32 v8, s{sT}, v8")
        a("v_lshlrev_b32 v9, 6, v2")
        a(f"s_lshl_b32 s{sT}, s{sSL}, 5")
        a(f"s_add_u32 s{sT}, s{sT}, s{sRB}")
        a(f"s_mul_i32 s{sT}, s{sT}, {8*896}")
        a(f"v_add_u32 v9, s{sT}, v9")
        a(f"v_mov_b32 v2, {OOB}")
        a("v_cmp_gt_u32 vcc, 28, v1")
        a("v_cndmask_b32 v8, v2, v8, vcc")
        a("v_cndmask_b32 v9, v2, v9, vcc")
        a.vmem(f"buffer_load_dword v252, v8, s[{SA}:{SA+3}], 0 offen", 'touch')
        a.vmem(f"buffer_load_dword v253, v9, s[{SW2}:{SW2+3}], 0 offen", 'touch')
    a(f"s_mov_b32 s{sOFF}, s{sBASE}")
    for it in range(NEARLY):
        prefill(it)
    a("v_mov_b32 v247, 0")
    a("v_mov_b32 v250, 0")
    g3_addr(a)
    a(f"v_add_u32 v12, s{sRING}, v8")
    a("v_xor_b32 v13, 64, v12")
    a("v_lshrrev_b32 v2, 5, v1")
    a("v_and_b32 v3, 31, v1")
    a("v_bfe_u32 v4, v3, 1, 3")
    a("v_lshrrev_b32 v5, 4, v3")
    a("v_mul_u32_u24 v5, 6, v5")
    a("v_xor_b32 v4, v4, v5")
    a("v_xor_b32 v4, v4, v2")
    a("v_mul_u32_u24 v5, 896, v3")
    for j in range(4):
        a(f"v_xor_b32 v6, {2*j}, v4")
        a(f"v_lshl_add_u32 v{14+j}, v6, 4, v5")
    if STOUCH:
        a("s_waitcnt lgkmcnt(0)")
        stouch_w1(1, 4, 3)
        for m in range(2, (448 // RBG + 7) // 8):
            stouch_w1(m)
    if opt.get('xbar', '1') == '1': a("s_barrier")
    if not STOUCH: stamp(a, 13)
    a.wait_vm('x')
    a("v_lshrrev_b32 v2, 5, v1")
    a("v_lshlrev_b32 v2, 3, v2")
    a(f"v_add_u32 v2, s{sBASE}, v2")
    for ft in range(2):
        for aa in range(4):
            a.vmem(f"global_load_dwordx2 {vr(224 + 2*(4*ft+aa), 2)}, v2, s[26:27] offset:{(32*ft+8*aa)*2}", 'bias')
    saved_vm_A = list(a.vm)

    def emit_ln(role):
        if not STOUCH: stamp(a, 1)
        NLN0 = int(opt.get('nln0', 0))
        for it in range(NEARLY, max(NEARLY, NLN0)):
            prefill(it)
        if opt.get('tpos', 'ln') == 'ln' and (role == "B" or opt.get('w1pos', 'g1') == 'ln'): touch1("C" + role)
        if opt.get('x_ln'): stamp(a, 40)
        U = 128
        a("v_mov_b32 v2, 0")
        a("v_mov_b32 v3, 0")
        a("v_mov_b32 v4, 0")
        a("v_mov_b32 v5, 0")
        a(f"v_mov_b32 v60, 0x3f803f80")
        for i in range(28):
            x = 32 + i
            a(f"v_dot2c_f32_bf16 v{2 + (i & 1)}, v60, v{x}")
            a(f"v_dot2c_f32_bf16 v{4 + (i & 1)}, v{x}, v{x}")
        if opt.get('x_ln'): stamp(a, 41)
        fill = []
        for i in range(28):
            fill.append(f"v_lshlrev_b32 v{U+2*i}, 16, v{32+i}")
            fill.append(f"v_and_b32 v{U+2*i+1}, 0xffff0000, v{32+i}")
        inv = fhex(1.0 / 448.0)
        eps = fhex(1e-5)
        chain = []
        chain += ["v_add_f32 v2, v2, v3", "v_add_f32 v4, v4, v5"]
        for m in ("quad_perm:[1,0,3,2]", "quad_perm:[2,3,0,1]", "row_half_mirror"):
            chain.append(f"v_add_f32_dpp v2, v2, v2 {m} row_mask:0xf bank_mask:0xf")
            chain.append(f"v_add_f32_dpp v4, v4, v4 {m} row_mask:0xf bank_mask:0xf")
        chain += [f"v_mul_f32 v5, {inv}, v2", f"v_mul_f32 v4, {inv}, v4", "v_fma_f32 v4, -v5, v5, v4", "v_max_f32 v4, 0, v4",
                  f"v_add_f32 v6, {eps}, v4", "v_rsq_f32 v6, v6",
                  "v_mul_f32 v7, v6, v6", "v_mul_f32 v7, v7, v4", f"v_add_f32 v7, {eps}, v7", "v_rsq_f32 v9, v7",
                  "v_mul_f32 v3, v6, v9", "v_mul_f32 v8, v7, v9", "v_mul_f32 v2, v5, v3", "v_sub_f32 v2, 0, v2"]
        for k, ins in enumerate(chain):
            a(ins)
            if fill:
                a(fill.pop(0))
        for f_ in fill:
            a(f_)
        if opt.get('x_ln'): stamp(a, 42)
        a("v_mov_b32 v60, v3")
        a("v_mov_b32 v61, v3")
        a("v_mov_b32 v4, v2")
        a("v_mov_b32 v63, v5")
        a("v_mov_b32 v5, v2")
        a("v_and_b32 v2, 7, v1")
        a("v_cmp_eq_u32 vcc, 0, v2")
        a(f"s_and_saveexec_b64 s[{sTMP}:{sTMP+1}], vcc")
        a(f"v_add_u32 v2, {S2T}, v62")
        a(f"ds_write_b32 v2, v8")
        a(f"ds_write_b32 v2, v63 offset:{M2T-S2T}")
        a(f"ds_write_b32 v2, v6 offset:{AT-S2T}")
        a(f"s_mov_b64 exec, s[{sTMP}:{sTMP+1}]")
        if opt.get('x_ln'): stamp(a, 43)
        if role == "B" and opt.get('g1pre', 'end') == 'mid':
            for it in range(6):
                prefill(it)
        a(".p2align 3")
        for i in range(7):
            for d in range(4):
                u = U + 2 * (4 * i + d)
                a(f"v_pk_fma_f32 v[{u}:{u+1}], v[{u}:{u+1}], v[60:61], v[4:5]")
            for d in range(4):
                u = U + 2 * (4 * i + d)
                a(f"v_cvt_pk_bf16_f32 v{32+4*i+d}, v{u}, v{u+1}")
            a(f"ds_write_b128 v10, {vr(32+4*i,4)} offset:{128*i}")
        a("s_waitcnt lgkmcnt(0)")
        stamp(a, 2)
    emit_ln("A")
    for k in range(6):
        a(f"s_add_u32 s{sSLOT1+k}, s{sRING}, {2048*k}")
        a(f"s_add_u32 s{sSLOT3+k}, s{sRING3}, {2048*k}")
    a(f"s_mov_b32 s{sOFF}, s{sBASE}")
    a("s_barrier")
    stamp(a, 3)
    NG2 = int(opt.get('ng2', 2))
    for it in range(NG2):
        prefill(it)
    pre_tags = [('st', i // 2) for i in range(2 * NG2)]

    PP = [(2, 3), (4, 5)]
    XR, XI = 122, 123
    def pass2(sfx, preloaded):
        if preloaded:
            a("s_branch K1_POLLW" + sfx)
        a.label("K1_POLL" + sfx)
        a(f"buffer_load_dwordx4 v[44:47], v250, s[{SWS}:{SWS+3}], 0 offen sc1")
        a("s_waitcnt vmcnt(0)")
        a.label("K1_POLLW" + sfx)
        a("v_cmp_ne_u32 vcc, 1, v46")
        a("s_cbranch_vccz K1_POLLED" + sfx)
        a(f"s_sleep {int(opt.get('psleep', 4))}")
        a("s_branch K1_POLL" + sfx)
        a.label("K1_POLLED" + sfx)
        stamp(a, 6)
        cmac(PP[1][0], PP[1][1], PGR, PGI, 44, 45, XR, XI)
        for e in range(16):
            nr, ni = PP[e & 1]
            hr, hi = PP[(e & 1) ^ 1]
            cmac(nr, ni, LR, LI, hr, hi, 64 + e, 80 + e)
            if e & 1:
                a(f"v_cvt_pk_bf16_f32 v{32 + e//2}, v{hr}, v{nr}")
                a(f"v_cvt_pk_bf16_f32 v{40 + e//2}, -v{hi}, -v{ni}")
        a.lds("ds_write_b128 v246, v[32:35] offset:8192", 'w')
        a.lds("ds_write_b128 v246, v[36:39] offset:8208", 'w')
        a.lds("ds_write_b128 v246, v[40:43] offset:10240", 'w')
        a.lds("ds_write_b128 v246, v[44:47] offset:10256", 'w')
        a.wait_lg_all()
        signal(a, 16)
        stamp(a, 7)
    a.vm = [t for t in saved_vm_A if not (isinstance(t, tuple) and t[0] == 'pre')] + pre_tags
    a.lg = []
    w1_items = [dict(srd=SA, va=27, vb=28, sbase=sBASE, off=16 * s * 3584, ring=sRING) for s in range(28)]
    w2_items = [dict(srd=SW2, va=29, vb=30, sbase=sW2B, off=16 * ks * 896, ring=sRING3) for ks in KORDER]
    c_items = []
    for part in range(2):
        for nt in range(2):
            for pr in range(2):
                c_items.append(dict(srd=(SCR_, SCI)[part], va=31, vb=11, sbase=sCB, off=(32 * nt + 16 * pr) * 896, ring=sRING3))
    stA = Stream(a, w1_items + w2_items + c_items, 0)
    stA.next = NG2
    a.wait_vm('bias')
    for ft in range(2):
        for aa in range(4):
            s_ = 224 + 2 * (4 * ft + aa)
            d_ = 128 + 16 * ft + 4 * aa
            a(f"v_lshlrev_b32 v{d_}, 16, v{s_}")
            a(f"v_and_b32 v{d_+1}, 0xffff0000, v{s_}")
            a(f"v_lshlrev_b32 v{d_+2}, 16, v{s_+1}")
            a(f"v_and_b32 v{d_+3}, 0xffff0000, v{s_+1}")

    FA = [192, 208, 224]

    def g2_reads(s):
        b = FA[s % 3]
        so = (s % 6) * 2048
        out = []
        for ft in range(2):
            for q in range(2):
                out.append(f"ds_read_b64_tr_b16 {vr(b+4*ft+2*q,2)}, v{12+ft} offset:{so+512*q}")
        j = s & 3
        out.append(f"ds_read_b128 {vr(b+8,4)}, v{14+j} offset:{128*(s>>2)}")
        out.append(f"ds_read_b128 {vr(b+12,4)}, v{14+(j^1)} offset:{128*(s>>2)+28672}")
        return out

    a(f"s_setprio {int(opt.get('g2p', 1))}")
    if opt.get('x_g2sleep'):
        a("s_sleep 127\n s_sleep 127")
    if opt.get('serial', '1') == '1':
        spin(a, 20, 4)
    if opt.get('w1pos', 'g1') == 'sig':
        touch1("DA")
    if opt.get('x_rep2'):
        a("s_mov_b32 s87, 0")
        a("s_waitcnt vmcnt(0)")
        a.vm = []
        a.label("K1_REP")
        stA.next = 0
        stamp(a, 44)
    stA.issue(6)
    stA.wait(0)
    for r in g2_reads(0):
        a.lds(r, ('f', 0))
    stA.wait(1)
    for r in g2_reads(1):
        a.lds(r, ('f', 1))
    a.wait_lg(('f', 0))
    stA.issue(7)
    a(".p2align 3")
    for s in range(28):
        b = FA[s % 3]
        ms = []
        for ft in range(2):
            for tt in range(2):
                acc = 64 + 32 * ft + 16 * tt
                c = vr(128 + 16 * ft, 16) if s == 0 else vr(acc, 16)
                ms.append(f"v_mfma_f32_32x32x16_bf16 {vr(acc,16)}, {vr(b+4*ft,4)}, {vr(b+8+4*tt,4)}, {c}")
        rd = g2_reads(s + 2) if s + 2 < 28 else []
        pp = stA.parts(min(s + 8, int(opt.get('g2cap', 34))))
        a(ms[0])
        both_wait(a, ('st', stA.first + s + 2) if s + 2 < 28 else None, ('f', s + 1) if s + 1 < 28 else None)
        if pp:
            pp[0][3]()
        else:
            a("s_nop 0")
        for r in rd[0:3]:
            a.lds(r, ('f', s + 2))
        a(ms[1])
        for r in rd[3:6]:
            a.lds(r, ('f', s + 2))
        if pp:
            pp[0][0]()
        a(ms[2])
        if pp:
            pp[0][1]()
        a(ms[3])
        if pp:
            pp[0][2]()
        for extra_ in pp[1:]:
            extra_[3](); a('s_nop 0'); extra_[0](); extra_[1](); extra_[2]()
        if opt.get('x_steps') and s % 3 == 2:
            lstamp(a)
    if opt.get('x_steps') and opt.get('x_rep2'):
        a("s_waitcnt lgkmcnt(0)")
        a.lg = []
        for i in range(LS[0]):
            a(f"s_mul_i32 s86, s87, 10")
            a(f"s_add_u32 m0, s86, {16+i}")
            a("s_nop 4")
            a(f"v_writelane_b32 v0, s{4+2*i}, m0")
        LS[0] = 0
    elif opt.get('x_steps'):
        lflush(a, 16)
    if opt.get('x_rep2'):
        a.wait_lg_all()
        a("s_waitcnt vmcnt(0)")
        a("s_cmp_eq_u32 s87, 1")
        a("s_cbranch_scc1 K1_REPD")
        stamp(a, 45)
        a("s_memtime s[100:101]\n s_waitcnt lgkmcnt(0)\n v_writelane_b32 v0, s100, 46")
        a("v_readlane_b32 s100, v0, 44")
        a("s_nop 4")
        a("v_writelane_b32 v0, s100, 47")
        a("s_mov_b32 s87, 1")
        a("s_branch K1_REP")
        a.label("K1_REPD")
        a.vm = []
    stamp(a, 4)
    a.wait_lg_all()
    signal(a, 8)
    spin(a, 0, 4)
    stA.issue(34)
    def touch2():
        if opt.get('touch2', '1') == '1':
            NS = RBG
            n2 = 1792 // NS // 4
            nc = 448 // NS // 4
            for rep in range((n2 + 63) // 64):
                a(f"s_mul_i32 s{sT}, s{sWV}, {n2}")
                a(f"v_add_u32 v2, s{sT}, v1")
                if rep:
                    a(f"v_add_u32 v2, {64*rep}, v2")
                a(f"v_mul_u32_u24 v2, {NS}, v2")
                a(f"v_add_u32 v2, s{sJS}, v2")
                a("v_lshlrev_b32 v2, 7, v2")
                a(f"v_mov_b32 v3, {OOB}")
                a(f"v_cmp_gt_u32 vcc, {n2 - 64*rep}, v1")
                a("v_cndmask_b32 v2, v3, v2, vcc")
                a(f"s_mul_i32 s{sT}, s{sSL}, {256*896}")
                a.vmem(f"buffer_load_dword v252, v2, s[{SW2}:{SW2+3}], s{sT} offen", 'touch')
            a(f"s_mul_i32 s{sT}, s{sWV}, {nc}")
            a(f"v_add_u32 v2, s{sT}, v1")
            a(f"v_mul_u32_u24 v2, {NS}, v2")
            a(f"v_add_u32 v2, s{sJS}, v2")
            a("v_mul_u32_u24 v2, 896, v2")
            a(f"v_mov_b32 v3, {OOB}")
            a(f"v_cmp_gt_u32 vcc, {nc}, v1")
            a("v_cndmask_b32 v2, v3, v2, vcc")
            a(f"s_lshl_b32 s{sT}, s{sSL}, 7")
            a.vmem(f"buffer_load_dword v253, v2, s[{SCR_}:{SCR_+3}], s{sT} offen", 'touch')
            a.vmem(f"buffer_load_dword v254, v2, s[{SCI}:{SCI+3}], s{sT} offen", 'touch')
    a("s_setprio 0")
    stamp(a, 5)
    if GSH[0]:
        spin(a, 8, 4)
        a(f"s_lshl_b32 s{sT}, s{sWV}, 13")
        a("v_lshlrev_b32 v2, 4, v1")
        a(f"v_add_u32 v32, s{sT}, v2")
        for k in range(8):
            a.lds(f"ds_write_b128 v32, {vr(96+4*k,4)} offset:{Y + 1024*k}", 'xf')
        a.wait_lg_all()
        signal(a, 40)
        gelu(a, touch2, int(opt.get('t2pos', 0)), fts=(0,))
    else:
        gelu(a, touch2, int(opt.get('t2pos', 1)))
    a.wait_lg_all()
    signal(a, 28)
    a(f"s_setprio {int(opt.get('g3p03', 2))}")
    stamp(a, 6)
    g3_stream = stA

    a.label("K1_G3")
    assert g3_stream.next == 34
    a.vm = [('st', 28 + i // 2) for i in range(12)]
    a.lg = []
    spin(a, 28, 8 if GSH[0] else 4)
    stamp(a, 8)
    def hook_load():
        if opt.get('hookpos', 'pre') == 'pre':
            return
        a.vmem(f"buffer_load_dwordx4 v[44:47], v250, s[{SWS}:{SWS+3}], 0 offen sc1", 'inbox')

    def hook_pass2():
        if opt.get('hookpos', 'pre') == 'pre':
            return
        a.wait_vm('inbox')
        a(f"s_cmp_ge_u32 s{sWV}, 4")
        a("s_cbranch_scc0 K1_HP")
        sv = (list(a.vm), list(a.lg))
        a(f"s_setprio {int(opt.get('p2prio', 0))}")
        pass2("B", True)
        a.vm, a.lg = sv[0], []
        a.label("K1_HP")
    g3(a, g3_stream, 28, D2, hook_load, hook_pass2)
    stamp(a, 19)
    a.vm = [('ps', 0)] * 8
    reduce_pre(a)
    a.wait_vm(('ps', 0))
    a(f"s_mul_i32 s{sT}, s{sRB}, 7")
    a(f"s_add_u32 s{sT}, s{sT}, s{sWV}")
    a(f"s_lshl_b32 s{sT}, s{sT}, 7")
    a(f"s_lshl_b32 s{sT2}, s{sSL}, 2")
    a(f"s_add_u32 s{sT}, s{sT}, s{sT2}")
    a(f"s_add_u32 s{sT}, s{sT}, {RFLAG}")
    a("v_mov_b32 v2, 1")
    a("v_mov_b32 v3, 0")
    a("s_mov_b64 exec, 1")
    a.vmem(f"buffer_store_dword v2, v3, s[{SWS}:{SWS+3}], s{sT} offen sc1", 'flag')
    a("s_mov_b64 exec, -1")
    a.label("K1_SIGD")
    signal(a, 32)
    stamp(a, 16)
    a.label("K1_RED")
    a.vm = ['x'] * 10
    a.lg = []
    reduce_main(a, opt)
    if opt.get('span'):
        a("s_memrealtime s[98:99]")
        a("s_waitcnt vmcnt(0)")
        a("s_memrealtime s[96:97]")
        a(f"s_lshl_b32 s{sT}, s2, 3")
        a(f"s_add_u32 s{sT}, s{sT}, s{sWV}")
        a(f"s_lshl_b32 s{sT}, s{sT}, 3")
        a(f"s_add_u32 s{sT}, s{sT}, 0xF84000")
        a("s_waitcnt lgkmcnt(0)")
        a("v_mov_b32 v2, s98")
        a("v_mov_b32 v3, s96")
        a("v_mov_b32 v4, 0")
        a("s_mov_b64 exec, 1")
        a(f"buffer_store_dwordx2 v[2:3], v4, s[{SWS}:{SWS+3}], s{sT} offen")
    stamp(a, 10)
    stamp_out(a)
    a("s_endpgm")

    a.label("K1_G1_PRE")
    a.vm = list(x_state)
    srd(a, SA, 10, 448 * 896)
    srd(a, SBI, 12, 448 * 896)
    a(f"s_sub_u32 s{sTMP}, s{sWV}, 4")
    a(f"s_mul_i32 s{sRING}, s{sTMP}, {RING}")
    a(f"s_add_u32 s{sRING3}, s{sRING}, {Y}")
    a(f"s_add_u32 s{sRING}, s{sRING}, {Q}")
    a(f"s_mul_i32 s{sBASE}, s{sP0}, 896")
    a(f"s_mov_b32 s{sINC0}, 0")
    a(f"s_mov_b32 s{sINC1}, 128")
    a("v_mov_b32 v27, v31")
    a("v_mov_b32 v28, v11")
    if opt.get('tpos', 'ln') == 'pre': touch1("B")
    if opt.get('touch'):
        a(f"s_mul_i32 s{sT}, s{sTMP}, 7")
        a(f"v_add_u32 v2, s{sT}, v1")
        a("v_lshlrev_b32 v8, 6, v2")
        a(f"s_lshl_b32 s{sT}, s{sSL}, 5")
        a(f"s_add_u32 s{sT}, s{sT}, s{sRB}")
        a(f"s_mul_i32 s{sT}, s{sT}, {2*896}")
        a(f"v_add_u32 v8, s{sT}, v8")
        a("v_lshrrev_b32 v9, 1, v2")
        a(f"s_mul_i32 s{sT}, s{sRB}, 14")
        a(f"v_add_u32 v9, s{sT}, v9")
        a("v_mul_u32_u24 v9, 896, v9")
        a("v_and_b32 v6, 1, v2")
        a("v_lshl_add_u32 v9, v6, 6, v9")
        a(f"s_lshl_b32 s{sT}, s{sSL}, 7")
        a(f"v_add_u32 v9, s{sT}, v9")
        a(f"v_mov_b32 v2, {OOB}")
        a("v_cmp_gt_u32 vcc, 7, v1")
        a("v_cndmask_b32 v8, v2, v8, vcc")
        a("v_cndmask_b32 v9, v2, v9, vcc")
        a.vmem(f"buffer_load_dword v252, v8, s[{SA}:{SA+3}], 0 offen", 'touch')
        a.vmem(f"buffer_load_dword v253, v8, s[{SBI}:{SBI+3}], 0 offen", 'touch')
        a.vmem(f"buffer_load_dword v254, v9, s[{SCR_}:{SCR_+3}], 0 offen", 'touch')
        a.vmem(f"buffer_load_dword v255, v9, s[{SCI}:{SCI+3}], 0 offen", 'touch')
    a(f"s_mov_b32 s{sOFF}, s{sBASE}")
    for it in range(NEARLY):
        prefill(it)
    g3_addr(a)
    a("v_and_b32 v2, 15, v1")
    a("v_lshrrev_b32 v3, 4, v1")
    a("v_bfe_u32 v4, v2, 1, 3")
    a("v_xor_b32 v4, v4, v3")
    a("v_lshlrev_b32 v4, 4, v4")
    a("v_lshl_add_u32 v4, v2, 7, v4")
    a(f"v_add_u32 v12, s{sRING}, v4")
    a("v_xor_b32 v13, 64, v12")
    a("v_lshrrev_b32 v4, 2, v2")
    a("v_and_b32 v5, 3, v2")
    a("v_lshl_add_u32 v6, v4, 4, v5")
    a("v_mul_u32_u24 v6, 896, v6")
    a("v_and_b32 v7, 1, v4")
    a("v_mul_u32_u24 v7, 3, v7")
    a("v_lshrrev_b32 v8, 1, v4")
    a("v_xor_b32 v7, v7, v8")
    a("v_lshlrev_b32 v7, 1, v7")
    a("v_lshrrev_b32 v8, 1, v5")
    a("v_xor_b32 v7, v7, v8")
    a("v_xor_b32 v7, v7, v3")
    for k in range(4):
        a(f"v_xor_b32 v8, {2*k}, v7")
        a(f"v_lshl_add_u32 v{14+k}, v8, 4, v6")
    a(f"s_lshl_b32 s{sT}, s{sTMP}, 9")
    a(f"s_add_u32 s{sT}, s{sT}, {SCR}")
    a("v_lshlrev_b32 v6, 5, v2")
    a(f"v_add_u32 v244, s{sT}, v6")
    a("v_lshl_add_u32 v245, v3, 3, v244")
    a("v_lshlrev_b32 v4, 1, v3")
    a("v_bfe_u32 v5, v2, 1, 1")
    a("v_lshlrev_b32 v5, 2, v5")
    a("v_xor_b32 v4, v4, v5")
    a("v_lshlrev_b32 v4, 4, v4")
    a("v_lshl_add_u32 v4, v2, 7, v4")
    a(f"v_add_u32 v246, s{sRING}, v4")
    a("v_lshlrev_b32 v247, 3, v2")
    a(f"s_lshl_b32 s{sT}, s{sSL}, 5")
    a(f"s_add_u32 s{sT}, s{sT}, s{sRB}")
    a(f"s_lshl_b32 s{sT}, s{sT}, 10")
    a(f"s_lshl_b32 s{sT2}, s{sTMP}, 8")
    a(f"s_add_u32 s{sT}, s{sT}, s{sT2}")
    a(f"s_add_u32 s{sT}, s{sT}, {INBOX}")
    a("v_lshlrev_b32 v250, 4, v2")
    a(f"v_add_u32 v250, s{sT}, v250")
    if STOUCH:
        a("s_waitcnt lgkmcnt(0)")
        stouch_w1g(1, 4, 3)
        for m in range(2, (448 // RBG + 7) // 8):
            stouch_w1g(m)
    if opt.get('xbar', '1') == '1': a("s_barrier")
    if not STOUCH: stamp(a, 13)
    a.wait_vm('x')
    saved_vm_B = list(a.vm)

    emit_ln("B")
    for k in range(6):
        a(f"s_add_u32 s{sSLOT1+k}, s{sRING}, {2048*k}")
        a(f"s_add_u32 s{sSLOT3+k}, s{sRING3}, {2048*k}")
    if opt.get('g1pre', 'end') != 'mid':
        for it in range(6):
            prefill(it)
    if opt.get('w1pos', 'g1') == 'g1':
        touch1("EA")
    for k in range(4):
        a(f"v_mov_b32 v{44+k}, 0")
    a("s_mov_b64 exec, 0xffff")
    a(f"buffer_store_dwordx4 v[44:47], v250, s[{SWS}:{SWS+3}], 0 offen sc1")
    a("s_mov_b64 exec, -1")
    a("v_lshlrev_b32 v249, 5, v1")
    a(f"s_cmp_eq_u32 s{sWV}, 4")
    a("s_cbranch_scc0 K1_NORDY")
    a("s_mov_b64 exec, 0x7f")
    a(f"buffer_load_dword v251, v249, s[{SDBG}:{SDBG+3}], 0 offen sc1")
    a("s_mov_b64 exec, -1")
    a.label("K1_NORDY")
    if opt.get('lampos', 'pre') == 'pre': lam_block()
    a("s_barrier")
    stamp(a, 3)
    a.vm = [t for t in saved_vm_B if not (isinstance(t, tuple) and t[0] == 'pre')] + [('b', i // 4) for i in range(12)]
    a.lg = []

    def b_parts(ds):
        sl_ = ds % 3
        return [
            lambda: (a(f"s_add_u32 m0, s{sRING}, {sl_*4096}"), a(f"s_add_u32 s{sT}, s{sBASE}, {128*ds}")),
            lambda: a.vmem(f"buffer_load_dwordx4 v31, s[{SA}:{SA+3}], s{sT} offen lds", ('b', ds)),
            lambda: a.vmem(f"buffer_load_dwordx4 v11, s[{SA}:{SA+3}], s{sT} offen offset:1024 lds", ('b', ds)),
            lambda: a(f"s_add_u32 m0, s{sRING}, {sl_*4096+2048}"),
            lambda: a.vmem(f"buffer_load_dwordx4 v31, s[{SBI}:{SBI+3}], s{sT} offen lds", ('b', ds)),
            lambda: a.vmem(f"buffer_load_dwordx4 v11, s[{SBI}:{SBI+3}], s{sT} offen offset:1024 lds", ('b', ds)),
        ]

    def b_issue(ds):
        for f_ in b_parts(ds):
            f_()
    AF = [128, 144, 160]
    BF = [176, 192]

    def g1_breads(ds):
        so = (ds % 3) * 4096
        out = []
        for s1 in range(2):
            out.append(f"ds_read_b128 {vr(BF[ds&1]+8*s1,4)}, v{12+s1} offset:{so}")
            out.append(f"ds_read_b128 {vr(BF[ds&1]+8*s1+4,4)}, v{12+s1} offset:{so+2048}")
        return out

    def g1_areads(s):
        s1 = s & 1
        out = []
        for aa in range(4):
            k = (2 * s1) ^ aa
            out.append(f"ds_read_b128 {vr(AF[s%3]+4*aa,4)}, v{14+k} offset:{aa*4*896+128*(s>>1)}")
        return out

    if opt.get('x_g1sleep'):
        a("s_sleep 127\n s_sleep 127\n s_sleep 127\n s_sleep 127")
    a(f"s_setprio {int(opt.get('g1p', 2))}")
    a.wait_vm(('b', 0))
    for r in g1_breads(0):
        a.lds(r, ('B', 0))
    for s0 in range(2):
        for r in g1_areads(s0):
            a.lds(r, ('f', s0))
    for s in range(14):
        ds = s >> 1
        a.wait_lg(('f', s))
        if s == 0:
            b_issue(3)
        if PROF[0] and opt.get('x_g1') and s % 2 == 0:
            a("s_memtime s[100:101]")
            a("s_waitcnt lgkmcnt(0)")
            a(f"v_writelane_b32 v0, s100, {24 + s}")
        if s % 2 == 0 and ds + 1 < 7:
            a.wait_vm(('b', ds + 1))
        if PROF[0] and opt.get('x_g1') and s % 2 == 0:
            a("s_memtime s[100:101]")
            a("s_waitcnt lgkmcnt(0)")
            a(f"v_writelane_b32 v0, s100, {25 + s}")
            a.lg = []
        bp = []
        if s % 2 == 1 and ds + 1 < 7:
            a.wait_lg(('B', ds + 1))
            if ds + 4 < 7:
                bp = b_parts(ds + 4)
        A_, B_ = AF[s % 3], BF[ds & 1] + 8 * (s & 1)
        ms = []
        for aa in range(4):
            for part in range(2):
                acc = 64 + 16 * part + 4 * aa
                c = "0" if s == 0 else vr(acc, 4)
                ms.append(f"v_mfma_f32_16x16x32_bf16 {vr(acc,4)}, {vr(A_+4*aa,4)}, {vr(B_+4*part,4)}, {c}")
        rd = []
        if s % 2 == 0 and ds + 1 < 7:
            rd += [(r, ('B', ds + 1)) for r in g1_breads(ds + 1)]
        if s + 2 < 14:
            rd += [(r, ('f', s + 2)) for r in g1_areads(s + 2)]
        fill = [lambda r=r, t=t: a.lds(r, t) for (r, t) in rd] + bp
        for k, m in enumerate(ms):
            a(m)
            if k < len(fill):
                fill[k]()
        for f_ in fill[len(ms):]:
            f_()
        if opt.get('x_g1l') and s % 2 == 1:
            lstamp(a)
        if bp and ds + 4 == 6 and opt.get('serial', '1') == '1':
            a(f"v_mov_b32 v2, {CNT+20}")
            a("v_mov_b32 v3, 1")
            a("s_mov_b64 exec, 1")
            a.lds("ds_add_u32 v2, v3", 'sig')
            a("s_mov_b64 exec, -1")
    if opt.get('x_g1l'): lflush(a, 34)
    a("s_setprio 0")
    stamp(a, 4)
    a.wait_lg_all()
    signal(a, 0)
    a(f"s_cmp_eq_u32 s{sWV}, 4")
    a("s_cbranch_scc0 K1_RDY2")
    a.label("K1_RDY1")
    a("s_waitcnt vmcnt(0)")
    a("s_mov_b64 exec, 0x7f")
    a("v_cmp_ne_u32 vcc, 1, v251")
    a("s_mov_b64 exec, -1")
    a("s_cbranch_vccnz K1_RDYS")
    SLOW.append(("K1_RDYS", ["s_sleep 4", "s_mov_b64 exec, 0x7f", f"buffer_load_dword v251, v249, s[{SDBG}:{SDBG+3}], 0 offen sc1", "s_mov_b64 exec, -1", "s_branch K1_RDY1"]))
    signal(a, 4)
    a.label("K1_RDY2")
    if opt.get('lampos', 'pre') == 'post': lam_block()
    a("v_lshrrev_b32 v7, 4, v1")
    a("v_lshlrev_b32 v4, 6, v7")
    a(f"v_add_u32 v4, {S2T}, v4")
    for k in range(4):
        a.lds(f"ds_read_b128 {vr(32+4*k,4)}, v4 offset:{16*k}", 'st')
    a.wait_lg('st')
    for e in range(16):
        R_, I_ = 64 + e, 80 + e
        a(f"v_mul_f32 v8, v{32+e}, v{R_}")
        a(f"v_mul_f32 v9, v{32+e}, v{I_}")
        a(f"v_mul_f32 v{R_}, v{CR}, v8")
        a(f"v_mul_f32 v{I_}, v{CR}, v9")
        a(f"v_fma_f32 v{R_}, -v{CI}, v9, v{R_}")
        a(f"v_fmac_f32 v{I_}, v{CI}, v8")
        nr, ni = PP[e & 1]
        hr, hi = PP[(e & 1) ^ 1]
        if e == 0:
            a(f"v_mov_b32 v{nr}, v{R_}")
            a(f"v_mov_b32 v{ni}, v{I_}")
        else:
            cmac(nr, ni, LR, LI, hr, hi, R_, I_)
    HE = PP[1]
    a.lds(f"ds_write_b64 v245, v[{HE[0]}:{HE[1]}]", 'w')
    a.wait_lg('w')
    a.lds("ds_read_b128 v[32:35], v244", 'r')
    a.lds("ds_read_b128 v[36:39], v244 offset:16", 'r')
    a.wait_lg('r')
    cmac(40, 41, L16R, L16I, 32, 33, 34, 35)
    cmac(42, 43, L16R, L16I, 40, 41, 36, 37)
    cmac(44, 45, L16R, L16I, 42, 43, 38, 39)
    a("v_mov_b32 v46, 1")
    a("v_mov_b32 v47, 0")
    a.wait_lg_all()
    spin(a, 4, 1)
    a(f"s_mov_b32 s{sT}, {EIN - INBOX}")
    a("s_mov_b64 exec, 0xffff")
    a(f"buffer_store_dwordx4 v[44:47], v250, s[{SWS}:{SWS+3}], s{sT} offen sc1")
    a("s_mov_b64 exec, -1")
    a.vm = []
    a(f"v_mov_b32 v{XR}, 0")
    a(f"v_mov_b32 v{XI}, 0")
    for g_, (r_, i_) in ((1, (32, 33)), (2, (40, 41)), (3, (42, 43))):
        a(f"v_cmp_eq_u32 vcc, {g_}, v7")
        a(f"v_cndmask_b32 v{XR}, v{XR}, v{r_}, vcc")
        a(f"v_cndmask_b32 v{XI}, v{XI}, v{i_}, vcc")
    stamp(a, 5)
    a("s_setprio 0")
    spin(a, 8, 4)
    stamp(a, 9)
    if GSH[0]:
        spin(a, 40, 4)
        a(f"s_sub_u32 s{sT}, s{sWV}, 4")
        a(f"s_lshl_b32 s{sT}, s{sT}, 13")
        a("v_lshlrev_b32 v2, 4, v1")
        a(f"v_add_u32 v32, s{sT}, v2")
        for k in range(8):
            a.lds(f"ds_read_b128 {vr(128+4*k,4)}, v32 offset:{Y + 1024*k}", 'xf')
        a.wait_lg_all()
        signal(a, 44)
        gelu(a, None, fts=(1,), accb=128, hw=True)
        a.wait_lg_all()
        signal(a, 28)
        spin(a, 44, 4)
    a(f"s_cmp_eq_u32 s{sWV}, 7")
    a("s_cbranch_scc1 K1_NOPRE")
    spin(a, 0, 4)
    stB = Stream(a, w2_items + c_items, 28)
    if opt.get('prefirst', '1') == '1':
        stB.issue(6)
    a.label("K1_NOPRE")
    a.vm = []
    if opt.get('hookpos', 'pre') == 'pre':
        a(f"s_setprio {int(opt.get('p2prio', 2))}")
        pass2("A", False)
        a(f"s_setprio {int(opt.get('g3p46', 1))}")
        a(f"s_cmp_eq_u32 s{sWV}, 7")
        a("s_cbranch_scc0 K1_G3")
    else:
        if opt.get('g3prio', '1') == '1':
            a("s_setprio 2")
        a(f"s_cmp_eq_u32 s{sWV}, 7")
        a("s_cbranch_scc0 K1_G3")
        a("s_setprio 0")
        pass2("A", False)
    a.vm = []
    reduce_pre(a)
    a.lg = []
    spin(a, 32, int(opt.get('cdone', 7)))
    a(f"s_mul_i32 s{sT}, s{sRB}, 7")
    a(f"s_add_u32 s{sT}, s{sT}, s{sSL}")
    a(f"s_lshl_b32 s{sT}, s{sT}, 7")
    a(f"s_add_u32 s{sTMP}, s{sT}, {RFLAG}")
    a("v_lshlrev_b32 v2, 2, v1")
    if OWNP[0]:
        a(f"s_lshl_b32 s{sT}, 1, s{sSL}")
        a(f"s_andn2_b32 s{sTMP+4}, 0x7f, s{sT}")
    else:
        a(f"s_mov_b32 s{sTMP+4}, 0x7f")
    a.label("K1_RPOLL")
    a(f"s_mov_b32 exec_lo, s{sTMP+4}")
    a("s_mov_b32 exec_hi, 0")
    a(f"buffer_load_dword v3, v2, s[{SWS}:{SWS+3}], s{sTMP} offen sc1")
    a("s_waitcnt vmcnt(0)")
    a("v_cmp_ne_u32 vcc, 1, v3")
    a("s_mov_b64 exec, -1")
    a("s_cbranch_vccnz K1_RPOLLS")
    SLOW.append(("K1_RPOLLS", [f"s_sleep {int(opt.get('rsleep', 1))}", "s_branch K1_RPOLL"]))
    signal(a, 36)
    a("s_branch K1_RED")

    for blk in OWNBLK:
        blk()
        a.vm = []
        reduce_pre(a)
        a("s_waitcnt lgkmcnt(0)")
        a("s_branch K1_SIGD")

    a.label("K1_COLL")
    a(f"s_cmp_lg_u32 s{sSL}, 7")
    a("s_cbranch_scc1 K1_END")
    a(f"s_mul_i32 s{sT}, s{sJS}, {R}")
    a(f"s_cmp_lg_u32 s{sT}, s{sRB}")
    a("s_cbranch_scc1 K1_END")
    a(f"s_cmp_ge_u32 s{sJS}, 7")
    a("s_cbranch_scc1 K1_END")
    a("v_lshrrev_b32 v2, 6, v0")
    a("v_and_b32 v1, 63, v0")
    a(f"v_readfirstlane_b32 s{sWV}, v2")
    a(f"s_mov_b32 s{sSL}, s{sJS}")
    a("s_load_dwordx4 s[4:7], s[0:1], 8")
    a("s_load_dwordx2 s[18:19], s[0:1], 56")
    a("s_load_dwordx4 s[32:35], s[0:1], 112")
    a("s_load_dwordx2 s[36:37], s[0:1], 128")
    a(f"s_lshl_b32 s{sT}, s{sSL}, 6")
    a(f"v_add_u32 v2, s{sT}, v1")
    a("v_lshlrev_b32 v2, 1, v2")
    a(f"s_lshl_b32 s{sT}, s{sSL}, 15")
    a(f"s_lshl_b32 s{sT2}, s{sWV}, 12")
    a(f"s_add_u32 s{sT}, s{sT}, s{sT2}")
    a(f"s_add_u32 s{sT}, s{sT}, {EIN}")
    a("v_lshlrev_b32 v3, 4, v1")
    a(f"v_add_u32 v3, s{sT}, v3")
    for k in range(4):
        a(f"v_mov_b32 v{8+k}, 0")
    a("s_waitcnt lgkmcnt(0)")
    srd(a, SWS, 36, WS_SIZE)
    srd(a, SDBG, 34, 256)
    for k in range(4):
        a(f"buffer_store_dwordx4 v[8:11], v3, s[{SWS}:{SWS+3}], 0 offen offset:{1024*k} sc1")
    a("v_lshlrev_b32 v12, 7, v0")
    a(f"s_lshl_b32 s{sT}, s{sSL}, 2")
    a(f"s_add_u32 s{sT}, s{sT}, {RFLAG}")
    a(f"v_mov_b32 v13, {OOB}")
    a("v_cmp_gt_u32 vcc, 224, v0")
    a("v_cndmask_b32 v12, v13, v12, vcc")
    a(f"buffer_store_dword v8, v12, s[{SWS}:{SWS+3}], s{sT} offen sc1")
    a("global_load_ushort v104, v2, s[4:5]")
    a("global_load_ushort v105, v2, s[6:7]")
    a("global_load_ushort v106, v2, s[18:19]")
    a("s_waitcnt vmcnt(0)")
    a("s_barrier")
    a(f"s_cmp_lg_u32 s{sWV}, 0")
    a("s_cbranch_scc1 K1_CNR")
    a(f"s_lshl_b32 s{sT}, s{sSL}, 5")
    a(f"v_mov_b32 v5, s{sT}")
    a("v_mov_b32 v6, 1")
    a("s_mov_b64 exec, 1")
    a(f"buffer_store_dword v6, v5, s[{SDBG}:{SDBG+3}], 0 offen sc1")
    a("s_mov_b64 exec, -1")
    a.label("K1_CNR")
    a("v_lshlrev_b32 v107, 16, v104")
    a("v_lshlrev_b32 v108, 16, v105")
    a("v_lshlrev_b32 v106, 16, v106")
    a(f"v_mul_f32 v106, {fhex(LOG2E)}, v106")
    a("v_exp_f32 v106, v106")
    bf16_round(a, 106, 106)
    a("v_mul_f32 v109, v106, v107")
    a("v_mul_f32 v110, v106, v108")
    a(f"v_mul_f32 v109, {fhex(LOG2E)}, v109")
    a(f"v_mul_f32 v110, {fhex(0.15915494309189535)}, v110")
    a("v_exp_f32 v109, v109")
    a("v_rndne_f32 v111, v110")
    a("v_sub_f32 v110, v110, v111")
    a("v_cos_f32 v111, v110")
    a("v_sin_f32 v112, v110")
    a("v_mul_f32 v104, v109, v111")
    a("v_mul_f32 v105, v109, v112")

    def csq2(d, s_):
        a(f"v_mul_f32 v{d[0]}, v{s_[0]}, v{s_[0]}")
        a(f"v_mul_f32 v{d[1]}, v{s_[0]}, v{s_[1]}")
        a(f"v_fma_f32 v{d[0]}, -v{s_[1]}, v{s_[1]}, v{d[0]}")
        a(f"v_add_f32 v{d[1]}, v{d[1]}, v{d[1]}")
    cur_ = (104, 105)
    for k in range(6):
        nx = (118, 119) if k % 2 == 0 else (120, 121)
        csq2(nx, cur_)
        cur_ = nx
    M1 = cur_
    M2, M3, M4 = (110, 111), (112, 113), (114, 115)
    csq2(M2, M1)
    a(f"v_mul_f32 v{M3[0]}, v{M2[0]}, v{M1[0]}")
    a(f"v_mul_f32 v{M3[1]}, v{M2[0]}, v{M1[1]}")
    a(f"v_fma_f32 v{M3[0]}, -v{M2[1]}, v{M1[1]}, v{M3[0]}")
    a(f"v_fmac_f32 v{M3[1]}, v{M2[1]}, v{M1[0]}")
    csq2(M4, M2)
    a("v_lshlrev_b32 v4, 4, v1")
    a(f"s_lshl_b32 s{sT}, s{sSL}, 15")
    a(f"s_lshl_b32 s{sT2}, s{sWV}, 12")
    a(f"s_add_u32 s{sT}, s{sT}, s{sT2}")
    a(f"s_add_u32 s{sT}, s{sT}, {INBOX}")
    a(f"v_add_u32 v4, s{sT}, v4")
    a("v_lshlrev_b32 v7, 3, v1")
    a(f"s_lshl_b32 s{sT}, s{sWV}, 9")
    a(f"v_add_u32 v6, s{sT}, v7")
    a.label("K1_CPOLL")
    for k in range(4):
        a(f"buffer_load_dwordx4 v[{16+4*k}:{19+4*k}], v3, s[{SWS}:{SWS+3}], 0 offen offset:{1024*k} sc1")
    a("s_waitcnt vmcnt(0)")
    a("v_and_b32 v12, v18, v22")
    a("v_and_b32 v13, v26, v30")
    a("v_and_b32 v12, v12, v13")
    a("v_cmp_ne_u32 vcc, 1, v12")
    a("s_cbranch_vccnz K1_CPOLLS")
    SLOW.append(("K1_CPOLLS", [f"s_sleep {int(opt.get('csleep', 1))}", "s_branch K1_CPOLL"]))
    if PROF[0]: a("s_memrealtime s[8:9]")
    cmac(32, 33, M1[0], M1[1], 16, 17, 20, 21)
    cmac(34, 35, M1[0], M1[1], 32, 33, 24, 25)
    cmac(36, 37, M1[0], M1[1], 34, 35, 28, 29)
    a("ds_write_b64 v6, v[36:37]")
    a("s_waitcnt lgkmcnt(0)")
    a("s_barrier")
    if PROF[0]: a("s_memrealtime s[10:11]")
    for w in range(7):
        a(f"ds_read_b64 v[{40+2*w}:{41+2*w}], v7 offset:{512*w}")
    a("v_mov_b32 v8, 0")
    a("v_mov_b32 v9, 0")
    a("s_waitcnt lgkmcnt(0)")
    for w in range(7):
        a(f"s_cmp_gt_u32 s{sWV}, {w}")
        a(f"s_cbranch_scc0 K1_CH")
        cmac(12, 13, M4[0], M4[1], 8, 9, 40 + 2 * w, 41 + 2 * w)
        a("v_mov_b32 v8, v12")
        a("v_mov_b32 v9, v13")
    a.label("K1_CH")
    for k, q in enumerate(((56, 57), (60, 61), (64, 65), (68, 69))):
        a(f"v_mov_b32 v{q[0]+2}, 1")
        a(f"v_mov_b32 v{q[0]+3}, 0")
        if k == 0:
            a(f"v_mov_b32 v{q[0]}, v8")
            a(f"v_mov_b32 v{q[1]}, v9")
        else:
            Mk = (M1, M2, M3)[k - 1]
            Lk = ((16, 17), (32, 33), (34, 35))[k - 1]
            cmac(q[0], q[1], Mk[0], Mk[1], 8, 9, Lk[0], Lk[1])
        a(f"buffer_store_dwordx4 v[{q[0]}:{q[0]+3}], v4, s[{SWS}:{SWS+3}], 0 offen offset:{1024*k} sc1")
    if PROF[0]:
        a(f"s_cmp_lg_u32 s{sWV}, 7")
        a("s_cbranch_scc1 K1_END")
        a("s_memrealtime s[12:13]")
        a("s_waitcnt vmcnt(0)")
        a("s_memrealtime s[14:15]")
        a("s_waitcnt lgkmcnt(0)")
        a(f"s_lshl_b32 s{sT+8}, s{sSL}, 4")
        a(f"s_add_u32 s{sT+8}, s{sT+8}, 0xF00000")
        a("v_mov_b32 v2, 0")
        for i, r in enumerate((8, 10, 12, 14)):
            a(f"v_mov_b32 v3, s{r}")
            a(f"buffer_store_dword v3, v2, s[{SWS}:{SWS+3}], s{sT+8} offen offset:{4*i}")
    a("s_endpgm")
    for lab, ins in SLOW:
        a.label(lab)
        for t in ins:
            a(t)
    del SLOW[:]
    a.label("K1_END")
    a("s_endpgm")
    return a


def g3_addr(a):
    a("v_lshrrev_b32 v2, 5, v1")
    a("v_bfe_u32 v3, v1, 2, 2")
    a("v_and_b32 v4, 3, v1")
    a("v_bfe_u32 v5, v1, 4, 1")
    a("v_lshlrev_b32 v6, 1, v5")
    a("v_lshrrev_b32 v7, 1, v4")
    a("v_or_b32 v6, v6, v7")
    a("v_lshrrev_b32 v7, 1, v3")
    a("v_lshlrev_b32 v7, 2, v7")
    a("v_xor_b32 v6, v6, v7")
    a("v_lshlrev_b32 v6, 4, v6")
    a("v_and_b32 v7, 1, v4")
    a("v_lshl_add_u32 v6, v7, 3, v6")
    a("v_lshl_add_u32 v7, v2, 3, v3")
    a("v_lshl_add_u32 v8, v7, 7, v6")
    a("v_lshl_add_u32 v7, v2, 2, v3")
    a("v_lshl_add_u32 v9, v7, 7, v6")
    a(f"v_add_u32 v18, s{sRING3}, v9")
    a("v_xor_b32 v19, 64, v18")
    a(f"v_add_u32 v21, {Q + 8192}, v8")
    a("v_xor_b32 v22, 64, v21")
    a("v_lshlrev_b32 v20, 4, v1")
    a(f"v_add_u32 v20, {Q}, v20")
    c_addr(a)


def c_addr(a):
    a("v_and_b32 v3, 31, v1")
    a("v_lshrrev_b32 v2, 5, v1")
    a("v_bfe_u32 v4, v3, 1, 3")
    a("v_xor_b32 v4, v4, v2")
    a("v_lshlrev_b32 v4, 4, v4")
    a("v_lshl_add_u32 v4, v3, 7, v4")
    a(f"v_add_u32 v23, s{sRING3}, v4")
    for cg in range(1, 4):
        a(f"v_xor_b32 v{23+cg}, {32*cg}, v23")


def gelu(a, hook=None, hookpos=1, fts=(0, 1), accb=64, hw=None):
    c1 = -2.0 * 0.7978845608028654 * LOG2E
    c2 = c1 * 0.044715
    a(f"v_mov_b32 v56, {fhex(c1)}")
    a(f"v_mov_b32 v57, {fhex(c1)}")
    a(f"v_mov_b32 v58, {fhex(c2)}")
    a(f"v_mov_b32 v59, {fhex(c2)}")
    a("v_mov_b32 v62, 1.0")
    a("v_mov_b32 v63, 1.0")
    if hw is None:
        a(f"s_mul_i32 s{sTMP}, s{sWV}, {RING}")
    else:
        a(f"s_sub_u32 s{sTMP}, s{sWV}, 4")
        a(f"s_mul_i32 s{sTMP}, s{sTMP}, {RING}")
    a(f"s_add_u32 s{sTMP}, s{sTMP}, {Q}")
    a("v_lshlrev_b32 v61, 4, v1")
    a(f"v_add_u32 v61, s{sTMP}, v61")
    grp = 0
    for ft in fts:
        for tt in range(2):
            acc = accb + 32 * (ft - fts[0]) + 16 * tt
            if hook is not None and grp == hookpos:
                hook()
            grp += 1
            a(".p2align 3")
            X = [acc + 2 * e for e in range(8)]
            T = [32 + 2 * e for e in range(8)]
            P = lambda r: f"v[{r}:{r+1}]"
            for e in range(8):
                a(f"v_pk_mul_f32 {P(T[e])}, {P(X[e])}, {P(X[e])}")
            for e in range(8):
                a(f"v_pk_fma_f32 {P(T[e])}, {P(T[e])}, v[58:59], v[56:57]")
            for e in range(8):
                a(f"v_pk_mul_f32 {P(T[e])}, {P(T[e])}, {P(X[e])}")
            for e in range(16):
                a(f"v_exp_f32 v{32+e}, v{32+e}")
            for e in range(8):
                a(f"v_pk_add_f32 {P(T[e])}, {P(T[e])}, v[62:63]")
            for e in range(16):
                a(f"v_rcp_f32 v{32+e}, v{32+e}")
            for e in range(8):
                a(f"v_pk_mul_f32 {P(T[e])}, {P(T[e])}, {P(X[e])}")
            for half in range(2):
                for d in range(4):
                    a(f"v_cvt_pk_bf16_f32 v{48+4*half+d}, v{32+8*half+2*d}, v{32+8*half+2*d+1}")
                a.lds(f"ds_write_b128 v61, {vr(48+4*half,4)} offset:{((2*ft+half)*2+tt)*1024}", 'hw')
            if len(a.lg) >= 8:
                a.wait_lg_all()
            if ft == 0 and tt == 1 and HALF[0]:
                a.wait_lg_all()
                signal(a, 12)


def g3(a, st, base, D2, hook_load=None, hook_pass2=None):
    FA = [192, 208, 224]
    CF = 64
    mlp_base = base
    ssm_base = base + 16
    first = [True]

    def mfmas(Aregs, Bregs):
        ms = []
        for tt in range(2):
            for nt in range(2):
                acc = 128 + 32 * tt + 16 * nt
                c = "0" if first[0] else vr(acc, 16)
                ms.append(f"v_mfma_f32_32x32x16_bf16 {vr(acc,16)}, {vr(Aregs[tt],4)}, {vr(Bregs[nt],4)}, {c}")
        first[0] = False
        return ms

    def mlp_reads(ks):
        b = FA[ks % 3]
        so = st.slot(mlp_base + ks) * 2048
        out = []
        for nt in range(2):
            for q in range(2):
                out.append(f"ds_read_b64_tr_b16 {vr(b+8+4*nt+2*q,2)}, v{18+nt} offset:{so+1024*q}")
        kr = KORDER[ks]
        for tt in range(2):
            out.append(f"ds_read_b128 {vr(b+4*tt,4)}, v20 offset:{12288*(kr>>2)+((kr&3)*2+tt)*1024}")
        return out

    def ssm_areads(k):
        part, cg = k >> 2, k & 3
        b = FA[(16 + k) % 3]
        out = []
        for tt in range(2):
            for q in range(2):
                out.append(f"ds_read_b64_tr_b16 {vr(b+4*tt+2*q,2)}, v{21+tt} offset:{12288*cg+2048*part+512*q}")
        return out

    def c_reads(part):
        out = []
        for nt in range(2):
            i0 = ssm_base + 4 * part + 2 * nt
            so = st.slot(i0) * 2048
            assert st.slot(i0 + 1) == st.slot(i0) + 1
            for cg in range(4):
                out.append(f"ds_read_b128 {vr(CF+32*part+8*cg+4*nt,4)}, v{23+cg} offset:{so}")
        return out

    def step_reads(m):
        return mlp_reads(m) if m < 16 else ssm_areads(m - 16)

    st.wait(mlp_base)
    for r in step_reads(0):
        a.lds(r, ('m', 0))
    st.wait(mlp_base + 1)
    for r in step_reads(1):
        a.lds(r, ('m', 1))
    a.wait_lg(('m', 0))
    a(".p2align 3")
    for m in range(24):
        b = FA[m % 3]
        if m < 16:
            ms = mfmas([b, b + 4], [b + 8, b + 12])
        else:
            k = m - 16
            cb = CF + 32 * (k >> 2) + 8 * (k & 3)
            ms = mfmas([b, b + 4], [cb, cb + 4])
        if m == 14:
            a.wait_lg_all()
            stamp(a, 14)
            hook_pass2()
            spin(a, 16, 4)
            if P14[0] >= 0:
                a(f"s_setprio {P14[0]}")
            stamp(a, 15)
        if m == 6 and HALF[0]:
            a.wait_lg_all()
            spin(a, 28, 4)
        if PSW[0] is not None and m == PSW[0][0]:
            a(f"s_cmp_ge_u32 s{sWV}, 4")
            a(f"s_cbranch_scc1 K1_PSW{m}")
            a(f"s_setprio {PSW[0][1]}")
            a(f"s_branch K1_PSWB{m}")
            a.label(f"K1_PSW{m}")
            a(f"s_setprio {PSW[0][2]}")
            a.label(f"K1_PSWB{m}")
        if m == 9:
            hook_load()
        rd = [(r, ('m', m + 2)) for r in step_reads(m + 2)] if m + 2 < 24 else []
        cr = []
        if m == 14:
            cr = [(r, ('c', 0)) for r in c_reads(0)[0:4]]
        elif m == 15:
            cr = [(r, ('c', 1)) for r in c_reads(0)[4:8]]
        elif m == 17:
            cr = [(r, ('c', 2)) for r in c_reads(1)[0:4]]
        elif m == 19:
            cr = [(r, ('c', 3)) for r in c_reads(1)[4:8]]
        if m == 16:
            if PRIO16[0] == 9:
                a(f"s_cmp_ge_u32 s{sWV}, 4")
                a("s_cbranch_scc1 K1_P16")
                a("s_setprio 2")
                a("s_branch K1_P16B")
                a.label("K1_P16")
                a("s_setprio 0")
                a.label("K1_P16B")
            elif PRIO16[0] == 8:
                a(f"s_cmp_ge_u32 s{sWV}, 4")
                a("s_cbranch_scc0 K1_P16")
                a("s_setprio 2")
                a("s_branch K1_P16B")
                a.label("K1_P16")
                a("s_setprio 0")
                a.label("K1_P16B")
            elif PRIO16[0] >= 0:
                a(f"s_setprio {PRIO16[0]}")
            a.wait_lg(('c', 1))
        if m == 20:
            a.wait_lg(('c', 3))
        if m <= 13:
            pp = st.parts(min(mlp_base + m + 8, ssm_base + 6))
            a(ms[0])
            both_wait(a, ('st', st.first + mlp_base + m + 2 - st.first) if m + 2 < 16 else None, ('m', m + 1))
            if pp:
                pp[0][3]()
            else:
                a("s_nop 0")
            for r, t in rd[0:3]:
                a.lds(r, t)
            a(ms[1])
            for r, t in rd[3:6]:
                a.lds(r, t)
            if pp:
                pp[0][0]()
            a(ms[2])
            if pp:
                pp[0][1]()
            a(ms[3])
            if pp:
                pp[0][2]()
            for extra_ in pp[1:]:
                extra_[3](); a('s_nop 0'); extra_[0](); extra_[1](); extra_[2]()
        else:
            a(ms[0])
            if m == 14:
                st.wait(ssm_base + 1)
            if m == 15:
                a.wait_lg(('m', 16))
                st.wait(ssm_base + 3)
            if m == 17:
                st.wait(ssm_base + 5)
            if m == 19:
                a.wait_lg(('c', 2))
                st.wait(ssm_base + 7)
            allr = rd + cr
            h1 = (len(allr) + 1) // 2
            for r, t in allr[:h1]:
                a.lds(r, t)
            a(ms[1])
            for r, t in allr[h1:]:
                a.lds(r, t)
            if m == 15:
                a.wait_lg(('c', 0))
                pp = st.parts(ssm_base + 8)
            else:
                pp = st.parts(min(mlp_base + m + 8, ssm_base + 6))
            if pp:
                pp[0][3](); pp[0][0]()
            a(ms[2])
            if m + 1 < 24:
                a.wait_lg(('m', m + 1))
            if pp:
                pp[0][1]()
            a(ms[3])
            if pp:
                pp[0][2]()
            for extra_ in pp[1:]:
                extra_[3](); a('s_nop 0'); extra_[0](); extra_[1](); extra_[2]()
        if XS[0] and m % 3 == 2:
            lstamp(a)
    if XS[0]:
        lflush(a, 26)
    if STORESYNC[0]:
        a.wait_lg_all()
        spin(a, 24, 7)
    a(f"s_mul_i32 s{sT}, s{sRB}, 7")
    a(f"s_add_u32 s{sT}, s{sT}, s{sWV}")
    a(f"s_mul_i32 s{sT}, s{sT}, 56")
    a(f"s_add_u32 s{sT}, s{sT}, s{sSL}")
    a(f"s_lshl_b32 s{sT}, s{sT}, 10")
    a(f"s_add_u32 s{sT}, s{sT}, {PBUF}")
    a("v_lshlrev_b32 v2, 4, v1")
    def pieces(store):
        for tt in range(2):
            for nt in range(2):
                acc = 128 + 32 * tt + 16 * nt
                for hf in range(2):
                    v_ = tt * 4 + nt * 2 + hf
                    d = 32 + 4 * (v_ & 3)
                    for k in range(4):
                        a(f"v_cvt_pk_bf16_f32 v{d+k}, v{acc+8*hf+2*k}, v{acc+8*hf+2*k+1}")
                    store(v_, d)
    if OWNP[0]:
        a(f"s_cmp_eq_u32 s{sWV}, s{sSL}")
        a("s_cbranch_scc1 K1_OWN")

    def st_glob(v_, d):
        a(f"s_add_u32 s{sT2}, s{sT}, {v_*7*1024}")
        a(f"buffer_store_dwordx4 {vr(d,4)}, v2, s[{SWS}:{SWS+3}], s{sT2} offen {PSC[0]}")
    pieces(st_glob)
    if OWNP[0]:
        def own_block():
            a.label("K1_OWN")
            a(f"v_add_u32 v3, s{sRING3}, v2")
            pieces(lambda v_, d: a(f"ds_write_b128 v3, {vr(d,4)} offset:{1024*v_}"))
        OWNBLK.append(own_block)


def reduce_pre(a):
    a("v_and_b32 v3, 31, v1")
    a("v_lshrrev_b32 v4, 5, v1")
    a(f"s_lshr_b32 s{sT}, s{sWV}, 2")
    a(f"s_lshl_b32 s{sT}, s{sT}, 5")
    a(f"s_and_b32 s{sT2}, s{sWV}, 1")
    a(f"s_lshl_b32 s{sT2}, s{sT2}, 4")
    a(f"s_add_u32 s{sT}, s{sT}, s{sT2}")
    a(f"v_lshl_add_u32 v6, v4, 2, s{sT}")
    a(f"s_bfe_u32 s{sT}, s{sWV}, 0x10001")
    a(f"s_lshl_b32 s{sT}, s{sT}, 5")
    a(f"s_lshl_b32 s{sT2}, s{sSL}, 6")
    a(f"s_add_u32 s{sT}, s{sT}, s{sT2}")
    a(f"v_add_u32 v5, s{sT}, v3")
    a(f"s_lshl_b32 s{sT}, s{sRB}, 6")
    a(f"v_add_u32 v7, s{sT}, v6")
    a("v_mul_u32_u24 v8, 896, v7")
    a("v_lshl_add_u32 v8, v5, 1, v8")
    a(f"v_add_u32 v9, {896*8}, v8")
    a("v_lshlrev_b32 v10, 1, v5")
    a("v_mul_u32_u24 v12, 1792, v7")
    a("v_lshl_add_u32 v12, v5, 2, v12")
    a(f"v_add_u32 v13, {1792*8}, v12")
    a(f"v_add_u32 v14, {1792*2}, v12")
    a(f"v_add_u32 v15, {1792*2}, v13")
    a("v_lshlrev_b32 v6, 2, v6")
    a(f"v_add_u32 v6, {S2T}, v6")
    srd(a, SX, 4, 2048 * 896)
    srd(a, SA, 32, 2048 * 1792)
    for e in range(8):
        a.vmem(f"buffer_load_ushort v{16+e}, v{8 if e < 4 else 9}, s[{SX}:{SX+3}], 0 offen offset:{896*(e&3)}", 'x')
    a.vmem("global_load_ushort v24, v10, s[20:21]", 'x')
    a.vmem("global_load_ushort v25, v10, s[30:31]", 'x')


def reduce_main(a, opt):
    a.lds(f"ds_read_b128 v[64:67], v6 offset:{M2T-S2T}", 't')
    a.lds(f"ds_read_b128 v[68:71], v6 offset:{M2T-S2T+32}", 't')
    a.lds(f"ds_read_b128 v[72:75], v6 offset:{AT-S2T}", 't')
    a.lds(f"ds_read_b128 v[76:79], v6 offset:{AT-S2T+32}", 't')
    a(f"s_mul_i32 s{sT}, s{sRB}, 7")
    a(f"s_add_u32 s{sT}, s{sT}, s{sSL}")
    a(f"s_lshl_b32 s{sT}, s{sT}, 3")
    a(f"s_add_u32 s{sT}, s{sT}, s{sWV}")
    a(f"s_mul_i32 s{sT}, s{sT}, 7168")
    a(f"s_add_u32 s{sT}, s{sT}, {PBUF}")
    a("v_lshlrev_b32 v7, 4, v1")
    a.wait_lg_all()
    OWN = opt.get('own', '1') == '1'
    a(f"s_mul_i32 s{sT}, s{sRB}, 7")
    a(f"s_add_u32 s{sT}, s{sT}, s{sSL}")
    a(f"s_lshl_b32 s{sT}, s{sT}, 3")
    a(f"s_add_u32 s{sT}, s{sT}, s{sWV}")
    a(f"s_mul_i32 s{sT}, s{sT}, 7168")
    a(f"s_add_u32 s{sTMP}, s{sT}, {PBUF}")
    if OWN:
        a(f"s_mul_i32 s{sT}, s{sSL}, {RING}")
        a(f"s_add_u32 s{sT2}, s{sT}, {P}")
        a(f"s_sub_u32 s{sT}, s{sT}, {4*RING - Y}")
        a(f"s_cmp_lt_u32 s{sSL}, 4")
        a(f"s_cselect_b32 s{sT}, s{sT2}, s{sT}")
        a(f"s_lshl_b32 s{sT2}, s{sWV}, 10")
        a(f"s_add_u32 s{sT}, s{sT}, s{sT2}")
        a(f"v_add_u32 v30, s{sT}, v7")
    spin(a, 36, 1)
    stamp(a, 17)
    a.vm = ['x'] * 10
    nglob = 6 if OWN else 7
    for i in range(nglob):
        if OWN:
            a(f"s_cmp_ge_u32 {i}, s{sSL}")
            a(f"s_cselect_b32 s{sT}, {i+1}, {i}")
            a(f"s_lshl_b32 s{sT}, s{sT}, 10")
            a(f"s_add_u32 s{sT}, s{sT}, s{sTMP}")
        else:
            a(f"s_add_u32 s{sT}, s{sTMP}, {1024*i}")
        a.vmem(f"buffer_load_dwordx4 {vr(32+4*i,4)}, v7, s[{SWS}:{SWS+3}], s{sT} offen sc1", ('p', i))
    if OWN:
        if int(opt.get('cdone', 7)) < 7:
            spin(a, 32, 7)
        a.lds("ds_read_b128 v[56:59], v30", 'own')
    a.wait_vm('x')
    a("v_lshlrev_b32 v24, 16, v24")
    a("v_lshlrev_b32 v25, 16, v25")
    for e in range(8):
        mu = 64 + 4 * (e >> 2) + (e & 3)
        r1 = 72 + 4 * (e >> 2) + (e & 3)
        a(f"v_lshlrev_b32 v26, 16, v{16+e}")
        a(f"v_sub_f32 v27, v26, v{mu}")
        a(f"v_add_f32 v{80+e}, v25, v26")
        a(f"v_mul_f32 v27, v27, v{r1}")
        a(f"v_fmac_f32 v{80+e}, v27, v24")
    order = ([6] + list(range(6))) if OWN else list(range(7))
    for n_, s_ in enumerate(order):
        if OWN and s_ == 6:
            a.wait_lg('own')
        else:
            a.wait_vm(('p', s_))
        last = n_ == 6
        if last: stamp(a, 18)
        for d in range(4):
            r = 32 + 4 * s_ + d
            a(f"v_lshlrev_b32 v28, 16, v{r}")
            a(f"v_and_b32 v29, 0xffff0000, v{r}")
            a(f"v_add_f32 v{80+2*d}, v{80+2*d}, v28")
            a(f"v_add_f32 v{81+2*d}, v{81+2*d}, v29")
            if last:
                sc = "sc1" if opt.get('osc', '0') == '1' else ""
                for e in (2 * d, 2 * d + 1):
                    if (e & 3) < 3:
                        a(f"buffer_store_dword v{80+e}, v{12 if e < 4 else 13}, s[{SA}:{SA+3}], 0 offen offset:{1792*(e&3)} {sc}")
                    else:
                        a(f"buffer_store_dword v{80+e}, v{14 if e < 4 else 15}, s[{SA}:{SA+3}], 0 offen offset:1792 {sc}")


def dump_lds(a, base, nbytes):
    a("s_lshl_b32 s90, s2, 16")
    a("s_add_u32 s90, s90, 0x800000")
    a("v_lshlrev_b32 v2, 4, v0")
    n = (nbytes + 8191) // 8192
    for i in range(n):
        a(f"v_add_u32 v3, {base + 8192*i}, v2")
        a("ds_read_b128 v[4:7], v3")
        a("s_waitcnt lgkmcnt(0)")
        a(f"v_add_u32 v3, {8192*i}, v2")
        a(f"buffer_store_dwordx4 v[4:7], v3, s[{SWS}:{SWS+3}], s90 offen")
        a("s_waitcnt vmcnt(0)")


def dump_regs(a, base, n):
    a("s_lshl_b32 s90, s2, 3")
    a(f"s_add_u32 s90, s90, s{sWV}")
    a("s_lshl_b32 s90, s90, 14")
    a("s_add_u32 s90, s90, 0x800000")
    a("v_lshlrev_b32 v2, 2, v1")
    a("s_nop 15")
    for i in range(n):
        a(f"buffer_store_dword v{base+i}, v2, s[{SWS}:{SWS+3}], s90 offen")
        a("s_add_u32 s90, s90, 256")
    a("s_waitcnt vmcnt(0)")


def gen_k2(opt):
    a = Asm()
    a("s_cmp_ge_u32 s2, 256")
    a("s_cbranch_scc1 K2_END")
    if opt.get('span'):
        a("s_memrealtime s[64:65]")
    if opt.get('k2prof'): a("s_memtime s[78:79]")
    a("s_load_dwordx2 s[4:5], s[0:1], 0")
    a("s_load_dwordx2 s[6:7], s[0:1], 64")
    a("s_load_dwordx4 s[8:11], s[0:1], 104")
    a("s_load_dwordx2 s[12:13], s[0:1], 128")
    a("v_lshrrev_b32 v2, 6, v0")
    a("v_and_b32 v1, 63, v0")
    a("v_readfirstlane_b32 s40, v2")
    a("v_and_b32 v3, 31, v1")
    a("v_lshrrev_b32 v4, 5, v1")
    a("v_lshlrev_b32 v7, 4, v1")
    a("s_mul_i32 s41, s2, 7")
    a("s_add_u32 s41, s41, s40")
    a("s_mul_hi_u32 s39, s41, 0x4924925")
    a("s_mul_i32 s42, s39, 56")
    a("s_sub_u32 s42, s41, s42")
    a("s_lshr_b32 s38, s42, 3")
    a("s_and_b32 s40, s42, 7")
    a("s_mul_i32 s46, s41, 7168")
    a(f"s_add_u32 s46, s46, {PBUF}")
    a("s_lshr_b32 s41, s40, 2")
    a("s_bfe_u32 s42, s40, 0x10001")
    a("s_and_b32 s43, s40, 1")
    a("s_lshl_b32 s44, s38, 6")
    a("s_lshl_b32 s45, s42, 5")
    a("s_add_u32 s44, s44, s45")
    a("v_add_u32 v5, s44, v3")
    a("s_lshl_b32 s45, s39, 6")
    a("s_lshl_b32 s46, s46, 0") if False else None
    a("s_lshl_b32 s47, s41, 5")
    a("s_add_u32 s45, s45, s47")
    a("s_lshl_b32 s47, s43, 4")
    a("s_add_u32 s45, s45, s47")
    a("v_lshl_add_u32 v6, v4, 2, s45")
    a("v_mul_u32_u24 v8, 896, v6")
    a("v_lshl_add_u32 v8, v5, 1, v8")
    a(f"v_add_u32 v9, {896*8}, v8")
    a("v_lshlrev_b32 v10, 3, v6")
    a("v_lshlrev_b32 v11, 1, v5")
    a("v_mul_u32_u24 v12, 1792, v6")
    a("v_lshl_add_u32 v12, v5, 2, v12")
    a(f"v_add_u32 v13, {1792*8}, v12")
    a(f"v_add_u32 v28, {1792*2}, v12")
    a(f"v_add_u32 v29, {1792*2}, v13")
    a(f"s_mov_b32 s47, {STATS}")
    a("s_waitcnt lgkmcnt(0)")
    if opt.get('k2prof'): a("s_memtime s[66:67]")
    srd(a, 56, 12, WS_SIZE)
    srd(a, 48, 4, 2048 * 896)
    a.vmem("global_load_ushort v24, v11, s[6:7]", 'x')
    a.vmem("global_load_ushort v25, v11, s[8:9]", 'x')
    a.vmem("buffer_load_dwordx4 v[64:67], v10, s[56:59], s47 offen", 'x')
    a.vmem("buffer_load_dwordx4 v[68:71], v10, s[56:59], s47 offen offset:16", 'x')
    a.vmem("buffer_load_dwordx4 v[72:75], v10, s[56:59], s47 offen offset:64", 'x')
    a.vmem("buffer_load_dwordx4 v[76:79], v10, s[56:59], s47 offen offset:80", 'x')
    for e in range(8):
        a.vmem(f"buffer_load_ushort v{16+e}, v{8 if e < 4 else 9}, s[48:51], 0 offen offset:{896*(e&3)}", 'x')
    for s_ in range(7):
        a.vmem(f"buffer_load_dwordx4 {vr(32+4*s_,4)}, v7, s[56:59], s46 offen", ('p', s_))
        a("s_add_u32 s46, s46, 1024")
    srd(a, 52, 10, 2048 * 1792)
    a.wait_vm('x')
    if opt.get('k2prof'): a("s_memtime s[72:73]")
    a("v_lshlrev_b32 v24, 16, v24")
    a("v_lshlrev_b32 v25, 16, v25")
    for e in range(8):
        m1 = 64 + 8 * (e >> 2) + 2 * (e & 3)
        a(f"v_lshlrev_b32 v26, 16, v{16+e}")
        a(f"v_sub_f32 v27, v26, v{m1}")
        a(f"v_add_f32 v{80+e}, v25, v26")
        a(f"v_mul_f32 v27, v27, v{m1+1}")
        a(f"v_fmac_f32 v{80+e}, v27, v24")
    for s_ in range(7):
        a.wait_vm(('p', s_))
        if opt.get('k2prof') and s_ in (0, 6): a(f"s_memtime s[{68 if s_ == 0 else 70}:{69 if s_ == 0 else 71}]")
        for d in range(4):
            r = 32 + 4 * s_ + d
            a(f"v_lshlrev_b32 v14, 16, v{r}")
            a(f"v_and_b32 v15, 0xffff0000, v{r}")
            a(f"v_add_f32 v{80+2*d}, v{80+2*d}, v14")
            a(f"v_add_f32 v{81+2*d}, v{81+2*d}, v15")
            if s_ == 6:
                sc = "sc1" if opt.get('k2sc', '0') == '1' else ""
                for e in (2 * d, 2 * d + 1):
                    if (e & 3) < 3:
                        a(f"buffer_store_dword v{80+e}, v{12 if e < 4 else 13}, s[52:55], 0 offen offset:{1792*(e&3)} {sc}")
                    else:
                        a(f"buffer_store_dword v{80+e}, v{28 if e < 4 else 29}, s[52:55], 0 offen offset:1792 {sc}")
    if opt.get('k2prof'):
        a("s_memtime s[74:75]")
        a("s_waitcnt vmcnt(0)")
        a("s_memtime s[76:77]")
        a("v_readfirstlane_b32 s40, v2")
        a("s_lshl_b32 s62, s2, 3")
        a("s_add_u32 s62, s62, s40")
        a("s_lshl_b32 s62, s62, 5")
        a("s_add_u32 s62, s62, 0xF90000")
        a("s_waitcnt lgkmcnt(0)")
        a("v_mov_b32 v3, 0")
        for i_, r_ in enumerate((78, 66, 68, 70, 72, 74, 76)):
            a(f"v_mov_b32 v30, s{r_}")
            a(f"buffer_store_dword v30, v3, s[56:59], s62 offen offset:{4*i_}")
    if opt.get('span'):
        a("s_waitcnt vmcnt(0)")
        a("s_memrealtime s[60:61]")
        a("v_readfirstlane_b32 s40, v2")
        a("s_lshl_b32 s62, s2, 3")
        a("s_add_u32 s62, s62, s40")
        a("s_lshl_b32 s62, s62, 2")
        a("s_add_u32 s62, s62, 0xF81000")
        a("s_waitcnt lgkmcnt(0)")
        a("v_mov_b32 v2, s60")
        a("v_mov_b32 v3, 0")
        a("s_mov_b64 exec, 1")
        a("buffer_store_dword v2, v3, s[56:59], s62 offen")
        a("v_mov_b32 v2, s64")
        a("s_add_u32 s62, s62, 0x8000")
        a("buffer_store_dword v2, v3, s[56:59], s62 offen")
    a.label("K2_END")
    a("s_endpgm")
    return a


def desc(name, vgpr, sgpr=102):
    return f""".p2align 6
.amdhsa_kernel {name}
  .amdhsa_next_free_vgpr {vgpr}
  .amdhsa_next_free_sgpr {sgpr}
  .amdhsa_accum_offset {vgpr}
  .amdhsa_group_segment_fixed_size 0
  .amdhsa_kernarg_size 136
  .amdhsa_user_sgpr_count 2
  .amdhsa_user_sgpr_kernarg_segment_ptr 1
  .amdhsa_system_sgpr_workgroup_id_x 1
.end_amdhsa_kernel
"""


def build(opt):
    ref = open("parallel_sum__ssm_conv_s5__mixer_channel_mlp__prompt.s.ref").read() if opt.get('hdr', True) else ""
    hdr = [l for l in ref.split("\n") if l.startswith(";") and "@launch" not in l and "Override launch" not in l and "grid=ceil" not in l]
    out = "\n".join(hdr) + "\n"
    out += f"; @launch grid=(256,1,1) block=(512,1,1) lds={LDS_BYTES}\n"
    out += '.amdgcn_target "amdgcn-amd-amdhsa--gfx950"\n.text\n'
    k1 = gen_k1(opt)
    kn = KNAME + "_kernel"
    out += f".globl {kn}\n.p2align 8\n.type {kn},@function\n{kn}:\n" + k1.text().replace("k1_kernel", kn)
    out += '.section .rodata,"a"\n' + desc(kn, 256)
    if opt.get('align', '1') == '1':
        import align
        out, nw, nn = align.align(out)
    return out


if __name__ == "__main__":
    opt = {}
    outp = sys.argv[1]
    for kv in sys.argv[2:]:
        k, v = kv.split("=")
        opt[k] = v
    open(outp, "w").write(build(opt))
```

```python
import sys
from asmlib import Asm

KNAME = "parallel_sum__ssm_conv_s5__mixer_channel_mlp__prompt"

Y = 0
Q = 57344
P = 106496
RING = 12288
MISC = 155648
S2T = MISC
M2T = MISC + 256
AT = MISC + 2816
SCR = MISC + 512
CNT = MISC + 2560
LDS_BYTES = 163840
EBUF = 0
STATS = 0x20000
EIN = 0x80000
RFLAG = 0xC0000
INBOX = 0x40000
PBUF = 0x100000
WS_SIZE = 0x1000000
OOB = 0x7ff00000

sSL, sRB, sWV = 38, 39, 40
sRING, sT, sT2, sBASE, sBASE2 = 41, 42, 43, 76, 77
SX, SA, SW2, SCR_, SCI, SBI, SWS, SDBG = 44, 48, 52, 56, 60, 64, 68, 72
sRING3 = 78
sCB = 79
sW2B = 80
sTMP = 82
sP0, sINC0, sINC1, sOFF, sJS = 88, 89, 90, 91, 92
sSLOT1, sSLOT3 = 6, 12
sPA = 94
sDUM = 97

LOG2E = 1.4426950408889634


def fhex(x):
    import struct
    return "0x%08x" % struct.unpack("<I", struct.pack("<f", x))[0]


def srd(a, dst, ptr, size):
    a(f"s_mov_b32 s{dst}, s{ptr}")
    a(f"s_mov_b32 s{dst+1}, s{ptr+1}")
    a(f"s_mov_b32 s{dst+2}, {size}")
    a(f"s_mov_b32 s{dst+3}, 0x20000")


def vr(b, n):
    return f"v[{b}:{b+n-1}]" if n > 1 else f"v{b}"


class Stream:
    def __init__(self, a, items, first_index=0):
        self.a = a
        self.items = items
        self.first = first_index
        self.next = 0

    def slot(self, i):
        return (self.first + i) % 6

    def issue(self, upto):
        a = self.a
        while self.next < min(upto, len(self.items)):
            it = self.items[self.next]
            sl = self.slot(self.next)
            a(f"s_add_u32 m0, s{it['ring']}, {sl*2048}")
            a(f"s_add_u32 s{sT}, s{it['sbase']}, {it['off']}")
            a.vmem(f"buffer_load_dwordx4 v{it['va']}, s[{it['srd']}:{it['srd']+3}], s{sT} offen lds", ('st', self.first + self.next))
            a.vmem(f"buffer_load_dwordx4 v{it['vb']}, s[{it['srd']}:{it['srd']+3}], s{sT} offen offset:1024 lds", ('st', self.first + self.next))
            self.next += 1

    def wait(self, i):
        self.a.wait_vm(('st', self.first + i))

    def parts(self, upto):
        a = self.a
        out = []
        while self.next < min(upto, len(self.items)):
            it = self.items[self.next]
            sl = self.slot(self.next)
            idx = self.first + self.next

            def setup(it=it, sl=sl):
                a(f"s_add_u32 s{sT}, s{it['sbase']}, {it['off']}")

            def setm0(it=it, sl=sl):
                base = sSLOT1 if it['ring'] == sRING else sSLOT3
                a(f"s_mov_b32 m0, s{base + sl}")

            def da(it=it, idx=idx):
                a.vmem(f"buffer_load_dwordx4 v{it['va']}, s[{it['srd']}:{it['srd']+3}], s{sT} offen lds", ('st', idx))

            def db(it=it, idx=idx):
                a.vmem(f"buffer_load_dwordx4 v{it['vb']}, s[{it['srd']}:{it['srd']+3}], s{sT} offen offset:1024 lds", ('st', idx))
            out.append((setup, da, db, setm0))
            self.next += 1
        return out


def signal(a, off):
    a(f"v_mov_b32 v2, {CNT+off}")
    a("v_mov_b32 v3, 1")
    a("s_mov_b64 exec, 1")
    a("ds_add_u32 v2, v3")
    a("s_mov_b64 exec, -1")


_spin = [0]
SPSL = [1]
SLOW = []
def spin(a, off, n):
    _spin[0] += 1
    L = f"K1_SPIN{_spin[0]}"
    a(f"v_mov_b32 v2, {CNT+off}")
    a.label(L)
    a("ds_read_b32 v3, v2")
    a("s_waitcnt lgkmcnt(0)")
    a(f"v_readfirstlane_b32 s{sT}, v3")
    a(f"s_cmp_ge_u32 s{sT}, {n}")
    a(f"s_cbranch_scc0 {L}_S")
    SLOW.append((L + "_S", ([f"s_sleep {SPSL[0]}"] if SPSL[0] > 0 else []) + [f"s_branch {L}"]))
    a.lg = []


def both_wait(a, vtag, ltag):
    parts = []
    if vtag is not None:
        idx = max((i for i, t in enumerate(a.vm) if t == vtag), default=None)
        if idx is not None:
            parts.append(f"vmcnt({len(a.vm) - 1 - idx})")
            a.vm = a.vm[idx + 1:]
    if ltag is not None:
        idx = max((i for i, t in enumerate(a.lg) if t == ltag), default=None)
        if idx is not None:
            parts.append(f"lgkmcnt({len(a.lg) - 1 - idx})")
            a.lg = a.lg[idx + 1:]
    a("s_waitcnt " + " ".join(parts) if parts else "s_nop 0")


def bf16_round(a, dst, src):
    a(f"v_cvt_pk_bf16_f32 v{dst}, v{src}, v{src}")
    a(f"v_lshlrev_b32 v{dst}, 16, v{dst}")


PROF = [False]
XS = [False]
STORESYNC = [True]
KORDER = list(range(16))
HALF = [True]
PRIOSW = [True]
PRIO16 = [1]
PST = [7168]
PSC = ['sc1']
GSH = [True]
OWNP = [True]
OWNBLK = []
PSW = [None]
P14 = [3]
XNOVM = [False]
def stamp(a, i):
    if not PROF[0]: return
    a("s_waitcnt lgkmcnt(0)")
    a("s_memtime s[100:101]")
    a("s_waitcnt lgkmcnt(0)")
    a(f"v_writelane_b32 v0, s100, {i}")
    a.lg = []

LS = [0]
def lstamp(a):
    if not PROF[0]: return
    a(f"s_memtime s[{4+2*LS[0]}:{5+2*LS[0]}]")
    LS[0] += 1

def lflush(a, lane0):
    if not PROF[0]: return
    a("s_waitcnt lgkmcnt(0)")
    a.lg = []
    for i in range(LS[0]):
        a(f"v_writelane_b32 v0, s{4+2*i}, {lane0+i}")
    LS[0] = 0

def stamp_out(a):
    if not PROF[0]: return
    a("s_memrealtime s[100:101]")
    a("s_lshl_b32 s87, s2, 3")
    a(f"s_add_u32 s87, s87, s{sWV}")
    a("s_lshl_b32 s87, s87, 8")
    a("s_add_u32 s87, s87, 0xE00000")
    a("s_waitcnt lgkmcnt(0)")
    a("v_writelane_b32 v0, s100, 62")
    a("v_writelane_b32 v0, s99, 63")
    a("v_lshlrev_b32 v2, 2, v1")
    a(f"buffer_store_dword v0, v2, s[{SWS}:{SWS+3}], s87 offen")

def gen_k1(opt):
    a = Asm()
    PROF[0] = bool(opt.get('prof'))
    XS[0] = bool(opt.get('x_g3'))
    STORESYNC[0] = opt.get('ssync', '0') == '1'
    HALF[0] = opt.get('half', '0') == '1'
    PRIOSW[0] = opt.get('priosw', '1') == '1'
    PRIO16[0] = int(opt.get('prio16', 1))
    PST[0] = int(opt.get('pst', 7168))
    SPSL[0] = int(opt.get('spsl', 1))
    PSC[0] = opt.get('psc', 'sc1').replace('_', ' ')
    GSH[0] = opt.get('gsh', '0') == '1'
    OWNP[0] = opt.get('own', '1') == '1'
    del OWNBLK[:]
    PSW[0] = tuple(int(x) for x in opt.get('psw', '8_1_1').split('_')) if opt.get('psw', '8_1_1') != 'none' else None
    P14[0] = int(opt.get('p14', 3))
    XNOVM[0] = bool(opt.get('x_novm3'))
    D2 = int(opt.get('d2', 4))
    NPRE = 4
    a(f"s_cmp_ge_u32 s2, 256")
    a("s_cbranch_scc1 K1_END")
    R = int(opt.get('R', 2))
    S_ = 8 // R
    RBG = 32 // R
    lg = lambda x: x.bit_length() - 1
    a(f"s_and_b32 s{sT}, s2, 7")
    a(f"s_lshr_b32 s{sT2}, s2, 3")
    a(f"s_and_b32 s{sJS}, s{sT2}, {RBG-1}")
    a(f"s_lshr_b32 s{sRB}, s{sT}, {lg(S_)}")
    a(f"s_mul_i32 s{sSL}, s{sJS}, {R}")
    a(f"s_add_u32 s{sRB}, s{sRB}, s{sSL}")
    a(f"s_and_b32 s{sSL}, s{sT}, {S_-1}")
    a(f"s_mul_i32 s{sSL}, s{sSL}, {R}")
    a(f"s_lshr_b32 s{sT2}, s{sT2}, {lg(RBG)}")
    a(f"s_add_u32 s{sSL}, s{sSL}, s{sT2}")
    a(f"s_cmp_ge_u32 s{sSL}, 7")
    a("s_cbranch_scc1 K1_COLL")
    if PROF[0]:
        a("s_memrealtime s[100:101]\n s_waitcnt lgkmcnt(0)\n s_mov_b32 s99, s100")
        a("s_memtime s[100:101]\n s_waitcnt lgkmcnt(0)\n s_mov_b32 s98, s100")
    if opt.get('span'):
        a("s_memrealtime s[98:99]")
    a("s_load_dwordx16 s[4:19], s[0:1], 0")
    a("s_load_dwordx16 s[20:35], s[0:1], 64")
    a("s_load_dwordx2 s[36:37], s[0:1], 128")
    a("v_lshrrev_b32 v2, 6, v0")
    a("v_and_b32 v1, 63, v0")
    if opt.get('ctouch', '1') == '1':
        NL = int(opt.get('cnl', 6))
        a("s_getpc_b64 s[94:95]")
        a.label("K1_PC")
        a("s_sub_u32 s94, s94, K1_PC-k1_kernel")
        a("s_subb_u32 s95, s95, 0")
        a("s_lshr_b32 s96, s2, 3")
        a(f"s_mul_i32 s96, s96, {NL*128}")
        a("v_lshlrev_b32 v3, 7, v0")
        a("v_add_u32 v3, s96, v3")
        a(f"v_cmp_gt_u32 s[84:85], {NL}, v0")
        a("v_cmp_gt_u32 vcc, K1_END-k1_kernel, v3")
        a("s_and_b64 vcc, vcc, s[84:85]")
        a("s_and_saveexec_b64 s[96:97], vcc")
        a("s_cbranch_execz K1_NOCT")
        a("global_load_dword v251, v3, s[94:95]")
        a.label("K1_NOCT")
        a("s_mov_b64 exec, s[96:97]")
    a(f"v_readfirstlane_b32 s{sWV}, v2")
    if opt.get('swap', '1') == '1':
        a(f"s_xor_b32 s{sWV}, s{sWV}, 4")
    if PROF[0]:
        a("v_writelane_b32 v0, s98, 0")
    a("v_lshrrev_b32 v3, 3, v1")
    a("v_and_b32 v4, 7, v1")
    a("v_mul_u32_u24 v5, 896, v3")
    a("v_lshl_add_u32 v10, v4, 4, v5")
    a("v_and_b32 v2, 15, v1")
    a(f"s_lshl_b32 s{sT}, s{sRB}, 3")
    a(f"s_add_u32 s{sT}, s{sT}, s{sWV}")
    a(f"s_mul_i32 s{sBASE2}, s{sT}, {8*896}")
    a(f"s_and_b32 s{sT}, s{sWV}, 3")
    a(f"s_lshl_b32 s{sT}, s{sT}, 4")
    a(f"s_lshl_b32 s{sT2}, s{sSL}, 6")
    a(f"s_add_u32 s{sP0}, s{sT}, s{sT2}")
    a(f"v_add_u32 v2, s{sP0}, v2")
    a("v_lshlrev_b32 v2, 1, v2")
    a("s_waitcnt lgkmcnt(0)")
    stamp(a, 11)
    def stouch_w1(m, nl=4, l0=0):
        NS = RBG
        nrow = 448 // NS
        a(f"s_add_u32 s{sT}, s{sWV}, {8*m}")
        skip = None
        if 8 * m + 7 >= nrow:
            _spin[0] += 1
            skip = f"K1_ST{m}_{_spin[0]}"
            a(f"s_cmp_ge_u32 s{sT}, {nrow}")
            a(f"s_cbranch_scc1 {skip}")
        a(f"s_mul_i32 s{sT}, s{sT}, {NS}")
        a(f"s_add_u32 s{sT}, s{sT}, s{sJS}")
        a(f"s_mul_i32 s{sT}, s{sT}, 3584")
        a(f"s_lshl_b32 s{sT2}, s{sSL}, 9")
        a(f"s_add_u32 s{sT}, s{sT}, s{sT2}")
        a(f"s_add_u32 s{sPA}, s24, s{sT}")
        a(f"s_addc_u32 s{sPA+1}, s25, 0")
        for k in range(l0, nl):
            a(f"s_load_dword s{sDUM}, s[{sPA}:{sPA+1}], {128*k}")
        if skip:
            a.label(skip)

    def stouch_b():
        NS = RBG
        per = 128 // NS
        if per < 8:
            a(f"s_cmp_ge_u32 s{sWV}, {per}")
            a("s_cbranch_scc1 K1_STB")
        reps = max(1, per // 8)
        for rep in range(reps):
            a(f"s_mul_i32 s{sT}, s{sJS}, {per}")
            a(f"s_add_u32 s{sT}, s{sT}, s{sWV}")
            if rep:
                a(f"s_add_u32 s{sT}, s{sT}, {8*rep}")
            a(f"s_and_b32 s{sT2}, s{sT}, 63")
            a(f"s_lshl_b32 s{sPA}, s{sSL}, 6")
            a(f"s_add_u32 s{sT2}, s{sT2}, s{sPA}")
            a(f"s_mul_i32 s{sT2}, s{sT2}, 896")
            a(f"s_cmp_ge_u32 s{sT}, 64")
            a(f"s_cselect_b32 s{sPA}, s12, s10")
            a(f"s_cselect_b32 s{sPA+1}, s13, s11")
            a(f"s_add_u32 s{sPA}, s{sPA}, s{sT2}")
            a(f"s_addc_u32 s{sPA+1}, s{sPA+1}, 0")
            for k in range(7):
                a(f"s_load_dword s{sDUM}, s[{sPA}:{sPA+1}], {128*k}")
        if per < 8:
            a.label("K1_STB")
    def stouch_w1g(m, nl=4, l0=0):
        n0 = len(a.items)
        stouch_w1(m, nl, l0)
        for i in range(n0, len(a.items)):
            k_, it = a.items[i]
            if k_ == 'label':
                a.items[i] = (k_, it + "G")
            elif k_ == 'ins' and 'K1_ST' in it.text:
                from asmlib import Ins
                a.items[i] = (k_, Ins(it.text + "G"))
    STOUCH = opt.get('stouch', '0') == '1'
    if STOUCH:
        stouch_b()
        stouch_w1(0)
        stouch_w1(1, 3)
    srd(a, SX, 4, 2048 * 896)
    if opt.get('warm'):
        srd(a, 48, 24, 448 * 3584); srd(a, 52, 28, 1792 * 896); srd(a, 56, 14, 448 * 896); srd(a, 60, 16, 448 * 896)
        srd(a, 64, 10, 448 * 896); srd(a, 68, 12, 448 * 896)
        a("v_lshlrev_b32 v6, 6, v0") if False else None
        a("v_and_b32 v7, 63, v1")
        a(f"s_lshl_b32 s{sT}, s{sWV}, 6")
        a(f"v_add_u32 v7, s{sT}, v1")
        for k in range(7):
            a(f"v_add_u32 v8, {512*k}, v7")
            a("v_lshrrev_b32 v9, 3, v8")
            a("v_mul_u32_u24 v9, 3584, v9")
            a("v_and_b32 v8, 7, v8")
            a("v_lshl_add_u32 v9, v8, 6, v9")
            a(f"s_lshl_b32 s{sT}, s{sSL}, 9")
            a(f"buffer_load_dword v250, v9, s[48:51], s{sT} offen")
        a(f"s_mul_i32 s{sT}, s{sSL}, {256*896}")
        for k in range(7):
            a(f"v_add_u32 v8, {512*k}, v7")
            a("v_lshlrev_b32 v9, 6, v8")
            a(f"buffer_load_dword v250, v9, s[52:55], s{sT} offen")
        a(f"s_mul_i32 s{sT}, s{sSL}, {64*896}")
        for k in range(2):
            a(f"v_add_u32 v8, {512*k}, v7")
            a("v_lshlrev_b32 v9, 6, v8")
            a(f"buffer_load_dword v250, v9, s[64:67], s{sT} offen")
            a(f"buffer_load_dword v250, v9, s[68:71], s{sT} offen")
        for k in range(2):
            a(f"v_add_u32 v8, {512*k}, v7")
            a("v_lshrrev_b32 v9, 1, v8")
            a("v_mul_u32_u24 v9, 896, v9")
            a("v_and_b32 v8, 1, v8")
            a("v_lshl_add_u32 v9, v8, 6, v9")
            a(f"s_lshl_b32 s{sT}, s{sSL}, 7")
            a(f"buffer_load_dword v250, v9, s[56:59], s{sT} offen")
            a(f"buffer_load_dword v250, v9, s[60:63], s{sT} offen")
        a(f"s_mul_i32 s{sT}, s{sRB}, {64*896}")
        for k in range(2):
            a(f"v_add_u32 v8, {512*k}, v7")
            a("v_lshlrev_b32 v9, 6, v8")
            a(f"buffer_load_dword v250, v9, s[{SX}:{SX+3}], s{sT} offen")
        a("s_waitcnt vmcnt(0)")
        a("s_barrier")
        a("s_sleep 64")
        a("s_barrier")
        if PROF[0]:
            a("s_memtime s[100:101]\n s_waitcnt lgkmcnt(0)\n v_writelane_b32 v0, s100, 0")
    a.vmem("global_load_ushort v104, v2, s[6:7]", 'par')
    a.vmem("global_load_ushort v105, v2, s[8:9]", 'par')
    a.vmem("global_load_ushort v106, v2, s[18:19]", 'par')
    for i in range(7):
        a.vmem(f"buffer_load_dwordx4 {vr(32+4*i,4)}, v10, s[{SX}:{SX+3}], s{sBASE2} offen offset:{128*i}", 'x')
    if opt.get('tlbw', '0') == '1':
        a("v_mov_b32 v2, 0")
        a("s_mov_b64 exec, 1")
        a.vmem("global_load_dword v250, v2, s[28:29]", 'tlb')
        a.vmem("global_load_dword v250, v2, s[14:15]", 'tlb')
        a.vmem("global_load_dword v250, v2, s[16:17]", 'tlb')
        a.vmem("global_load_dword v250, v2, s[36:37]", 'tlb')
        a("s_mov_b64 exec, -1")
    x_state = list(a.vm)

    srd(a, SW2, 28, 1792 * 896)
    srd(a, SCR_, 14, 448 * 896)
    srd(a, SCI, 16, 448 * 896)
    srd(a, SWS, 36, WS_SIZE)
    srd(a, SDBG, 34, 256)
    if opt.get('span'):
        a(f"s_lshl_b32 s{sT}, s2, 2")
        a(f"s_add_u32 s{sT}, s{sT}, 0xF80000")
        a("v_mov_b32 v240, s98")
        a("v_mov_b32 v241, 0")
        a("s_mov_b64 exec, 1")
        a(f"buffer_store_dword v240, v241, s[{SWS}:{SWS+3}], s{sT} offen")
        a("s_mov_b64 exec, -1")
    a("v_lshrrev_b32 v6, 4, v1")
    a("v_and_b32 v7, 1, v6")
    a("v_lshlrev_b32 v7, 2, v7")
    a("v_xor_b32 v7, v4, v7")
    a("v_xor_b32 v8, v4, v6")
    a("v_lshl_add_u32 v31, v8, 4, v5")
    a("v_xor_b32 v11, 64, v31")
    a(f"v_add_u32 v11, {8*896-1024}, v11")
    a("v_lshl_add_u32 v29, v7, 4, v5")
    a(f"v_add_u32 v30, {8*896-1024}, v29")
    NS = RBG
    nW = 448 * 4 // NS // 4
    a(f"s_and_b32 s{sT}, s{sWV}, 3")
    a(f"s_mul_i32 s{sT}, s{sT}, {nW}")
    a(f"v_add_u32 v6, s{sT}, v1")
    a("v_lshrrev_b32 v9, 2, v6")
    a(f"v_mul_u32_u24 v9, {NS}, v9")
    a(f"v_add_u32 v9, s{sJS}, v9")
    a("v_mul_u32_u24 v9, 3584, v9")
    a("v_and_b32 v6, 3, v6")
    a("v_lshl_add_u32 v248, v6, 7, v9")
    a(f"s_lshl_b32 s{sT}, s{sSL}, 9")
    a(f"v_add_u32 v248, s{sT}, v248")
    a("v_lshlrev_b32 v249, 7, v1")
    a("v_lshrrev_b32 v6, 4, v1")
    a(f"s_mul_i32 s{sW2B}, s{sSL}, {256*896}")
    a(f"s_lshl_b32 s{sT}, s{sWV}, 7")
    a(f"s_add_u32 s{sW2B}, s{sW2B}, s{sT}")
    a(f"s_mul_i32 s{sCB}, s{sWV}, {64*896}")
    a(f"s_lshl_b32 s{sT}, s{sSL}, 7")
    a(f"s_add_u32 s{sCB}, s{sCB}, s{sT}")
    a(f"s_lshl_b32 s{sT}, s{sWV}, 3")
    a(f"v_add_u32 v62, s{sT}, v3")
    a("v_bfe_u32 v63, v62, 1, 3")
    a(f"s_lshr_b32 s{sT}, s{sWV}, 1")
    a(f"s_and_b32 s{sT2}, s{sT}, 1")
    a(f"s_mul_i32 s{sT2}, s{sT2}, 3")
    a(f"s_lshr_b32 s{sT}, s{sT}, 1")
    a(f"s_xor_b32 s{sT}, s{sT}, s{sT2}")
    a(f"s_lshl_b32 s{sT}, s{sT}, 1")
    a(f"v_xor_b32 v63, s{sT}, v63")
    a("v_xor_b32 v63, v63, v4")
    a("v_mul_u32_u24 v61, 896, v62")
    a("v_lshl_add_u32 v10, v63, 4, v61")
    a("v_lshlrev_b32 v62, 2, v62")
    a("v_mov_b32 v60, 0")
    a(f"v_mov_b32 v63, {CNT}")
    for k in range(12):
        a(f"ds_write_b32 v63, v60 offset:{4*k}")
    a(f"s_cmp_ge_u32 s{sWV}, 4")
    a("s_cbranch_scc1 K1_G1_PRE")

    def touch1(sfx):
        if opt.get('touch1', '1') != '1':
            return
        if sfx.endswith("A"):
            nl = 448 * 4 // NS // 4
            assert nl <= 64
            a(f"s_mov_b64 exec, {hex((1 << nl) - 1)}")
            a("global_load_dword v252, v248, s[24:25]")
        else:
            perB = 128 // NS
            perW = perB // 4
            assert perW >= 1 and 7 * perW <= 64
            a(f"s_mul_i32 s{sT}, s{sJS}, {perB}")
            a(f"s_sub_u32 s{sT2}, s{sWV}, 4")
            a(f"s_mul_i32 s{sT2}, s{sT2}, {perW}")
            a(f"s_add_u32 s{sT}, s{sT}, s{sT2}")
            a(f"s_and_b32 s{sT2}, s{sT}, 63")
            a(f"s_lshl_b32 s{sPA}, s{sSL}, 6")
            a(f"s_add_u32 s{sT2}, s{sT2}, s{sPA}")
            a(f"s_mul_i32 s{sT2}, s{sT2}, 896")
            a(f"s_cmp_ge_u32 s{sT}, 64")
            a(f"s_cselect_b32 s{sPA}, s12, s10")
            a(f"s_cselect_b32 s{sPA+1}, s13, s11")
            a(f"s_add_u32 s{sPA}, s{sPA}, s{sT2}")
            a(f"s_addc_u32 s{sPA+1}, s{sPA+1}, 0")
            a(f"s_mov_b64 exec, {hex((1 << (7 * perW)) - 1)}")
            a(f"global_load_dword v253, v249, s[{sPA}:{sPA+1}]")
        a("s_mov_b64 exec, -1")

    LR, LI = 104, 105
    CR, CI = 116, 117
    L16R, L16I, PGR, PGI, MUR, MUI, M8R, M8I = 106, 107, 108, 109, 110, 111, 112, 113

    def cmac(dr, di, xr, xi, yr, yi, ar, ai):
        a(f"v_fma_f32 v{dr}, v{xr}, v{yr}, v{ar}")
        a(f"v_fma_f32 v{di}, v{xr}, v{yi}, v{ai}")
        a(f"v_fma_f32 v{dr}, -v{xi}, v{yi}, v{dr}")
        a(f"v_fmac_f32 v{di}, v{xi}, v{yr}")

    def lam_block():
        a.wait_vm('par')
        if not STOUCH: stamp(a, 12)
        LR, LI = 104, 105
        a("v_lshlrev_b32 v107, 16, v104")
        a("v_lshlrev_b32 v108, 16, v105")
        a("v_lshlrev_b32 v106, 16, v106")
        a(f"v_mul_f32 v106, {fhex(LOG2E)}, v106")
        a("v_exp_f32 v106, v106")
        bf16_round(a, 106, 106)
        a("v_mul_f32 v109, v106, v107")
        a("v_mul_f32 v110, v106, v108")
        a(f"v_mul_f32 v109, {fhex(LOG2E)}, v109")
        a(f"v_mul_f32 v110, {fhex(0.15915494309189535)}, v110")
        a("v_exp_f32 v109, v109")
        a("v_rndne_f32 v111, v110")
        a("v_sub_f32 v110, v110, v111")
        a("v_cos_f32 v111, v110")
        a("v_sin_f32 v112, v110")
        a("v_mul_f32 v113, v107, v107")
        a("v_fmac_f32 v113, v108, v108")
        a("v_mul_f32 v104, v109, v111")
        a("v_mul_f32 v105, v109, v112")
        a("v_rcp_f32 v110, v113")
        a("v_add_f32 v109, -1.0, v104")
        a("v_mul_f32 v111, v109, v107")
        a("v_mul_f32 v112, v105, v107")
        a("v_fmac_f32 v111, v105, v108")
        a("v_fma_f32 v112, -v109, v108, v112")
        a("v_add_f32 v110, v110, v110")
        CR, CI = 116, 117
        a(f"v_mul_f32 v{CR}, v111, v110")
        a(f"v_mul_f32 v{CI}, v112, v110")

        def csq(dr, di, sr, si):
            a(f"v_mul_f32 v{dr}, v{sr}, v{sr}")
            a(f"v_mul_f32 v{di}, v{sr}, v{si}")
            a(f"v_fma_f32 v{dr}, -v{si}, v{si}, v{dr}")
            a(f"v_add_f32 v{di}, v{di}, v{di}")

        def cmul(dr, di, xr, xi, yr, yi):
            a(f"v_mul_f32 v{dr}, v{xr}, v{yr}")
            a(f"v_mul_f32 v{di}, v{xr}, v{yi}")
            a(f"v_fma_f32 v{dr}, -v{xi}, v{yi}, v{dr}")
            a(f"v_fmac_f32 v{di}, v{xi}, v{yr}")

        def cmac(dr, di, xr, xi, yr, yi, ar, ai):
            a(f"v_fma_f32 v{dr}, v{xr}, v{yr}, v{ar}")
            a(f"v_fma_f32 v{di}, v{xr}, v{yi}, v{ai}")
            a(f"v_fma_f32 v{dr}, -v{xi}, v{yi}, v{dr}")
            a(f"v_fmac_f32 v{di}, v{xi}, v{yr}")
        L16R, L16I, PGR, PGI, MUR, MUI, M8R, M8I = 106, 107, 108, 109, 110, 111, 112, 113
        csq(118, 119, LR, LI)
        csq(120, 121, 118, 119)
        csq(118, 119, 120, 121)
        csq(L16R, L16I, 118, 119)
        csq(118, 119, L16R, L16I)
        cmul(120, 121, 118, 119, L16R, L16I)
        a("v_lshrrev_b32 v2, 4, v1")
        a(f"v_mov_b32 v{PGR}, 1.0")
        a(f"v_mov_b32 v{PGI}, 0")
        a("v_cmp_eq_u32 vcc, 1, v2")
        a(f"v_cndmask_b32 v{PGR}, v{PGR}, v{L16R}, vcc")
        a(f"v_cndmask_b32 v{PGI}, v{PGI}, v{L16I}, vcc")
        a("v_cmp_eq_u32 vcc, 2, v2")
        a(f"v_cndmask_b32 v{PGR}, v{PGR}, v118, vcc")
        a(f"v_cndmask_b32 v{PGI}, v{PGI}, v119, vcc")
        a("v_cmp_eq_u32 vcc, 3, v2")
        a(f"v_cndmask_b32 v{PGR}, v{PGR}, v120, vcc")
        a(f"v_cndmask_b32 v{PGI}, v{PGI}, v121, vcc")

    def prefill(it):
        s_ = SA if it % 2 == 0 else SBI
        a(f"s_add_u32 m0, s{sRING}, {2048*it}")
        a("s_nop 0")
        a.vmem(f"buffer_load_dwordx4 v27, s[{s_}:{s_+3}], s{sOFF} offen lds", ('pre', it))
        a.vmem(f"buffer_load_dwordx4 v28, s[{s_}:{s_+3}], s{sOFF} offen offset:1024 lds", ('pre', it))
        a(f"s_add_u32 s{sOFF}, s{sOFF}, s{sINC0 if it % 2 == 0 else sINC1}")
    NEARLY = int(opt.get('nearly', 0))

    srd(a, SA, 24, 448 * 3584)
    srd(a, SBI, 24, 448 * 3584)
    a(f"s_mul_i32 s{sRING}, s{sWV}, {RING}")
    a(f"s_add_u32 s{sRING}, s{sRING}, {P}")
    a(f"s_mov_b32 s{sRING3}, s{sRING}")
    a(f"s_lshl_b32 s{sBASE}, s{sSL}, 9")
    a(f"s_lshl_b32 s{sT}, s{sWV}, 7")
    a(f"s_add_u32 s{sBASE}, s{sBASE}, s{sT}")
    a(f"s_mov_b32 s{sINC0}, {16*3584}")
    a(f"s_mov_b32 s{sINC1}, {16*3584}")
    a("v_mul_u32_u24 v27, 3584, v3")
    a("v_lshl_add_u32 v27, v7, 4, v27")
    a(f"v_add_u32 v28, {8*3584-1024}, v27")
    if opt.get('tpos', 'ln') == 'pre': touch1("A")
    if opt.get('touch'):
        a(f"s_mul_i32 s{sT}, s{sWV}, 28")
        a(f"v_add_u32 v2, s{sT}, v1")
        a("v_lshrrev_b32 v8, 3, v2")
        a("v_and_b32 v9, 7, v2")
        a(f"s_mul_i32 s{sT}, s{sRB}, 14")
        a(f"v_add_u32 v8, s{sT}, v8")
        a("v_mul_u32_u24 v8, 3584, v8")
        a("v_lshl_add_u32 v8, v9, 6, v8")
        a(f"s_lshl_b32 s{sT}, s{sSL}, 9")
        a(f"v_add_u32 v8, s{sT}, v8")
        a("v_lshlrev_b32 v9, 6, v2")
        a(f"s_lshl_b32 s{sT}, s{sSL}, 5")
        a(f"s_add_u32 s{sT}, s{sT}, s{sRB}")
        a(f"s_mul_i32 s{sT}, s{sT}, {8*896}")
        a(f"v_add_u32 v9, s{sT}, v9")
        a(f"v_mov_b32 v2, {OOB}")
        a("v_cmp_gt_u32 vcc, 28, v1")
        a("v_cndmask_b32 v8, v2, v8, vcc")
        a("v_cndmask_b32 v9, v2, v9, vcc")
        a.vmem(f"buffer_load_dword v252, v8, s[{SA}:{SA+3}], 0 offen", 'touch')
        a.vmem(f"buffer_load_dword v253, v9, s[{SW2}:{SW2+3}], 0 offen", 'touch')
    a(f"s_mov_b32 s{sOFF}, s{sBASE}")
    for it in range(NEARLY):
        prefill(it)
    a("v_mov_b32 v247, 0")
    a("v_mov_b32 v250, 0")
    g3_addr(a)
    a(f"v_add_u32 v12, s{sRING}, v8")
    a("v_xor_b32 v13, 64, v12")
    a("v_lshrrev_b32 v2, 5, v1")
    a("v_and_b32 v3, 31, v1")
    a("v_bfe_u32 v4, v3, 1, 3")
    a("v_lshrrev_b32 v5, 4, v3")
    a("v_mul_u32_u24 v5, 6, v5")
    a("v_xor_b32 v4, v4, v5")
    a("v_xor_b32 v4, v4, v2")
    a("v_mul_u32_u24 v5, 896, v3")
    for j in range(4):
        a(f"v_xor_b32 v6, {2*j}, v4")
        a(f"v_lshl_add_u32 v{14+j}, v6, 4, v5")
    if STOUCH:
        a("s_waitcnt lgkmcnt(0)")
        stouch_w1(1, 4, 3)
        for m in range(2, (448 // RBG + 7) // 8):
            stouch_w1(m)
    if opt.get('xbar', '1') == '1': a("s_barrier")
    if not STOUCH: stamp(a, 13)
    a.wait_vm('x')
    a("v_lshrrev_b32 v2, 5, v1")
    a("v_lshlrev_b32 v2, 3, v2")
    a(f"v_add_u32 v2, s{sBASE}, v2")
    for ft in range(2):
        for aa in range(4):
            a.vmem(f"global_load_dwordx2 {vr(224 + 2*(4*ft+aa), 2)}, v2, s[26:27] offset:{(32*ft+8*aa)*2}", 'bias')
    saved_vm_A = list(a.vm)

    def emit_ln(role):
        if not STOUCH: stamp(a, 1)
        NLN0 = int(opt.get('nln0', 0))
        for it in range(NEARLY, max(NEARLY, NLN0)):
            prefill(it)
        if opt.get('tpos', 'ln') == 'ln' and (role == "B" or opt.get('w1pos', 'g1') == 'ln'): touch1("C" + role)
        if opt.get('x_ln'): stamp(a, 40)
        U = 128
        a("v_mov_b32 v2, 0")
        a("v_mov_b32 v3, 0")
        a("v_mov_b32 v4, 0")
        a("v_mov_b32 v5, 0")
        a(f"v_mov_b32 v60, 0x3f803f80")
        for i in range(28):
            x = 32 + i
            a(f"v_dot2c_f32_bf16 v{2 + (i & 1)}, v60, v{x}")
            a(f"v_dot2c_f32_bf16 v{4 + (i & 1)}, v{x}, v{x}")
        if opt.get('x_ln'): stamp(a, 41)
        fill = []
        for i in range(28):
            fill.append(f"v_lshlrev_b32 v{U+2*i}, 16, v{32+i}")
            fill.append(f"v_and_b32 v{U+2*i+1}, 0xffff0000, v{32+i}")
        inv = fhex(1.0 / 448.0)
        eps = fhex(1e-5)
        chain = []
        chain += ["v_add_f32 v2, v2, v3", "v_add_f32 v4, v4, v5"]
        for m in ("quad_perm:[1,0,3,2]", "quad_perm:[2,3,0,1]", "row_half_mirror"):
            chain.append(f"v_add_f32_dpp v2, v2, v2 {m} row_mask:0xf bank_mask:0xf")
            chain.append(f"v_add_f32_dpp v4, v4, v4 {m} row_mask:0xf bank_mask:0xf")
        chain += [f"v_mul_f32 v5, {inv}, v2", f"v_mul_f32 v4, {inv}, v4", "v_fma_f32 v4, -v5, v5, v4", "v_max_f32 v4, 0, v4",
                  f"v_add_f32 v6, {eps}, v4", "v_rsq_f32 v6, v6",
                  "v_mul_f32 v7, v6, v6", "v_mul_f32 v7, v7, v4", f"v_add_f32 v7, {eps}, v7", "v_rsq_f32 v9, v7",
                  "v_mul_f32 v3, v6, v9", "v_mul_f32 v8, v7, v9", "v_mul_f32 v2, v5, v3", "v_sub_f32 v2, 0, v2"]
        for k, ins in enumerate(chain):
            a(ins)
            if fill:
                a(fill.pop(0))
        for f_ in fill:
            a(f_)
        if opt.get('x_ln'): stamp(a, 42)
        a("v_mov_b32 v60, v3")
        a("v_mov_b32 v61, v3")
        a("v_mov_b32 v4, v2")
        a("v_mov_b32 v63, v5")
        a("v_mov_b32 v5, v2")
        if opt.get('x_ln'): stamp(a, 43)
        if role == "B" and opt.get('g1pre', 'end') == 'mid':
            for it in range(6):
                prefill(it)
        a(".p2align 3")
        for i in range(7):
            for d in range(4):
                u = U + 2 * (4 * i + d)
                a(f"v_pk_fma_f32 v[{u}:{u+1}], v[{u}:{u+1}], v[60:61], v[4:5]")
            for d in range(4):
                u = U + 2 * (4 * i + d)
                a(f"v_cvt_pk_bf16_f32 v{32+4*i+d}, v{u}, v{u+1}")
            a(f"ds_write_b128 v10, {vr(32+4*i,4)} offset:{128*i}")
        a("v_and_b32 v2, 7, v1")
        a("v_cmp_eq_u32 vcc, 0, v2")
        a(f"s_and_saveexec_b64 s[{sTMP}:{sTMP+1}], vcc")
        a(f"v_add_u32 v2, {S2T}, v62")
        a(f"ds_write_b32 v2, v8")
        a(f"ds_write_b32 v2, v63 offset:{M2T-S2T}")
        a(f"ds_write_b32 v2, v6 offset:{AT-S2T}")
        a(f"s_mov_b64 exec, s[{sTMP}:{sTMP+1}]")
        a("s_waitcnt lgkmcnt(0)")
        stamp(a, 2)
    emit_ln("A")
    for k in range(6):
        a(f"s_add_u32 s{sSLOT1+k}, s{sRING}, {2048*k}")
        a(f"s_add_u32 s{sSLOT3+k}, s{sRING3}, {2048*k}")
    a(f"s_mov_b32 s{sOFF}, s{sBASE}")
    a("s_barrier")
    stamp(a, 3)
    NG2 = int(opt.get('ng2', 2))
    for it in range(NG2):
        prefill(it)
    pre_tags = [('st', i // 2) for i in range(2 * NG2)]

    PP = [(2, 3), (4, 5)]
    XR, XI = 122, 123
    def pass2(sfx, preloaded):
        if preloaded:
            a("s_branch K1_POLLW" + sfx)
        a.label("K1_POLL" + sfx)
        a(f"buffer_load_dwordx4 v[44:47], v250, s[{SWS}:{SWS+3}], 0 offen sc1")
        a("s_waitcnt vmcnt(0)")
        a.label("K1_POLLW" + sfx)
        a("v_cmp_ne_u32 vcc, 1, v46")
        a("s_cbranch_vccz K1_POLLED" + sfx)
        a(f"s_sleep {int(opt.get('psleep', 4))}")
        a("s_branch K1_POLL" + sfx)
        a.label("K1_POLLED" + sfx)
        stamp(a, 6)
        cmac(PP[1][0], PP[1][1], PGR, PGI, 44, 45, XR, XI)
        for e in range(16):
            nr, ni = PP[e & 1]
            hr, hi = PP[(e & 1) ^ 1]
            cmac(nr, ni, LR, LI, hr, hi, 64 + e, 80 + e)
            if e & 1:
                a(f"v_cvt_pk_bf16_f32 v{32 + e//2}, v{hr}, v{nr}")
                a(f"v_cvt_pk_bf16_f32 v{40 + e//2}, -v{hi}, -v{ni}")
        a.lds("ds_write_b128 v246, v[32:35] offset:8192", 'w')
        a.lds("ds_write_b128 v246, v[36:39] offset:8208", 'w')
        a.lds("ds_write_b128 v246, v[40:43] offset:10240", 'w')
        a.lds("ds_write_b128 v246, v[44:47] offset:10256", 'w')
        a.wait_lg_all()
        signal(a, 16)
        stamp(a, 7)
    a.vm = [t for t in saved_vm_A if not (isinstance(t, tuple) and t[0] == 'pre')] + pre_tags
    a.lg = []
    w1_items = [dict(srd=SA, va=27, vb=28, sbase=sBASE, off=16 * s * 3584, ring=sRING) for s in range(28)]
    w2_items = [dict(srd=SW2, va=29, vb=30, sbase=sW2B, off=16 * ks * 896, ring=sRING3) for ks in KORDER]
    c_items = []
    for part in range(2):
        for nt in range(2):
            for pr in range(2):
                c_items.append(dict(srd=(SCR_, SCI)[part], va=31, vb=11, sbase=sCB, off=(32 * nt + 16 * pr) * 896, ring=sRING3))
    stA = Stream(a, w1_items + w2_items + c_items, 0)
    stA.next = NG2
    a.wait_vm('bias')
    for ft in range(2):
        for aa in range(4):
            s_ = 224 + 2 * (4 * ft + aa)
            d_ = 128 + 16 * ft + 4 * aa
            a(f"v_lshlrev_b32 v{d_}, 16, v{s_}")
            a(f"v_and_b32 v{d_+1}, 0xffff0000, v{s_}")
            a(f"v_lshlrev_b32 v{d_+2}, 16, v{s_+1}")
            a(f"v_and_b32 v{d_+3}, 0xffff0000, v{s_+1}")

    FA = [192, 208, 224]

    def g2_reads(s):
        b = FA[s % 3]
        so = (s % 6) * 2048
        out = []
        for ft in range(2):
            for q in range(2):
                out.append(f"ds_read_b64_tr_b16 {vr(b+4*ft+2*q,2)}, v{12+ft} offset:{so+512*q}")
        j = s & 3
        out.append(f"ds_read_b128 {vr(b+8,4)}, v{14+j} offset:{128*(s>>2)}")
        out.append(f"ds_read_b128 {vr(b+12,4)}, v{14+(j^1)} offset:{128*(s>>2)+28672}")
        return out

    a(f"s_setprio {int(opt.get('g2p', 1))}")
    if opt.get('x_g2sleep'):
        a("s_sleep 127\n s_sleep 127")
    if opt.get('serial', '1') == '1':
        spin(a, 20, 4)
    if opt.get('w1pos', 'g1') == 'sig':
        touch1("DA")
    if opt.get('x_rep2'):
        a("s_mov_b32 s87, 0")
        a("s_waitcnt vmcnt(0)")
        a.vm = []
        a.label("K1_REP")
        stA.next = 0
        stamp(a, 44)
    stA.issue(6)
    stA.wait(0)
    for r in g2_reads(0):
        a.lds(r, ('f', 0))
    stA.wait(1)
    for r in g2_reads(1):
        a.lds(r, ('f', 1))
    a.wait_lg(('f', 0))
    stA.issue(7)
    a(".p2align 3")
    for s in range(28):
        b = FA[s % 3]
        ms = []
        for ft in range(2):
            for tt in range(2):
                acc = 64 + 32 * ft + 16 * tt
                c = vr(128 + 16 * ft, 16) if s == 0 else vr(acc, 16)
                ms.append(f"v_mfma_f32_32x32x16_bf16 {vr(acc,16)}, {vr(b+4*ft,4)}, {vr(b+8+4*tt,4)}, {c}")
        rd = g2_reads(s + 2) if s + 2 < 28 else []
        pp = stA.parts(min(s + 8, int(opt.get('g2cap', 34))))
        a(ms[0])
        both_wait(a, ('st', stA.first + s + 2) if s + 2 < 28 else None, ('f', s + 1) if s + 1 < 28 else None)
        if pp:
            pp[0][3]()
        else:
            a("s_nop 0")
        for r in rd[0:3]:
            a.lds(r, ('f', s + 2))
        a(ms[1])
        for r in rd[3:6]:
            a.lds(r, ('f', s + 2))
        if pp:
            pp[0][0]()
        a(ms[2])
        if pp:
            pp[0][1]()
        a(ms[3])
        if pp:
            pp[0][2]()
        for extra_ in pp[1:]:
            extra_[3](); a('s_nop 0'); extra_[0](); extra_[1](); extra_[2]()
        if opt.get('x_steps') and s % 3 == 2:
            lstamp(a)
    if opt.get('x_steps') and opt.get('x_rep2'):
        a("s_waitcnt lgkmcnt(0)")
        a.lg = []
        for i in range(LS[0]):
            a(f"s_mul_i32 s86, s87, 10")
            a(f"s_add_u32 m0, s86, {16+i}")
            a("s_nop 4")
            a(f"v_writelane_b32 v0, s{4+2*i}, m0")
        LS[0] = 0
    elif opt.get('x_steps'):
        lflush(a, 16)
    if opt.get('x_rep2'):
        a.wait_lg_all()
        a("s_waitcnt vmcnt(0)")
        a("s_cmp_eq_u32 s87, 1")
        a("s_cbranch_scc1 K1_REPD")
        stamp(a, 45)
        a("s_memtime s[100:101]\n s_waitcnt lgkmcnt(0)\n v_writelane_b32 v0, s100, 46")
        a("v_readlane_b32 s100, v0, 44")
        a("s_nop 4")
        a("v_writelane_b32 v0, s100, 47")
        a("s_mov_b32 s87, 1")
        a("s_branch K1_REP")
        a.label("K1_REPD")
        a.vm = []
    stamp(a, 4)
    a.wait_lg_all()
    signal(a, 8)
    spin(a, 0, 4)
    stA.issue(34)
    def touch2(wexpr=None, rep4=False):
        if opt.get('touch2', '1') != '1':
            return
        NS = RBG
        n2 = 1792 // NS // 4
        nc = 448 // NS // 4
        for w in (range(4) if rep4 else [None]):
            if w is None:
                a(f"s_mul_i32 s{sT}, s{sWV}, {n2}")
            else:
                a(f"s_mov_b32 s{sT}, {n2*w}")
            a(f"v_add_u32 v2, s{sT}, v1")
            a(f"v_mul_u32_u24 v2, {NS}, v2")
            a(f"v_add_u32 v2, s{sJS}, v2")
            a("v_lshlrev_b32 v2, 7, v2")
            a(f"v_mov_b32 v3, {OOB}")
            a(f"v_cmp_gt_u32 vcc, {n2}, v1")
            a("v_cndmask_b32 v2, v3, v2, vcc")
            a(f"s_mul_i32 s{sT}, s{sSL}, {256*896}")
            a.vmem(f"buffer_load_dword v252, v2, s[{SW2}:{SW2+3}], s{sT} offen", 'touch')
        ncc = nc * 4 if rep4 else nc
        if rep4:
            a(f"v_mov_b32 v2, v1")
        else:
            a(f"s_mul_i32 s{sT}, s{sWV}, {nc}")
            a(f"v_add_u32 v2, s{sT}, v1")
        a(f"v_mul_u32_u24 v2, {NS}, v2")
        a(f"v_add_u32 v2, s{sJS}, v2")
        a("v_mul_u32_u24 v2, 896, v2")
        a(f"v_mov_b32 v3, {OOB}")
        a(f"v_cmp_gt_u32 vcc, {ncc}, v1")
        a("v_cndmask_b32 v2, v3, v2, vcc")
        a(f"s_lshl_b32 s{sT}, s{sSL}, 7")
        a.vmem(f"buffer_load_dword v253, v2, s[{SCR_}:{SCR_+3}], s{sT} offen", 'touch')
        a.vmem(f"buffer_load_dword v254, v2, s[{SCI}:{SCI+3}], s{sT} offen", 'touch')
    a("s_setprio 0")
    stamp(a, 5)
    if GSH[0]:
        spin(a, 8, 4)
        a(f"s_lshl_b32 s{sT}, s{sWV}, 13")
        a("v_lshlrev_b32 v2, 4, v1")
        a(f"v_add_u32 v32, s{sT}, v2")
        for k in range(8):
            a.lds(f"ds_write_b128 v32, {vr(96+4*k,4)} offset:{Y + 1024*k}", 'xf')
        a.wait_lg_all()
        signal(a, 40)
        gelu(a, touch2, int(opt.get('t2pos', 0)), fts=(0,))
    else:
        gelu(a, touch2 if opt.get('t2by', 'w7') == 'g2' else None, int(opt.get('t2pos', 1)))
    a.wait_lg_all()
    signal(a, 28)
    a(f"s_setprio {int(opt.get('g3p03', 2))}")
    stamp(a, 6)
    g3_stream = stA

    a.label("K1_G3")
    assert g3_stream.next == 34
    a.vm = [('st', 28 + i // 2) for i in range(12)]
    a.lg = []
    spin(a, 28, 8 if GSH[0] else 4)
    stamp(a, 8)
    def hook_load():
        if opt.get('hookpos', 'pre') == 'pre':
            return
        a.vmem(f"buffer_load_dwordx4 v[44:47], v250, s[{SWS}:{SWS+3}], 0 offen sc1", 'inbox')

    def hook_pass2():
        if opt.get('hookpos', 'pre') == 'pre':
            return
        a.wait_vm('inbox')
        a(f"s_cmp_ge_u32 s{sWV}, 4")
        a("s_cbranch_scc0 K1_HP")
        sv = (list(a.vm), list(a.lg))
        a(f"s_setprio {int(opt.get('p2prio', 0))}")
        pass2("B", True)
        a.vm, a.lg = sv[0], []
        a.label("K1_HP")
    g3(a, g3_stream, 28, D2, hook_load, hook_pass2)
    stamp(a, 19)
    a.vm = [('ps', 0)] * 8
    reduce_pre(a)
    a.wait_vm(('ps', 0))
    a(f"s_mul_i32 s{sT}, s{sRB}, 7")
    a(f"s_add_u32 s{sT}, s{sT}, s{sWV}")
    a(f"s_lshl_b32 s{sT}, s{sT}, 7")
    a(f"s_lshl_b32 s{sT2}, s{sSL}, 2")
    a(f"s_add_u32 s{sT}, s{sT}, s{sT2}")
    a(f"s_add_u32 s{sT}, s{sT}, {RFLAG}")
    a("v_mov_b32 v2, 1")
    a("v_mov_b32 v3, 0")
    a("s_mov_b64 exec, 1")
    a.vmem(f"buffer_store_dword v2, v3, s[{SWS}:{SWS+3}], s{sT} offen sc1", 'flag')
    a("s_mov_b64 exec, -1")
    a.label("K1_SIGD")
    signal(a, 32)
    stamp(a, 16)
    a.label("K1_RED")
    a.vm = ['x'] * 10
    a.lg = []
    reduce_main(a, opt)
    if opt.get('span'):
        a("s_memrealtime s[98:99]")
        a("s_waitcnt vmcnt(0)")
        a("s_memrealtime s[96:97]")
        a(f"s_lshl_b32 s{sT}, s2, 3")
        a(f"s_add_u32 s{sT}, s{sT}, s{sWV}")
        a(f"s_lshl_b32 s{sT}, s{sT}, 3")
        a(f"s_add_u32 s{sT}, s{sT}, 0xF84000")
        a("s_waitcnt lgkmcnt(0)")
        a("v_mov_b32 v2, s98")
        a("v_mov_b32 v3, s96")
        a("v_mov_b32 v4, 0")
        a("s_mov_b64 exec, 1")
        a(f"buffer_store_dwordx2 v[2:3], v4, s[{SWS}:{SWS+3}], s{sT} offen")
    stamp(a, 10)
    stamp_out(a)
    a("s_endpgm")

    a.label("K1_G1_PRE")
    a.vm = list(x_state)
    srd(a, SA, 10, 448 * 896)
    srd(a, SBI, 12, 448 * 896)
    a(f"s_sub_u32 s{sTMP}, s{sWV}, 4")
    a(f"s_mul_i32 s{sRING}, s{sTMP}, {RING}")
    a(f"s_add_u32 s{sRING3}, s{sRING}, {Y}")
    a(f"s_add_u32 s{sRING}, s{sRING}, {Q}")
    a(f"s_mul_i32 s{sBASE}, s{sP0}, 896")
    a(f"s_mov_b32 s{sINC0}, 0")
    a(f"s_mov_b32 s{sINC1}, 128")
    a("v_mov_b32 v27, v31")
    a("v_mov_b32 v28, v11")
    if opt.get('tpos', 'ln') == 'pre': touch1("B")
    if opt.get('touch'):
        a(f"s_mul_i32 s{sT}, s{sTMP}, 7")
        a(f"v_add_u32 v2, s{sT}, v1")
        a("v_lshlrev_b32 v8, 6, v2")
        a(f"s_lshl_b32 s{sT}, s{sSL}, 5")
        a(f"s_add_u32 s{sT}, s{sT}, s{sRB}")
        a(f"s_mul_i32 s{sT}, s{sT}, {2*896}")
        a(f"v_add_u32 v8, s{sT}, v8")
        a("v_lshrrev_b32 v9, 1, v2")
        a(f"s_mul_i32 s{sT}, s{sRB}, 14")
        a(f"v_add_u32 v9, s{sT}, v9")
        a("v_mul_u32_u24 v9, 896, v9")
        a("v_and_b32 v6, 1, v2")
        a("v_lshl_add_u32 v9, v6, 6, v9")
        a(f"s_lshl_b32 s{sT}, s{sSL}, 7")
        a(f"v_add_u32 v9, s{sT}, v9")
        a(f"v_mov_b32 v2, {OOB}")
        a("v_cmp_gt_u32 vcc, 7, v1")
        a("v_cndmask_b32 v8, v2, v8, vcc")
        a("v_cndmask_b32 v9, v2, v9, vcc")
        a.vmem(f"buffer_load_dword v252, v8, s[{SA}:{SA+3}], 0 offen", 'touch')
        a.vmem(f"buffer_load_dword v253, v8, s[{SBI}:{SBI+3}], 0 offen", 'touch')
        a.vmem(f"buffer_load_dword v254, v9, s[{SCR_}:{SCR_+3}], 0 offen", 'touch')
        a.vmem(f"buffer_load_dword v255, v9, s[{SCI}:{SCI+3}], 0 offen", 'touch')
    a(f"s_mov_b32 s{sOFF}, s{sBASE}")
    for it in range(NEARLY):
        prefill(it)
    g3_addr(a)
    a("v_and_b32 v2, 15, v1")
    a("v_lshrrev_b32 v3, 4, v1")
    a("v_bfe_u32 v4, v2, 1, 3")
    a("v_xor_b32 v4, v4, v3")
    a("v_lshlrev_b32 v4, 4, v4")
    a("v_lshl_add_u32 v4, v2, 7, v4")
    a(f"v_add_u32 v12, s{sRING}, v4")
    a("v_xor_b32 v13, 64, v12")
    a("v_lshrrev_b32 v4, 2, v2")
    a("v_and_b32 v5, 3, v2")
    a("v_lshl_add_u32 v6, v4, 4, v5")
    a("v_mul_u32_u24 v6, 896, v6")
    a("v_and_b32 v7, 1, v4")
    a("v_mul_u32_u24 v7, 3, v7")
    a("v_lshrrev_b32 v8, 1, v4")
    a("v_xor_b32 v7, v7, v8")
    a("v_lshlrev_b32 v7, 1, v7")
    a("v_lshrrev_b32 v8, 1, v5")
    a("v_xor_b32 v7, v7, v8")
    a("v_xor_b32 v7, v7, v3")
    for k in range(4):
        a(f"v_xor_b32 v8, {2*k}, v7")
        a(f"v_lshl_add_u32 v{14+k}, v8, 4, v6")
    a(f"s_lshl_b32 s{sT}, s{sTMP}, 9")
    a(f"s_add_u32 s{sT}, s{sT}, {SCR}")
    a("v_lshlrev_b32 v6, 5, v2")
    a(f"v_add_u32 v244, s{sT}, v6")
    a("v_lshl_add_u32 v245, v3, 3, v244")
    a("v_lshlrev_b32 v4, 1, v3")
    a("v_bfe_u32 v5, v2, 1, 1")
    a("v_lshlrev_b32 v5, 2, v5")
    a("v_xor_b32 v4, v4, v5")
    a("v_lshlrev_b32 v4, 4, v4")
    a("v_lshl_add_u32 v4, v2, 7, v4")
    a(f"v_add_u32 v246, s{sRING}, v4")
    a("v_lshlrev_b32 v247, 3, v2")
    a(f"s_lshl_b32 s{sT}, s{sSL}, 5")
    a(f"s_add_u32 s{sT}, s{sT}, s{sRB}")
    a(f"s_lshl_b32 s{sT}, s{sT}, 10")
    a(f"s_lshl_b32 s{sT2}, s{sTMP}, 8")
    a(f"s_add_u32 s{sT}, s{sT}, s{sT2}")
    a(f"s_add_u32 s{sT}, s{sT}, {INBOX}")
    a("v_lshlrev_b32 v250, 4, v2")
    a(f"v_add_u32 v250, s{sT}, v250")
    if STOUCH:
        a("s_waitcnt lgkmcnt(0)")
        stouch_w1g(1, 4, 3)
        for m in range(2, (448 // RBG + 7) // 8):
            stouch_w1g(m)
    if opt.get('xbar', '1') == '1': a("s_barrier")
    if not STOUCH: stamp(a, 13)
    a.wait_vm('x')
    saved_vm_B = list(a.vm)

    emit_ln("B")
    for k in range(6):
        a(f"s_add_u32 s{sSLOT1+k}, s{sRING}, {2048*k}")
        a(f"s_add_u32 s{sSLOT3+k}, s{sRING3}, {2048*k}")
    if opt.get('g1pre', 'end') != 'mid':
        for it in range(6):
            prefill(it)
    if opt.get('w1pos', 'g1') == 'g1':
        touch1("EA")
    for k in range(4):
        a(f"v_mov_b32 v{44+k}, 0")
    a("s_mov_b64 exec, 0xffff")
    a(f"buffer_store_dwordx4 v[44:47], v250, s[{SWS}:{SWS+3}], 0 offen sc1")
    a("s_mov_b64 exec, -1")
    a("v_lshlrev_b32 v249, 5, v1")
    a(f"s_cmp_eq_u32 s{sWV}, 4")
    a("s_cbranch_scc0 K1_NORDY")
    a("s_mov_b64 exec, 0x7f")
    a(f"buffer_load_dword v251, v249, s[{SDBG}:{SDBG+3}], 0 offen sc1")
    a("s_mov_b64 exec, -1")
    a.label("K1_NORDY")
    if opt.get('lampos', 'pre') == 'pre': lam_block()
    a("s_barrier")
    stamp(a, 3)
    a.vm = [t for t in saved_vm_B if not (isinstance(t, tuple) and t[0] == 'pre')] + [('b', i // 4) for i in range(12)]
    a.lg = []

    def b_parts(ds):
        sl_ = ds % 3
        return [
            lambda: (a(f"s_add_u32 m0, s{sRING}, {sl_*4096}"), a(f"s_add_u32 s{sT}, s{sBASE}, {128*ds}")),
            lambda: a.vmem(f"buffer_load_dwordx4 v31, s[{SA}:{SA+3}], s{sT} offen lds", ('b', ds)),
            lambda: a.vmem(f"buffer_load_dwordx4 v11, s[{SA}:{SA+3}], s{sT} offen offset:1024 lds", ('b', ds)),
            lambda: a(f"s_add_u32 m0, s{sRING}, {sl_*4096+2048}"),
            lambda: a.vmem(f"buffer_load_dwordx4 v31, s[{SBI}:{SBI+3}], s{sT} offen lds", ('b', ds)),
            lambda: a.vmem(f"buffer_load_dwordx4 v11, s[{SBI}:{SBI+3}], s{sT} offen offset:1024 lds", ('b', ds)),
        ]

    def b_issue(ds):
        for f_ in b_parts(ds):
            f_()
    AF = [128, 144, 160]
    BF = [176, 192]

    def g1_breads(ds):
        so = (ds % 3) * 4096
        out = []
        for s1 in range(2):
            out.append(f"ds_read_b128 {vr(BF[ds&1]+8*s1,4)}, v{12+s1} offset:{so}")
            out.append(f"ds_read_b128 {vr(BF[ds&1]+8*s1+4,4)}, v{12+s1} offset:{so+2048}")
        return out

    def g1_areads(s):
        s1 = s & 1
        out = []
        for aa in range(4):
            k = (2 * s1) ^ aa
            out.append(f"ds_read_b128 {vr(AF[s%3]+4*aa,4)}, v{14+k} offset:{aa*4*896+128*(s>>1)}")
        return out

    if opt.get('x_g1sleep'):
        a("s_sleep 127\n s_sleep 127\n s_sleep 127\n s_sleep 127")
    a(f"s_setprio {int(opt.get('g1p', 2))}")
    a.wait_vm(('b', 0))
    for r in g1_breads(0):
        a.lds(r, ('B', 0))
    for s0 in range(2):
        for r in g1_areads(s0):
            a.lds(r, ('f', s0))
    for s in range(14):
        ds = s >> 1
        a.wait_lg(('f', s))
        if s == 0:
            b_issue(3)
        if PROF[0] and opt.get('x_g1') and s % 2 == 0:
            a("s_memtime s[100:101]")
            a("s_waitcnt lgkmcnt(0)")
            a(f"v_writelane_b32 v0, s100, {24 + s}")
        if s % 2 == 0 and ds + 1 < 7:
            a.wait_vm(('b', ds + 1))
        if PROF[0] and opt.get('x_g1') and s % 2 == 0:
            a("s_memtime s[100:101]")
            a("s_waitcnt lgkmcnt(0)")
            a(f"v_writelane_b32 v0, s100, {25 + s}")
            a.lg = []
        bp = []
        if s % 2 == 1 and ds + 1 < 7:
            a.wait_lg(('B', ds + 1))
            if ds + 4 < 7:
                bp = b_parts(ds + 4)
        A_, B_ = AF[s % 3], BF[ds & 1] + 8 * (s & 1)
        ms = []
        for aa in range(4):
            for part in range(2):
                acc = 64 + 16 * part + 4 * aa
                c = "0" if s == 0 else vr(acc, 4)
                ms.append(f"v_mfma_f32_16x16x32_bf16 {vr(acc,4)}, {vr(A_+4*aa,4)}, {vr(B_+4*part,4)}, {c}")
        rd = []
        if s % 2 == 0 and ds + 1 < 7:
            rd += [(r, ('B', ds + 1)) for r in g1_breads(ds + 1)]
        if s + 2 < 14:
            rd += [(r, ('f', s + 2)) for r in g1_areads(s + 2)]
        fill = [lambda r=r, t=t: a.lds(r, t) for (r, t) in rd] + bp
        for k, m in enumerate(ms):
            a(m)
            if k < len(fill):
                fill[k]()
        for f_ in fill[len(ms):]:
            f_()
        if opt.get('x_g1l') and s % 2 == 1:
            lstamp(a)
        if bp and ds + 4 == 6 and opt.get('serial', '1') == '1':
            a(f"v_mov_b32 v2, {CNT+20}")
            a("v_mov_b32 v3, 1")
            a("s_mov_b64 exec, 1")
            a.lds("ds_add_u32 v2, v3", 'sig')
            a("s_mov_b64 exec, -1")
    if opt.get('x_g1l'): lflush(a, 34)
    a("s_setprio 0")
    stamp(a, 4)
    a.wait_lg_all()
    signal(a, 0)
    a(f"s_cmp_eq_u32 s{sWV}, 4")
    a("s_cbranch_scc0 K1_RDY2")
    a.label("K1_RDY1")
    a("s_waitcnt vmcnt(0)")
    a("s_mov_b64 exec, 0x7f")
    a("v_cmp_ne_u32 vcc, 1, v251")
    a("s_mov_b64 exec, -1")
    a("s_cbranch_vccnz K1_RDYS")
    SLOW.append(("K1_RDYS", ["s_sleep 4", "s_mov_b64 exec, 0x7f", f"buffer_load_dword v251, v249, s[{SDBG}:{SDBG+3}], 0 offen sc1", "s_mov_b64 exec, -1", "s_branch K1_RDY1"]))
    signal(a, 4)
    a.label("K1_RDY2")
    if opt.get('lampos', 'pre') == 'post': lam_block()
    a("v_lshrrev_b32 v7, 4, v1")
    a("v_lshlrev_b32 v4, 6, v7")
    a(f"v_add_u32 v4, {S2T}, v4")
    for k in range(4):
        a.lds(f"ds_read_b128 {vr(32+4*k,4)}, v4 offset:{16*k}", 'st')
    a.wait_lg('st')
    for e in range(16):
        R_, I_ = 64 + e, 80 + e
        a(f"v_mul_f32 v8, v{32+e}, v{R_}")
        a(f"v_mul_f32 v9, v{32+e}, v{I_}")
        a(f"v_mul_f32 v{R_}, v{CR}, v8")
        a(f"v_mul_f32 v{I_}, v{CR}, v9")
        a(f"v_fma_f32 v{R_}, -v{CI}, v9, v{R_}")
        a(f"v_fmac_f32 v{I_}, v{CI}, v8")
        nr, ni = PP[e & 1]
        hr, hi = PP[(e & 1) ^ 1]
        if e == 0:
            a(f"v_mov_b32 v{nr}, v{R_}")
            a(f"v_mov_b32 v{ni}, v{I_}")
        else:
            cmac(nr, ni, LR, LI, hr, hi, R_, I_)
    HE = PP[1]
    a.lds(f"ds_write_b64 v245, v[{HE[0]}:{HE[1]}]", 'w')
    a.wait_lg('w')
    a.lds("ds_read_b128 v[32:35], v244", 'r')
    a.lds("ds_read_b128 v[36:39], v244 offset:16", 'r')
    a.wait_lg('r')
    cmac(40, 41, L16R, L16I, 32, 33, 34, 35)
    cmac(42, 43, L16R, L16I, 40, 41, 36, 37)
    cmac(44, 45, L16R, L16I, 42, 43, 38, 39)
    a("v_mov_b32 v46, 1")
    a("v_mov_b32 v47, 0")
    a.wait_lg_all()
    spin(a, 4, 1)
    a(f"s_mov_b32 s{sT}, {EIN - INBOX}")
    a("s_mov_b64 exec, 0xffff")
    a(f"buffer_store_dwordx4 v[44:47], v250, s[{SWS}:{SWS+3}], s{sT} offen sc1")
    a("s_mov_b64 exec, -1")
    a.vm = []
    a(f"v_mov_b32 v{XR}, 0")
    a(f"v_mov_b32 v{XI}, 0")
    for g_, (r_, i_) in ((1, (32, 33)), (2, (40, 41)), (3, (42, 43))):
        a(f"v_cmp_eq_u32 vcc, {g_}, v7")
        a(f"v_cndmask_b32 v{XR}, v{XR}, v{r_}, vcc")
        a(f"v_cndmask_b32 v{XI}, v{XI}, v{i_}, vcc")
    stamp(a, 5)
    a("s_setprio 0")
    spin(a, 8, 4)
    stamp(a, 9)
    if GSH[0]:
        spin(a, 40, 4)
        a(f"s_sub_u32 s{sT}, s{sWV}, 4")
        a(f"s_lshl_b32 s{sT}, s{sT}, 13")
        a("v_lshlrev_b32 v2, 4, v1")
        a(f"v_add_u32 v32, s{sT}, v2")
        for k in range(8):
            a.lds(f"ds_read_b128 {vr(128+4*k,4)}, v32 offset:{Y + 1024*k}", 'xf')
        a.wait_lg_all()
        signal(a, 44)
        gelu(a, None, fts=(1,), accb=128, hw=True)
        a.wait_lg_all()
        signal(a, 28)
        spin(a, 44, 4)
    a(f"s_cmp_eq_u32 s{sWV}, 7")
    a("s_cbranch_scc1 K1_W7T")
    spin(a, 0, 4)
    stB = Stream(a, w2_items + c_items, 28)
    if opt.get('prefirst', '1') == '1':
        stB.issue(6)
    if opt.get('t2by', 'w7') == 'w7':
        a("s_branch K1_NOPRE")
        a.label("K1_W7T")
        touch2(rep4=True)
    else:
        a.label("K1_W7T")
    a.label("K1_NOPRE")
    a.vm = []
    if opt.get('hookpos', 'pre') == 'pre':
        a(f"s_setprio {int(opt.get('p2prio', 2))}")
        pass2("A", False)
        a(f"s_setprio {int(opt.get('g3p46', 0))}")
        a(f"s_cmp_eq_u32 s{sWV}, 7")
        a("s_cbranch_scc0 K1_G3")
    else:
        if opt.get('g3prio', '1') == '1':
            a("s_setprio 2")
        a(f"s_cmp_eq_u32 s{sWV}, 7")
        a("s_cbranch_scc0 K1_G3")
        a("s_setprio 0")
        pass2("A", False)
    a.vm = []
    reduce_pre(a)
    a.lg = []
    spin(a, 32, int(opt.get('cdone', 7)))
    a(f"s_mul_i32 s{sT}, s{sRB}, 7")
    a(f"s_add_u32 s{sT}, s{sT}, s{sSL}")
    a(f"s_lshl_b32 s{sT}, s{sT}, 7")
    a(f"s_add_u32 s{sTMP}, s{sT}, {RFLAG}")
    a("v_lshlrev_b32 v2, 2, v1")
    if OWNP[0]:
        a(f"s_lshl_b32 s{sT}, 1, s{sSL}")
        a(f"s_andn2_b32 s{sTMP+4}, 0x7f, s{sT}")
    else:
        a(f"s_mov_b32 s{sTMP+4}, 0x7f")
    a.label("K1_RPOLL")
    a(f"s_mov_b32 exec_lo, s{sTMP+4}")
    a("s_mov_b32 exec_hi, 0")
    a(f"buffer_load_dword v3, v2, s[{SWS}:{SWS+3}], s{sTMP} offen sc1")
    a("s_waitcnt vmcnt(0)")
    a("v_cmp_ne_u32 vcc, 1, v3")
    a("s_mov_b64 exec, -1")
    a("s_cbranch_vccnz K1_RPOLLS")
    SLOW.append(("K1_RPOLLS", [f"s_sleep {int(opt.get('rsleep', 1))}", "s_branch K1_RPOLL"]))
    signal(a, 36)
    a("s_branch K1_RED")

    for blk in OWNBLK:
        blk()
        a.vm = []
        reduce_pre(a)
        a("s_waitcnt lgkmcnt(0)")
        a("s_branch K1_SIGD")

    a.label("K1_COLL")
    a(f"s_cmp_lg_u32 s{sSL}, 7")
    a("s_cbranch_scc1 K1_END")
    a(f"s_mul_i32 s{sT}, s{sJS}, {R}")
    a(f"s_cmp_lg_u32 s{sT}, s{sRB}")
    a("s_cbranch_scc1 K1_END")
    a(f"s_cmp_ge_u32 s{sJS}, 7")
    a("s_cbranch_scc1 K1_END")
    a("v_lshrrev_b32 v2, 6, v0")
    a("v_and_b32 v1, 63, v0")
    a(f"v_readfirstlane_b32 s{sWV}, v2")
    a(f"s_mov_b32 s{sSL}, s{sJS}")
    a("s_load_dwordx4 s[4:7], s[0:1], 8")
    a("s_load_dwordx2 s[18:19], s[0:1], 56")
    a("s_load_dwordx4 s[32:35], s[0:1], 112")
    a("s_load_dwordx2 s[36:37], s[0:1], 128")
    a(f"s_lshl_b32 s{sT}, s{sSL}, 6")
    a(f"v_add_u32 v2, s{sT}, v1")
    a("v_lshlrev_b32 v2, 1, v2")
    a(f"s_lshl_b32 s{sT}, s{sSL}, 15")
    a(f"s_lshl_b32 s{sT2}, s{sWV}, 12")
    a(f"s_add_u32 s{sT}, s{sT}, s{sT2}")
    a(f"s_add_u32 s{sT}, s{sT}, {EIN}")
    a("v_lshlrev_b32 v3, 4, v1")
    a(f"v_add_u32 v3, s{sT}, v3")
    for k in range(4):
        a(f"v_mov_b32 v{8+k}, 0")
    a("s_waitcnt lgkmcnt(0)")
    srd(a, SWS, 36, WS_SIZE)
    srd(a, SDBG, 34, 256)
    for k in range(4):
        a(f"buffer_store_dwordx4 v[8:11], v3, s[{SWS}:{SWS+3}], 0 offen offset:{1024*k} sc1")
    a("v_lshlrev_b32 v12, 7, v0")
    a(f"s_lshl_b32 s{sT}, s{sSL}, 2")
    a(f"s_add_u32 s{sT}, s{sT}, {RFLAG}")
    a(f"v_mov_b32 v13, {OOB}")
    a("v_cmp_gt_u32 vcc, 224, v0")
    a("v_cndmask_b32 v12, v13, v12, vcc")
    a(f"buffer_store_dword v8, v12, s[{SWS}:{SWS+3}], s{sT} offen sc1")
    a("global_load_ushort v104, v2, s[4:5]")
    a("global_load_ushort v105, v2, s[6:7]")
    a("global_load_ushort v106, v2, s[18:19]")
    a("s_waitcnt vmcnt(0)")
    a("s_barrier")
    a(f"s_cmp_lg_u32 s{sWV}, 0")
    a("s_cbranch_scc1 K1_CNR")
    a(f"s_lshl_b32 s{sT}, s{sSL}, 5")
    a(f"v_mov_b32 v5, s{sT}")
    a("v_mov_b32 v6, 1")
    a("s_mov_b64 exec, 1")
    a(f"buffer_store_dword v6, v5, s[{SDBG}:{SDBG+3}], 0 offen sc1")
    a("s_mov_b64 exec, -1")
    a.label("K1_CNR")
    a("v_lshlrev_b32 v107, 16, v104")
    a("v_lshlrev_b32 v108, 16, v105")
    a("v_lshlrev_b32 v106, 16, v106")
    a(f"v_mul_f32 v106, {fhex(LOG2E)}, v106")
    a("v_exp_f32 v106, v106")
    bf16_round(a, 106, 106)
    a("v_mul_f32 v109, v106, v107")
    a("v_mul_f32 v110, v106, v108")
    a(f"v_mul_f32 v109, {fhex(LOG2E)}, v109")
    a(f"v_mul_f32 v110, {fhex(0.15915494309189535)}, v110")
    a("v_exp_f32 v109, v109")
    a("v_rndne_f32 v111, v110")
    a("v_sub_f32 v110, v110, v111")
    a("v_cos_f32 v111, v110")
    a("v_sin_f32 v112, v110")
    a("v_mul_f32 v104, v109, v111")
    a("v_mul_f32 v105, v109, v112")

    def csq2(d, s_):
        a(f"v_mul_f32 v{d[0]}, v{s_[0]}, v{s_[0]}")
        a(f"v_mul_f32 v{d[1]}, v{s_[0]}, v{s_[1]}")
        a(f"v_fma_f32 v{d[0]}, -v{s_[1]}, v{s_[1]}, v{d[0]}")
        a(f"v_add_f32 v{d[1]}, v{d[1]}, v{d[1]}")
    cur_ = (104, 105)
    for k in range(6):
        nx = (118, 119) if k % 2 == 0 else (120, 121)
        csq2(nx, cur_)
        cur_ = nx
    M1 = cur_
    M2, M3, M4 = (110, 111), (112, 113), (114, 115)
    csq2(M2, M1)
    a(f"v_mul_f32 v{M3[0]}, v{M2[0]}, v{M1[0]}")
    a(f"v_mul_f32 v{M3[1]}, v{M2[0]}, v{M1[1]}")
    a(f"v_fma_f32 v{M3[0]}, -v{M2[1]}, v{M1[1]}, v{M3[0]}")
    a(f"v_fmac_f32 v{M3[1]}, v{M2[1]}, v{M1[0]}")
    csq2(M4, M2)
    a("v_lshlrev_b32 v4, 4, v1")
    a(f"s_lshl_b32 s{sT}, s{sSL}, 15")
    a(f"s_lshl_b32 s{sT2}, s{sWV}, 12")
    a(f"s_add_u32 s{sT}, s{sT}, s{sT2}")
    a(f"s_add_u32 s{sT}, s{sT}, {INBOX}")
    a(f"v_add_u32 v4, s{sT}, v4")
    a("v_lshlrev_b32 v7, 3, v1")
    a(f"s_lshl_b32 s{sT}, s{sWV}, 9")
    a(f"v_add_u32 v6, s{sT}, v7")
    a.label("K1_CPOLL")
    for k in range(4):
        a(f"buffer_load_dwordx4 v[{16+4*k}:{19+4*k}], v3, s[{SWS}:{SWS+3}], 0 offen offset:{1024*k} sc1")
    a("s_waitcnt vmcnt(0)")
    a("v_and_b32 v12, v18, v22")
    a("v_and_b32 v13, v26, v30")
    a("v_and_b32 v12, v12, v13")
    a("v_cmp_ne_u32 vcc, 1, v12")
    a("s_cbranch_vccnz K1_CPOLLS")
    SLOW.append(("K1_CPOLLS", [f"s_sleep {int(opt.get('csleep', 1))}", "s_branch K1_CPOLL"]))
    if PROF[0]: a("s_memrealtime s[8:9]")
    cmac(32, 33, M1[0], M1[1], 16, 17, 20, 21)
    cmac(34, 35, M1[0], M1[1], 32, 33, 24, 25)
    cmac(36, 37, M1[0], M1[1], 34, 35, 28, 29)
    a("ds_write_b64 v6, v[36:37]")
    a("s_waitcnt lgkmcnt(0)")
    a("s_barrier")
    if PROF[0]: a("s_memrealtime s[10:11]")
    for w in range(7):
        a(f"ds_read_b64 v[{40+2*w}:{41+2*w}], v7 offset:{512*w}")
    a("v_mov_b32 v8, 0")
    a("v_mov_b32 v9, 0")
    a("s_waitcnt lgkmcnt(0)")
    for w in range(7):
        a(f"s_cmp_gt_u32 s{sWV}, {w}")
        a(f"s_cbranch_scc0 K1_CH")
        cmac(12, 13, M4[0], M4[1], 8, 9, 40 + 2 * w, 41 + 2 * w)
        a("v_mov_b32 v8, v12")
        a("v_mov_b32 v9, v13")
    a.label("K1_CH")
    for k, q in enumerate(((56, 57), (60, 61), (64, 65), (68, 69))):
        a(f"v_mov_b32 v{q[0]+2}, 1")
        a(f"v_mov_b32 v{q[0]+3}, 0")
        if k == 0:
            a(f"v_mov_b32 v{q[0]}, v8")
            a(f"v_mov_b32 v{q[1]}, v9")
        else:
            Mk = (M1, M2, M3)[k - 1]
            Lk = ((16, 17), (32, 33), (34, 35))[k - 1]
            cmac(q[0], q[1], Mk[0], Mk[1], 8, 9, Lk[0], Lk[1])
        a(f"buffer_store_dwordx4 v[{q[0]}:{q[0]+3}], v4, s[{SWS}:{SWS+3}], 0 offen offset:{1024*k} sc1")
    if PROF[0]:
        a(f"s_cmp_lg_u32 s{sWV}, 7")
        a("s_cbranch_scc1 K1_END")
        a("s_memrealtime s[12:13]")
        a("s_waitcnt vmcnt(0)")
        a("s_memrealtime s[14:15]")
        a("s_waitcnt lgkmcnt(0)")
        a(f"s_lshl_b32 s{sT+8}, s{sSL}, 4")
        a(f"s_add_u32 s{sT+8}, s{sT+8}, 0xF00000")
        a("v_mov_b32 v2, 0")
        for i, r in enumerate((8, 10, 12, 14)):
            a(f"v_mov_b32 v3, s{r}")
            a(f"buffer_store_dword v3, v2, s[{SWS}:{SWS+3}], s{sT+8} offen offset:{4*i}")
    a("s_endpgm")
    for lab, ins in SLOW:
        a.label(lab)
        for t in ins:
            a(t)
    del SLOW[:]
    a.label("K1_END")
    a("s_endpgm")
    return a


def g3_addr(a):
    a("v_lshrrev_b32 v2, 5, v1")
    a("v_bfe_u32 v3, v1, 2, 2")
    a("v_and_b32 v4, 3, v1")
    a("v_bfe_u32 v5, v1, 4, 1")
    a("v_lshlrev_b32 v6, 1, v5")
    a("v_lshrrev_b32 v7, 1, v4")
    a("v_or_b32 v6, v6, v7")
    a("v_lshrrev_b32 v7, 1, v3")
    a("v_lshlrev_b32 v7, 2, v7")
    a("v_xor_b32 v6, v6, v7")
    a("v_lshlrev_b32 v6, 4, v6")
    a("v_and_b32 v7, 1, v4")
    a("v_lshl_add_u32 v6, v7, 3, v6")
    a("v_lshl_add_u32 v7, v2, 3, v3")
    a("v_lshl_add_u32 v8, v7, 7, v6")
    a("v_lshl_add_u32 v7, v2, 2, v3")
    a("v_lshl_add_u32 v9, v7, 7, v6")
    a(f"v_add_u32 v18, s{sRING3}, v9")
    a("v_xor_b32 v19, 64, v18")
    a(f"v_add_u32 v21, {Q + 8192}, v8")
    a("v_xor_b32 v22, 64, v21")
    a("v_lshlrev_b32 v20, 4, v1")
    a(f"v_add_u32 v20, {Q}, v20")
    c_addr(a)


def c_addr(a):
    a("v_and_b32 v3, 31, v1")
    a("v_lshrrev_b32 v2, 5, v1")
    a("v_bfe_u32 v4, v3, 1, 3")
    a("v_xor_b32 v4, v4, v2")
    a("v_lshlrev_b32 v4, 4, v4")
    a("v_lshl_add_u32 v4, v3, 7, v4")
    a(f"v_add_u32 v23, s{sRING3}, v4")
    for cg in range(1, 4):
        a(f"v_xor_b32 v{23+cg}, {32*cg}, v23")


def gelu(a, hook=None, hookpos=1, fts=(0, 1), accb=64, hw=None):
    c1 = -2.0 * 0.7978845608028654 * LOG2E
    c2 = c1 * 0.044715
    a(f"v_mov_b32 v56, {fhex(c1)}")
    a(f"v_mov_b32 v57, {fhex(c1)}")
    a(f"v_mov_b32 v58, {fhex(c2)}")
    a(f"v_mov_b32 v59, {fhex(c2)}")
    a("v_mov_b32 v62, 1.0")
    a("v_mov_b32 v63, 1.0")
    if hw is None:
        a(f"s_mul_i32 s{sTMP}, s{sWV}, {RING}")
    else:
        a(f"s_sub_u32 s{sTMP}, s{sWV}, 4")
        a(f"s_mul_i32 s{sTMP}, s{sTMP}, {RING}")
    a(f"s_add_u32 s{sTMP}, s{sTMP}, {Q}")
    a("v_lshlrev_b32 v61, 4, v1")
    a(f"v_add_u32 v61, s{sTMP}, v61")
    grp = 0
    for ft in fts:
        for tt in range(2):
            acc = accb + 32 * (ft - fts[0]) + 16 * tt
            if hook is not None and grp == hookpos:
                hook()
            grp += 1
            a(".p2align 3")
            X = [acc + 2 * e for e in range(8)]
            T = [32 + 2 * e for e in range(8)]
            P = lambda r: f"v[{r}:{r+1}]"
            for e in range(8):
                a(f"v_pk_mul_f32 {P(T[e])}, {P(X[e])}, {P(X[e])}")
            for e in range(8):
                a(f"v_pk_fma_f32 {P(T[e])}, {P(T[e])}, v[58:59], v[56:57]")
            for e in range(8):
                a(f"v_pk_mul_f32 {P(T[e])}, {P(T[e])}, {P(X[e])}")
            for e in range(16):
                a(f"v_exp_f32 v{32+e}, v{32+e}")
            for e in range(8):
                a(f"v_pk_add_f32 {P(T[e])}, {P(T[e])}, v[62:63]")
            for e in range(16):
                a(f"v_rcp_f32 v{32+e}, v{32+e}")
            for e in range(8):
                a(f"v_pk_mul_f32 {P(T[e])}, {P(T[e])}, {P(X[e])}")
            for half in range(2):
                for d in range(4):
                    a(f"v_cvt_pk_bf16_f32 v{48+4*half+d}, v{32+8*half+2*d}, v{32+8*half+2*d+1}")
                a.lds(f"ds_write_b128 v61, {vr(48+4*half,4)} offset:{((2*ft+half)*2+tt)*1024}", 'hw')
            if len(a.lg) >= 8:
                a.wait_lg_all()
            if ft == 0 and tt == 1 and HALF[0]:
                a.wait_lg_all()
                signal(a, 12)


def g3(a, st, base, D2, hook_load=None, hook_pass2=None):
    FA = [192, 208, 224]
    CF = 64
    mlp_base = base
    ssm_base = base + 16
    first = [True]

    def mfmas(Aregs, Bregs):
        ms = []
        for tt in range(2):
            for nt in range(2):
                acc = 128 + 32 * tt + 16 * nt
                c = "0" if first[0] else vr(acc, 16)
                ms.append(f"v_mfma_f32_32x32x16_bf16 {vr(acc,16)}, {vr(Aregs[tt],4)}, {vr(Bregs[nt],4)}, {c}")
        first[0] = False
        return ms

    def mlp_reads(ks):
        b = FA[ks % 3]
        so = st.slot(mlp_base + ks) * 2048
        out = []
        for nt in range(2):
            for q in range(2):
                out.append(f"ds_read_b64_tr_b16 {vr(b+8+4*nt+2*q,2)}, v{18+nt} offset:{so+1024*q}")
        kr = KORDER[ks]
        for tt in range(2):
            out.append(f"ds_read_b128 {vr(b+4*tt,4)}, v20 offset:{12288*(kr>>2)+((kr&3)*2+tt)*1024}")
        return out

    def ssm_areads(k):
        part, cg = k >> 2, k & 3
        b = FA[(16 + k) % 3]
        out = []
        for tt in range(2):
            for q in range(2):
                out.append(f"ds_read_b64_tr_b16 {vr(b+4*tt+2*q,2)}, v{21+tt} offset:{12288*cg+2048*part+512*q}")
        return out

    def c_reads(part):
        out = []
        for nt in range(2):
            i0 = ssm_base + 4 * part + 2 * nt
            so = st.slot(i0) * 2048
            assert st.slot(i0 + 1) == st.slot(i0) + 1
            for cg in range(4):
                out.append(f"ds_read_b128 {vr(CF+32*part+8*cg+4*nt,4)}, v{23+cg} offset:{so}")
        return out

    def step_reads(m):
        return mlp_reads(m) if m < 16 else ssm_areads(m - 16)

    st.wait(mlp_base)
    for r in step_reads(0):
        a.lds(r, ('m', 0))
    st.wait(mlp_base + 1)
    for r in step_reads(1):
        a.lds(r, ('m', 1))
    a.wait_lg(('m', 0))
    a(".p2align 3")
    for m in range(24):
        b = FA[m % 3]
        if m < 16:
            ms = mfmas([b, b + 4], [b + 8, b + 12])
        else:
            k = m - 16
            cb = CF + 32 * (k >> 2) + 8 * (k & 3)
            ms = mfmas([b, b + 4], [cb, cb + 4])
        if m == 14:
            a.wait_lg_all()
            stamp(a, 14)
            hook_pass2()
            spin(a, 16, 4)
            if P14[0] >= 0:
                a(f"s_setprio {P14[0]}")
            stamp(a, 15)
        if m == 6 and HALF[0]:
            a.wait_lg_all()
            spin(a, 28, 4)
        if PSW[0] is not None and m == PSW[0][0]:
            a(f"s_cmp_ge_u32 s{sWV}, 4")
            a(f"s_cbranch_scc1 K1_PSW{m}")
            a(f"s_setprio {PSW[0][1]}")
            a(f"s_branch K1_PSWB{m}")
            a.label(f"K1_PSW{m}")
            a(f"s_setprio {PSW[0][2]}")
            a.label(f"K1_PSWB{m}")
        if m == 9:
            hook_load()
        rd = [(r, ('m', m + 2)) for r in step_reads(m + 2)] if m + 2 < 24 else []
        cr = []
        if m == 14:
            cr = [(r, ('c', 0)) for r in c_reads(0)[0:4]]
        elif m == 15:
            cr = [(r, ('c', 1)) for r in c_reads(0)[4:8]]
        elif m == 17:
            cr = [(r, ('c', 2)) for r in c_reads(1)[0:4]]
        elif m == 19:
            cr = [(r, ('c', 3)) for r in c_reads(1)[4:8]]
        if m == 16:
            if PRIO16[0] == 9:
                a(f"s_cmp_ge_u32 s{sWV}, 4")
                a("s_cbranch_scc1 K1_P16")
                a("s_setprio 2")
                a("s_branch K1_P16B")
                a.label("K1_P16")
                a("s_setprio 0")
                a.label("K1_P16B")
            elif PRIO16[0] == 8:
                a(f"s_cmp_ge_u32 s{sWV}, 4")
                a("s_cbranch_scc0 K1_P16")
                a("s_setprio 2")
                a("s_branch K1_P16B")
                a.label("K1_P16")
                a("s_setprio 0")
                a.label("K1_P16B")
            elif PRIO16[0] >= 0:
                a(f"s_setprio {PRIO16[0]}")
            a.wait_lg(('c', 1))
        if m == 20:
            a.wait_lg(('c', 3))
        if m <= 13:
            pp = st.parts(min(mlp_base + m + 8, ssm_base + 6))
            a(ms[0])
            both_wait(a, ('st', st.first + mlp_base + m + 2 - st.first) if m + 2 < 16 else None, ('m', m + 1))
            if pp:
                pp[0][3]()
            else:
                a("s_nop 0")
            for r, t in rd[0:3]:
                a.lds(r, t)
            a(ms[1])
            for r, t in rd[3:6]:
                a.lds(r, t)
            if pp:
                pp[0][0]()
            a(ms[2])
            if pp:
                pp[0][1]()
            a(ms[3])
            if pp:
                pp[0][2]()
            for extra_ in pp[1:]:
                extra_[3](); a('s_nop 0'); extra_[0](); extra_[1](); extra_[2]()
        else:
            a(ms[0])
            if m == 14:
                st.wait(ssm_base + 1)
            if m == 15:
                a.wait_lg(('m', 16))
                st.wait(ssm_base + 3)
            if m == 17:
                st.wait(ssm_base + 5)
            if m == 19:
                a.wait_lg(('c', 2))
                st.wait(ssm_base + 7)
            allr = rd + cr
            h1 = (len(allr) + 1) // 2
            for r, t in allr[:h1]:
                a.lds(r, t)
            a(ms[1])
            for r, t in allr[h1:]:
                a.lds(r, t)
            if m == 15:
                a.wait_lg(('c', 0))
                pp = st.parts(ssm_base + 8)
            else:
                pp = st.parts(min(mlp_base + m + 8, ssm_base + 6))
            if pp:
                pp[0][3](); pp[0][0]()
            a(ms[2])
            if m + 1 < 24:
                a.wait_lg(('m', m + 1))
            if pp:
                pp[0][1]()
            a(ms[3])
            if pp:
                pp[0][2]()
            for extra_ in pp[1:]:
                extra_[3](); a('s_nop 0'); extra_[0](); extra_[1](); extra_[2]()
        if XS[0] and m % 3 == 2:
            lstamp(a)
    if XS[0]:
        lflush(a, 26)
    if STORESYNC[0]:
        a.wait_lg_all()
        spin(a, 24, 7)
    a(f"s_mul_i32 s{sT}, s{sRB}, 7")
    a(f"s_add_u32 s{sT}, s{sT}, s{sWV}")
    a(f"s_mul_i32 s{sT}, s{sT}, {8*PST[0]}")
    a(f"s_lshl_b32 s{sT2}, s{sSL}, 10")
    a(f"s_add_u32 s{sT}, s{sT}, s{sT2}")
    a(f"s_add_u32 s{sT}, s{sT}, {PBUF}")
    a("v_lshlrev_b32 v2, 4, v1")
    def pieces(store):
        for tt in range(2):
            for nt in range(2):
                acc = 128 + 32 * tt + 16 * nt
                for hf in range(2):
                    v_ = tt * 4 + nt * 2 + hf
                    d = 32 + 4 * (v_ & 3)
                    for k in range(4):
                        a(f"v_cvt_pk_bf16_f32 v{d+k}, v{acc+8*hf+2*k}, v{acc+8*hf+2*k+1}")
                    store(v_, d)
    if OWNP[0]:
        a(f"s_cmp_eq_u32 s{sWV}, s{sSL}")
        a("s_cbranch_scc1 K1_OWN")

    def st_glob(v_, d):
        a(f"s_add_u32 s{sT2}, s{sT}, {v_*PST[0]}")
        a(f"buffer_store_dwordx4 {vr(d,4)}, v2, s[{SWS}:{SWS+3}], s{sT2} offen {PSC[0]}")
    pieces(st_glob)
    if OWNP[0]:
        def own_block():
            a.label("K1_OWN")
            a(f"v_add_u32 v3, s{sRING3}, v2")
            pieces(lambda v_, d: a(f"ds_write_b128 v3, {vr(d,4)} offset:{1024*v_}"))
        OWNBLK.append(own_block)


def reduce_pre(a):
    a("v_and_b32 v3, 31, v1")
    a("v_lshrrev_b32 v4, 5, v1")
    a(f"s_lshr_b32 s{sT}, s{sWV}, 2")
    a(f"s_lshl_b32 s{sT}, s{sT}, 5")
    a(f"s_and_b32 s{sT2}, s{sWV}, 1")
    a(f"s_lshl_b32 s{sT2}, s{sT2}, 4")
    a(f"s_add_u32 s{sT}, s{sT}, s{sT2}")
    a(f"v_lshl_add_u32 v6, v4, 2, s{sT}")
    a(f"s_bfe_u32 s{sT}, s{sWV}, 0x10001")
    a(f"s_lshl_b32 s{sT}, s{sT}, 5")
    a(f"s_lshl_b32 s{sT2}, s{sSL}, 6")
    a(f"s_add_u32 s{sT}, s{sT}, s{sT2}")
    a(f"v_add_u32 v5, s{sT}, v3")
    a(f"s_lshl_b32 s{sT}, s{sRB}, 6")
    a(f"v_add_u32 v7, s{sT}, v6")
    a("v_mul_u32_u24 v8, 896, v7")
    a("v_lshl_add_u32 v8, v5, 1, v8")
    a(f"v_add_u32 v9, {896*8}, v8")
    a("v_lshlrev_b32 v10, 1, v5")
    a("v_mul_u32_u24 v12, 1792, v7")
    a("v_lshl_add_u32 v12, v5, 2, v12")
    a(f"v_add_u32 v13, {1792*8}, v12")
    a(f"v_add_u32 v14, {1792*2}, v12")
    a(f"v_add_u32 v15, {1792*2}, v13")
    a("v_lshlrev_b32 v6, 2, v6")
    a(f"v_add_u32 v6, {S2T}, v6")
    srd(a, SX, 4, 2048 * 896)
    srd(a, SA, 32, 2048 * 1792)
    for e in range(8):
        a.vmem(f"buffer_load_ushort v{16+e}, v{8 if e < 4 else 9}, s[{SX}:{SX+3}], 0 offen offset:{896*(e&3)}", 'x')
    a.vmem("global_load_ushort v24, v10, s[20:21]", 'x')
    a.vmem("global_load_ushort v25, v10, s[30:31]", 'x')


def reduce_main(a, opt):
    a.lds(f"ds_read_b128 v[64:67], v6 offset:{M2T-S2T}", 't')
    a.lds(f"ds_read_b128 v[68:71], v6 offset:{M2T-S2T+32}", 't')
    a.lds(f"ds_read_b128 v[72:75], v6 offset:{AT-S2T}", 't')
    a.lds(f"ds_read_b128 v[76:79], v6 offset:{AT-S2T+32}", 't')
    a(f"s_mul_i32 s{sT}, s{sRB}, 7")
    a(f"s_add_u32 s{sT}, s{sT}, s{sSL}")
    a(f"s_lshl_b32 s{sT}, s{sT}, 3")
    a(f"s_add_u32 s{sT}, s{sT}, s{sWV}")
    a(f"s_mul_i32 s{sT}, s{sT}, {PST[0]}")
    a(f"s_add_u32 s{sT}, s{sT}, {PBUF}")
    a("v_lshlrev_b32 v7, 4, v1")
    a.wait_lg_all()
    OWN = opt.get('own', '1') == '1'
    a(f"s_mul_i32 s{sT}, s{sRB}, 7")
    a(f"s_add_u32 s{sT}, s{sT}, s{sSL}")
    a(f"s_lshl_b32 s{sT}, s{sT}, 3")
    a(f"s_add_u32 s{sT}, s{sT}, s{sWV}")
    a(f"s_mul_i32 s{sT}, s{sT}, {PST[0]}")
    a(f"s_add_u32 s{sTMP}, s{sT}, {PBUF}")
    if OWN:
        a(f"s_mul_i32 s{sT}, s{sSL}, {RING}")
        a(f"s_add_u32 s{sT2}, s{sT}, {P}")
        a(f"s_sub_u32 s{sT}, s{sT}, {4*RING - Y}")
        a(f"s_cmp_lt_u32 s{sSL}, 4")
        a(f"s_cselect_b32 s{sT}, s{sT2}, s{sT}")
        a(f"s_lshl_b32 s{sT2}, s{sWV}, 10")
        a(f"s_add_u32 s{sT}, s{sT}, s{sT2}")
        a(f"v_add_u32 v30, s{sT}, v7")
    spin(a, 36, 1)
    stamp(a, 17)
    a.vm = ['x'] * 10
    nglob = 6 if OWN else 7
    for i in range(nglob):
        if OWN:
            a(f"s_cmp_ge_u32 {i}, s{sSL}")
            a(f"s_cselect_b32 s{sT}, {i+1}, {i}")
            a(f"s_lshl_b32 s{sT}, s{sT}, 10")
            a(f"s_add_u32 s{sT}, s{sT}, s{sTMP}")
        else:
            a(f"s_add_u32 s{sT}, s{sTMP}, {1024*i}")
        a.vmem(f"buffer_load_dwordx4 {vr(32+4*i,4)}, v7, s[{SWS}:{SWS+3}], s{sT} offen sc1", ('p', i))
    if OWN:
        if int(opt.get('cdone', 7)) < 7:
            spin(a, 32, 7)
        a.lds("ds_read_b128 v[56:59], v30", 'own')
    a.wait_vm('x')
    a("v_lshlrev_b32 v24, 16, v24")
    a("v_lshlrev_b32 v25, 16, v25")
    for e in range(8):
        mu = 64 + 4 * (e >> 2) + (e & 3)
        r1 = 72 + 4 * (e >> 2) + (e & 3)
        a(f"v_lshlrev_b32 v26, 16, v{16+e}")
        a(f"v_sub_f32 v27, v26, v{mu}")
        a(f"v_add_f32 v{80+e}, v25, v26")
        a(f"v_mul_f32 v27, v27, v{r1}")
        a(f"v_fmac_f32 v{80+e}, v27, v24")
    order = ([6] + list(range(6))) if OWN else list(range(7))
    for n_, s_ in enumerate(order):
        if OWN and s_ == 6:
            a.wait_lg('own')
        else:
            a.wait_vm(('p', s_))
        last = n_ == 6
        if last: stamp(a, 18)
        for d in range(4):
            r = 32 + 4 * s_ + d
            a(f"v_lshlrev_b32 v28, 16, v{r}")
            a(f"v_and_b32 v29, 0xffff0000, v{r}")
            a(f"v_add_f32 v{80+2*d}, v{80+2*d}, v28")
            a(f"v_add_f32 v{81+2*d}, v{81+2*d}, v29")
            if last:
                sc = "sc1" if opt.get('osc', '0') == '1' else ""
                for e in (2 * d, 2 * d + 1):
                    if (e & 3) < 3:
                        a(f"buffer_store_dword v{80+e}, v{12 if e < 4 else 13}, s[{SA}:{SA+3}], 0 offen offset:{1792*(e&3)} {sc}")
                    else:
                        a(f"buffer_store_dword v{80+e}, v{14 if e < 4 else 15}, s[{SA}:{SA+3}], 0 offen offset:1792 {sc}")


def dump_lds(a, base, nbytes):
    a("s_lshl_b32 s90, s2, 16")
    a("s_add_u32 s90, s90, 0x800000")
    a("v_lshlrev_b32 v2, 4, v0")
    n = (nbytes + 8191) // 8192
    for i in range(n):
        a(f"v_add_u32 v3, {base + 8192*i}, v2")
        a("ds_read_b128 v[4:7], v3")
        a("s_waitcnt lgkmcnt(0)")
        a(f"v_add_u32 v3, {8192*i}, v2")
        a(f"buffer_store_dwordx4 v[4:7], v3, s[{SWS}:{SWS+3}], s90 offen")
        a("s_waitcnt vmcnt(0)")


def dump_regs(a, base, n):
    a("s_lshl_b32 s90, s2, 3")
    a(f"s_add_u32 s90, s90, s{sWV}")
    a("s_lshl_b32 s90, s90, 14")
    a("s_add_u32 s90, s90, 0x800000")
    a("v_lshlrev_b32 v2, 2, v1")
    a("s_nop 15")
    for i in range(n):
        a(f"buffer_store_dword v{base+i}, v2, s[{SWS}:{SWS+3}], s90 offen")
        a("s_add_u32 s90, s90, 256")
    a("s_waitcnt vmcnt(0)")


def gen_k2(opt):
    a = Asm()
    a("s_cmp_ge_u32 s2, 256")
    a("s_cbranch_scc1 K2_END")
    if opt.get('span'):
        a("s_memrealtime s[64:65]")
    if opt.get('k2prof'): a("s_memtime s[78:79]")
    a("s_load_dwordx2 s[4:5], s[0:1], 0")
    a("s_load_dwordx2 s[6:7], s[0:1], 64")
    a("s_load_dwordx4 s[8:11], s[0:1], 104")
    a("s_load_dwordx2 s[12:13], s[0:1], 128")
    a("v_lshrrev_b32 v2, 6, v0")
    a("v_and_b32 v1, 63, v0")
    a("v_readfirstlane_b32 s40, v2")
    a("v_and_b32 v3, 31, v1")
    a("v_lshrrev_b32 v4, 5, v1")
    a("v_lshlrev_b32 v7, 4, v1")
    a("s_mul_i32 s41, s2, 7")
    a("s_add_u32 s41, s41, s40")
    a("s_mul_hi_u32 s39, s41, 0x4924925")
    a("s_mul_i32 s42, s39, 56")
    a("s_sub_u32 s42, s41, s42")
    a("s_lshr_b32 s38, s42, 3")
    a("s_and_b32 s40, s42, 7")
    a("s_mul_i32 s46, s41, 7168")
    a(f"s_add_u32 s46, s46, {PBUF}")
    a("s_lshr_b32 s41, s40, 2")
    a("s_bfe_u32 s42, s40, 0x10001")
    a("s_and_b32 s43, s40, 1")
    a("s_lshl_b32 s44, s38, 6")
    a("s_lshl_b32 s45, s42, 5")
    a("s_add_u32 s44, s44, s45")
    a("v_add_u32 v5, s44, v3")
    a("s_lshl_b32 s45, s39, 6")
    a("s_lshl_b32 s46, s46, 0") if False else None
    a("s_lshl_b32 s47, s41, 5")
    a("s_add_u32 s45, s45, s47")
    a("s_lshl_b32 s47, s43, 4")
    a("s_add_u32 s45, s45, s47")
    a("v_lshl_add_u32 v6, v4, 2, s45")
    a("v_mul_u32_u24 v8, 896, v6")
    a("v_lshl_add_u32 v8, v5, 1, v8")
    a(f"v_add_u32 v9, {896*8}, v8")
    a("v_lshlrev_b32 v10, 3, v6")
    a("v_lshlrev_b32 v11, 1, v5")
    a("v_mul_u32_u24 v12, 1792, v6")
    a("v_lshl_add_u32 v12, v5, 2, v12")
    a(f"v_add_u32 v13, {1792*8}, v12")
    a(f"v_add_u32 v28, {1792*2}, v12")
    a(f"v_add_u32 v29, {1792*2}, v13")
    a(f"s_mov_b32 s47, {STATS}")
    a("s_waitcnt lgkmcnt(0)")
    if opt.get('k2prof'): a("s_memtime s[66:67]")
    srd(a, 56, 12, WS_SIZE)
    srd(a, 48, 4, 2048 * 896)
    a.vmem("global_load_ushort v24, v11, s[6:7]", 'x')
    a.vmem("global_load_ushort v25, v11, s[8:9]", 'x')
    a.vmem("buffer_load_dwordx4 v[64:67], v10, s[56:59], s47 offen", 'x')
    a.vmem("buffer_load_dwordx4 v[68:71], v10, s[56:59], s47 offen offset:16", 'x')
    a.vmem("buffer_load_dwordx4 v[72:75], v10, s[56:59], s47 offen offset:64", 'x')
    a.vmem("buffer_load_dwordx4 v[76:79], v10, s[56:59], s47 offen offset:80", 'x')
    for e in range(8):
        a.vmem(f"buffer_load_ushort v{16+e}, v{8 if e < 4 else 9}, s[48:51], 0 offen offset:{896*(e&3)}", 'x')
    for s_ in range(7):
        a.vmem(f"buffer_load_dwordx4 {vr(32+4*s_,4)}, v7, s[56:59], s46 offen", ('p', s_))
        a("s_add_u32 s46, s46, 1024")
    srd(a, 52, 10, 2048 * 1792)
    a.wait_vm('x')
    if opt.get('k2prof'): a("s_memtime s[72:73]")
    a("v_lshlrev_b32 v24, 16, v24")
    a("v_lshlrev_b32 v25, 16, v25")
    for e in range(8):
        m1 = 64 + 8 * (e >> 2) + 2 * (e & 3)
        a(f"v_lshlrev_b32 v26, 16, v{16+e}")
        a(f"v_sub_f32 v27, v26, v{m1}")
        a(f"v_add_f32 v{80+e}, v25, v26")
        a(f"v_mul_f32 v27, v27, v{m1+1}")
        a(f"v_fmac_f32 v{80+e}, v27, v24")
    for s_ in range(7):
        a.wait_vm(('p', s_))
        if opt.get('k2prof') and s_ in (0, 6): a(f"s_memtime s[{68 if s_ == 0 else 70}:{69 if s_ == 0 else 71}]")
        for d in range(4):
            r = 32 + 4 * s_ + d
            a(f"v_lshlrev_b32 v14, 16, v{r}")
            a(f"v_and_b32 v15, 0xffff0000, v{r}")
            a(f"v_add_f32 v{80+2*d}, v{80+2*d}, v14")
            a(f"v_add_f32 v{81+2*d}, v{81+2*d}, v15")
            if s_ == 6:
                sc = "sc1" if opt.get('k2sc', '0') == '1' else ""
                for e in (2 * d, 2 * d + 1):
                    if (e & 3) < 3:
                        a(f"buffer_store_dword v{80+e}, v{12 if e < 4 else 13}, s[52:55], 0 offen offset:{1792*(e&3)} {sc}")
                    else:
                        a(f"buffer_store_dword v{80+e}, v{28 if e < 4 else 29}, s[52:55], 0 offen offset:1792 {sc}")
    if opt.get('k2prof'):
        a("s_memtime s[74:75]")
        a("s_waitcnt vmcnt(0)")
        a("s_memtime s[76:77]")
        a("v_readfirstlane_b32 s40, v2")
        a("s_lshl_b32 s62, s2, 3")
        a("s_add_u32 s62, s62, s40")
        a("s_lshl_b32 s62, s62, 5")
        a("s_add_u32 s62, s62, 0xF90000")
        a("s_waitcnt lgkmcnt(0)")
        a("v_mov_b32 v3, 0")
        for i_, r_ in enumerate((78, 66, 68, 70, 72, 74, 76)):
            a(f"v_mov_b32 v30, s{r_}")
            a(f"buffer_store_dword v30, v3, s[56:59], s62 offen offset:{4*i_}")
    if opt.get('span'):
        a("s_waitcnt vmcnt(0)")
        a("s_memrealtime s[60:61]")
        a("v_readfirstlane_b32 s40, v2")
        a("s_lshl_b32 s62, s2, 3")
        a("s_add_u32 s62, s62, s40")
        a("s_lshl_b32 s62, s62, 2")
        a("s_add_u32 s62, s62, 0xF81000")
        a("s_waitcnt lgkmcnt(0)")
        a("v_mov_b32 v2, s60")
        a("v_mov_b32 v3, 0")
        a("s_mov_b64 exec, 1")
        a("buffer_store_dword v2, v3, s[56:59], s62 offen")
        a("v_mov_b32 v2, s64")
        a("s_add_u32 s62, s62, 0x8000")
        a("buffer_store_dword v2, v3, s[56:59], s62 offen")
    a.label("K2_END")
    a("s_endpgm")
    return a


def desc(name, vgpr, sgpr=102):
    return f""".p2align 6
.amdhsa_kernel {name}
  .amdhsa_next_free_vgpr {vgpr}
  .amdhsa_next_free_sgpr {sgpr}
  .amdhsa_accum_offset {vgpr}
  .amdhsa_group_segment_fixed_size 0
  .amdhsa_kernarg_size 136
  .amdhsa_user_sgpr_count 2
  .amdhsa_user_sgpr_kernarg_segment_ptr 1
  .amdhsa_system_sgpr_workgroup_id_x 1
.end_amdhsa_kernel
"""


def build(opt):
    ref = open("parallel_sum__ssm_conv_s5__mixer_channel_mlp__prompt.s.ref").read() if opt.get('hdr', True) else ""
    hdr = [l for l in ref.split("\n") if l.startswith(";") and "@launch" not in l and "Override launch" not in l and "grid=ceil" not in l]
    out = "\n".join(hdr) + "\n"
    out += f"; @launch grid=(256,1,1) block=(512,1,1) lds={LDS_BYTES}\n"
    out += '.amdgcn_target "amdgcn-amd-amdhsa--gfx950"\n.text\n'
    k1 = gen_k1(opt)
    kn = KNAME + "_kernel"
    out += f".globl {kn}\n.p2align 8\n.type {kn},@function\n{kn}:\n" + k1.text().replace("k1_kernel", kn)
    out += '.section .rodata,"a"\n' + desc(kn, 256)
    if opt.get('align', '1') == '1':
        import align
        out, nw, nn = align.align(out)
    return out


if __name__ == "__main__":
    opt = {}
    outp = sys.argv[1]
    for kv in sys.argv[2:]:
        k, v = kv.split("=")
        opt[k] = v
    open(outp, "w").write(build(opt))
```

```python
import sys
from asmlib import Asm

KNAME = "parallel_sum__ssm_conv_s5__mixer_channel_mlp__prompt"

Y = 0
Q = 57344
P = 106496
RING = 12288
MISC = 155648
S2T = MISC
M2T = MISC + 256
AT = MISC + 2816
SCR = MISC + 512
CNT = MISC + 2560
LDS_BYTES = 163840
EBUF = 0
STATS = 0x20000
EIN = 0x80000
RFLAG = 0xC0000
INBOX = 0x40000
PBUF = 0x100000
WS_SIZE = 0x1000000
OOB = 0x7ff00000

sSL, sRB, sWV = 38, 39, 40
sRING, sT, sT2, sBASE, sBASE2 = 41, 42, 43, 76, 77
SX, SA, SW2, SCR_, SCI, SBI, SWS, SDBG = 44, 48, 52, 56, 60, 64, 68, 72
sRING3 = 78
sCB = 79
sW2B = 80
sTMP = 82
sP0, sINC0, sINC1, sOFF, sJS = 88, 89, 90, 91, 92
sSLOT1, sSLOT3 = 6, 12
sPA = 94
sDUM = 97

LOG2E = 1.4426950408889634


def fhex(x):
    import struct
    return "0x%08x" % struct.unpack("<I", struct.pack("<f", x))[0]


def srd(a, dst, ptr, size):
    a(f"s_mov_b32 s{dst}, s{ptr}")
    a(f"s_mov_b32 s{dst+1}, s{ptr+1}")
    a(f"s_mov_b32 s{dst+2}, {size}")
    a(f"s_mov_b32 s{dst+3}, 0x20000")


def vr(b, n):
    return f"v[{b}:{b+n-1}]" if n > 1 else f"v{b}"


class Stream:
    def __init__(self, a, items, first_index=0):
        self.a = a
        self.items = items
        self.first = first_index
        self.next = 0

    def slot(self, i):
        return (self.first + i) % 6

    def issue(self, upto):
        a = self.a
        while self.next < min(upto, len(self.items)):
            it = self.items[self.next]
            sl = self.slot(self.next)
            a(f"s_add_u32 m0, s{it['ring']}, {sl*2048}")
            a(f"s_add_u32 s{sT}, s{it['sbase']}, {it['off']}")
            a.vmem(f"buffer_load_dwordx4 v{it['va']}, s[{it['srd']}:{it['srd']+3}], s{sT} offen lds", ('st', self.first + self.next))
            a.vmem(f"buffer_load_dwordx4 v{it['vb']}, s[{it['srd']}:{it['srd']+3}], s{sT} offen offset:1024 lds", ('st', self.first + self.next))
            self.next += 1

    def wait(self, i):
        self.a.wait_vm(('st', self.first + i))

    def parts(self, upto):
        a = self.a
        out = []
        while self.next < min(upto, len(self.items)):
            it = self.items[self.next]
            sl = self.slot(self.next)
            idx = self.first + self.next

            def setup(it=it, sl=sl):
                a(f"s_add_u32 s{sT}, s{it['sbase']}, {it['off']}")

            def setm0(it=it, sl=sl):
                base = sSLOT1 if it['ring'] == sRING else sSLOT3
                a(f"s_mov_b32 m0, s{base + sl}")

            def da(it=it, idx=idx):
                a.vmem(f"buffer_load_dwordx4 v{it['va']}, s[{it['srd']}:{it['srd']+3}], s{sT} offen lds", ('st', idx))

            def db(it=it, idx=idx):
                a.vmem(f"buffer_load_dwordx4 v{it['vb']}, s[{it['srd']}:{it['srd']+3}], s{sT} offen offset:1024 lds", ('st', idx))
            out.append((setup, da, db, setm0))
            self.next += 1
        return out


def signal(a, off):
    a(f"v_mov_b32 v2, {CNT+off}")
    a("v_mov_b32 v3, 1")
    a("s_mov_b64 exec, 1")
    a("ds_add_u32 v2, v3")
    a("s_mov_b64 exec, -1")


_spin = [0]
SPSL = [1]
SLOW = []
def spin(a, off, n):
    _spin[0] += 1
    L = f"K1_SPIN{_spin[0]}"
    a(f"v_mov_b32 v2, {CNT+off}")
    a.label(L)
    a("ds_read_b32 v3, v2")
    a("s_waitcnt lgkmcnt(0)")
    a(f"v_readfirstlane_b32 s{sT}, v3")
    a(f"s_cmp_ge_u32 s{sT}, {n}")
    a(f"s_cbranch_scc0 {L}_S")
    SLOW.append((L + "_S", ([f"s_sleep {SPSL[0]}"] if SPSL[0] > 0 else []) + [f"s_branch {L}"]))
    a.lg = []


def both_wait(a, vtag, ltag):
    parts = []
    if vtag is not None:
        idx = max((i for i, t in enumerate(a.vm) if t == vtag), default=None)
        if idx is not None:
            parts.append(f"vmcnt({len(a.vm) - 1 - idx})")
            a.vm = a.vm[idx + 1:]
    if ltag is not None:
        idx = max((i for i, t in enumerate(a.lg) if t == ltag), default=None)
        if idx is not None:
            parts.append(f"lgkmcnt({len(a.lg) - 1 - idx})")
            a.lg = a.lg[idx + 1:]
    a("s_waitcnt " + " ".join(parts) if parts else "s_nop 0")


def bf16_round(a, dst, src):
    a(f"v_cvt_pk_bf16_f32 v{dst}, v{src}, v{src}")
    a(f"v_lshlrev_b32 v{dst}, 16, v{dst}")


PROF = [False]
XS = [False]
STORESYNC = [True]
KORDER = list(range(16))
HALF = [True]
PRIOSW = [True]
PRIO16 = [1]
PST = [7168]
PSC = ['sc1']
GSH = [True]
OWNP = [True]
OWNBLK = []
PSW = [None]
P14 = [3]
XNOVM = [False]
def stamp(a, i):
    if not PROF[0]: return
    a("s_waitcnt lgkmcnt(0)")
    a("s_memtime s[100:101]")
    a("s_waitcnt lgkmcnt(0)")
    a(f"v_writelane_b32 v0, s100, {i}")
    a.lg = []

LS = [0]
def lstamp(a):
    if not PROF[0]: return
    a(f"s_memtime s[{4+2*LS[0]}:{5+2*LS[0]}]")
    LS[0] += 1

def lflush(a, lane0):
    if not PROF[0]: return
    a("s_waitcnt lgkmcnt(0)")
    a.lg = []
    for i in range(LS[0]):
        a(f"v_writelane_b32 v0, s{4+2*i}, {lane0+i}")
    LS[0] = 0

def stamp_out(a):
    if not PROF[0]: return
    a("s_memrealtime s[100:101]")
    a("s_lshl_b32 s87, s2, 3")
    a(f"s_add_u32 s87, s87, s{sWV}")
    a("s_lshl_b32 s87, s87, 8")
    a("s_add_u32 s87, s87, 0xE00000")
    a("s_waitcnt lgkmcnt(0)")
    a("v_writelane_b32 v0, s100, 62")
    a("v_writelane_b32 v0, s99, 63")
    a("v_lshlrev_b32 v2, 2, v1")
    a(f"buffer_store_dword v0, v2, s[{SWS}:{SWS+3}], s87 offen")

def gen_k1(opt):
    a = Asm()
    PROF[0] = bool(opt.get('prof'))
    XS[0] = bool(opt.get('x_g3'))
    STORESYNC[0] = opt.get('ssync', '0') == '1'
    HALF[0] = opt.get('half', '0') == '1'
    PRIOSW[0] = opt.get('priosw', '1') == '1'
    PRIO16[0] = int(opt.get('prio16', 1))
    PST[0] = int(opt.get('pst', 7168))
    SPSL[0] = int(opt.get('spsl', 1))
    PSC[0] = opt.get('psc', 'sc1').replace('_', ' ')
    GSH[0] = opt.get('gsh', '0') == '1'
    OWNP[0] = opt.get('own', '1') == '1'
    del OWNBLK[:]
    PSW[0] = tuple(int(x) for x in opt.get('psw', '8_1_1').split('_')) if opt.get('psw', '8_1_1') != 'none' else None
    P14[0] = int(opt.get('p14', 3))
    XNOVM[0] = bool(opt.get('x_novm3'))
    D2 = int(opt.get('d2', 4))
    NPRE = 4
    a(f"s_cmp_ge_u32 s2, 256")
    a("s_cbranch_scc1 K1_END")
    R = int(opt.get('R', 2))
    S_ = 8 // R
    RBG = 32 // R
    lg = lambda x: x.bit_length() - 1
    a(f"s_and_b32 s{sT}, s2, 7")
    a(f"s_lshr_b32 s{sT2}, s2, 3")
    a(f"s_and_b32 s{sJS}, s{sT2}, {RBG-1}")
    a(f"s_lshr_b32 s{sRB}, s{sT}, {lg(S_)}")
    a(f"s_mul_i32 s{sSL}, s{sJS}, {R}")
    a(f"s_add_u32 s{sRB}, s{sRB}, s{sSL}")
    a(f"s_and_b32 s{sSL}, s{sT}, {S_-1}")
    a(f"s_mul_i32 s{sSL}, s{sSL}, {R}")
    a(f"s_lshr_b32 s{sT2}, s{sT2}, {lg(RBG)}")
    a(f"s_add_u32 s{sSL}, s{sSL}, s{sT2}")
    a(f"s_cmp_ge_u32 s{sSL}, 7")
    a("s_cbranch_scc1 K1_COLL")
    if PROF[0]:
        a("s_memrealtime s[100:101]\n s_waitcnt lgkmcnt(0)\n s_mov_b32 s99, s100")
        a("s_memtime s[100:101]\n s_waitcnt lgkmcnt(0)\n s_mov_b32 s98, s100")
    if opt.get('span'):
        a("s_memrealtime s[98:99]")
    a("s_load_dwordx16 s[4:19], s[0:1], 0")
    a("s_load_dwordx16 s[20:35], s[0:1], 64")
    a("s_load_dwordx2 s[36:37], s[0:1], 128")
    a("v_lshrrev_b32 v2, 6, v0")
    a("v_and_b32 v1, 63, v0")
    if opt.get('ctouch', '1') == '1':
        NL = int(opt.get('cnl', 6))
        a("s_getpc_b64 s[94:95]")
        a.label("K1_PC")
        a("s_sub_u32 s94, s94, K1_PC-k1_kernel")
        a("s_subb_u32 s95, s95, 0")
        a("s_lshr_b32 s96, s2, 3")
        a(f"s_mul_i32 s96, s96, {NL*128}")
        a("v_lshlrev_b32 v3, 7, v0")
        a("v_add_u32 v3, s96, v3")
        a(f"v_cmp_gt_u32 s[84:85], {NL}, v0")
        a("v_cmp_gt_u32 vcc, K1_END-k1_kernel, v3")
        a("s_and_b64 vcc, vcc, s[84:85]")
        a("s_and_saveexec_b64 s[96:97], vcc")
        a("s_cbranch_execz K1_NOCT")
        a("global_load_dword v251, v3, s[94:95]")
        a.label("K1_NOCT")
        a("s_mov_b64 exec, s[96:97]")
    a(f"v_readfirstlane_b32 s{sWV}, v2")
    if opt.get('swap', '1') == '1':
        a(f"s_xor_b32 s{sWV}, s{sWV}, 4")
    if PROF[0]:
        a("v_writelane_b32 v0, s98, 0")
    a("v_lshrrev_b32 v3, 3, v1")
    a("v_and_b32 v4, 7, v1")
    a("v_mul_u32_u24 v5, 896, v3")
    a("v_lshl_add_u32 v10, v4, 4, v5")
    a("v_and_b32 v2, 15, v1")
    a(f"s_lshl_b32 s{sT}, s{sRB}, 3")
    a(f"s_add_u32 s{sT}, s{sT}, s{sWV}")
    a(f"s_mul_i32 s{sBASE2}, s{sT}, {8*896}")
    a(f"s_and_b32 s{sT}, s{sWV}, 3")
    a(f"s_lshl_b32 s{sT}, s{sT}, 4")
    a(f"s_lshl_b32 s{sT2}, s{sSL}, 6")
    a(f"s_add_u32 s{sP0}, s{sT}, s{sT2}")
    a(f"v_add_u32 v2, s{sP0}, v2")
    a("v_lshlrev_b32 v2, 1, v2")
    a("s_waitcnt lgkmcnt(0)")
    stamp(a, 11)
    def stouch_w1(m, nl=4, l0=0):
        NS = RBG
        nrow = 448 // NS
        a(f"s_add_u32 s{sT}, s{sWV}, {8*m}")
        skip = None
        if 8 * m + 7 >= nrow:
            _spin[0] += 1
            skip = f"K1_ST{m}_{_spin[0]}"
            a(f"s_cmp_ge_u32 s{sT}, {nrow}")
            a(f"s_cbranch_scc1 {skip}")
        a(f"s_mul_i32 s{sT}, s{sT}, {NS}")
        a(f"s_add_u32 s{sT}, s{sT}, s{sJS}")
        a(f"s_mul_i32 s{sT}, s{sT}, 3584")
        a(f"s_lshl_b32 s{sT2}, s{sSL}, 9")
        a(f"s_add_u32 s{sT}, s{sT}, s{sT2}")
        a(f"s_add_u32 s{sPA}, s24, s{sT}")
        a(f"s_addc_u32 s{sPA+1}, s25, 0")
        for k in range(l0, nl):
            a(f"s_load_dword s{sDUM}, s[{sPA}:{sPA+1}], {128*k}")
        if skip:
            a.label(skip)

    def stouch_b():
        NS = RBG
        per = 128 // NS
        if per < 8:
            a(f"s_cmp_ge_u32 s{sWV}, {per}")
            a("s_cbranch_scc1 K1_STB")
        reps = max(1, per // 8)
        for rep in range(reps):
            a(f"s_mul_i32 s{sT}, s{sJS}, {per}")
            a(f"s_add_u32 s{sT}, s{sT}, s{sWV}")
            if rep:
                a(f"s_add_u32 s{sT}, s{sT}, {8*rep}")
            a(f"s_and_b32 s{sT2}, s{sT}, 63")
            a(f"s_lshl_b32 s{sPA}, s{sSL}, 6")
            a(f"s_add_u32 s{sT2}, s{sT2}, s{sPA}")
            a(f"s_mul_i32 s{sT2}, s{sT2}, 896")
            a(f"s_cmp_ge_u32 s{sT}, 64")
            a(f"s_cselect_b32 s{sPA}, s12, s10")
            a(f"s_cselect_b32 s{sPA+1}, s13, s11")
            a(f"s_add_u32 s{sPA}, s{sPA}, s{sT2}")
            a(f"s_addc_u32 s{sPA+1}, s{sPA+1}, 0")
            for k in range(7):
                a(f"s_load_dword s{sDUM}, s[{sPA}:{sPA+1}], {128*k}")
        if per < 8:
            a.label("K1_STB")
    def stouch_w1g(m, nl=4, l0=0):
        n0 = len(a.items)
        stouch_w1(m, nl, l0)
        for i in range(n0, len(a.items)):
            k_, it = a.items[i]
            if k_ == 'label':
                a.items[i] = (k_, it + "G")
            elif k_ == 'ins' and 'K1_ST' in it.text:
                from asmlib import Ins
                a.items[i] = (k_, Ins(it.text + "G"))
    STOUCH = opt.get('stouch', '0') == '1'
    if STOUCH:
        stouch_b()
        stouch_w1(0)
        stouch_w1(1, 3)
    srd(a, SX, 4, 2048 * 896)
    if opt.get('warm'):
        srd(a, 48, 24, 448 * 3584); srd(a, 52, 28, 1792 * 896); srd(a, 56, 14, 448 * 896); srd(a, 60, 16, 448 * 896)
        srd(a, 64, 10, 448 * 896); srd(a, 68, 12, 448 * 896)
        a("v_lshlrev_b32 v6, 6, v0") if False else None
        a("v_and_b32 v7, 63, v1")
        a(f"s_lshl_b32 s{sT}, s{sWV}, 6")
        a(f"v_add_u32 v7, s{sT}, v1")
        for k in range(7):
            a(f"v_add_u32 v8, {512*k}, v7")
            a("v_lshrrev_b32 v9, 3, v8")
            a("v_mul_u32_u24 v9, 3584, v9")
            a("v_and_b32 v8, 7, v8")
            a("v_lshl_add_u32 v9, v8, 6, v9")
            a(f"s_lshl_b32 s{sT}, s{sSL}, 9")
            a(f"buffer_load_dword v250, v9, s[48:51], s{sT} offen")
        a(f"s_mul_i32 s{sT}, s{sSL}, {256*896}")
        for k in range(7):
            a(f"v_add_u32 v8, {512*k}, v7")
            a("v_lshlrev_b32 v9, 6, v8")
            a(f"buffer_load_dword v250, v9, s[52:55], s{sT} offen")
        a(f"s_mul_i32 s{sT}, s{sSL}, {64*896}")
        for k in range(2):
            a(f"v_add_u32 v8, {512*k}, v7")
            a("v_lshlrev_b32 v9, 6, v8")
            a(f"buffer_load_dword v250, v9, s[64:67], s{sT} offen")
            a(f"buffer_load_dword v250, v9, s[68:71], s{sT} offen")
        for k in range(2):
            a(f"v_add_u32 v8, {512*k}, v7")
            a("v_lshrrev_b32 v9, 1, v8")
            a("v_mul_u32_u24 v9, 896, v9")
            a("v_and_b32 v8, 1, v8")
            a("v_lshl_add_u32 v9, v8, 6, v9")
            a(f"s_lshl_b32 s{sT}, s{sSL}, 7")
            a(f"buffer_load_dword v250, v9, s[56:59], s{sT} offen")
            a(f"buffer_load_dword v250, v9, s[60:63], s{sT} offen")
        a(f"s_mul_i32 s{sT}, s{sRB}, {64*896}")
        for k in range(2):
            a(f"v_add_u32 v8, {512*k}, v7")
            a("v_lshlrev_b32 v9, 6, v8")
            a(f"buffer_load_dword v250, v9, s[{SX}:{SX+3}], s{sT} offen")
        a("s_waitcnt vmcnt(0)")
        a("s_barrier")
        a("s_sleep 64")
        a("s_barrier")
        if PROF[0]:
            a("s_memtime s[100:101]\n s_waitcnt lgkmcnt(0)\n v_writelane_b32 v0, s100, 0")
    a.vmem("global_load_ushort v104, v2, s[6:7]", 'par')
    a.vmem("global_load_ushort v105, v2, s[8:9]", 'par')
    a.vmem("global_load_ushort v106, v2, s[18:19]", 'par')
    for i in range(7):
        a.vmem(f"buffer_load_dwordx4 {vr(32+4*i,4)}, v10, s[{SX}:{SX+3}], s{sBASE2} offen offset:{128*i}", 'x')
    if opt.get('tlbw', '0') == '1':
        a("v_mov_b32 v2, 0")
        a("s_mov_b64 exec, 1")
        a.vmem("global_load_dword v250, v2, s[28:29]", 'tlb')
        a.vmem("global_load_dword v250, v2, s[14:15]", 'tlb')
        a.vmem("global_load_dword v250, v2, s[16:17]", 'tlb')
        a.vmem("global_load_dword v250, v2, s[36:37]", 'tlb')
        a("s_mov_b64 exec, -1")
    x_state = list(a.vm)

    srd(a, SW2, 28, 1792 * 896)
    srd(a, SCR_, 14, 448 * 896)
    srd(a, SCI, 16, 448 * 896)
    srd(a, SWS, 36, WS_SIZE)
    srd(a, SDBG, 34, 256)
    if opt.get('span'):
        a(f"s_lshl_b32 s{sT}, s2, 2")
        a(f"s_add_u32 s{sT}, s{sT}, 0xF80000")
        a("v_mov_b32 v240, s98")
        a("v_mov_b32 v241, 0")
        a("s_mov_b64 exec, 1")
        a(f"buffer_store_dword v240, v241, s[{SWS}:{SWS+3}], s{sT} offen")
        a("s_mov_b64 exec, -1")
    a("v_lshrrev_b32 v6, 4, v1")
    a("v_and_b32 v7, 1, v6")
    a("v_lshlrev_b32 v7, 2, v7")
    a("v_xor_b32 v7, v4, v7")
    a("v_xor_b32 v8, v4, v6")
    a("v_lshl_add_u32 v31, v8, 4, v5")
    a("v_xor_b32 v11, 64, v31")
    a(f"v_add_u32 v11, {8*896-1024}, v11")
    a("v_lshl_add_u32 v29, v7, 4, v5")
    a(f"v_add_u32 v30, {8*896-1024}, v29")
    NS = RBG
    nW = 448 * 4 // NS // 4
    a(f"s_and_b32 s{sT}, s{sWV}, 3")
    a(f"s_mul_i32 s{sT}, s{sT}, {nW}")
    a(f"v_add_u32 v6, s{sT}, v1")
    a("v_lshrrev_b32 v9, 2, v6")
    a(f"v_mul_u32_u24 v9, {NS}, v9")
    a(f"v_add_u32 v9, s{sJS}, v9")
    a("v_mul_u32_u24 v9, 3584, v9")
    a("v_and_b32 v6, 3, v6")
    a("v_lshl_add_u32 v248, v6, 7, v9")
    a(f"s_lshl_b32 s{sT}, s{sSL}, 9")
    a(f"v_add_u32 v248, s{sT}, v248")
    a("v_lshlrev_b32 v249, 7, v1")
    a("v_lshrrev_b32 v6, 4, v1")
    a(f"s_mul_i32 s{sW2B}, s{sSL}, {256*896}")
    a(f"s_lshl_b32 s{sT}, s{sWV}, 7")
    a(f"s_add_u32 s{sW2B}, s{sW2B}, s{sT}")
    a(f"s_mul_i32 s{sCB}, s{sWV}, {64*896}")
    a(f"s_lshl_b32 s{sT}, s{sSL}, 7")
    a(f"s_add_u32 s{sCB}, s{sCB}, s{sT}")
    a(f"s_lshl_b32 s{sT}, s{sWV}, 3")
    a(f"v_add_u32 v62, s{sT}, v3")
    a("v_bfe_u32 v63, v62, 1, 3")
    a(f"s_lshr_b32 s{sT}, s{sWV}, 1")
    a(f"s_and_b32 s{sT2}, s{sT}, 1")
    a(f"s_mul_i32 s{sT2}, s{sT2}, 3")
    a(f"s_lshr_b32 s{sT}, s{sT}, 1")
    a(f"s_xor_b32 s{sT}, s{sT}, s{sT2}")
    a(f"s_lshl_b32 s{sT}, s{sT}, 1")
    a(f"v_xor_b32 v63, s{sT}, v63")
    a("v_xor_b32 v63, v63, v4")
    a("v_mul_u32_u24 v61, 896, v62")
    a("v_lshl_add_u32 v10, v63, 4, v61")
    a("v_lshlrev_b32 v62, 2, v62")
    a("v_mov_b32 v60, 0")
    a(f"v_mov_b32 v63, {CNT}")
    for k in range(12):
        a(f"ds_write_b32 v63, v60 offset:{4*k}")
    a(f"s_cmp_ge_u32 s{sWV}, 4")
    a("s_cbranch_scc1 K1_G1_PRE")

    def touch1(sfx):
        if opt.get('touch1', '1') != '1':
            return
        if sfx.endswith("A"):
            nl = 448 * 4 // NS // 4
            assert nl <= 64
            a(f"s_mov_b64 exec, {hex((1 << nl) - 1)}")
            a("global_load_dword v252, v248, s[24:25]")
        else:
            perB = 128 // NS
            perW = perB // 4
            assert perW >= 1 and 7 * perW <= 64
            a(f"s_mul_i32 s{sT}, s{sJS}, {perB}")
            a(f"s_sub_u32 s{sT2}, s{sWV}, 4")
            a(f"s_mul_i32 s{sT2}, s{sT2}, {perW}")
            a(f"s_add_u32 s{sT}, s{sT}, s{sT2}")
            a(f"s_and_b32 s{sT2}, s{sT}, 63")
            a(f"s_lshl_b32 s{sPA}, s{sSL}, 6")
            a(f"s_add_u32 s{sT2}, s{sT2}, s{sPA}")
            a(f"s_mul_i32 s{sT2}, s{sT2}, 896")
            a(f"s_cmp_ge_u32 s{sT}, 64")
            a(f"s_cselect_b32 s{sPA}, s12, s10")
            a(f"s_cselect_b32 s{sPA+1}, s13, s11")
            a(f"s_add_u32 s{sPA}, s{sPA}, s{sT2}")
            a(f"s_addc_u32 s{sPA+1}, s{sPA+1}, 0")
            a(f"s_mov_b64 exec, {hex((1 << (7 * perW)) - 1)}")
            a(f"global_load_dword v253, v249, s[{sPA}:{sPA+1}]")
        a("s_mov_b64 exec, -1")

    LR, LI = 104, 105
    CR, CI = 116, 117
    L16R, L16I, PGR, PGI, MUR, MUI, M8R, M8I = 106, 107, 108, 109, 110, 111, 112, 113

    def cmac(dr, di, xr, xi, yr, yi, ar, ai):
        a(f"v_fma_f32 v{dr}, v{xr}, v{yr}, v{ar}")
        a(f"v_fma_f32 v{di}, v{xr}, v{yi}, v{ai}")
        a(f"v_fma_f32 v{dr}, -v{xi}, v{yi}, v{dr}")
        a(f"v_fmac_f32 v{di}, v{xi}, v{yr}")

    def lam_block():
        a.wait_vm('par')
        if not STOUCH: stamp(a, 12)
        LR, LI = 104, 105
        a("v_lshlrev_b32 v107, 16, v104")
        a("v_lshlrev_b32 v108, 16, v105")
        a("v_lshlrev_b32 v106, 16, v106")
        a(f"v_mul_f32 v106, {fhex(LOG2E)}, v106")
        a("v_exp_f32 v106, v106")
        bf16_round(a, 106, 106)
        a("v_mul_f32 v109, v106, v107")
        a("v_mul_f32 v110, v106, v108")
        a(f"v_mul_f32 v109, {fhex(LOG2E)}, v109")
        a(f"v_mul_f32 v110, {fhex(0.15915494309189535)}, v110")
        a("v_exp_f32 v109, v109")
        a("v_rndne_f32 v111, v110")
        a("v_sub_f32 v110, v110, v111")
        a("v_cos_f32 v111, v110")
        a("v_sin_f32 v112, v110")
        a("v_mul_f32 v113, v107, v107")
        a("v_fmac_f32 v113, v108, v108")
        a("v_mul_f32 v104, v109, v111")
        a("v_mul_f32 v105, v109, v112")
        a("v_rcp_f32 v110, v113")
        a("v_add_f32 v109, -1.0, v104")
        a("v_mul_f32 v111, v109, v107")
        a("v_mul_f32 v112, v105, v107")
        a("v_fmac_f32 v111, v105, v108")
        a("v_fma_f32 v112, -v109, v108, v112")
        a("v_add_f32 v110, v110, v110")
        CR, CI = 116, 117
        a(f"v_mul_f32 v{CR}, v111, v110")
        a(f"v_mul_f32 v{CI}, v112, v110")

        def csq(dr, di, sr, si):
            a(f"v_mul_f32 v{dr}, v{sr}, v{sr}")
            a(f"v_mul_f32 v{di}, v{sr}, v{si}")
            a(f"v_fma_f32 v{dr}, -v{si}, v{si}, v{dr}")
            a(f"v_add_f32 v{di}, v{di}, v{di}")

        def cmul(dr, di, xr, xi, yr, yi):
            a(f"v_mul_f32 v{dr}, v{xr}, v{yr}")
            a(f"v_mul_f32 v{di}, v{xr}, v{yi}")
            a(f"v_fma_f32 v{dr}, -v{xi}, v{yi}, v{dr}")
            a(f"v_fmac_f32 v{di}, v{xi}, v{yr}")

        def cmac(dr, di, xr, xi, yr, yi, ar, ai):
            a(f"v_fma_f32 v{dr}, v{xr}, v{yr}, v{ar}")
            a(f"v_fma_f32 v{di}, v{xr}, v{yi}, v{ai}")
            a(f"v_fma_f32 v{dr}, -v{xi}, v{yi}, v{dr}")
            a(f"v_fmac_f32 v{di}, v{xi}, v{yr}")
        L16R, L16I, PGR, PGI, MUR, MUI, M8R, M8I = 106, 107, 108, 109, 110, 111, 112, 113
        csq(118, 119, LR, LI)
        csq(120, 121, 118, 119)
        csq(118, 119, 120, 121)
        csq(L16R, L16I, 118, 119)
        csq(118, 119, L16R, L16I)
        cmul(120, 121, 118, 119, L16R, L16I)
        a("v_lshrrev_b32 v2, 4, v1")
        a(f"v_mov_b32 v{PGR}, 1.0")
        a(f"v_mov_b32 v{PGI}, 0")
        a("v_cmp_eq_u32 vcc, 1, v2")
        a(f"v_cndmask_b32 v{PGR}, v{PGR}, v{L16R}, vcc")
        a(f"v_cndmask_b32 v{PGI}, v{PGI}, v{L16I}, vcc")
        a("v_cmp_eq_u32 vcc, 2, v2")
        a(f"v_cndmask_b32 v{PGR}, v{PGR}, v118, vcc")
        a(f"v_cndmask_b32 v{PGI}, v{PGI}, v119, vcc")
        a("v_cmp_eq_u32 vcc, 3, v2")
        a(f"v_cndmask_b32 v{PGR}, v{PGR}, v120, vcc")
        a(f"v_cndmask_b32 v{PGI}, v{PGI}, v121, vcc")

    def prefill(it):
        s_ = SA if it % 2 == 0 else SBI
        a(f"s_add_u32 m0, s{sRING}, {2048*it}")
        a("s_nop 0")
        a.vmem(f"buffer_load_dwordx4 v27, s[{s_}:{s_+3}], s{sOFF} offen lds", ('pre', it))
        a.vmem(f"buffer_load_dwordx4 v28, s[{s_}:{s_+3}], s{sOFF} offen offset:1024 lds", ('pre', it))
        a(f"s_add_u32 s{sOFF}, s{sOFF}, s{sINC0 if it % 2 == 0 else sINC1}")
    NEARLY = int(opt.get('nearly', 0))

    srd(a, SA, 24, 448 * 3584)
    srd(a, SBI, 24, 448 * 3584)
    a(f"s_mul_i32 s{sRING}, s{sWV}, {RING}")
    a(f"s_add_u32 s{sRING}, s{sRING}, {P}")
    a(f"s_mov_b32 s{sRING3}, s{sRING}")
    a(f"s_lshl_b32 s{sBASE}, s{sSL}, 9")
    a(f"s_lshl_b32 s{sT}, s{sWV}, 7")
    a(f"s_add_u32 s{sBASE}, s{sBASE}, s{sT}")
    a(f"s_mov_b32 s{sINC0}, {16*3584}")
    a(f"s_mov_b32 s{sINC1}, {16*3584}")
    a("v_mul_u32_u24 v27, 3584, v3")
    a("v_lshl_add_u32 v27, v7, 4, v27")
    a(f"v_add_u32 v28, {8*3584-1024}, v27")
    if opt.get('tpos', 'ln') == 'pre': touch1("A")
    if opt.get('touch'):
        a(f"s_mul_i32 s{sT}, s{sWV}, 28")
        a(f"v_add_u32 v2, s{sT}, v1")
        a("v_lshrrev_b32 v8, 3, v2")
        a("v_and_b32 v9, 7, v2")
        a(f"s_mul_i32 s{sT}, s{sRB}, 14")
        a(f"v_add_u32 v8, s{sT}, v8")
        a("v_mul_u32_u24 v8, 3584, v8")
        a("v_lshl_add_u32 v8, v9, 6, v8")
        a(f"s_lshl_b32 s{sT}, s{sSL}, 9")
        a(f"v_add_u32 v8, s{sT}, v8")
        a("v_lshlrev_b32 v9, 6, v2")
        a(f"s_lshl_b32 s{sT}, s{sSL}, 5")
        a(f"s_add_u32 s{sT}, s{sT}, s{sRB}")
        a(f"s_mul_i32 s{sT}, s{sT}, {8*896}")
        a(f"v_add_u32 v9, s{sT}, v9")
        a(f"v_mov_b32 v2, {OOB}")
        a("v_cmp_gt_u32 vcc, 28, v1")
        a("v_cndmask_b32 v8, v2, v8, vcc")
        a("v_cndmask_b32 v9, v2, v9, vcc")
        a.vmem(f"buffer_load_dword v252, v8, s[{SA}:{SA+3}], 0 offen", 'touch')
        a.vmem(f"buffer_load_dword v253, v9, s[{SW2}:{SW2+3}], 0 offen", 'touch')
    a(f"s_mov_b32 s{sOFF}, s{sBASE}")
    for it in range(NEARLY):
        prefill(it)
    a("v_mov_b32 v247, 0")
    a("v_mov_b32 v250, 0")
    g3_addr(a)
    a(f"v_add_u32 v12, s{sRING}, v8")
    a("v_xor_b32 v13, 64, v12")
    a("v_lshrrev_b32 v2, 5, v1")
    a("v_and_b32 v3, 31, v1")
    a("v_bfe_u32 v4, v3, 1, 3")
    a("v_lshrrev_b32 v5, 4, v3")
    a("v_mul_u32_u24 v5, 6, v5")
    a("v_xor_b32 v4, v4, v5")
    a("v_xor_b32 v4, v4, v2")
    a("v_mul_u32_u24 v5, 896, v3")
    for j in range(4):
        a(f"v_xor_b32 v6, {2*j}, v4")
        a(f"v_lshl_add_u32 v{14+j}, v6, 4, v5")
    if STOUCH:
        a("s_waitcnt lgkmcnt(0)")
        stouch_w1(1, 4, 3)
        for m in range(2, (448 // RBG + 7) // 8):
            stouch_w1(m)
    if opt.get('xbar', '1') == '1': a("s_barrier")
    if not STOUCH: stamp(a, 13)
    a.wait_vm('x')
    a("v_lshrrev_b32 v2, 5, v1")
    a("v_lshlrev_b32 v2, 3, v2")
    a(f"v_add_u32 v2, s{sBASE}, v2")
    for ft in range(2):
        for aa in range(4):
            a.vmem(f"global_load_dwordx2 {vr(224 + 2*(4*ft+aa), 2)}, v2, s[26:27] offset:{(32*ft+8*aa)*2}", 'bias')
    saved_vm_A = list(a.vm)

    def emit_ln(role):
        if not STOUCH: stamp(a, 1)
        NLN0 = int(opt.get('nln0', 0))
        for it in range(NEARLY, max(NEARLY, NLN0)):
            prefill(it)
        if opt.get('tpos', 'ln') == 'ln' and (role == "B" or opt.get('w1pos', 'g1') == 'ln'): touch1("C" + role)
        if opt.get('x_ln'): stamp(a, 40)
        U = 128
        a("v_mov_b32 v2, 0")
        a("v_mov_b32 v3, 0")
        a("v_mov_b32 v4, 0")
        a("v_mov_b32 v5, 0")
        a(f"v_mov_b32 v60, 0x3f803f80")
        for i in range(28):
            x = 32 + i
            a(f"v_dot2c_f32_bf16 v{2 + (i & 1)}, v60, v{x}")
            a(f"v_dot2c_f32_bf16 v{4 + (i & 1)}, v{x}, v{x}")
        if opt.get('x_ln'): stamp(a, 41)
        fill = []
        for i in range(28):
            fill.append(f"v_lshlrev_b32 v{U+2*i}, 16, v{32+i}")
            fill.append(f"v_and_b32 v{U+2*i+1}, 0xffff0000, v{32+i}")
        inv = fhex(1.0 / 448.0)
        eps = fhex(1e-5)
        chain = []
        chain += ["v_add_f32 v2, v2, v3", "v_add_f32 v4, v4, v5"]
        for m in ("quad_perm:[1,0,3,2]", "quad_perm:[2,3,0,1]", "row_half_mirror"):
            chain.append(f"v_add_f32_dpp v2, v2, v2 {m} row_mask:0xf bank_mask:0xf")
            chain.append(f"v_add_f32_dpp v4, v4, v4 {m} row_mask:0xf bank_mask:0xf")
        chain += [f"v_mul_f32 v5, {inv}, v2", f"v_mul_f32 v4, {inv}, v4", "v_fma_f32 v4, -v5, v5, v4", "v_max_f32 v4, 0, v4",
                  f"v_add_f32 v6, {eps}, v4", "v_rsq_f32 v6, v6",
                  "v_mul_f32 v7, v6, v6", "v_mul_f32 v7, v7, v4", f"v_add_f32 v7, {eps}, v7", "v_rsq_f32 v9, v7",
                  "v_mul_f32 v3, v6, v9", "v_mul_f32 v8, v7, v9", "v_mul_f32 v2, v5, v3", "v_sub_f32 v2, 0, v2"]
        for k, ins in enumerate(chain):
            a(ins)
            if fill:
                a(fill.pop(0))
        for f_ in fill:
            a(f_)
        if opt.get('x_ln'): stamp(a, 42)
        a("v_mov_b32 v60, v3")
        a("v_mov_b32 v61, v3")
        a("v_mov_b32 v4, v2")
        a("v_mov_b32 v63, v5")
        a("v_mov_b32 v5, v2")
        if opt.get('x_ln'): stamp(a, 43)
        if role == "B" and opt.get('g1pre', 'end') == 'mid':
            for it in range(6):
                prefill(it)
        a(".p2align 3")
        for i in range(7):
            for d in range(4):
                u = U + 2 * (4 * i + d)
                a(f"v_pk_fma_f32 v[{u}:{u+1}], v[{u}:{u+1}], v[60:61], v[4:5]")
            for d in range(4):
                u = U + 2 * (4 * i + d)
                a(f"v_cvt_pk_bf16_f32 v{32+4*i+d}, v{u}, v{u+1}")
            a(f"ds_write_b128 v10, {vr(32+4*i,4)} offset:{128*i}")
        a("v_and_b32 v2, 7, v1")
        a("v_cmp_eq_u32 vcc, 0, v2")
        a(f"s_and_saveexec_b64 s[{sTMP}:{sTMP+1}], vcc")
        a(f"v_add_u32 v2, {S2T}, v62")
        a(f"ds_write_b32 v2, v8")
        a(f"ds_write_b32 v2, v63 offset:{M2T-S2T}")
        a(f"ds_write_b32 v2, v6 offset:{AT-S2T}")
        a(f"s_mov_b64 exec, s[{sTMP}:{sTMP+1}]")
        a("s_waitcnt lgkmcnt(0)")
        stamp(a, 2)
    emit_ln("A")
    for k in range(6):
        a(f"s_add_u32 s{sSLOT1+k}, s{sRING}, {2048*k}")
        a(f"s_add_u32 s{sSLOT3+k}, s{sRING3}, {2048*k}")
    a(f"s_mov_b32 s{sOFF}, s{sBASE}")
    a("s_barrier")
    stamp(a, 3)
    NG2 = int(opt.get('ng2', 2))
    for it in range(NG2):
        prefill(it)
    pre_tags = [('st', i // 2) for i in range(2 * NG2)]

    PP = [(2, 3), (4, 5)]
    XR, XI = 122, 123
    def pass2(sfx, preloaded):
        if preloaded:
            a("s_branch K1_POLLW" + sfx)
        a.label("K1_POLL" + sfx)
        a(f"buffer_load_dwordx4 v[44:47], v250, s[{SWS}:{SWS+3}], 0 offen sc1")
        a("s_waitcnt vmcnt(0)")
        a.label("K1_POLLW" + sfx)
        a("v_cmp_ne_u32 vcc, 1, v46")
        a("s_cbranch_vccz K1_POLLED" + sfx)
        a(f"s_sleep {int(opt.get('psleep', 4))}")
        a("s_branch K1_POLL" + sfx)
        a.label("K1_POLLED" + sfx)
        stamp(a, 6)
        cmac(PP[1][0], PP[1][1], PGR, PGI, 44, 45, XR, XI)
        for e in range(16):
            nr, ni = PP[e & 1]
            hr, hi = PP[(e & 1) ^ 1]
            cmac(nr, ni, LR, LI, hr, hi, 64 + e, 80 + e)
            if e & 1:
                a(f"v_cvt_pk_bf16_f32 v{32 + e//2}, v{hr}, v{nr}")
                a(f"v_cvt_pk_bf16_f32 v{40 + e//2}, -v{hi}, -v{ni}")
        a.lds("ds_write_b128 v246, v[32:35] offset:8192", 'w')
        a.lds("ds_write_b128 v246, v[36:39] offset:8208", 'w')
        a.lds("ds_write_b128 v246, v[40:43] offset:10240", 'w')
        a.lds("ds_write_b128 v246, v[44:47] offset:10256", 'w')
        a.wait_lg_all()
        signal(a, 16)
        stamp(a, 7)
    a.vm = [t for t in saved_vm_A if not (isinstance(t, tuple) and t[0] == 'pre')] + pre_tags
    a.lg = []
    w1_items = [dict(srd=SA, va=27, vb=28, sbase=sBASE, off=16 * s * 3584, ring=sRING) for s in range(28)]
    w2_items = [dict(srd=SW2, va=29, vb=30, sbase=sW2B, off=16 * ks * 896, ring=sRING3) for ks in KORDER]
    c_items = []
    for part in range(2):
        for nt in range(2):
            for pr in range(2):
                c_items.append(dict(srd=(SCR_, SCI)[part], va=31, vb=11, sbase=sCB, off=(32 * nt + 16 * pr) * 896, ring=sRING3))
    stA = Stream(a, w1_items + w2_items + c_items, 0)
    stA.next = NG2
    a.wait_vm('bias')
    for ft in range(2):
        for aa in range(4):
            s_ = 224 + 2 * (4 * ft + aa)
            d_ = 128 + 16 * ft + 4 * aa
            a(f"v_lshlrev_b32 v{d_}, 16, v{s_}")
            a(f"v_and_b32 v{d_+1}, 0xffff0000, v{s_}")
            a(f"v_lshlrev_b32 v{d_+2}, 16, v{s_+1}")
            a(f"v_and_b32 v{d_+3}, 0xffff0000, v{s_+1}")

    FA = [192, 208, 224]

    def g2_reads(s):
        b = FA[s % 3]
        so = (s % 6) * 2048
        out = []
        for ft in range(2):
            for q in range(2):
                out.append(f"ds_read_b64_tr_b16 {vr(b+4*ft+2*q,2)}, v{12+ft} offset:{so+512*q}")
        j = s & 3
        out.append(f"ds_read_b128 {vr(b+8,4)}, v{14+j} offset:{128*(s>>2)}")
        out.append(f"ds_read_b128 {vr(b+12,4)}, v{14+(j^1)} offset:{128*(s>>2)+28672}")
        return out

    a(f"s_setprio {int(opt.get('g2p', 1))}")
    if opt.get('x_g2sleep'):
        a("s_sleep 127\n s_sleep 127")
    if opt.get('serial', '1') == '1':
        spin(a, 20, 4)
    if opt.get('w1pos', 'g1') == 'sig':
        touch1("DA")
    if opt.get('x_rep2'):
        a("s_mov_b32 s87, 0")
        a("s_waitcnt vmcnt(0)")
        a.vm = []
        a.label("K1_REP")
        stA.next = 0
        stamp(a, 44)
    stA.issue(6)
    stA.wait(0)
    for r in g2_reads(0):
        a.lds(r, ('f', 0))
    stA.wait(1)
    for r in g2_reads(1):
        a.lds(r, ('f', 1))
    a.wait_lg(('f', 0))
    stA.issue(7)
    a(".p2align 3")
    for s in range(28):
        b = FA[s % 3]
        ms = []
        for ft in range(2):
            for tt in range(2):
                acc = 64 + 32 * ft + 16 * tt
                c = vr(128 + 16 * ft, 16) if s == 0 else vr(acc, 16)
                ms.append(f"v_mfma_f32_32x32x16_bf16 {vr(acc,16)}, {vr(b+4*ft,4)}, {vr(b+8+4*tt,4)}, {c}")
        rd = g2_reads(s + 2) if s + 2 < 28 else []
        pp = stA.parts(min(s + 8, int(opt.get('g2cap', 34))))
        a(ms[0])
        both_wait(a, ('st', stA.first + s + 2) if s + 2 < 28 else None, ('f', s + 1) if s + 1 < 28 else None)
        if pp:
            pp[0][3]()
        else:
            a("s_nop 0")
        for r in rd[0:3]:
            a.lds(r, ('f', s + 2))
        a(ms[1])
        for r in rd[3:6]:
            a.lds(r, ('f', s + 2))
        if pp:
            pp[0][0]()
        a(ms[2])
        if pp:
            pp[0][1]()
        a(ms[3])
        if pp:
            pp[0][2]()
        for extra_ in pp[1:]:
            extra_[3](); a('s_nop 0'); extra_[0](); extra_[1](); extra_[2]()
        if opt.get('x_steps') and s % 3 == 2:
            lstamp(a)
    if opt.get('x_steps') and opt.get('x_rep2'):
        a("s_waitcnt lgkmcnt(0)")
        a.lg = []
        for i in range(LS[0]):
            a(f"s_mul_i32 s86, s87, 10")
            a(f"s_add_u32 m0, s86, {16+i}")
            a("s_nop 4")
            a(f"v_writelane_b32 v0, s{4+2*i}, m0")
        LS[0] = 0
    elif opt.get('x_steps'):
        lflush(a, 16)
    if opt.get('x_rep2'):
        a.wait_lg_all()
        a("s_waitcnt vmcnt(0)")
        a("s_cmp_eq_u32 s87, 1")
        a("s_cbranch_scc1 K1_REPD")
        stamp(a, 45)
        a("s_memtime s[100:101]\n s_waitcnt lgkmcnt(0)\n v_writelane_b32 v0, s100, 46")
        a("v_readlane_b32 s100, v0, 44")
        a("s_nop 4")
        a("v_writelane_b32 v0, s100, 47")
        a("s_mov_b32 s87, 1")
        a("s_branch K1_REP")
        a.label("K1_REPD")
        a.vm = []
    stamp(a, 4)
    a.wait_lg_all()
    signal(a, 8)
    spin(a, 0, 4)
    stA.issue(34)
    def touch2(wexpr=None, rep4=False):
        if opt.get('touch2', '1') != '1':
            return
        NS = RBG
        n2 = 1792 // NS // 4
        nc = 448 // NS // 4
        for w in (range(4) if rep4 else [None]):
            if w is None:
                a(f"s_mul_i32 s{sT}, s{sWV}, {n2}")
            else:
                a(f"s_mov_b32 s{sT}, {n2*w}")
            a(f"v_add_u32 v2, s{sT}, v1")
            a(f"v_mul_u32_u24 v2, {NS}, v2")
            a(f"v_add_u32 v2, s{sJS}, v2")
            a("v_lshlrev_b32 v2, 7, v2")
            a(f"v_mov_b32 v3, {OOB}")
            a(f"v_cmp_gt_u32 vcc, {n2}, v1")
            a("v_cndmask_b32 v2, v3, v2, vcc")
            a(f"s_mul_i32 s{sT}, s{sSL}, {256*896}")
            a.vmem(f"buffer_load_dword v252, v2, s[{SW2}:{SW2+3}], s{sT} offen", 'touch')
        ncc = nc * 4 if rep4 else nc
        if rep4:
            a(f"v_mov_b32 v2, v1")
        else:
            a(f"s_mul_i32 s{sT}, s{sWV}, {nc}")
            a(f"v_add_u32 v2, s{sT}, v1")
        a(f"v_mul_u32_u24 v2, {NS}, v2")
        a(f"v_add_u32 v2, s{sJS}, v2")
        a("v_mul_u32_u24 v2, 896, v2")
        a(f"v_mov_b32 v3, {OOB}")
        a(f"v_cmp_gt_u32 vcc, {ncc}, v1")
        a("v_cndmask_b32 v2, v3, v2, vcc")
        a(f"s_lshl_b32 s{sT}, s{sSL}, 7")
        a.vmem(f"buffer_load_dword v253, v2, s[{SCR_}:{SCR_+3}], s{sT} offen", 'touch')
        a.vmem(f"buffer_load_dword v254, v2, s[{SCI}:{SCI+3}], s{sT} offen", 'touch')
    a("s_setprio 0")
    stamp(a, 5)
    if GSH[0]:
        spin(a, 8, 4)
        a(f"s_lshl_b32 s{sT}, s{sWV}, 13")
        a("v_lshlrev_b32 v2, 4, v1")
        a(f"v_add_u32 v32, s{sT}, v2")
        for k in range(8):
            a.lds(f"ds_write_b128 v32, {vr(96+4*k,4)} offset:{Y + 1024*k}", 'xf')
        a.wait_lg_all()
        signal(a, 40)
        gelu(a, touch2, int(opt.get('t2pos', 0)), fts=(0,))
    else:
        gelu(a, touch2 if opt.get('t2by', 'w7') == 'g2' else None, int(opt.get('t2pos', 1)))
    a.wait_lg_all()
    signal(a, 28)
    a(f"s_setprio {int(opt.get('g3p03', 2))}")
    stamp(a, 6)
    g3_stream = stA

    a.label("K1_G3")
    assert g3_stream.next == 34
    a.vm = [('st', 28 + i // 2) for i in range(12)]
    a.lg = []
    spin(a, 28, 8 if GSH[0] else 4)
    stamp(a, 8)
    def hook_load():
        if opt.get('hookpos', 'pre') == 'pre':
            return
        a.vmem(f"buffer_load_dwordx4 v[44:47], v250, s[{SWS}:{SWS+3}], 0 offen sc1", 'inbox')

    def hook_pass2():
        if opt.get('hookpos', 'pre') == 'pre':
            return
        a.wait_vm('inbox')
        a(f"s_cmp_ge_u32 s{sWV}, 4")
        a("s_cbranch_scc0 K1_HP")
        sv = (list(a.vm), list(a.lg))
        a(f"s_setprio {int(opt.get('p2prio', 0))}")
        pass2("B", True)
        a.vm, a.lg = sv[0], []
        a.label("K1_HP")
    g3(a, g3_stream, 28, D2, hook_load, hook_pass2)
    stamp(a, 19)
    a.vm = [('ps', 0)] * 8
    reduce_pre(a)
    a.wait_vm(('ps', 0))
    a(f"s_mul_i32 s{sT}, s{sRB}, 7")
    a(f"s_add_u32 s{sT}, s{sT}, s{sWV}")
    a(f"s_lshl_b32 s{sT}, s{sT}, 7")
    a(f"s_lshl_b32 s{sT2}, s{sSL}, 2")
    a(f"s_add_u32 s{sT}, s{sT}, s{sT2}")
    a(f"s_add_u32 s{sT}, s{sT}, {RFLAG}")
    a("v_mov_b32 v2, 1")
    a("v_mov_b32 v3, 0")
    a("s_mov_b64 exec, 1")
    a.vmem(f"buffer_store_dword v2, v3, s[{SWS}:{SWS+3}], s{sT} offen sc1", 'flag')
    a("s_mov_b64 exec, -1")
    a.label("K1_SIGD")
    signal(a, 32)
    stamp(a, 16)
    a.label("K1_RED")
    a.vm = ['x'] * 10
    a.lg = []
    reduce_main(a, opt)
    if opt.get('span'):
        a("s_memrealtime s[98:99]")
        a("s_waitcnt vmcnt(0)")
        a("s_memrealtime s[96:97]")
        a(f"s_lshl_b32 s{sT}, s2, 3")
        a(f"s_add_u32 s{sT}, s{sT}, s{sWV}")
        a(f"s_lshl_b32 s{sT}, s{sT}, 3")
        a(f"s_add_u32 s{sT}, s{sT}, 0xF84000")
        a("s_waitcnt lgkmcnt(0)")
        a("v_mov_b32 v2, s98")
        a("v_mov_b32 v3, s96")
        a("v_mov_b32 v4, 0")
        a("s_mov_b64 exec, 1")
        a(f"buffer_store_dwordx2 v[2:3], v4, s[{SWS}:{SWS+3}], s{sT} offen")
    stamp(a, 10)
    stamp_out(a)
    a("s_endpgm")

    a.label("K1_G1_PRE")
    a.vm = list(x_state)
    srd(a, SA, 10, 448 * 896)
    srd(a, SBI, 12, 448 * 896)
    a(f"s_sub_u32 s{sTMP}, s{sWV}, 4")
    a(f"s_mul_i32 s{sRING}, s{sTMP}, {RING}")
    a(f"s_add_u32 s{sRING3}, s{sRING}, {Y}")
    a(f"s_add_u32 s{sRING}, s{sRING}, {Q}")
    a(f"s_mul_i32 s{sBASE}, s{sP0}, 896")
    a(f"s_mov_b32 s{sINC0}, 0")
    a(f"s_mov_b32 s{sINC1}, 128")
    a("v_mov_b32 v27, v31")
    a("v_mov_b32 v28, v11")
    if opt.get('tpos', 'ln') == 'pre': touch1("B")
    if opt.get('touch'):
        a(f"s_mul_i32 s{sT}, s{sTMP}, 7")
        a(f"v_add_u32 v2, s{sT}, v1")
        a("v_lshlrev_b32 v8, 6, v2")
        a(f"s_lshl_b32 s{sT}, s{sSL}, 5")
        a(f"s_add_u32 s{sT}, s{sT}, s{sRB}")
        a(f"s_mul_i32 s{sT}, s{sT}, {2*896}")
        a(f"v_add_u32 v8, s{sT}, v8")
        a("v_lshrrev_b32 v9, 1, v2")
        a(f"s_mul_i32 s{sT}, s{sRB}, 14")
        a(f"v_add_u32 v9, s{sT}, v9")
        a("v_mul_u32_u24 v9, 896, v9")
        a("v_and_b32 v6, 1, v2")
        a("v_lshl_add_u32 v9, v6, 6, v9")
        a(f"s_lshl_b32 s{sT}, s{sSL}, 7")
        a(f"v_add_u32 v9, s{sT}, v9")
        a(f"v_mov_b32 v2, {OOB}")
        a("v_cmp_gt_u32 vcc, 7, v1")
        a("v_cndmask_b32 v8, v2, v8, vcc")
        a("v_cndmask_b32 v9, v2, v9, vcc")
        a.vmem(f"buffer_load_dword v252, v8, s[{SA}:{SA+3}], 0 offen", 'touch')
        a.vmem(f"buffer_load_dword v253, v8, s[{SBI}:{SBI+3}], 0 offen", 'touch')
        a.vmem(f"buffer_load_dword v254, v9, s[{SCR_}:{SCR_+3}], 0 offen", 'touch')
        a.vmem(f"buffer_load_dword v255, v9, s[{SCI}:{SCI+3}], 0 offen", 'touch')
    a(f"s_mov_b32 s{sOFF}, s{sBASE}")
    for it in range(NEARLY):
        prefill(it)
    g3_addr(a)
    a("v_and_b32 v2, 15, v1")
    a("v_lshrrev_b32 v3, 4, v1")
    a("v_bfe_u32 v4, v2, 1, 3")
    a("v_xor_b32 v4, v4, v3")
    a("v_lshlrev_b32 v4, 4, v4")
    a("v_lshl_add_u32 v4, v2, 7, v4")
    a(f"v_add_u32 v12, s{sRING}, v4")
    a("v_xor_b32 v13, 64, v12")
    a("v_lshrrev_b32 v4, 2, v2")
    a("v_and_b32 v5, 3, v2")
    a("v_lshl_add_u32 v6, v4, 4, v5")
    a("v_mul_u32_u24 v6, 896, v6")
    a("v_and_b32 v7, 1, v4")
    a("v_mul_u32_u24 v7, 3, v7")
    a("v_lshrrev_b32 v8, 1, v4")
    a("v_xor_b32 v7, v7, v8")
    a("v_lshlrev_b32 v7, 1, v7")
    a("v_lshrrev_b32 v8, 1, v5")
    a("v_xor_b32 v7, v7, v8")
    a("v_xor_b32 v7, v7, v3")
    for k in range(4):
        a(f"v_xor_b32 v8, {2*k}, v7")
        a(f"v_lshl_add_u32 v{14+k}, v8, 4, v6")
    a(f"s_lshl_b32 s{sT}, s{sTMP}, 9")
    a(f"s_add_u32 s{sT}, s{sT}, {SCR}")
    a("v_lshlrev_b32 v6, 5, v2")
    a(f"v_add_u32 v244, s{sT}, v6")
    a("v_lshl_add_u32 v245, v3, 3, v244")
    a("v_lshlrev_b32 v4, 1, v3")
    a("v_bfe_u32 v5, v2, 1, 1")
    a("v_lshlrev_b32 v5, 2, v5")
    a("v_xor_b32 v4, v4, v5")
    a("v_lshlrev_b32 v4, 4, v4")
    a("v_lshl_add_u32 v4, v2, 7, v4")
    a(f"v_add_u32 v246, s{sRING}, v4")
    a("v_lshlrev_b32 v247, 3, v2")
    a(f"s_lshl_b32 s{sT}, s{sSL}, 5")
    a(f"s_add_u32 s{sT}, s{sT}, s{sRB}")
    a(f"s_lshl_b32 s{sT}, s{sT}, 10")
    a(f"s_lshl_b32 s{sT2}, s{sTMP}, 8")
    a(f"s_add_u32 s{sT}, s{sT}, s{sT2}")
    a(f"s_add_u32 s{sT}, s{sT}, {INBOX}")
    a("v_lshlrev_b32 v250, 4, v2")
    a(f"v_add_u32 v250, s{sT}, v250")
    if STOUCH:
        a("s_waitcnt lgkmcnt(0)")
        stouch_w1g(1, 4, 3)
        for m in range(2, (448 // RBG + 7) // 8):
            stouch_w1g(m)
    if opt.get('xbar', '1') == '1': a("s_barrier")
    if not STOUCH: stamp(a, 13)
    a.wait_vm('x')
    saved_vm_B = list(a.vm)

    emit_ln("B")
    for k in range(6):
        a(f"s_add_u32 s{sSLOT1+k}, s{sRING}, {2048*k}")
        a(f"s_add_u32 s{sSLOT3+k}, s{sRING3}, {2048*k}")
    if opt.get('g1pre', 'end') != 'mid':
        for it in range(6):
            prefill(it)
    if opt.get('w1pos', 'g1') == 'g1':
        touch1("EA")
    for k in range(4):
        a(f"v_mov_b32 v{44+k}, 0")
    a("s_mov_b64 exec, 0xffff")
    a(f"buffer_store_dwordx4 v[44:47], v250, s[{SWS}:{SWS+3}], 0 offen sc1")
    a("s_mov_b64 exec, -1")
    a("v_lshlrev_b32 v249, 5, v1")
    a(f"s_cmp_eq_u32 s{sWV}, 4")
    a("s_cbranch_scc0 K1_NORDY")
    a("s_mov_b64 exec, 0x7f")
    a(f"buffer_load_dword v251, v249, s[{SDBG}:{SDBG+3}], 0 offen sc1")
    a("s_mov_b64 exec, -1")
    a.label("K1_NORDY")
    if opt.get('lampos', 'pre') == 'pre': lam_block()
    a("s_barrier")
    stamp(a, 3)
    a.vm = [t for t in saved_vm_B if not (isinstance(t, tuple) and t[0] == 'pre')] + [('b', i // 4) for i in range(12)]
    a.lg = []

    def b_parts(ds):
        sl_ = ds % 3
        return [
            lambda: (a(f"s_add_u32 m0, s{sRING}, {sl_*4096}"), a(f"s_add_u32 s{sT}, s{sBASE}, {128*ds}")),
            lambda: a.vmem(f"buffer_load_dwordx4 v31, s[{SA}:{SA+3}], s{sT} offen lds", ('b', ds)),
            lambda: a.vmem(f"buffer_load_dwordx4 v11, s[{SA}:{SA+3}], s{sT} offen offset:1024 lds", ('b', ds)),
            lambda: a(f"s_add_u32 m0, s{sRING}, {sl_*4096+2048}"),
            lambda: a.vmem(f"buffer_load_dwordx4 v31, s[{SBI}:{SBI+3}], s{sT} offen lds", ('b', ds)),
            lambda: a.vmem(f"buffer_load_dwordx4 v11, s[{SBI}:{SBI+3}], s{sT} offen offset:1024 lds", ('b', ds)),
        ]

    def b_issue(ds):
        for f_ in b_parts(ds):
            f_()
    AF = [128, 144, 160]
    BF = [176, 192]

    def g1_breads(ds):
        so = (ds % 3) * 4096
        out = []
        for s1 in range(2):
            out.append(f"ds_read_b128 {vr(BF[ds&1]+8*s1,4)}, v{12+s1} offset:{so}")
            out.append(f"ds_read_b128 {vr(BF[ds&1]+8*s1+4,4)}, v{12+s1} offset:{so+2048}")
        return out

    def g1_areads(s):
        s1 = s & 1
        out = []
        for aa in range(4):
            k = (2 * s1) ^ aa
            out.append(f"ds_read_b128 {vr(AF[s%3]+4*aa,4)}, v{14+k} offset:{aa*4*896+128*(s>>1)}")
        return out

    if opt.get('x_g1sleep'):
        a("s_sleep 127\n s_sleep 127\n s_sleep 127\n s_sleep 127")
    a(f"s_setprio {int(opt.get('g1p', 2))}")
    a.wait_vm(('b', 0))
    for r in g1_breads(0):
        a.lds(r, ('B', 0))
    for s0 in range(2):
        for r in g1_areads(s0):
            a.lds(r, ('f', s0))
    for s in range(14):
        ds = s >> 1
        a.wait_lg(('f', s))
        if s == 0:
            b_issue(3)
        if PROF[0] and opt.get('x_g1') and s % 2 == 0:
            a("s_memtime s[100:101]")
            a("s_waitcnt lgkmcnt(0)")
            a(f"v_writelane_b32 v0, s100, {24 + s}")
        if s % 2 == 0 and ds + 1 < 7:
            a.wait_vm(('b', ds + 1))
        if PROF[0] and opt.get('x_g1') and s % 2 == 0:
            a("s_memtime s[100:101]")
            a("s_waitcnt lgkmcnt(0)")
            a(f"v_writelane_b32 v0, s100, {25 + s}")
            a.lg = []
        bp = []
        if s % 2 == 1 and ds + 1 < 7:
            a.wait_lg(('B', ds + 1))
            if ds + 4 < 7:
                bp = b_parts(ds + 4)
        A_, B_ = AF[s % 3], BF[ds & 1] + 8 * (s & 1)
        ms = []
        for aa in range(4):
            for part in range(2):
                acc = 64 + 16 * part + 4 * aa
                c = "0" if s == 0 else vr(acc, 4)
                ms.append(f"v_mfma_f32_16x16x32_bf16 {vr(acc,4)}, {vr(A_+4*aa,4)}, {vr(B_+4*part,4)}, {c}")
        rd = []
        if s % 2 == 0 and ds + 1 < 7:
            rd += [(r, ('B', ds + 1)) for r in g1_breads(ds + 1)]
        if s + 2 < 14:
            rd += [(r, ('f', s + 2)) for r in g1_areads(s + 2)]
        fill = [lambda r=r, t=t: a.lds(r, t) for (r, t) in rd] + bp
        for k, m in enumerate(ms):
            a(m)
            if k < len(fill):
                fill[k]()
        for f_ in fill[len(ms):]:
            f_()
        if opt.get('x_g1l') and s % 2 == 1:
            lstamp(a)
        if bp and ds + 4 == 6 and opt.get('serial', '1') == '1':
            a(f"v_mov_b32 v2, {CNT+20}")
            a("v_mov_b32 v3, 1")
            a("s_mov_b64 exec, 1")
            a.lds("ds_add_u32 v2, v3", 'sig')
            a("s_mov_b64 exec, -1")
    if opt.get('x_g1l'): lflush(a, 34)
    a(f"s_setprio {int(opt.get('postprio', 0))}")
    stamp(a, 4)
    a.wait_lg_all()
    signal(a, 0)
    a(f"s_cmp_eq_u32 s{sWV}, 4")
    a("s_cbranch_scc0 K1_RDY2")
    a.label("K1_RDY1")
    a("s_waitcnt vmcnt(0)")
    a("s_mov_b64 exec, 0x7f")
    a("v_cmp_ne_u32 vcc, 1, v251")
    a("s_mov_b64 exec, -1")
    a("s_cbranch_vccnz K1_RDYS")
    SLOW.append(("K1_RDYS", ["s_sleep 4", "s_mov_b64 exec, 0x7f", f"buffer_load_dword v251, v249, s[{SDBG}:{SDBG+3}], 0 offen sc1", "s_mov_b64 exec, -1", "s_branch K1_RDY1"]))
    signal(a, 4)
    a.label("K1_RDY2")
    if opt.get('lampos', 'pre') == 'post': lam_block()
    a("v_lshrrev_b32 v7, 4, v1")
    a("v_lshlrev_b32 v4, 6, v7")
    a(f"v_add_u32 v4, {S2T}, v4")
    for k in range(4):
        a.lds(f"ds_read_b128 {vr(32+4*k,4)}, v4 offset:{16*k}", 'st')
    a.wait_lg('st')
    for e in range(16):
        R_, I_ = 64 + e, 80 + e
        a(f"v_mul_f32 v8, v{32+e}, v{R_}")
        a(f"v_mul_f32 v9, v{32+e}, v{I_}")
        a(f"v_mul_f32 v{R_}, v{CR}, v8")
        a(f"v_mul_f32 v{I_}, v{CR}, v9")
        a(f"v_fma_f32 v{R_}, -v{CI}, v9, v{R_}")
        a(f"v_fmac_f32 v{I_}, v{CI}, v8")
        nr, ni = PP[e & 1]
        hr, hi = PP[(e & 1) ^ 1]
        if e == 0:
            a(f"v_mov_b32 v{nr}, v{R_}")
            a(f"v_mov_b32 v{ni}, v{I_}")
        else:
            cmac(nr, ni, LR, LI, hr, hi, R_, I_)
    HE = PP[1]
    a.lds(f"ds_write_b64 v245, v[{HE[0]}:{HE[1]}]", 'w')
    a.wait_lg('w')
    a.lds("ds_read_b128 v[32:35], v244", 'r')
    a.lds("ds_read_b128 v[36:39], v244 offset:16", 'r')
    a.wait_lg('r')
    cmac(40, 41, L16R, L16I, 32, 33, 34, 35)
    cmac(42, 43, L16R, L16I, 40, 41, 36, 37)
    cmac(44, 45, L16R, L16I, 42, 43, 38, 39)
    a("v_mov_b32 v46, 1")
    a("v_mov_b32 v47, 0")
    a.wait_lg_all()
    spin(a, 4, 1)
    a(f"s_mov_b32 s{sT}, {EIN - INBOX}")
    a("s_mov_b64 exec, 0xffff")
    a(f"buffer_store_dwordx4 v[44:47], v250, s[{SWS}:{SWS+3}], s{sT} offen sc1")
    a("s_mov_b64 exec, -1")
    a.vm = []
    a(f"v_mov_b32 v{XR}, 0")
    a(f"v_mov_b32 v{XI}, 0")
    for g_, (r_, i_) in ((1, (32, 33)), (2, (40, 41)), (3, (42, 43))):
        a(f"v_cmp_eq_u32 vcc, {g_}, v7")
        a(f"v_cndmask_b32 v{XR}, v{XR}, v{r_}, vcc")
        a(f"v_cndmask_b32 v{XI}, v{XI}, v{i_}, vcc")
    stamp(a, 5)
    a("s_setprio 0")
    spin(a, 8, 4)
    stamp(a, 9)
    if GSH[0]:
        spin(a, 40, 4)
        a(f"s_sub_u32 s{sT}, s{sWV}, 4")
        a(f"s_lshl_b32 s{sT}, s{sT}, 13")
        a("v_lshlrev_b32 v2, 4, v1")
        a(f"v_add_u32 v32, s{sT}, v2")
        for k in range(8):
            a.lds(f"ds_read_b128 {vr(128+4*k,4)}, v32 offset:{Y + 1024*k}", 'xf')
        a.wait_lg_all()
        signal(a, 44)
        gelu(a, None, fts=(1,), accb=128, hw=True)
        a.wait_lg_all()
        signal(a, 28)
        spin(a, 44, 4)
    a(f"s_cmp_eq_u32 s{sWV}, 7")
    a("s_cbranch_scc1 K1_W7T")
    spin(a, 0, 4)
    stB = Stream(a, w2_items + c_items, 28)
    if opt.get('prefirst', '1') == '1':
        stB.issue(6)
    if opt.get('t2by', 'w7') == 'w7':
        a("s_branch K1_NOPRE")
        a.label("K1_W7T")
        touch2(rep4=True)
    else:
        a.label("K1_W7T")
    a.label("K1_NOPRE")
    a.vm = []
    if opt.get('hookpos', 'pre') == 'pre':
        a(f"s_setprio {int(opt.get('p2prio', 2))}")
        pass2("A", False)
        a(f"s_setprio {int(opt.get('g3p46', 0))}")
        a(f"s_cmp_eq_u32 s{sWV}, 7")
        a("s_cbranch_scc0 K1_G3")
    else:
        if opt.get('g3prio', '1') == '1':
            a("s_setprio 2")
        a(f"s_cmp_eq_u32 s{sWV}, 7")
        a("s_cbranch_scc0 K1_G3")
        a("s_setprio 0")
        pass2("A", False)
    a.vm = []
    reduce_pre(a)
    a.lg = []
    spin(a, 32, int(opt.get('cdone', 7)))
    a(f"s_mul_i32 s{sT}, s{sRB}, 7")
    a(f"s_add_u32 s{sT}, s{sT}, s{sSL}")
    a(f"s_lshl_b32 s{sT}, s{sT}, 7")
    a(f"s_add_u32 s{sTMP}, s{sT}, {RFLAG}")
    a("v_lshlrev_b32 v2, 2, v1")
    if OWNP[0]:
        a(f"s_lshl_b32 s{sT}, 1, s{sSL}")
        a(f"s_andn2_b32 s{sTMP+4}, 0x7f, s{sT}")
    else:
        a(f"s_mov_b32 s{sTMP+4}, 0x7f")
    a.label("K1_RPOLL")
    a(f"s_mov_b32 exec_lo, s{sTMP+4}")
    a("s_mov_b32 exec_hi, 0")
    a(f"buffer_load_dword v3, v2, s[{SWS}:{SWS+3}], s{sTMP} offen sc1")
    a("s_waitcnt vmcnt(0)")
    a("v_cmp_ne_u32 vcc, 1, v3")
    a("s_mov_b64 exec, -1")
    a("s_cbranch_vccnz K1_RPOLLS")
    SLOW.append(("K1_RPOLLS", [f"s_sleep {int(opt.get('rsleep', 1))}", "s_branch K1_RPOLL"]))
    signal(a, 36)
    a("s_branch K1_RED")

    for blk in OWNBLK:
        blk()
        a.vm = []
        reduce_pre(a)
        a("s_waitcnt lgkmcnt(0)")
        a("s_branch K1_SIGD")

    a.label("K1_COLL")
    a(f"s_cmp_lg_u32 s{sSL}, 7")
    a("s_cbranch_scc1 K1_END")
    a(f"s_mul_i32 s{sT}, s{sJS}, {R}")
    a(f"s_cmp_lg_u32 s{sT}, s{sRB}")
    a("s_cbranch_scc1 K1_END")
    a(f"s_cmp_ge_u32 s{sJS}, 7")
    a("s_cbranch_scc1 K1_END")
    a("v_lshrrev_b32 v2, 6, v0")
    a("v_and_b32 v1, 63, v0")
    a(f"v_readfirstlane_b32 s{sWV}, v2")
    a(f"s_mov_b32 s{sSL}, s{sJS}")
    a("s_load_dwordx4 s[4:7], s[0:1], 8")
    a("s_load_dwordx2 s[18:19], s[0:1], 56")
    a("s_load_dwordx4 s[32:35], s[0:1], 112")
    a("s_load_dwordx2 s[36:37], s[0:1], 128")
    a(f"s_lshl_b32 s{sT}, s{sSL}, 6")
    a(f"v_add_u32 v2, s{sT}, v1")
    a("v_lshlrev_b32 v2, 1, v2")
    a(f"s_lshl_b32 s{sT}, s{sSL}, 15")
    a(f"s_lshl_b32 s{sT2}, s{sWV}, 12")
    a(f"s_add_u32 s{sT}, s{sT}, s{sT2}")
    a(f"s_add_u32 s{sT}, s{sT}, {EIN}")
    a("v_lshlrev_b32 v3, 4, v1")
    a(f"v_add_u32 v3, s{sT}, v3")
    for k in range(4):
        a(f"v_mov_b32 v{8+k}, 0")
    a("s_waitcnt lgkmcnt(0)")
    srd(a, SWS, 36, WS_SIZE)
    srd(a, SDBG, 34, 256)
    for k in range(4):
        a(f"buffer_store_dwordx4 v[8:11], v3, s[{SWS}:{SWS+3}], 0 offen offset:{1024*k} sc1")
    a("v_lshlrev_b32 v12, 7, v0")
    a(f"s_lshl_b32 s{sT}, s{sSL}, 2")
    a(f"s_add_u32 s{sT}, s{sT}, {RFLAG}")
    a(f"v_mov_b32 v13, {OOB}")
    a("v_cmp_gt_u32 vcc, 224, v0")
    a("v_cndmask_b32 v12, v13, v12, vcc")
    a(f"buffer_store_dword v8, v12, s[{SWS}:{SWS+3}], s{sT} offen sc1")
    a("global_load_ushort v104, v2, s[4:5]")
    a("global_load_ushort v105, v2, s[6:7]")
    a("global_load_ushort v106, v2, s[18:19]")
    a("s_waitcnt vmcnt(0)")
    a("s_barrier")
    a(f"s_cmp_lg_u32 s{sWV}, 0")
    a("s_cbranch_scc1 K1_CNR")
    a(f"s_lshl_b32 s{sT}, s{sSL}, 5")
    a(f"v_mov_b32 v5, s{sT}")
    a("v_mov_b32 v6, 1")
    a("s_mov_b64 exec, 1")
    a(f"buffer_store_dword v6, v5, s[{SDBG}:{SDBG+3}], 0 offen sc1")
    a("s_mov_b64 exec, -1")
    a.label("K1_CNR")
    a("v_lshlrev_b32 v107, 16, v104")
    a("v_lshlrev_b32 v108, 16, v105")
    a("v_lshlrev_b32 v106, 16, v106")
    a(f"v_mul_f32 v106, {fhex(LOG2E)}, v106")
    a("v_exp_f32 v106, v106")
    bf16_round(a, 106, 106)
    a("v_mul_f32 v109, v106, v107")
    a("v_mul_f32 v110, v106, v108")
    a(f"v_mul_f32 v109, {fhex(LOG2E)}, v109")
    a(f"v_mul_f32 v110, {fhex(0.15915494309189535)}, v110")
    a("v_exp_f32 v109, v109")
    a("v_rndne_f32 v111, v110")
    a("v_sub_f32 v110, v110, v111")
    a("v_cos_f32 v111, v110")
    a("v_sin_f32 v112, v110")
    a("v_mul_f32 v104, v109, v111")
    a("v_mul_f32 v105, v109, v112")

    def csq2(d, s_):
        a(f"v_mul_f32 v{d[0]}, v{s_[0]}, v{s_[0]}")
        a(f"v_mul_f32 v{d[1]}, v{s_[0]}, v{s_[1]}")
        a(f"v_fma_f32 v{d[0]}, -v{s_[1]}, v{s_[1]}, v{d[0]}")
        a(f"v_add_f32 v{d[1]}, v{d[1]}, v{d[1]}")
    cur_ = (104, 105)
    for k in range(6):
        nx = (118, 119) if k % 2 == 0 else (120, 121)
        csq2(nx, cur_)
        cur_ = nx
    M1 = cur_
    M2, M3, M4 = (110, 111), (112, 113), (114, 115)
    csq2(M2, M1)
    a(f"v_mul_f32 v{M3[0]}, v{M2[0]}, v{M1[0]}")
    a(f"v_mul_f32 v{M3[1]}, v{M2[0]}, v{M1[1]}")
    a(f"v_fma_f32 v{M3[0]}, -v{M2[1]}, v{M1[1]}, v{M3[0]}")
    a(f"v_fmac_f32 v{M3[1]}, v{M2[1]}, v{M1[0]}")
    csq2(M4, M2)
    a("v_lshlrev_b32 v4, 4, v1")
    a(f"s_lshl_b32 s{sT}, s{sSL}, 15")
    a(f"s_lshl_b32 s{sT2}, s{sWV}, 12")
    a(f"s_add_u32 s{sT}, s{sT}, s{sT2}")
    a(f"s_add_u32 s{sT}, s{sT}, {INBOX}")
    a(f"v_add_u32 v4, s{sT}, v4")
    a("v_lshlrev_b32 v7, 3, v1")
    a(f"s_lshl_b32 s{sT}, s{sWV}, 9")
    a(f"v_add_u32 v6, s{sT}, v7")
    a.label("K1_CPOLL")
    for k in range(4):
        a(f"buffer_load_dwordx4 v[{16+4*k}:{19+4*k}], v3, s[{SWS}:{SWS+3}], 0 offen offset:{1024*k} sc1")
    a("s_waitcnt vmcnt(0)")
    a("v_and_b32 v12, v18, v22")
    a("v_and_b32 v13, v26, v30")
    a("v_and_b32 v12, v12, v13")
    a("v_cmp_ne_u32 vcc, 1, v12")
    a("s_cbranch_vccnz K1_CPOLLS")
    SLOW.append(("K1_CPOLLS", [f"s_sleep {int(opt.get('csleep', 1))}", "s_branch K1_CPOLL"]))
    if PROF[0]: a("s_memrealtime s[8:9]")
    cmac(32, 33, M1[0], M1[1], 16, 17, 20, 21)
    cmac(34, 35, M1[0], M1[1], 32, 33, 24, 25)
    cmac(36, 37, M1[0], M1[1], 34, 35, 28, 29)
    a("ds_write_b64 v6, v[36:37]")
    a("s_waitcnt lgkmcnt(0)")
    a("s_barrier")
    if PROF[0]: a("s_memrealtime s[10:11]")
    for w in range(7):
        a(f"ds_read_b64 v[{40+2*w}:{41+2*w}], v7 offset:{512*w}")
    a("v_mov_b32 v8, 0")
    a("v_mov_b32 v9, 0")
    a("s_waitcnt lgkmcnt(0)")
    for w in range(7):
        a(f"s_cmp_gt_u32 s{sWV}, {w}")
        a(f"s_cbranch_scc0 K1_CH")
        cmac(12, 13, M4[0], M4[1], 8, 9, 40 + 2 * w, 41 + 2 * w)
        a("v_mov_b32 v8, v12")
        a("v_mov_b32 v9, v13")
    a.label("K1_CH")
    for k, q in enumerate(((56, 57), (60, 61), (64, 65), (68, 69))):
        a(f"v_mov_b32 v{q[0]+2}, 1")
        a(f"v_mov_b32 v{q[0]+3}, 0")
        if k == 0:
            a(f"v_mov_b32 v{q[0]}, v8")
            a(f"v_mov_b32 v{q[1]}, v9")
        else:
            Mk = (M1, M2, M3)[k - 1]
            Lk = ((16, 17), (32, 33), (34, 35))[k - 1]
            cmac(q[0], q[1], Mk[0], Mk[1], 8, 9, Lk[0], Lk[1])
        a(f"buffer_store_dwordx4 v[{q[0]}:{q[0]+3}], v4, s[{SWS}:{SWS+3}], 0 offen offset:{1024*k} sc1")
    if PROF[0]:
        a(f"s_cmp_lg_u32 s{sWV}, 7")
        a("s_cbranch_scc1 K1_END")
        a("s_memrealtime s[12:13]")
        a("s_waitcnt vmcnt(0)")
        a("s_memrealtime s[14:15]")
        a("s_waitcnt lgkmcnt(0)")
        a(f"s_lshl_b32 s{sT+8}, s{sSL}, 4")
        a(f"s_add_u32 s{sT+8}, s{sT+8}, 0xF00000")
        a("v_mov_b32 v2, 0")
        for i, r in enumerate((8, 10, 12, 14)):
            a(f"v_mov_b32 v3, s{r}")
            a(f"buffer_store_dword v3, v2, s[{SWS}:{SWS+3}], s{sT+8} offen offset:{4*i}")
    a("s_endpgm")
    for lab, ins in SLOW:
        a.label(lab)
        for t in ins:
            a(t)
    del SLOW[:]
    a.label("K1_END")
    a("s_endpgm")
    return a


def g3_addr(a):
    a("v_lshrrev_b32 v2, 5, v1")
    a("v_bfe_u32 v3, v1, 2, 2")
    a("v_and_b32 v4, 3, v1")
    a("v_bfe_u32 v5, v1, 4, 1")
    a("v_lshlrev_b32 v6, 1, v5")
    a("v_lshrrev_b32 v7, 1, v4")
    a("v_or_b32 v6, v6, v7")
    a("v_lshrrev_b32 v7, 1, v3")
    a("v_lshlrev_b32 v7, 2, v7")
    a("v_xor_b32 v6, v6, v7")
    a("v_lshlrev_b32 v6, 4, v6")
    a("v_and_b32 v7, 1, v4")
    a("v_lshl_add_u32 v6, v7, 3, v6")
    a("v_lshl_add_u32 v7, v2, 3, v3")
    a("v_lshl_add_u32 v8, v7, 7, v6")
    a("v_lshl_add_u32 v7, v2, 2, v3")
    a("v_lshl_add_u32 v9, v7, 7, v6")
    a(f"v_add_u32 v18, s{sRING3}, v9")
    a("v_xor_b32 v19, 64, v18")
    a(f"v_add_u32 v21, {Q + 8192}, v8")
    a("v_xor_b32 v22, 64, v21")
    a("v_lshlrev_b32 v20, 4, v1")
    a(f"v_add_u32 v20, {Q}, v20")
    c_addr(a)


def c_addr(a):
    a("v_and_b32 v3, 31, v1")
    a("v_lshrrev_b32 v2, 5, v1")
    a("v_bfe_u32 v4, v3, 1, 3")
    a("v_xor_b32 v4, v4, v2")
    a("v_lshlrev_b32 v4, 4, v4")
    a("v_lshl_add_u32 v4, v3, 7, v4")
    a(f"v_add_u32 v23, s{sRING3}, v4")
    for cg in range(1, 4):
        a(f"v_xor_b32 v{23+cg}, {32*cg}, v23")


def gelu(a, hook=None, hookpos=1, fts=(0, 1), accb=64, hw=None):
    c1 = -2.0 * 0.7978845608028654 * LOG2E
    c2 = c1 * 0.044715
    a(f"v_mov_b32 v56, {fhex(c1)}")
    a(f"v_mov_b32 v57, {fhex(c1)}")
    a(f"v_mov_b32 v58, {fhex(c2)}")
    a(f"v_mov_b32 v59, {fhex(c2)}")
    a("v_mov_b32 v62, 1.0")
    a("v_mov_b32 v63, 1.0")
    if hw is None:
        a(f"s_mul_i32 s{sTMP}, s{sWV}, {RING}")
    else:
        a(f"s_sub_u32 s{sTMP}, s{sWV}, 4")
        a(f"s_mul_i32 s{sTMP}, s{sTMP}, {RING}")
    a(f"s_add_u32 s{sTMP}, s{sTMP}, {Q}")
    a("v_lshlrev_b32 v61, 4, v1")
    a(f"v_add_u32 v61, s{sTMP}, v61")
    grp = 0
    for ft in fts:
        for tt in range(2):
            acc = accb + 32 * (ft - fts[0]) + 16 * tt
            if hook is not None and grp == hookpos:
                hook()
            grp += 1
            a(".p2align 3")
            X = [acc + 2 * e for e in range(8)]
            T = [32 + 2 * e for e in range(8)]
            P = lambda r: f"v[{r}:{r+1}]"
            for e in range(8):
                a(f"v_pk_mul_f32 {P(T[e])}, {P(X[e])}, {P(X[e])}")
            for e in range(8):
                a(f"v_pk_fma_f32 {P(T[e])}, {P(T[e])}, v[58:59], v[56:57]")
            for e in range(8):
                a(f"v_pk_mul_f32 {P(T[e])}, {P(T[e])}, {P(X[e])}")
            for e in range(16):
                a(f"v_exp_f32 v{32+e}, v{32+e}")
            for e in range(8):
                a(f"v_pk_add_f32 {P(T[e])}, {P(T[e])}, v[62:63]")
            for e in range(16):
                a(f"v_rcp_f32 v{32+e}, v{32+e}")
            for e in range(8):
                a(f"v_pk_mul_f32 {P(T[e])}, {P(T[e])}, {P(X[e])}")
            for half in range(2):
                for d in range(4):
                    a(f"v_cvt_pk_bf16_f32 v{48+4*half+d}, v{32+8*half+2*d}, v{32+8*half+2*d+1}")
                a.lds(f"ds_write_b128 v61, {vr(48+4*half,4)} offset:{((2*ft+half)*2+tt)*1024}", 'hw')
            if len(a.lg) >= 8:
                a.wait_lg_all()
            if ft == 0 and tt == 1 and HALF[0]:
                a.wait_lg_all()
                signal(a, 12)


def g3(a, st, base, D2, hook_load=None, hook_pass2=None):
    FA = [192, 208, 224]
    CF = 64
    mlp_base = base
    ssm_base = base + 16
    first = [True]

    def mfmas(Aregs, Bregs):
        ms = []
        for tt in range(2):
            for nt in range(2):
                acc = 128 + 32 * tt + 16 * nt
                c = "0" if first[0] else vr(acc, 16)
                ms.append(f"v_mfma_f32_32x32x16_bf16 {vr(acc,16)}, {vr(Aregs[tt],4)}, {vr(Bregs[nt],4)}, {c}")
        first[0] = False
        return ms

    def mlp_reads(ks):
        b = FA[ks % 3]
        so = st.slot(mlp_base + ks) * 2048
        out = []
        for nt in range(2):
            for q in range(2):
                out.append(f"ds_read_b64_tr_b16 {vr(b+8+4*nt+2*q,2)}, v{18+nt} offset:{so+1024*q}")
        kr = KORDER[ks]
        for tt in range(2):
            out.append(f"ds_read_b128 {vr(b+4*tt,4)}, v20 offset:{12288*(kr>>2)+((kr&3)*2+tt)*1024}")
        return out

    def ssm_areads(k):
        part, cg = k >> 2, k & 3
        b = FA[(16 + k) % 3]
        out = []
        for tt in range(2):
            for q in range(2):
                out.append(f"ds_read_b64_tr_b16 {vr(b+4*tt+2*q,2)}, v{21+tt} offset:{12288*cg+2048*part+512*q}")
        return out

    def c_reads(part):
        out = []
        for nt in range(2):
            i0 = ssm_base + 4 * part + 2 * nt
            so = st.slot(i0) * 2048
            assert st.slot(i0 + 1) == st.slot(i0) + 1
            for cg in range(4):
                out.append(f"ds_read_b128 {vr(CF+32*part+8*cg+4*nt,4)}, v{23+cg} offset:{so}")
        return out

    def step_reads(m):
        return mlp_reads(m) if m < 16 else ssm_areads(m - 16)

    st.wait(mlp_base)
    for r in step_reads(0):
        a.lds(r, ('m', 0))
    st.wait(mlp_base + 1)
    for r in step_reads(1):
        a.lds(r, ('m', 1))
    a.wait_lg(('m', 0))
    a(".p2align 3")
    for m in range(24):
        b = FA[m % 3]
        if m < 16:
            ms = mfmas([b, b + 4], [b + 8, b + 12])
        else:
            k = m - 16
            cb = CF + 32 * (k >> 2) + 8 * (k & 3)
            ms = mfmas([b, b + 4], [cb, cb + 4])
        if m == 14:
            a.wait_lg_all()
            stamp(a, 14)
            hook_pass2()
            spin(a, 16, 4)
            if P14[0] >= 0:
                a(f"s_setprio {P14[0]}")
            stamp(a, 15)
        if m == 6 and HALF[0]:
            a.wait_lg_all()
            spin(a, 28, 4)
        if PSW[0] is not None and m == PSW[0][0]:
            a(f"s_cmp_ge_u32 s{sWV}, 4")
            a(f"s_cbranch_scc1 K1_PSW{m}")
            a(f"s_setprio {PSW[0][1]}")
            a(f"s_branch K1_PSWB{m}")
            a.label(f"K1_PSW{m}")
            a(f"s_setprio {PSW[0][2]}")
            a.label(f"K1_PSWB{m}")
        if m == 9:
            hook_load()
        rd = [(r, ('m', m + 2)) for r in step_reads(m + 2)] if m + 2 < 24 else []
        cr = []
        if m == 14:
            cr = [(r, ('c', 0)) for r in c_reads(0)[0:4]]
        elif m == 15:
            cr = [(r, ('c', 1)) for r in c_reads(0)[4:8]]
        elif m == 17:
            cr = [(r, ('c', 2)) for r in c_reads(1)[0:4]]
        elif m == 19:
            cr = [(r, ('c', 3)) for r in c_reads(1)[4:8]]
        if m == 16:
            if PRIO16[0] == 9:
                a(f"s_cmp_ge_u32 s{sWV}, 4")
                a("s_cbranch_scc1 K1_P16")
                a("s_setprio 2")
                a("s_branch K1_P16B")
                a.label("K1_P16")
                a("s_setprio 0")
                a.label("K1_P16B")
            elif PRIO16[0] == 8:
                a(f"s_cmp_ge_u32 s{sWV}, 4")
                a("s_cbranch_scc0 K1_P16")
                a("s_setprio 2")
                a("s_branch K1_P16B")
                a.label("K1_P16")
                a("s_setprio 0")
                a.label("K1_P16B")
            elif PRIO16[0] >= 0:
                a(f"s_setprio {PRIO16[0]}")
            a.wait_lg(('c', 1))
        if m == 20:
            a.wait_lg(('c', 3))
        if m <= 13:
            pp = st.parts(min(mlp_base + m + 8, ssm_base + 6))
            a(ms[0])
            both_wait(a, ('st', st.first + mlp_base + m + 2 - st.first) if m + 2 < 16 else None, ('m', m + 1))
            if pp:
                pp[0][3]()
            else:
                a("s_nop 0")
            for r, t in rd[0:3]:
                a.lds(r, t)
            a(ms[1])
            for r, t in rd[3:6]:
                a.lds(r, t)
            if pp:
                pp[0][0]()
            a(ms[2])
            if pp:
                pp[0][1]()
            a(ms[3])
            if pp:
                pp[0][2]()
            for extra_ in pp[1:]:
                extra_[3](); a('s_nop 0'); extra_[0](); extra_[1](); extra_[2]()
        else:
            a(ms[0])
            if m == 14:
                st.wait(ssm_base + 1)
            if m == 15:
                a.wait_lg(('m', 16))
                st.wait(ssm_base + 3)
            if m == 17:
                st.wait(ssm_base + 5)
            if m == 19:
                a.wait_lg(('c', 2))
                st.wait(ssm_base + 7)
            allr = rd + cr
            h1 = (len(allr) + 1) // 2
            for r, t in allr[:h1]:
                a.lds(r, t)
            a(ms[1])
            for r, t in allr[h1:]:
                a.lds(r, t)
            if m == 15:
                a.wait_lg(('c', 0))
                pp = st.parts(ssm_base + 8)
            else:
                pp = st.parts(min(mlp_base + m + 8, ssm_base + 6))
            if pp:
                pp[0][3](); pp[0][0]()
            a(ms[2])
            if m + 1 < 24:
                a.wait_lg(('m', m + 1))
            if pp:
                pp[0][1]()
            a(ms[3])
            if pp:
                pp[0][2]()
            for extra_ in pp[1:]:
                extra_[3](); a('s_nop 0'); extra_[0](); extra_[1](); extra_[2]()
        if XS[0] and m % 3 == 2:
            lstamp(a)
    if XS[0]:
        lflush(a, 26)
    if STORESYNC[0]:
        a.wait_lg_all()
        spin(a, 24, 7)
    a(f"s_mul_i32 s{sT}, s{sRB}, 7")
    a(f"s_add_u32 s{sT}, s{sT}, s{sWV}")
    a(f"s_mul_i32 s{sT}, s{sT}, {8*PST[0]}")
    a(f"s_lshl_b32 s{sT2}, s{sSL}, 10")
    a(f"s_add_u32 s{sT}, s{sT}, s{sT2}")
    a(f"s_add_u32 s{sT}, s{sT}, {PBUF}")
    a("v_lshlrev_b32 v2, 4, v1")
    def pieces(store):
        for tt in range(2):
            for nt in range(2):
                acc = 128 + 32 * tt + 16 * nt
                for hf in range(2):
                    v_ = tt * 4 + nt * 2 + hf
                    d = 32 + 4 * (v_ & 3)
                    for k in range(4):
                        a(f"v_cvt_pk_bf16_f32 v{d+k}, v{acc+8*hf+2*k}, v{acc+8*hf+2*k+1}")
                    store(v_, d)
    if OWNP[0]:
        a(f"s_cmp_eq_u32 s{sWV}, s{sSL}")
        a("s_cbranch_scc1 K1_OWN")

    def st_glob(v_, d):
        a(f"s_add_u32 s{sT2}, s{sT}, {v_*PST[0]}")
        a(f"buffer_store_dwordx4 {vr(d,4)}, v2, s[{SWS}:{SWS+3}], s{sT2} offen {PSC[0]}")
    pieces(st_glob)
    if OWNP[0]:
        def own_block():
            a.label("K1_OWN")
            a(f"v_add_u32 v3, s{sRING3}, v2")
            pieces(lambda v_, d: a(f"ds_write_b128 v3, {vr(d,4)} offset:{1024*v_}"))
        OWNBLK.append(own_block)


def reduce_pre(a):
    a("v_and_b32 v3, 31, v1")
    a("v_lshrrev_b32 v4, 5, v1")
    a(f"s_lshr_b32 s{sT}, s{sWV}, 2")
    a(f"s_lshl_b32 s{sT}, s{sT}, 5")
    a(f"s_and_b32 s{sT2}, s{sWV}, 1")
    a(f"s_lshl_b32 s{sT2}, s{sT2}, 4")
    a(f"s_add_u32 s{sT}, s{sT}, s{sT2}")
    a(f"v_lshl_add_u32 v6, v4, 2, s{sT}")
    a(f"s_bfe_u32 s{sT}, s{sWV}, 0x10001")
    a(f"s_lshl_b32 s{sT}, s{sT}, 5")
    a(f"s_lshl_b32 s{sT2}, s{sSL}, 6")
    a(f"s_add_u32 s{sT}, s{sT}, s{sT2}")
    a(f"v_add_u32 v5, s{sT}, v3")
    a(f"s_lshl_b32 s{sT}, s{sRB}, 6")
    a(f"v_add_u32 v7, s{sT}, v6")
    a("v_mul_u32_u24 v8, 896, v7")
    a("v_lshl_add_u32 v8, v5, 1, v8")
    a(f"v_add_u32 v9, {896*8}, v8")
    a("v_lshlrev_b32 v10, 1, v5")
    a("v_mul_u32_u24 v12, 1792, v7")
    a("v_lshl_add_u32 v12, v5, 2, v12")
    a(f"v_add_u32 v13, {1792*8}, v12")
    a(f"v_add_u32 v14, {1792*2}, v12")
    a(f"v_add_u32 v15, {1792*2}, v13")
    a("v_lshlrev_b32 v6, 2, v6")
    a(f"v_add_u32 v6, {S2T}, v6")
    srd(a, SX, 4, 2048 * 896)
    srd(a, SA, 32, 2048 * 1792)
    for e in range(8):
        a.vmem(f"buffer_load_ushort v{16+e}, v{8 if e < 4 else 9}, s[{SX}:{SX+3}], 0 offen offset:{896*(e&3)}", 'x')
    a.vmem("global_load_ushort v24, v10, s[20:21]", 'x')
    a.vmem("global_load_ushort v25, v10, s[30:31]", 'x')


def reduce_main(a, opt):
    a.lds(f"ds_read_b128 v[64:67], v6 offset:{M2T-S2T}", 't')
    a.lds(f"ds_read_b128 v[68:71], v6 offset:{M2T-S2T+32}", 't')
    a.lds(f"ds_read_b128 v[72:75], v6 offset:{AT-S2T}", 't')
    a.lds(f"ds_read_b128 v[76:79], v6 offset:{AT-S2T+32}", 't')
    a(f"s_mul_i32 s{sT}, s{sRB}, 7")
    a(f"s_add_u32 s{sT}, s{sT}, s{sSL}")
    a(f"s_lshl_b32 s{sT}, s{sT}, 3")
    a(f"s_add_u32 s{sT}, s{sT}, s{sWV}")
    a(f"s_mul_i32 s{sT}, s{sT}, {PST[0]}")
    a(f"s_add_u32 s{sT}, s{sT}, {PBUF}")
    a("v_lshlrev_b32 v7, 4, v1")
    a.wait_lg_all()
    OWN = opt.get('own', '1') == '1'
    a(f"s_mul_i32 s{sT}, s{sRB}, 7")
    a(f"s_add_u32 s{sT}, s{sT}, s{sSL}")
    a(f"s_lshl_b32 s{sT}, s{sT}, 3")
    a(f"s_add_u32 s{sT}, s{sT}, s{sWV}")
    a(f"s_mul_i32 s{sT}, s{sT}, {PST[0]}")
    a(f"s_add_u32 s{sTMP}, s{sT}, {PBUF}")
    if OWN:
        a(f"s_mul_i32 s{sT}, s{sSL}, {RING}")
        a(f"s_add_u32 s{sT2}, s{sT}, {P}")
        a(f"s_sub_u32 s{sT}, s{sT}, {4*RING - Y}")
        a(f"s_cmp_lt_u32 s{sSL}, 4")
        a(f"s_cselect_b32 s{sT}, s{sT2}, s{sT}")
        a(f"s_lshl_b32 s{sT2}, s{sWV}, 10")
        a(f"s_add_u32 s{sT}, s{sT}, s{sT2}")
        a(f"v_add_u32 v30, s{sT}, v7")
    spin(a, 36, 1)
    stamp(a, 17)
    a.vm = ['x'] * 10
    nglob = 6 if OWN else 7
    for i in range(nglob):
        if OWN:
            a(f"s_cmp_ge_u32 {i}, s{sSL}")
            a(f"s_cselect_b32 s{sT}, {i+1}, {i}")
            a(f"s_lshl_b32 s{sT}, s{sT}, 10")
            a(f"s_add_u32 s{sT}, s{sT}, s{sTMP}")
        else:
            a(f"s_add_u32 s{sT}, s{sTMP}, {1024*i}")
        a.vmem(f"buffer_load_dwordx4 {vr(32+4*i,4)}, v7, s[{SWS}:{SWS+3}], s{sT} offen sc1", ('p', i))
    if OWN:
        if int(opt.get('cdone', 7)) < 7:
            spin(a, 32, 7)
        a.lds("ds_read_b128 v[56:59], v30", 'own')
    a.wait_vm('x')
    a("v_lshlrev_b32 v24, 16, v24")
    a("v_lshlrev_b32 v25, 16, v25")
    for e in range(8):
        mu = 64 + 4 * (e >> 2) + (e & 3)
        r1 = 72 + 4 * (e >> 2) + (e & 3)
        a(f"v_lshlrev_b32 v26, 16, v{16+e}")
        a(f"v_sub_f32 v27, v26, v{mu}")
        a(f"v_add_f32 v{80+e}, v25, v26")
        a(f"v_mul_f32 v27, v27, v{r1}")
        a(f"v_fmac_f32 v{80+e}, v27, v24")
    order = ([6] + list(range(6))) if OWN else list(range(7))
    for n_, s_ in enumerate(order):
        if OWN and s_ == 6:
            a.wait_lg('own')
        else:
            a.wait_vm(('p', s_))
        last = n_ == 6
        if last: stamp(a, 18)
        for d in range(4):
            r = 32 + 4 * s_ + d
            a(f"v_lshlrev_b32 v28, 16, v{r}")
            a(f"v_and_b32 v29, 0xffff0000, v{r}")
            a(f"v_add_f32 v{80+2*d}, v{80+2*d}, v28")
            a(f"v_add_f32 v{81+2*d}, v{81+2*d}, v29")
            if last:
                sc = "sc1" if opt.get('osc', '0') == '1' else ""
                for e in (2 * d, 2 * d + 1):
                    if (e & 3) < 3:
                        a(f"buffer_store_dword v{80+e}, v{12 if e < 4 else 13}, s[{SA}:{SA+3}], 0 offen offset:{1792*(e&3)} {sc}")
                    else:
                        a(f"buffer_store_dword v{80+e}, v{14 if e < 4 else 15}, s[{SA}:{SA+3}], 0 offen offset:1792 {sc}")


def dump_lds(a, base, nbytes):
    a("s_lshl_b32 s90, s2, 16")
    a("s_add_u32 s90, s90, 0x800000")
    a("v_lshlrev_b32 v2, 4, v0")
    n = (nbytes + 8191) // 8192
    for i in range(n):
        a(f"v_add_u32 v3, {base + 8192*i}, v2")
        a("ds_read_b128 v[4:7], v3")
        a("s_waitcnt lgkmcnt(0)")
        a(f"v_add_u32 v3, {8192*i}, v2")
        a(f"buffer_store_dwordx4 v[4:7], v3, s[{SWS}:{SWS+3}], s90 offen")
        a("s_waitcnt vmcnt(0)")


def dump_regs(a, base, n):
    a("s_lshl_b32 s90, s2, 3")
    a(f"s_add_u32 s90, s90, s{sWV}")
    a("s_lshl_b32 s90, s90, 14")
    a("s_add_u32 s90, s90, 0x800000")
    a("v_lshlrev_b32 v2, 2, v1")
    a("s_nop 15")
    for i in range(n):
        a(f"buffer_store_dword v{base+i}, v2, s[{SWS}:{SWS+3}], s90 offen")
        a("s_add_u32 s90, s90, 256")
    a("s_waitcnt vmcnt(0)")


def gen_k2(opt):
    a = Asm()
    a("s_cmp_ge_u32 s2, 256")
    a("s_cbranch_scc1 K2_END")
    if opt.get('span'):
        a("s_memrealtime s[64:65]")
    if opt.get('k2prof'): a("s_memtime s[78:79]")
    a("s_load_dwordx2 s[4:5], s[0:1], 0")
    a("s_load_dwordx2 s[6:7], s[0:1], 64")
    a("s_load_dwordx4 s[8:11], s[0:1], 104")
    a("s_load_dwordx2 s[12:13], s[0:1], 128")
    a("v_lshrrev_b32 v2, 6, v0")
    a("v_and_b32 v1, 63, v0")
    a("v_readfirstlane_b32 s40, v2")
    a("v_and_b32 v3, 31, v1")
    a("v_lshrrev_b32 v4, 5, v1")
    a("v_lshlrev_b32 v7, 4, v1")
    a("s_mul_i32 s41, s2, 7")
    a("s_add_u32 s41, s41, s40")
    a("s_mul_hi_u32 s39, s41, 0x4924925")
    a("s_mul_i32 s42, s39, 56")
    a("s_sub_u32 s42, s41, s42")
    a("s_lshr_b32 s38, s42, 3")
    a("s_and_b32 s40, s42, 7")
    a("s_mul_i32 s46, s41, 7168")
    a(f"s_add_u32 s46, s46, {PBUF}")
    a("s_lshr_b32 s41, s40, 2")
    a("s_bfe_u32 s42, s40, 0x10001")
    a("s_and_b32 s43, s40, 1")
    a("s_lshl_b32 s44, s38, 6")
    a("s_lshl_b32 s45, s42, 5")
    a("s_add_u32 s44, s44, s45")
    a("v_add_u32 v5, s44, v3")
    a("s_lshl_b32 s45, s39, 6")
    a("s_lshl_b32 s46, s46, 0") if False else None
    a("s_lshl_b32 s47, s41, 5")
    a("s_add_u32 s45, s45, s47")
    a("s_lshl_b32 s47, s43, 4")
    a("s_add_u32 s45, s45, s47")
    a("v_lshl_add_u32 v6, v4, 2, s45")
    a("v_mul_u32_u24 v8, 896, v6")
    a("v_lshl_add_u32 v8, v5, 1, v8")
    a(f"v_add_u32 v9, {896*8}, v8")
    a("v_lshlrev_b32 v10, 3, v6")
    a("v_lshlrev_b32 v11, 1, v5")
    a("v_mul_u32_u24 v12, 1792, v6")
    a("v_lshl_add_u32 v12, v5, 2, v12")
    a(f"v_add_u32 v13, {1792*8}, v12")
    a(f"v_add_u32 v28, {1792*2}, v12")
    a(f"v_add_u32 v29, {1792*2}, v13")
    a(f"s_mov_b32 s47, {STATS}")
    a("s_waitcnt lgkmcnt(0)")
    if opt.get('k2prof'): a("s_memtime s[66:67]")
    srd(a, 56, 12, WS_SIZE)
    srd(a, 48, 4, 2048 * 896)
    a.vmem("global_load_ushort v24, v11, s[6:7]", 'x')
    a.vmem("global_load_ushort v25, v11, s[8:9]", 'x')
    a.vmem("buffer_load_dwordx4 v[64:67], v10, s[56:59], s47 offen", 'x')
    a.vmem("buffer_load_dwordx4 v[68:71], v10, s[56:59], s47 offen offset:16", 'x')
    a.vmem("buffer_load_dwordx4 v[72:75], v10, s[56:59], s47 offen offset:64", 'x')
    a.vmem("buffer_load_dwordx4 v[76:79], v10, s[56:59], s47 offen offset:80", 'x')
    for e in range(8):
        a.vmem(f"buffer_load_ushort v{16+e}, v{8 if e < 4 else 9}, s[48:51], 0 offen offset:{896*(e&3)}", 'x')
    for s_ in range(7):
        a.vmem(f"buffer_load_dwordx4 {vr(32+4*s_,4)}, v7, s[56:59], s46 offen", ('p', s_))
        a("s_add_u32 s46, s46, 1024")
    srd(a, 52, 10, 2048 * 1792)
    a.wait_vm('x')
    if opt.get('k2prof'): a("s_memtime s[72:73]")
    a("v_lshlrev_b32 v24, 16, v24")
    a("v_lshlrev_b32 v25, 16, v25")
    for e in range(8):
        m1 = 64 + 8 * (e >> 2) + 2 * (e & 3)
        a(f"v_lshlrev_b32 v26, 16, v{16+e}")
        a(f"v_sub_f32 v27, v26, v{m1}")
        a(f"v_add_f32 v{80+e}, v25, v26")
        a(f"v_mul_f32 v27, v27, v{m1+1}")
        a(f"v_fmac_f32 v{80+e}, v27, v24")
    for s_ in range(7):
        a.wait_vm(('p', s_))
        if opt.get('k2prof') and s_ in (0, 6): a(f"s_memtime s[{68 if s_ == 0 else 70}:{69 if s_ == 0 else 71}]")
        for d in range(4):
            r = 32 + 4 * s_ + d
            a(f"v_lshlrev_b32 v14, 16, v{r}")
            a(f"v_and_b32 v15, 0xffff0000, v{r}")
            a(f"v_add_f32 v{80+2*d}, v{80+2*d}, v14")
            a(f"v_add_f32 v{81+2*d}, v{81+2*d}, v15")
            if s_ == 6:
                sc = "sc1" if opt.get('k2sc', '0') == '1' else ""
                for e in (2 * d, 2 * d + 1):
                    if (e & 3) < 3:
                        a(f"buffer_store_dword v{80+e}, v{12 if e < 4 else 13}, s[52:55], 0 offen offset:{1792*(e&3)} {sc}")
                    else:
                        a(f"buffer_store_dword v{80+e}, v{28 if e < 4 else 29}, s[52:55], 0 offen offset:1792 {sc}")
    if opt.get('k2prof'):
        a("s_memtime s[74:75]")
        a("s_waitcnt vmcnt(0)")
        a("s_memtime s[76:77]")
        a("v_readfirstlane_b32 s40, v2")
        a("s_lshl_b32 s62, s2, 3")
        a("s_add_u32 s62, s62, s40")
        a("s_lshl_b32 s62, s62, 5")
        a("s_add_u32 s62, s62, 0xF90000")
        a("s_waitcnt lgkmcnt(0)")
        a("v_mov_b32 v3, 0")
        for i_, r_ in enumerate((78, 66, 68, 70, 72, 74, 76)):
            a(f"v_mov_b32 v30, s{r_}")
            a(f"buffer_store_dword v30, v3, s[56:59], s62 offen offset:{4*i_}")
    if opt.get('span'):
        a("s_waitcnt vmcnt(0)")
        a("s_memrealtime s[60:61]")
        a("v_readfirstlane_b32 s40, v2")
        a("s_lshl_b32 s62, s2, 3")
        a("s_add_u32 s62, s62, s40")
        a("s_lshl_b32 s62, s62, 2")
        a("s_add_u32 s62, s62, 0xF81000")
        a("s_waitcnt lgkmcnt(0)")
        a("v_mov_b32 v2, s60")
        a("v_mov_b32 v3, 0")
        a("s_mov_b64 exec, 1")
        a("buffer_store_dword v2, v3, s[56:59], s62 offen")
        a("v_mov_b32 v2, s64")
        a("s_add_u32 s62, s62, 0x8000")
        a("buffer_store_dword v2, v3, s[56:59], s62 offen")
    a.label("K2_END")
    a("s_endpgm")
    return a


def desc(name, vgpr, sgpr=102):
    return f""".p2align 6
.amdhsa_kernel {name}
  .amdhsa_next_free_vgpr {vgpr}
  .amdhsa_next_free_sgpr {sgpr}
  .amdhsa_accum_offset {vgpr}
  .amdhsa_group_segment_fixed_size 0
  .amdhsa_kernarg_size 136
  .amdhsa_user_sgpr_count 2
  .amdhsa_user_sgpr_kernarg_segment_ptr 1
  .amdhsa_system_sgpr_workgroup_id_x 1
.end_amdhsa_kernel
"""


DESC = """;
; Design (one launch, 256 workgroups of 8 waves, 160 KB LDS, generated by a script of my own):
;  * out = x + xn*Dskip + b2 + [hs | gelu(y2 W1 + b1)] * [C ; W2].  A workgroup owns 64 rows (rb) and one of 7 hidden slices
;  * waves 4..7 (G1): u = y2 B^T (16x16x32 MFMA), in-lane scan over 16 steps, block end state -> collector (tagged granules);
;    the collector turns the 32 end states of its slice into carry-ins; second pass gives hs (bf16) in LDS.
;  * weights stream through wave-private LDS rings by LDS-DMA; hand-offs between workgroups use sc1 stores/loads and
"""


def build(opt):
    ref = open("parallel_sum__ssm_conv_s5__mixer_channel_mlp__prompt.s.ref").read() if opt.get('hdr', True) else ""
    hdr = [l for l in ref.split("\n") if l.startswith(";") and "@launch" not in l and "Override launch" not in l and "grid=ceil" not in l]
    out = "\n".join(hdr) + "\n"
    out += f"; @launch grid=(256,1,1) block=(512,1,1) lds={LDS_BYTES}\n" + DESC
    out += '.amdgcn_target "amdgcn-amd-amdhsa--gfx950"\n.text\n'
    k1 = gen_k1(opt)
    kn = KNAME + "_kernel"
    out += f".globl {kn}\n.p2align 8\n.type {kn},@function\n{kn}:\n" + k1.text().replace("k1_kernel", kn)
    out += '.section .rodata,"a"\n' + desc(kn, 256)
    if opt.get('align', '1') == '1':
        import align
        out, nw, nn = align.align(out)
    return out


if __name__ == "__main__":
    opt = {}
    outp = sys.argv[1]
    for kv in sys.argv[2:]:
        k, v = kv.split("=")
        opt[k] = v
    open(outp, "w").write(build(opt))
```
